```python
import torch

def _softmax(x, axis=-1):
    return torch.softmax(x, dim=axis)

def _gelu(x):
    return torch.nn.functional.gelu(x, approximate='tanh')

def _silu(x):
    return torch.nn.functional.silu(x)

def _sigmoid(x):
    return torch.sigmoid(x)

def _layernorm(x, axis=-1, eps=1e-05):
    m = x.mean(dim=axis, keepdim=True)
    v = x.var(dim=axis, keepdim=True, unbiased=False)
    return (x - m) / torch.sqrt(v + eps)

def _scatter_add(tgt, idx, src, axis=0):
    return tgt.clone().index_add_(axis, idx, src)

def _segment_sum(src, seg, n):
    out = torch.zeros((n,) + src.shape[1:], dtype=src.dtype)
    return out.index_add_(0, seg, src)

def _pad(x, pw):
    flat = tuple((v for pair in reversed(pw) for v in pair))
    return torch.nn.functional.pad(x, flat)
kernel_name = 'standalone__kv_cache_quant_pre_rope_vs_post_rope__prompt'

def setup_inputs():

    _w = lambda a: (lambda t: t.to(torch.bfloat16) if t.is_floating_point() else t)(torch.as_tensor(a))
    B, Sq, Skv = (1, 2048, 2048)
    H, Dh0 = (8, 256)
    G = -1 if -1 > 0 else Dh0
    G = max(2, G // 2 * 2)
    Dh = max(G, Dh0 // G * G)
    Skv = max(Skv, Sq)
    ng = Dh // G
    bits = 8 if 8 > 1 else 4
    bits = max(2, min(8, bits))
    qmax = (1 << bits) - 1
    half = Dh // 2
    inv = 1.0 / 10000.0 ** (torch.arange(half) / max(1, half))
    ang_k = torch.arange(Skv)[:, None] * inv[None, :]
    ang_q = torch.arange(Skv - Sq, Skv)[:, None] * inv[None, :]
    kc = torch.cat([torch.cos(ang_k), torch.cos(ang_k)], dim=-1)
    ks = torch.cat([torch.sin(ang_k), torch.sin(ang_k)], dim=-1)
    qc = torch.cat([torch.cos(ang_q), torch.cos(ang_q)], dim=-1)
    qs = torch.cat([torch.sin(ang_q), torch.sin(ang_q)], dim=-1)
    qk_i = torch.randint(0, qmax + 1, (B, H, Skv, Dh)).to(torch.int32)
    qv_i = torch.randint(0, qmax + 1, (B, H, Skv, Dh)).to(torch.int32)
    ksc = torch.abs((lambda *s: torch.randn(*s, dtype=torch.bfloat16) * 0.05)(B, H, Skv, ng)) * 0.1 + 0.01
    kzp = torch.full((B, H, Skv, ng), qmax / 2.0)
    vsc = torch.abs((lambda *s: torch.randn(*s, dtype=torch.bfloat16) * 0.05)(B, H, Skv, ng)) * 0.1 + 0.01
    vzp = torch.full((B, H, Skv, ng), qmax / 2.0)
    return {'q': _w((lambda *s: torch.randn(*s, dtype=torch.bfloat16) * 0.8)(B, H, Sq, Dh) * 0.5), 'qk': _w(qk_i), 'k_scales': _w(ksc), 'k_zeros': _w(kzp), 'qv': _w(qv_i), 'v_scales': _w(vsc), 'v_zeros': _w(vzp), 'q_cos': _w(qc), 'q_sin': _w(qs), 'k_cos': _w(kc), 'k_sin': _w(ks)}

def reference(q, qk, k_scales, k_zeros, qv, v_scales, v_zeros, q_cos, q_sin, k_cos, k_sin):
    B, H, Sq, Dh = q.shape
    ng = k_scales.shape[-1]
    G = Dh // ng
    half = Dh // 2
    ks = (lambda x, n, axis: torch.repeat_interleave(x, n, dim=axis))(k_scales, G, axis=-1)
    kz = (lambda x, n, axis: torch.repeat_interleave(x, n, dim=axis))(k_zeros, G, axis=-1)
    k = ((lambda x, dt: x.to(dt))(qk, q.dtype) - kz) * ks
    vs = (lambda x, n, axis: torch.repeat_interleave(x, n, dim=axis))(v_scales, G, axis=-1)
    vz = (lambda x, n, axis: torch.repeat_interleave(x, n, dim=axis))(v_zeros, G, axis=-1)
    v = ((lambda x, dt: x.to(dt))(qv, q.dtype) - vz) * vs
    k1 = k[..., :half].clone()
    k2 = k[..., half:].clone()
    krh = torch.concatenate([-k2, k1], axis=-1)
    kr = k * k_cos[None, None, :, :] + krh * k_sin[None, None, :, :]
    q1 = q[..., :half].clone()
    q2 = q[..., half:].clone()
    qrh = torch.concatenate([-q2, q1], axis=-1)
    qr = q * q_cos[None, None, :, :] + qrh * q_sin[None, None, :, :]
    logits = torch.einsum('bhqd,bhkd->bhqk', qr, kr) * float(Dh) ** (-0.5)
    attn = _softmax(logits, axis=-1)
    out = torch.einsum('bhqk,bhkd->bhqd', attn, v)
    return out
```

```python
import sys, os, argparse, math, struct

NAME = "standalone__kv_cache_quant_pre_rope_vs_post_rope__prompt"

def f32bits(x):
    return struct.unpack("<I", struct.pack("<f", x))[0]

class Asm:
    def __init__(self):
        self.lines = []
    def __call__(self, s):
        for l in s.split("\n"):
            l = l.strip()
            if l:
                self.lines.append("    " + l)
    def label(self, l):
        self.lines.append(l + ":")
    def c(self, s):
        self.lines.append("    ; " + s)
    def text(self):
        return "\n".join(self.lines) + "\n"

def vr(b, n=1):
    return f"v{b}" if n == 1 else f"v[{b}:{b+n-1}]"
def ar(b, n=1):
    return f"a{b}" if n == 1 else f"a[{b}:{b+n-1}]"
def sr(b, n=1):
    return f"s{b}" if n == 1 else f"s[{b}:{b+n-1}]"

def make_srd(a, d, ptr, off_lo_expr_sreg, nbytes):
    if off_lo_expr_sreg is None:
        a(f"s_mov_b32 s{d}, s{ptr}")
        a(f"s_mov_b32 s{d+1}, s{ptr+1}")
    else:
        a(f"s_add_u32 s{d}, s{ptr}, s{off_lo_expr_sreg}")
        a(f"s_addc_u32 s{d+1}, s{ptr+1}, 0")
    a(f"s_mov_b32 s{d+2}, {nbytes}")
    a(f"s_mov_b32 s{d+3}, 0x20000")

def rnd2(a, x, y, tmp, smask):
    a(f"v_cvt_pk_bf16_f32 v{tmp}, v{x}, v{y}")
    a(f"v_lshlrev_b32 v{x}, 16, v{tmp}")
    a(f"v_and_b32 v{y}, s{smask}, v{tmp}")

KFS = 1056
KHS = 528

def gen_prep(a, opt):
    a.label("prep_kernel")
    a("s_cmp_ge_u32 s2, 512")
    a("s_cbranch_scc1 L_prep_done")
    a("s_load_dwordx4 s[36:39], s[0:1], 8")
    a("s_load_dwordx4 s[40:43], s[0:1], 24")
    a("s_load_dwordx4 s[44:47], s[0:1], 40")
    a("s_load_dwordx4 s[48:51], s[0:1], 72")
    a("s_load_dwordx2 s[52:53], s[0:1], 104")
    a("s_and_b32 s3, s2, 7")
    a("s_lshr_b32 s4, s2, 3")
    a("v_and_b32 v1, 63, v0")
    a("v_lshrrev_b32 v2, 6, v0")
    a("v_and_b32 v3, 31, v0")
    a("v_bfe_u32 v4, v0, 5, 1")
    a("v_readfirstlane_b32 s5, v2")
    a("s_mov_b32 s72, 0xffff0000")
    a("s_lshl_b32 s6, s3, 21")
    a("s_lshl_b32 s7, s4, 15")
    a("s_add_u32 s6, s6, s7")
    a("s_lshl_b32 s7, s4, 14")
    a("s_lshl_b32 s54, s3, 12")
    a("s_lshl_b32 s55, s4, 6")
    a("s_add_u32 s54, s54, s55")
    a("s_lshl_b32 s55, s3, 20")
    a("s_add_u32 s73, s55, s7")
    a("s_lshr_b32 s74, s4, 2")
    a("s_lshl_b32 s74, s74, 16")
    a("s_add_u32 s74, s74, s55")
    a("s_add_u32 s74, s74, 0x800000")
    a("s_mov_b32 s75, 4096")
    a("s_mov_b32 s76, 8192")
    a("s_mov_b32 s77, 16384")
    a("s_mov_b32 s78, 24576")
    a("v_lshl_add_u32 v5, v2, 3, v4")
    a("v_lshlrev_b32 v6, 10, v5")
    a("v_lshl_add_u32 v6, v3, 4, v6")
    a("v_lshlrev_b32 v7, 9, v5")
    a("v_lshl_add_u32 v7, v3, 3, v7")
    a("v_lshlrev_b32 v176, 1, v5")
    a("v_lshlrev_b32 v177, 12, v4")
    a("v_lshl_add_u32 v177, v2, 8, v177")
    a("v_lshl_add_u32 v177, v3, 3, v177")
    a("v_lshlrev_b32 v178, 3, v4")
    a("s_waitcnt lgkmcnt(0)")
    make_srd(a, 8, 36, 6, 32768)
    make_srd(a, 12, 48, 7, 16384)
    make_srd(a, 16, 50, 7, 16384)
    make_srd(a, 20, 38, 54, 64)
    make_srd(a, 24, 40, 54, 64)
    make_srd(a, 28, 42, 6, 32768)
    make_srd(a, 56, 44, 54, 64)
    make_srd(a, 60, 46, 54, 64)
    make_srd(a, 64, 52, 73, 16384)
    make_srd(a, 68, 52, 74, 65536)
    for r in range(4):
        so = "0" if r < 2 else "s75"
        io = (r & 1) * 2048
        b = 8 + r * 8
        a(f"buffer_load_dwordx4 v[{b}:{b+3}], v6, s[8:11], {so} offen offset:{io}")
        a(f"buffer_load_dwordx4 v[{b+4}:{b+7}], v6, s[8:11], {so} offen offset:{io+512}")
        b = 40 + r * 8
        a(f"buffer_load_dwordx2 v[{b}:{b+1}], v7, s[12:15], 0 offen offset:{r*1024}")
        a(f"buffer_load_dwordx2 v[{b+2}:{b+3}], v7, s[12:15], 0 offen offset:{r*1024+256}")
        a(f"buffer_load_dwordx2 v[{b+4}:{b+5}], v7, s[16:19], 0 offen offset:{r*1024}")
        a(f"buffer_load_dwordx2 v[{b+6}:{b+7}], v7, s[16:19], 0 offen offset:{r*1024+256}")
        a(f"buffer_load_ushort v{72+r}, v176, s[20:23], 0 offen offset:{r*4}")
        a(f"buffer_load_ushort v{76+r}, v176, s[24:27], 0 offen offset:{r*4}")
    soffs = ["0", "s76", "s77", "s78"]
    for m in range(2):
        for j in range(8):
            b = 80 + (m * 8 + j) * 2
            a(f"buffer_load_dwordx2 v[{b}:{b+1}], v177, s[28:31], {soffs[m*2+(j>>2)]} offen offset:{(j&3)*1024}")
    for g in range(4):
        a(f"buffer_load_dwordx2 v[{112+2*g}:{113+2*g}], v178, s[56:59], 0 offen offset:{g*16}")
        a(f"buffer_load_dwordx2 v[{120+2*g}:{121+2*g}], v178, s[60:63], 0 offen offset:{g*16}")
    nV = 24
    a("v_lshrrev_b32 v179, 2, v3")
    a(f"v_mul_u32_u24 v179, {KFS}, v179")
    a("v_bfe_u32 v180, v3, 1, 1")
    a(f"v_mul_u32_u24 v180, {KHS}, v180")
    a("v_add_u32 v179, v179, v180")
    a("v_and_b32 v180, 1, v3")
    a("v_lshl_add_u32 v179, v180, 3, v179")
    a("v_lshl_add_u32 v179, v5, 4, v179")
    T = 128
    for r in range(4):
        a(f"s_waitcnt vmcnt({(3-r)*8 + nV})")
        u = 8 + r * 8
        cs = 40 + r * 8
        a(f"v_lshlrev_b32 v{72+r}, 16, v{72+r}")
        a(f"v_lshlrev_b32 v{76+r}, 16, v{76+r}")
        for c in range(8):
            a(f"v_cvt_f32_i32 v{u+c}, v{u+c}")
        for c in range(8):
            a(f"v_sub_f32 v{u+c}, v{u+c}, v{76+r}")
        for c in range(0, 8, 2):
            rnd2(a, u + c, u + c + 1, T, 72)
        for c in range(8):
            a(f"v_mul_f32 v{u+c}, v{u+c}, v{72+r}")
        for c in range(0, 8, 2):
            rnd2(a, u + c, u + c + 1, T, 72)
        for k in range(4):
            src = cs + 2 * k
            dst = T + 1 + 4 * k
            a(f"v_lshlrev_b32 v{dst}, 16, v{src}")
            a(f"v_and_b32 v{dst+1}, s72, v{src}")
            a(f"v_lshlrev_b32 v{dst+2}, 16, v{src+1}")
            a(f"v_and_b32 v{dst+3}, s72, v{src+1}")
        cA, cB, sA, sB = T + 1, T + 5, T + 9, T + 13
        for c in range(4):
            a(f"v_mul_f32 v{cA+c}, v{u+c}, v{cA+c}")
            a(f"v_mul_f32 v{sA+c}, v{u+4+c}, v{sA+c}")
            a(f"v_mul_f32 v{cB+c}, v{u+4+c}, v{cB+c}")
            a(f"v_mul_f32 v{sB+c}, v{u+c}, v{sB+c}")
        for base in (cA, cB, sA, sB):
            rnd2(a, base, base + 1, T, 72)
            rnd2(a, base + 2, base + 3, T, 72)
        for c in range(4):
            a(f"v_sub_f32 v{cA+c}, v{cA+c}, v{sA+c}")
            a(f"v_add_f32 v{cB+c}, v{cB+c}, v{sB+c}")
        o = T + 18
        a(f"v_cvt_pk_bf16_f32 v{o}, v{cA}, v{cA+1}")
        a(f"v_cvt_pk_bf16_f32 v{o+1}, v{cA+2}, v{cA+3}")
        a(f"v_cvt_pk_bf16_f32 v{o+2}, v{cB}, v{cB+1}")
        a(f"v_cvt_pk_bf16_f32 v{o+3}, v{cB+2}, v{cB+3}")
        a(f"ds_write_b64 v179, v[{o}:{o+1}] offset:{r*32}")
        a(f"ds_write_b64 v179, v[{o+2}:{o+3}] offset:{r*32 + 8*KFS}")
    a("s_waitcnt vmcnt(0)")
    a("s_and_b32 s79, s4, 3")
    a("s_sub_u32 s79, s79, s5")
    a("s_lshl_b32 s79, s79, 1")
    a("s_add_u32 s80, s79, 1")
    a("s_and_b32 s79, s79, 7")
    a("s_and_b32 s80, s80, 7")
    a("s_lshl_b32 s79, s79, 11")
    a("s_lshl_b32 s80, s80, 11")
    a("s_lshl_b32 s81, s5, 14")
    a("s_add_u32 s79, s79, s81")
    a("s_add_u32 s80, s80, s81")
    a("v_lshlrev_b32 v181, 4, v1")
    for m in range(2):
        for g2 in range(2):
            g = m * 2 + g2
            for (src, dst) in ((112 + 2 * g, T + 4 * g2), (120 + 2 * g, T + 8 + 4 * g2)):
                a(f"v_lshlrev_b32 v{dst}, 16, v{src}")
                a(f"v_and_b32 v{dst+1}, s72, v{src}")
                a(f"v_lshlrev_b32 v{dst+2}, 16, v{src+1}")
                a(f"v_and_b32 v{dst+3}, s72, v{src+1}")
        for j in range(8):
            b = 80 + (m * 8 + j) * 2
            a(f"v_cvt_f32_i32 v{b}, v{b}")
            a(f"v_cvt_f32_i32 v{b+1}, v{b+1}")
            a(f"v_sub_f32 v{b}, v{b}, v{T+8+j}")
            a(f"v_sub_f32 v{b+1}, v{b+1}, v{T+8+j}")
            rnd2(a, b, b + 1, T + 16, 72)
            a(f"v_mul_f32 v{b}, v{b}, v{T+j}")
            a(f"v_mul_f32 v{b+1}, v{b+1}, v{T+j}")
        for e in range(2):
            o = T + 20 + 4 * e + 8 * m
            for jj in range(4):
                b0 = 80 + (m * 8 + 2 * jj) * 2 + e
                b1 = 80 + (m * 8 + 2 * jj + 1) * 2 + e
                a(f"v_cvt_pk_bf16_f32 v{o+jj}, v{b0}, v{b1}")
            a(f"buffer_store_dwordx4 v[{o}:{o+3}], v181, s[68:71], s{79+m} offen offset:{e*1024}")
    a("s_waitcnt lgkmcnt(0)")
    a("s_barrier")
    a(f"v_mul_u32_u24 v182, {4*KFS}, v2")
    a(f"v_mul_u32_u24 v183, {KHS}, v4")
    a("v_add_u32 v182, v182, v183")
    a("v_lshl_add_u32 v182, v3, 4, v182")
    for k in range(4):
        a(f"ds_read_b128 v[{8+4*k}:{11+4*k}], v182 offset:{k*KFS}")
    a("v_lshl_add_u32 v183, v2, 12, v181")
    for k in range(4):
        a(f"s_waitcnt lgkmcnt({3-k})")
        a(f"buffer_store_dwordx4 v[{8+4*k}:{11+4*k}], v183, s[64:67], 0 offen offset:{k*1024}")
    a.label("L_prep_done")
    a("s_endpgm")

def kd(name, nvgpr, nsgpr, accum):
    return f""".section .rodata,"a"
.p2align 6
.amdhsa_kernel {name}
  .amdhsa_next_free_vgpr {nvgpr}
  .amdhsa_next_free_sgpr {nsgpr}
  .amdhsa_accum_offset {accum}
  .amdhsa_group_segment_fixed_size 0
  .amdhsa_kernarg_size 112
  .amdhsa_user_sgpr_count 2
  .amdhsa_user_sgpr_kernarg_segment_ptr 1
  .amdhsa_system_sgpr_workgroup_id_x 1
  .amdhsa_float_denorm_mode_32 3
.end_amdhsa_kernel
"""

V_OFF = 1
V_PW = 5
V_PR = 6
V_MC = 9
V_L = 11
V_T = 13
V_S = 16
V_PO = 80
V_PF = 112
V_V = 160
V_X = 224
A_O = 0
A_Q = 64
A_K = 192

LDS_Q = 0
LDS_P = 34816
LDS_L = LDS_P + 32768
LDS_M = LDS_L + 2048
LDS_TOTAL = LDS_M + 2048

S_KSRD = 4
S_VSRD = 8
S_QSRD = 12
S_CSRD = 16
S_SSRD = 20
S_OSRD = 24
S_KOFF = 28
S_VOFF = 29
S_I = 30
S_ROT = 31
S_C = 32
S_W = 33
S_MASK = 34
S_KUSE = 35

class Item:
    __slots__ = ("kind", "text", "tag", "cost")
    def __init__(self, kind, text="", tag=None, cost=4):
        self.kind = kind; self.text = text; self.tag = tag; self.cost = cost

def I_valu(t, cost=4): return Item("valu", t, cost=cost)
def I_raw(t): return Item("raw", t, cost=0)
def I_salu(t): return Item("salu", t, cost=4)
def I_vm(t, tag): return Item("vm", t, tag, cost=4)
def I_lds(t, tag): return Item("lds", t, tag, cost=4)
def I_wvm(tag): return Item("wvm", tag=tag, cost=0)
def I_wlds(tag): return Item("wlds", tag=tag, cost=0)
def I_mfma(t): return Item("mfma", t, cost=8)

def kload(tile, s, soff):
    return I_vm(f"buffer_load_dwordx4 a[{A_K+4*s}:{A_K+4*s+3}], v{V_OFF+(s>>2)}, s[{S_KSRD}:{S_KSRD+3}], s{soff} offen offset:{(s&3)*1024}", ("K", tile, s))
def vload(tile, f, soff):
    return I_vm(f"buffer_load_dwordx4 v[{V_V+4*f}:{V_V+4*f+3}], v{V_OFF+(f>>2)}, s[{S_VSRD}:{S_VSRD+3}], s{soff} offen offset:{(f&3)*1024}", ("V", tile, f))

def softmax_stream(i, opt):
    par = i & 1
    S = V_S + 32 * par
    PO = V_PO + 16 * par
    pairs = []
    for qb in range(2):
        for m in range(2):
            for jj in range(4):
                r = S + qb * 16 + m * 8 + jj * 2
                pairs.append((qb, m, jj, r))
    out = []
    def stage1(k):
        qb, m, jj, r = pairs[k]
        return [I_valu(f"v_fma_f32 v{r}, v{r}, s{S_C}, -v{V_MC+qb}"),
                I_valu(f"v_fma_f32 v{r+1}, v{r+1}, s{S_C}, -v{V_MC+qb}")], \
               [I_valu(f"v_exp_f32 v{r}, v{r}", 8), I_valu(f"v_exp_f32 v{r+1}, v{r+1}", 8)]
    def stage2(k):
        qb, m, jj, r = pairs[k]
        l = [I_valu(f"v_add_f32 v{V_L+qb}, v{V_L+qb}, v{r}"),
             I_valu(f"v_add_f32 v{V_L+qb}, v{V_L+qb}, v{r+1}"),
             I_valu(f"v_cvt_pk_bf16_f32 v{PO+(qb*2+m)*4+jj}, v{r}, v{r+1}")]
        w = []
        if jj == 3:
            fr = qb * 2 + m
            w = [I_lds(f"ds_write_b128 v{V_PW}, v[{PO+fr*4}:{PO+fr*4+3}] offset:{par*16384+fr*1024}", ("PW", i, fr))]
        return l, w
    n = len(pairs)
    for k in range(n + 1):
        f = e = s2 = w = None
        if k < n:
            f, e = stage1(k)
        if k >= 1:
            s2, w = stage2(k - 1)
        if f and s2:
            out += [f[0], f[1], s2[0], e[0], s2[1], e[1], s2[2]] + w
        elif f:
            out += [f[0], f[1], e[0], e[1]]
        else:
            out += [I_raw("s_nop 0")] + s2 + w
    return out

def build_iter(i, opt, NT=16):
    has_qk = (i + 1) < NT
    has_sm = 0 <= i < NT
    has_pv = 1 <= i <= NT
    mf = []
    if has_qk:
        t = i + 1
        S = V_S + 32 * (t & 1)
        for s in range(16):
            for qb in range(2):
                d = f"v[{S+qb*16}:{S+qb*16+15}]"
                c = "0" if s == 0 else d
                pre = []
                if qb == 0 and (s % opt.wgrp == 0):
                    pre.append(I_wvm(("K", t, min(15, s + opt.wgrp - 1))))
                post = []
                if qb == 1 and (opt.loop_kloads_always or t + 1 < NT):
                    post.append(kload(t + 1, s, S_KUSE))
                mf.append([pre, I_mfma(f"v_mfma_f32_32x32x16_bf16 {d}, a[{A_K+4*s}:{A_K+4*s+3}], a[{A_Q+(qb*16+s)*4}:{A_Q+(qb*16+s)*4+3}], {c}"), post])
    nqk = len(mf)
    if has_pv:
        t = i - 1
        par = t & 1
        for p in range(8):
            for e in range(2):
                f = 2 * p + e
                for qb in range(2):
                    o = A_O + (e * 2 + qb) * 16
                    if p < 2:
                        b = V_PO + 16 * par + (qb * 2 + p) * 4
                    else:
                        b = V_PF + ((p - 2) * 2 + qb) * 4
                    pre = []
                    if qb == 0 and (f % opt.wgrp == 0):
                        pre.append(I_wvm(("V", t, min(15, f + opt.wgrp - 1))))
                    if p >= 2 and e == 0 and qb == 0 and (p == 2 or not opt.one_lds_wait):
                        pre.append(I_wlds(("PR", t, 7 if opt.one_lds_wait else p, 1)))
                    post = []
                    if qb == 1 and t + 1 < NT:
                        post.append(vload(t + 1, f, S_VOFF))
                    mf.append([pre, I_mfma(f"v_mfma_f32_32x32x16_bf16 a[{o}:{o+15}], v[{V_V+4*f}:{V_V+4*f+3}], v[{b}:{b+3}], a[{o}:{o+15}]"), post])
    reads = []
    if has_pv:
        t = i - 1
        par = t & 1
        for p in range(2, 8):
            for qb in range(2):
                dst = V_PF + ((p - 2) * 2 + qb) * 4
                reads.append(I_lds(f"ds_read_b128 v[{dst}:{dst+3}], v{V_PR+(p>>1)-1} offset:{par*16384+(qb*2+(p&1))*1024}", ("PR", t, p, qb)))
    sm = softmax_stream(i, opt) if has_sm else []
    items = []
    head = []
    if has_qk:
        head.append(I_salu(f"s_add_u32 s{S_KOFF}, s{S_KOFF}, 0x10000"))
        head.append(I_salu(f"s_and_b32 s{S_KOFF}, s{S_KOFF}, 0xfffff"))
        head.append(I_salu(f"s_cmp_lt_u32 s{S_I}, {NT-2}"))
        head.append(I_salu(f"s_cselect_b32 s{S_KUSE}, s{S_KOFF}, 0x100000"))
    if has_pv:
        head.append(I_salu(f"s_add_u32 s{S_VOFF}, s{S_VOFF}, 0x10000"))
        head.append(I_salu(f"s_and_b32 s{S_VOFF}, s{S_VOFF}, 0xfffff"))
    n = len(mf)
    if n == 0:
        return head + reads + sm
    gaps = [[] for _ in range(n)]
    if nqk:
        for k, r in enumerate(reads):
            gaps[min(k, n - 1)].append(r)
    else:
        head = head + reads
    if sm:
        g0 = opt.sm_g0 if n == 64 else 0
        g1 = opt.sm_g1 if n == 64 else n - 1
        tot = sum(x.cost for x in sm)
        cum = 0
        for x in sm:
            g = g0 + int((cum / tot) * (g1 - g0 + 1))
            g = min(g, n - 1)
            gaps[g].append(x)
            cum += x.cost
    first = True
    for k, (pre, m, post) in enumerate(mf):
        items += pre
        items.append(m)
        if first:
            items += head
            first = False
        items += post
        items += gaps[k]
    return items

def resolve_waits(blocks):
    vmq = []; ldq = []
    res = {}
    for name, items in blocks:
        for idx, it in enumerate(items):
            if it.kind == "vm":
                vmq.append(it.tag)
            elif it.kind == "lds":
                ldq.append(it.tag)
            elif it.kind == "wvm":
                pos = max(k for k, t in enumerate(vmq) if t == it.tag)
                n = len(vmq) - 1 - pos
                res[(name, idx)] = min(res.get((name, idx), 63), n)
            elif it.kind == "wlds":
                if it.tag == "all":
                    n = 0
                else:
                    pos = max(k for k, t in enumerate(ldq) if t == it.tag)
                    n = len(ldq) - 1 - pos
                res[(name, idx)] = min(res.get((name, idx), 15), n)
    return res

def emit_block(a, name, items, waits):
    for idx, it in enumerate(items):
        if it.kind == "wvm":
            n = waits[(name, idx)]
            if n < 63:
                a(f"s_waitcnt vmcnt({n})")
        elif it.kind == "wlds":
            n = waits[(name, idx)]
            a(f"s_waitcnt lgkmcnt({min(n,15)})")
        else:
            a(it.text)

def rope_q_exact(a, src, out, T):
    M = S_MASK
    for t in range(4):
        ql, qh, cl, ch, sl, sh = (src + 4 * k + t for k in range(6))
        a0, a1, b0, b1 = T, T + 1, T + 2, T + 3
        x = T + 4
        tmp = T + 12
        a(f"v_lshlrev_b32 v{a0}, 16, v{ql}"); a(f"v_and_b32 v{a1}, s{M}, v{ql}")
        a(f"v_lshlrev_b32 v{b0}, 16, v{qh}"); a(f"v_and_b32 v{b1}, s{M}, v{qh}")
        a(f"v_lshlrev_b32 v{x}, 16, v{cl}"); a(f"v_and_b32 v{x+1}, s{M}, v{cl}")
        a(f"v_lshlrev_b32 v{x+2}, 16, v{sl}"); a(f"v_and_b32 v{x+3}, s{M}, v{sl}")
        a(f"v_lshlrev_b32 v{x+4}, 16, v{ch}"); a(f"v_and_b32 v{x+5}, s{M}, v{ch}")
        a(f"v_lshlrev_b32 v{x+6}, 16, v{sh}"); a(f"v_and_b32 v{x+7}, s{M}, v{sh}")
        a(f"v_mul_f32 v{x}, v{a0}, v{x}"); a(f"v_mul_f32 v{x+1}, v{a1}, v{x+1}")
        a(f"v_mul_f32 v{x+2}, v{b0}, v{x+2}"); a(f"v_mul_f32 v{x+3}, v{b1}, v{x+3}")
        a(f"v_mul_f32 v{x+4}, v{b0}, v{x+4}"); a(f"v_mul_f32 v{x+5}, v{b1}, v{x+5}")
        a(f"v_mul_f32 v{x+6}, v{a0}, v{x+6}"); a(f"v_mul_f32 v{x+7}, v{a1}, v{x+7}")
        for k in range(0, 8, 2):
            rnd2(a, x + k, x + k + 1, tmp, M)
        a(f"v_sub_f32 v{x}, v{x}, v{x+2}"); a(f"v_sub_f32 v{x+1}, v{x+1}, v{x+3}")
        a(f"v_add_f32 v{x+4}, v{x+4}, v{x+6}"); a(f"v_add_f32 v{x+5}, v{x+5}, v{x+7}")
        a(f"v_cvt_pk_bf16_f32 v{out+t}, v{x}, v{x+1}")
        a(f"v_cvt_pk_bf16_f32 v{out+4+t}, v{x+4}, v{x+5}")

def gen_attn(a, opt):
    NT = 16
    a.label("attn_kernel")
    a("s_cmp_ge_u32 s2, 256")
    a("s_cbranch_scc1 L_attn_done")
    a("s_load_dwordx2 s[36:37], s[0:1], 0")
    a("s_load_dwordx4 s[40:43], s[0:1], 56")
    a("s_load_dwordx2 s[44:45], s[0:1], 88")
    a("s_load_dwordx2 s[46:47], s[0:1], 104")
    a("s_and_b32 s38, s2, 7")
    a("s_lshr_b32 s39, s2, 3")
    a("v_and_b32 v16, 63, v0")
    a("v_lshrrev_b32 v17, 6, v0")
    a("v_and_b32 v18, 31, v0")
    a("v_bfe_u32 v19, v0, 5, 1")
    a(f"v_readfirstlane_b32 s{S_W}, v17")
    a(f"s_mov_b32 s{S_MASK}, 0xffff0000")
    a(f"s_mov_b32 s{S_C}, 0x{f32bits(math.log2(math.e)/16.0):08x}")
    if opt.rot:
        a(f"s_and_b32 s{S_ROT}, s39, 15")
    else:
        a(f"s_mov_b32 s{S_ROT}, 0")
    a(f"v_lshlrev_b32 v{V_OFF}, 4, v16")
    a(f"v_lshl_add_u32 v{V_OFF}, v17, 14, v{V_OFF}")
    for k in range(1, 4):
        a(f"v_add_u32 v{V_OFF+k}, {4096*k}, v{V_OFF}")
    a(f"v_lshlrev_b32 v20, 4, v16")
    a(f"v_add_u32 v20, {LDS_P}, v20")
    a(f"v_lshl_add_u32 v{V_PW}, v17, 12, v20")
    for t in range(1, 4):
        a(f"v_add_u32 v21, {t}, v17")
        a(f"v_and_b32 v21, 3, v21")
        a(f"v_lshl_add_u32 v{V_PR+t-1}, v21, 12, v20")
    a("v_lshrrev_b32 v22, 4, v16")
    a("v_and_b32 v23, 15, v16")
    a("v_lshl_add_u32 v24, v17, 4, v22")
    a("v_lshlrev_b32 v224, 9, v24")
    a("v_lshl_add_u32 v224, v23, 4, v224")
    a("v_lshrrev_b32 v25, 1, v17")
    a(f"v_mul_u32_u24 v225, {16*KFS}, v25")
    a("v_lshrrev_b32 v25, 1, v23")
    a(f"v_mul_u32_u24 v25, {KFS}, v25")
    a("v_add_u32 v225, v225, v25")
    a("v_and_b32 v25, 1, v23")
    a(f"v_mul_u32_u24 v25, {KHS}, v25")
    a("v_add_u32 v225, v225, v25")
    a("v_and_b32 v25, 1, v17")
    a("v_lshl_add_u32 v25, v25, 4, v22")
    a("v_lshl_add_u32 v225, v25, 4, v225")
    a(f"v_mul_u32_u24 v226, {KHS}, v19")
    a("v_lshl_add_u32 v226, v18, 4, v226")
    a(f"v_lshlrev_b32 v228, 5, v18")
    a(f"v_add_u32 v228, {LDS_L}, v228")
    a(f"v_lshl_add_u32 v227, v17, 3, v228")
    a(f"v_lshl_add_u32 v227, v19, 2, v227")
    a("v_lshlrev_b32 v229, 9, v18")
    a("v_lshl_add_u32 v229, v17, 7, v229")
    a("v_lshl_add_u32 v229, v19, 4, v229")
    a("s_waitcnt lgkmcnt(0)")
    a("s_lshl_b32 s48, s38, 20")
    make_srd(a, S_KSRD, 46, 48, 0x100000)
    a("s_add_u32 s48, s48, 0x800000")
    make_srd(a, S_VSRD, 46, 48, 0x100000)
    a("s_lshl_b32 s48, s38, 20")
    a("s_lshl_b32 s49, s39, 15")
    a("s_add_u32 s48, s48, s49")
    make_srd(a, S_QSRD, 36, 48, 32768)
    make_srd(a, S_OSRD, 44, 48, 32768)
    make_srd(a, S_CSRD, 40, 49, 32768)
    make_srd(a, S_SSRD, 42, 49, 32768)
    a("s_mov_b32 s50, 4096")
    a("s_mov_b32 s51, 16384")
    for it in range(4):
        so = "0" if it < 2 else "s50"
        io = (it & 1) * 2048
        b = 16 + 24 * it
        for k, srd in enumerate((S_QSRD, S_CSRD, S_SSRD)):
            a(f"buffer_load_dwordx4 v[{b+8*k}:{b+8*k+3}], v224, s[{srd}:{srd+3}], {so} offen offset:{io}")
            a(f"buffer_load_dwordx4 v[{b+8*k+4}:{b+8*k+7}], v224, s[{srd}:{srd+3}], {so} offen offset:{io+256}")
    a(f"s_lshl_b32 s{S_KOFF}, s{S_ROT}, 16")
    a(f"s_mov_b32 s{S_VOFF}, s{S_KOFF}")
    a(f"s_mov_b32 s{S_KUSE}, s{S_KOFF}")
    pro = []
    for s in range(16):
        pro.append(kload(0, s, S_KUSE))
    for f in range(16):
        pro.append(vload(0, f, S_VOFF))
    for it in pro:
        a(it.text)
    for r in range(64):
        a(f"v_accvgpr_write_b32 a{A_O+r}, 0")
    for r in (V_MC, V_MC + 1, V_L, V_L + 1):
        a(f"v_mov_b32 v{r}, 0")
    for it in range(4):
        a(f"s_waitcnt vmcnt({32 + (3 - it) * 6})")
        rope_q_exact(a, 16 + 24 * it, 232, 240)
        a(f"ds_write_b128 v225, v[232:235] offset:{it*64}")
        a(f"ds_write_b128 v225, v[236:239] offset:{it*64 + 8*KFS}")
    a("s_waitcnt lgkmcnt(0)")
    a("s_barrier")
    for qb in range(2):
        for s in range(16):
            b = A_Q + (qb * 16 + s) * 4
            a(f"ds_read_b128 a[{b}:{b+3}], v226 offset:{(qb*16+s)*KFS}")
    a("s_waitcnt lgkmcnt(0)")
    pre = []
    pre.append(I_salu(f"s_add_u32 s{S_KOFF}, s{S_KOFF}, 0x10000"))
    pre.append(I_salu(f"s_and_b32 s{S_KOFF}, s{S_KOFF}, 0xfffff"))
    pre.append(I_salu(f"s_mov_b32 s{S_KUSE}, s{S_KOFF}"))
    S = V_S
    for s in range(16):
        pre.append(I_wvm(("K", 0, s)))
        for qb in range(2):
            d = f"v[{S+qb*16}:{S+qb*16+15}]"
            c = "0" if s == 0 else d
            pre.append(I_mfma(f"v_mfma_f32_32x32x16_bf16 {d}, a[{A_K+4*s}:{A_K+4*s+3}], a[{A_Q+(qb*16+s)*4}:{A_Q+(qb*16+s)*4+3}], {c}"))
        pre.append(kload(1, s, S_KUSE))
    pre.append(I_raw("s_nop 15"))
    pre.append(I_salu(f"s_mov_b32 s{S_I}, 0"))
    endbar = [I_wlds("all"), I_raw("s_barrier")]
    blocks = [("pro", pro), ("pre", pre)]
    it0 = build_iter(0, opt) + endbar + [I_salu(f"s_mov_b32 s{S_I}, 1")]
    blocks.append(("it0", it0))
    loop_odd = build_iter(1, opt) + [I_salu(f"s_add_u32 s{S_I}, s{S_I}, 1")] + endbar
    dyn = []
    stat = {}
    for i in range(1, 15):
        items = build_iter(i, opt) + [I_salu(f"s_add_u32 s{S_I}, s{S_I}, 1")]
        if i % 2 == 0:
            items = items + [I_salu(f"s_cmp_lt_u32 s{S_I}, 15")]
        items = items + endbar
        nm = "odd" if i % 2 else "even"
        blocks.append((nm, items))
        if nm not in stat:
            stat[nm] = items
        else:
            assert [x.text for x in stat[nm]] == [x.text for x in items], nm
    it15 = build_iter(15, opt)
    it15 += [I_lds(f"ds_write_b32 v227, v{V_L}", ("LW", 0)), I_lds(f"ds_write_b32 v227, v{V_L+1} offset:1024", ("LW", 1))] + endbar
    blocks.append(("it15", it15))
    it16 = build_iter(16, opt)
    blocks.append(("it16", it16))
    waits = resolve_waits(blocks)
    emit_block(a, "pre", pre, waits)
    emit_block(a, "it0", it0, waits)
    a.label("L_loop")
    emit_block(a, "odd", stat["odd"], waits)
    emit_block(a, "even", stat["even"], waits)
    a("s_cbranch_scc1 L_loop")
    emit_block(a, "it15", it15, waits)
    for qb in range(2):
        a(f"ds_read_b128 v[{232+8*qb}:{235+8*qb}], v228 offset:{qb*1024}")
        a(f"ds_read_b128 v[{236+8*qb}:{239+8*qb}], v228 offset:{qb*1024+16}")
    emit_block(a, "it16", it16, waits)
    a("s_waitcnt lgkmcnt(0)")
    for qb in range(2):
        b = 232 + 8 * qb
        a(f"v_add_f32 v{b}, v{b}, v{b+1}"); a(f"v_add_f32 v{b+2}, v{b+2}, v{b+3}")
        a(f"v_add_f32 v{b+4}, v{b+4}, v{b+5}"); a(f"v_add_f32 v{b+6}, v{b+6}, v{b+7}")
        a(f"v_add_f32 v{b}, v{b}, v{b+2}"); a(f"v_add_f32 v{b+4}, v{b+4}, v{b+6}")
        a(f"v_add_f32 v{b}, v{b}, v{b+4}")
        a(f"v_rcp_f32 v{b}, v{b}")
    a("s_nop 15")
    for qb in range(2):
        inv = 232 + 8 * qb
        for R in range(4):
            o = 16 + (qb * 4 + R) * 4
            for k in range(4):
                r = 4 * R + k
                a(f"v_accvgpr_read_b32 v248, a{A_O+(0*2+qb)*16+r}")
                a(f"v_accvgpr_read_b32 v249, a{A_O+(1*2+qb)*16+r}")
                a(f"v_mul_f32 v248, v248, v{inv}")
                a(f"v_mul_f32 v249, v249, v{inv}")
                a(f"v_cvt_pk_bf16_f32 v{o+k}, v248, v249")
            so = "0" if qb == 0 else "s51"
            a(f"buffer_store_dwordx4 v[{o}:{o+3}], v229, s[{S_OSRD}:{S_OSRD+3}], {so} offen offset:{R*32}")
    a.label("L_attn_done")
    a("s_endpgm")

def main():
    ap = argparse.ArgumentParser()
    ap.add_argument("-o", default=f"cdna_kernels/{NAME}.s")
    ap.add_argument("--rot", type=int, default=1)
    ap.add_argument("--wgrp", type=int, default=1)
    ap.add_argument("--one_lds_wait", type=int, default=1)
    ap.add_argument("--sm_g0", type=int, default=0)
    ap.add_argument("--sm_g1", type=int, default=57)
    ap.add_argument("--loop_kloads_always", type=int, default=1)
    opt = ap.parse_args()
    hdr = open(f"cdna_kernels/{NAME}.s.ref").read().split("\n")
    head = []
    for l in hdr:
        if l.startswith("; Override") or l.startswith("; grid=") or l.startswith("; @launch"):
            continue
        if not l.startswith(";"):
            break
        head.append(l)
    out = "\n".join(head) + "\n"
    out += f"; @launch kernel=prep_kernel grid=(512,1,1) block=(256,1,1) lds={16*KFS}\n"
    out += f"; @launch kernel=attn_kernel grid=(256,1,1) block=(256,1,1) lds={LDS_TOTAL}\n"
    out += '.amdgcn_target "amdgcn-amd-amdhsa--gfx950"\n.text\n'
    a = Asm()
    gen_prep(a, opt)
    out += ".globl prep_kernel\n.p2align 8\n.type prep_kernel,@function\n" + a.text()
    a = Asm()
    gen_attn(a, opt)
    out += ".globl attn_kernel\n.p2align 8\n.type attn_kernel,@function\n" + a.text()
    out += kd("prep_kernel", 184, 96, 184)
    out += kd("attn_kernel", 512, 96, 256)
    open(opt.o, "w").write(out)

if __name__ == "__main__":
    main()
```

```python
import sys, os, argparse, math, struct

NAME = "standalone__kv_cache_quant_pre_rope_vs_post_rope__prompt"

def f32bits(x):
    return struct.unpack("<I", struct.pack("<f", x))[0]

class Asm:
    def __init__(self):
        self.lines = []
    def __call__(self, s):
        for l in s.split("\n"):
            l = l.strip()
            if l:
                self.lines.append("    " + l)
    def label(self, l):
        self.lines.append(l + ":")
    def c(self, s):
        self.lines.append("    ; " + s)
    def text(self):
        return "\n".join(self.lines) + "\n"

def vr(b, n=1):
    return f"v{b}" if n == 1 else f"v[{b}:{b+n-1}]"
def ar(b, n=1):
    return f"a{b}" if n == 1 else f"a[{b}:{b+n-1}]"
def sr(b, n=1):
    return f"s{b}" if n == 1 else f"s[{b}:{b+n-1}]"

def make_srd(a, d, ptr, off_lo_expr_sreg, nbytes):
    if off_lo_expr_sreg is None:
        a(f"s_mov_b32 s{d}, s{ptr}")
        a(f"s_mov_b32 s{d+1}, s{ptr+1}")
    else:
        a(f"s_add_u32 s{d}, s{ptr}, s{off_lo_expr_sreg}")
        a(f"s_addc_u32 s{d+1}, s{ptr+1}, 0")
    a(f"s_mov_b32 s{d+2}, {nbytes}")
    a(f"s_mov_b32 s{d+3}, 0x20000")

def rnd2(a, x, y, tmp, smask):
    a(f"v_cvt_pk_bf16_f32 v{tmp}, v{x}, v{y}")
    a(f"v_lshlrev_b32 v{x}, 16, v{tmp}")
    a(f"v_and_b32 v{y}, s{smask}, v{tmp}")

KFS = 1056
KHS = 528

def gen_prep(a, opt):
    a.label("prep_kernel")
    a("s_cmp_ge_u32 s2, 512")
    a("s_cbranch_scc1 L_prep_done")
    a("s_load_dwordx4 s[36:39], s[0:1], 8")
    a("s_load_dwordx4 s[40:43], s[0:1], 24")
    a("s_load_dwordx4 s[44:47], s[0:1], 40")
    a("s_load_dwordx4 s[48:51], s[0:1], 72")
    a("s_load_dwordx2 s[52:53], s[0:1], 104")
    a("s_and_b32 s3, s2, 7")
    a("s_lshr_b32 s4, s2, 3")
    a("v_and_b32 v1, 63, v0")
    a("v_lshrrev_b32 v2, 6, v0")
    a("v_and_b32 v3, 31, v0")
    a("v_bfe_u32 v4, v0, 5, 1")
    a("v_readfirstlane_b32 s5, v2")
    a("s_mov_b32 s72, 0xffff0000")
    a("s_lshl_b32 s6, s3, 21")
    a("s_lshl_b32 s7, s4, 15")
    a("s_add_u32 s6, s6, s7")
    a("s_lshl_b32 s7, s4, 14")
    a("s_lshl_b32 s54, s3, 12")
    a("s_lshl_b32 s55, s4, 6")
    a("s_add_u32 s54, s54, s55")
    a("s_lshl_b32 s55, s3, 20")
    a("s_add_u32 s73, s55, s7")
    a("s_lshr_b32 s74, s4, 2")
    a("s_lshl_b32 s74, s74, 16")
    a("s_add_u32 s74, s74, s55")
    a("s_add_u32 s74, s74, 0x800000")
    a("s_mov_b32 s75, 4096")
    a("s_mov_b32 s76, 8192")
    a("s_mov_b32 s77, 16384")
    a("s_mov_b32 s78, 24576")
    a("v_lshl_add_u32 v5, v2, 3, v4")
    a("v_lshlrev_b32 v6, 10, v5")
    a("v_lshl_add_u32 v6, v3, 4, v6")
    a("v_lshlrev_b32 v7, 9, v5")
    a("v_lshl_add_u32 v7, v3, 3, v7")
    a("v_lshlrev_b32 v176, 1, v5")
    a("v_lshlrev_b32 v177, 12, v4")
    a("v_lshl_add_u32 v177, v2, 8, v177")
    a("v_lshl_add_u32 v177, v3, 3, v177")
    a("v_lshlrev_b32 v178, 3, v4")
    a("s_waitcnt lgkmcnt(0)")
    make_srd(a, 8, 36, 6, 32768)
    make_srd(a, 12, 48, 7, 16384)
    make_srd(a, 16, 50, 7, 16384)
    make_srd(a, 20, 38, 54, 64)
    make_srd(a, 24, 40, 54, 64)
    make_srd(a, 28, 42, 6, 32768)
    make_srd(a, 56, 44, 54, 64)
    make_srd(a, 60, 46, 54, 64)
    make_srd(a, 64, 52, 73, 16384)
    make_srd(a, 68, 52, 74, 65536)
    for r in range(4):
        so = "0" if r < 2 else "s75"
        io = (r & 1) * 2048
        b = 8 + r * 8
        a(f"buffer_load_dwordx4 v[{b}:{b+3}], v6, s[8:11], {so} offen offset:{io}")
        a(f"buffer_load_dwordx4 v[{b+4}:{b+7}], v6, s[8:11], {so} offen offset:{io+512}")
        b = 40 + r * 8
        a(f"buffer_load_dwordx2 v[{b}:{b+1}], v7, s[12:15], 0 offen offset:{r*1024}")
        a(f"buffer_load_dwordx2 v[{b+2}:{b+3}], v7, s[12:15], 0 offen offset:{r*1024+256}")
        a(f"buffer_load_dwordx2 v[{b+4}:{b+5}], v7, s[16:19], 0 offen offset:{r*1024}")
        a(f"buffer_load_dwordx2 v[{b+6}:{b+7}], v7, s[16:19], 0 offen offset:{r*1024+256}")
        a(f"buffer_load_ushort v{72+r}, v176, s[20:23], 0 offen offset:{r*4}")
        a(f"buffer_load_ushort v{76+r}, v176, s[24:27], 0 offen offset:{r*4}")
    soffs = ["0", "s76", "s77", "s78"]
    for m in range(2):
        for j in range(8):
            b = 80 + (m * 8 + j) * 2
            a(f"buffer_load_dwordx2 v[{b}:{b+1}], v177, s[28:31], {soffs[m*2+(j>>2)]} offen offset:{(j&3)*1024}")
    for g in range(4):
        a(f"buffer_load_dwordx2 v[{112+2*g}:{113+2*g}], v178, s[56:59], 0 offen offset:{g*16}")
        a(f"buffer_load_dwordx2 v[{120+2*g}:{121+2*g}], v178, s[60:63], 0 offen offset:{g*16}")
    nV = 24
    a("v_lshrrev_b32 v179, 2, v3")
    a(f"v_mul_u32_u24 v179, {KFS}, v179")
    a("v_bfe_u32 v180, v3, 1, 1")
    a(f"v_mul_u32_u24 v180, {KHS}, v180")
    a("v_add_u32 v179, v179, v180")
    a("v_and_b32 v180, 1, v3")
    a("v_lshl_add_u32 v179, v180, 3, v179")
    a("v_lshl_add_u32 v179, v5, 4, v179")
    T = 128
    for r in range(4):
        a(f"s_waitcnt vmcnt({(3-r)*8 + nV})")
        u = 8 + r * 8
        cs = 40 + r * 8
        a(f"v_lshlrev_b32 v{72+r}, 16, v{72+r}")
        a(f"v_lshlrev_b32 v{76+r}, 16, v{76+r}")
        for c in range(8):
            a(f"v_cvt_f32_i32 v{u+c}, v{u+c}")
        for c in range(8):
            a(f"v_sub_f32 v{u+c}, v{u+c}, v{76+r}")
        for c in range(0, 8, 2):
            rnd2(a, u + c, u + c + 1, T, 72)
        for c in range(8):
            a(f"v_mul_f32 v{u+c}, v{u+c}, v{72+r}")
        for c in range(0, 8, 2):
            rnd2(a, u + c, u + c + 1, T, 72)
        for k in range(4):
            src = cs + 2 * k
            dst = T + 1 + 4 * k
            a(f"v_lshlrev_b32 v{dst}, 16, v{src}")
            a(f"v_and_b32 v{dst+1}, s72, v{src}")
            a(f"v_lshlrev_b32 v{dst+2}, 16, v{src+1}")
            a(f"v_and_b32 v{dst+3}, s72, v{src+1}")
        cA, cB, sA, sB = T + 1, T + 5, T + 9, T + 13
        for c in range(4):
            a(f"v_mul_f32 v{cA+c}, v{u+c}, v{cA+c}")
            a(f"v_mul_f32 v{sA+c}, v{u+4+c}, v{sA+c}")
            a(f"v_mul_f32 v{cB+c}, v{u+4+c}, v{cB+c}")
            a(f"v_mul_f32 v{sB+c}, v{u+c}, v{sB+c}")
        for base in (cA, cB, sA, sB):
            rnd2(a, base, base + 1, T, 72)
            rnd2(a, base + 2, base + 3, T, 72)
        for c in range(4):
            a(f"v_sub_f32 v{cA+c}, v{cA+c}, v{sA+c}")
            a(f"v_add_f32 v{cB+c}, v{cB+c}, v{sB+c}")
        o = T + 18
        a(f"v_cvt_pk_bf16_f32 v{o}, v{cA}, v{cA+1}")
        a(f"v_cvt_pk_bf16_f32 v{o+1}, v{cA+2}, v{cA+3}")
        a(f"v_cvt_pk_bf16_f32 v{o+2}, v{cB}, v{cB+1}")
        a(f"v_cvt_pk_bf16_f32 v{o+3}, v{cB+2}, v{cB+3}")
        a(f"ds_write_b64 v179, v[{o}:{o+1}] offset:{r*32}")
        a(f"ds_write_b64 v179, v[{o+2}:{o+3}] offset:{r*32 + 8*KFS}")
    a("s_waitcnt vmcnt(0)")
    a("s_and_b32 s79, s4, 3")
    a("s_sub_u32 s79, s79, s5")
    a("s_lshl_b32 s79, s79, 1")
    a("s_add_u32 s80, s79, 1")
    a("s_and_b32 s79, s79, 7")
    a("s_and_b32 s80, s80, 7")
    a("s_lshl_b32 s79, s79, 11")
    a("s_lshl_b32 s80, s80, 11")
    a("s_lshl_b32 s81, s5, 14")
    a("s_add_u32 s79, s79, s81")
    a("s_add_u32 s80, s80, s81")
    a("v_lshlrev_b32 v181, 4, v1")
    for m in range(2):
        for g2 in range(2):
            g = m * 2 + g2
            for (src, dst) in ((112 + 2 * g, T + 4 * g2), (120 + 2 * g, T + 8 + 4 * g2)):
                a(f"v_lshlrev_b32 v{dst}, 16, v{src}")
                a(f"v_and_b32 v{dst+1}, s72, v{src}")
                a(f"v_lshlrev_b32 v{dst+2}, 16, v{src+1}")
                a(f"v_and_b32 v{dst+3}, s72, v{src+1}")
        for j in range(8):
            b = 80 + (m * 8 + j) * 2
            a(f"v_cvt_f32_i32 v{b}, v{b}")
            a(f"v_cvt_f32_i32 v{b+1}, v{b+1}")
            a(f"v_sub_f32 v{b}, v{b}, v{T+8+j}")
            a(f"v_sub_f32 v{b+1}, v{b+1}, v{T+8+j}")
            rnd2(a, b, b + 1, T + 16, 72)
            a(f"v_mul_f32 v{b}, v{b}, v{T+j}")
            a(f"v_mul_f32 v{b+1}, v{b+1}, v{T+j}")
        for e in range(2):
            o = T + 20 + 4 * e + 8 * m
            for jj in range(4):
                b0 = 80 + (m * 8 + 2 * jj) * 2 + e
                b1 = 80 + (m * 8 + 2 * jj + 1) * 2 + e
                a(f"v_cvt_pk_bf16_f32 v{o+jj}, v{b0}, v{b1}")
            a(f"buffer_store_dwordx4 v[{o}:{o+3}], v181, s[68:71], s{79+m} offen offset:{e*1024}")
    a("s_waitcnt lgkmcnt(0)")
    a("s_barrier")
    a(f"v_mul_u32_u24 v182, {4*KFS}, v2")
    a(f"v_mul_u32_u24 v183, {KHS}, v4")
    a("v_add_u32 v182, v182, v183")
    a("v_lshl_add_u32 v182, v3, 4, v182")
    for k in range(4):
        a(f"ds_read_b128 v[{8+4*k}:{11+4*k}], v182 offset:{k*KFS}")
    a("v_lshl_add_u32 v183, v2, 12, v181")
    for k in range(4):
        a(f"s_waitcnt lgkmcnt({3-k})")
        a(f"buffer_store_dwordx4 v[{8+4*k}:{11+4*k}], v183, s[64:67], 0 offen offset:{k*1024}")
    a.label("L_prep_done")
    a("s_endpgm")

def kd(name, nvgpr, nsgpr, accum):
    return f""".section .rodata,"a"
.p2align 6
.amdhsa_kernel {name}
  .amdhsa_next_free_vgpr {nvgpr}
  .amdhsa_next_free_sgpr {nsgpr}
  .amdhsa_accum_offset {accum}
  .amdhsa_group_segment_fixed_size 0
  .amdhsa_kernarg_size 112
  .amdhsa_user_sgpr_count 2
  .amdhsa_user_sgpr_kernarg_segment_ptr 1
  .amdhsa_system_sgpr_workgroup_id_x 1
  .amdhsa_float_denorm_mode_32 3
.end_amdhsa_kernel
"""

V_OFF = 1
V_PW = 5
V_PR = 6
V_MC = 9
V_L = 11
V_T = 13
V_S = 16
V_PO = 80
V_PF = 112
V_V = 160
V_X = 224
A_O = 0
A_Q = 64
A_K = 192

LDS_Q = 0
LDS_P = 34816
LDS_L = LDS_P + 32768
LDS_M = LDS_L + 2048
LDS_TOTAL = LDS_M + 2048

S_KSRD = 4
S_VSRD = 8
S_QSRD = 12
S_CSRD = 16
S_SSRD = 20
S_OSRD = 24
S_KOFF = 28
S_VOFF = 29
S_I = 30
S_ROT = 31
S_C = 32
S_W = 33
S_MASK = 34
S_KUSE = 35

class Item:
    __slots__ = ("kind", "text", "tag", "cost")
    def __init__(self, kind, text="", tag=None, cost=4):
        self.kind = kind; self.text = text; self.tag = tag; self.cost = cost

def I_valu(t, cost=4): return Item("valu", t, cost=cost)
def I_raw(t): return Item("raw", t, cost=0)
def I_salu(t): return Item("salu", t, cost=4)
def I_vm(t, tag): return Item("vm", t, tag, cost=4)
def I_lds(t, tag): return Item("lds", t, tag, cost=4)
def I_wvm(tag): return Item("wvm", tag=tag, cost=0)
def I_wlds(tag): return Item("wlds", tag=tag, cost=0)
def I_mfma(t): return Item("mfma", t, cost=8)

LDFLAGS = ""
def kload(tile, s, soff):
    return I_vm(f"buffer_load_dwordx4 a[{A_K+4*s}:{A_K+4*s+3}], v{V_OFF+(s>>2)}, s[{S_KSRD}:{S_KSRD+3}], s{soff} offen offset:{(s&3)*1024}{LDFLAGS}", ("K", tile, s))
def vload(tile, f, soff):
    return I_vm(f"buffer_load_dwordx4 v[{V_V+4*f}:{V_V+4*f+3}], v{V_OFF+(f>>2)}, s[{S_VSRD}:{S_VSRD+3}], s{soff} offen offset:{(f&3)*1024}{LDFLAGS}", ("V", tile, f))

def softmax_stream(i, opt):
    par = i & 1
    S = V_S + 32 * par
    PO = V_PO + 16 * par
    pairs = []
    for qb in range(2):
        for m in range(2):
            for jj in range(4):
                r = S + qb * 16 + m * 8 + jj * 2
                pairs.append((qb, m, jj, r))
    out = []
    def stage1(k):
        qb, m, jj, r = pairs[k]
        return [I_valu(f"v_fma_f32 v{r}, v{r}, s{S_C}, -v{V_MC+qb}"),
                I_valu(f"v_fma_f32 v{r+1}, v{r+1}, s{S_C}, -v{V_MC+qb}")], \
               [I_valu(f"v_exp_f32 v{r}, v{r}", 8), I_valu(f"v_exp_f32 v{r+1}, v{r+1}", 8)]
    def stage2(k):
        qb, m, jj, r = pairs[k]
        l = [I_valu(f"v_add_f32 v{V_L+qb}, v{V_L+qb}, v{r}"),
             I_valu(f"v_add_f32 v{V_L+qb}, v{V_L+qb}, v{r+1}"),
             I_valu(f"v_cvt_pk_bf16_f32 v{PO+(qb*2+m)*4+jj}, v{r}, v{r+1}")]
        w = []
        if jj == 3:
            fr = qb * 2 + m
            w = [I_lds(f"ds_write_b128 v{V_PW}, v[{PO+fr*4}:{PO+fr*4+3}] offset:{par*16384+fr*1024}", ("PW", i, fr))]
        return l, w
    n = len(pairs)
    for k in range(n + 1):
        f = e = s2 = w = None
        if k < n:
            f, e = stage1(k)
        if k >= 1:
            s2, w = stage2(k - 1)
        if f and s2:
            out += [f[0], f[1], s2[0], e[0], s2[1], e[1], s2[2]] + w
        elif f:
            out += [f[0], f[1], e[0], e[1]]
        else:
            out += [I_raw("s_nop 0")] + s2 + w
    return out

def build_iter(i, opt, NT=16):
    has_qk = (i + 1) < NT
    has_sm = 0 <= i < NT
    has_pv = 1 <= i <= NT
    mf = []
    if has_qk:
        t = i + 1
        S = V_S + 32 * (t & 1)
        for s in range(16):
            for qb in range(2):
                d = f"v[{S+qb*16}:{S+qb*16+15}]"
                c = "0" if s == 0 else d
                pre = []
                if qb == 0 and (s % opt.wgrp == 0):
                    pre.append(I_wvm(("K", t, min(15, s + opt.wgrp - 1))))
                post = []
                if qb == 1 and (opt.loop_kloads_always or t + 1 < NT):
                    post.append(kload(t + 1, s, S_KUSE))
                mf.append([pre, I_mfma(f"v_mfma_f32_32x32x16_bf16 {d}, a[{A_K+4*s}:{A_K+4*s+3}], a[{A_Q+(qb*16+s)*4}:{A_Q+(qb*16+s)*4+3}], {c}"), post])
    nqk = len(mf)
    if has_pv:
        t = i - 1
        par = t & 1
        for p in range(8):
            for e in range(2):
                f = 2 * p + e
                for qb in range(2):
                    o = A_O + (e * 2 + qb) * 16
                    if p < 2:
                        b = V_PO + 16 * par + (qb * 2 + p) * 4
                    else:
                        b = V_PF + ((p - 2) * 2 + qb) * 4
                    pre = []
                    if qb == 0 and (f % opt.wgrp == 0):
                        pre.append(I_wvm(("V", t, min(15, f + opt.wgrp - 1))))
                    if p >= 2 and e == 0 and qb == 0 and (p == 2 or not opt.one_lds_wait):
                        pre.append(I_wlds(("PR", t, 7 if opt.one_lds_wait else p, 1)))
                    post = []
                    if qb == 1 and t + 1 < NT:
                        post.append(vload(t + 1, f, S_VOFF))
                    mf.append([pre, I_mfma(f"v_mfma_f32_32x32x16_bf16 a[{o}:{o+15}], v[{V_V+4*f}:{V_V+4*f+3}], v[{b}:{b+3}], a[{o}:{o+15}]"), post])
    reads = []
    if has_pv:
        t = i - 1
        par = t & 1
        for p in range(2, 8):
            for qb in range(2):
                dst = V_PF + ((p - 2) * 2 + qb) * 4
                reads.append(I_lds(f"ds_read_b128 v[{dst}:{dst+3}], v{V_PR+(p>>1)-1} offset:{par*16384+(qb*2+(p&1))*1024}", ("PR", t, p, qb)))
    sm = softmax_stream(i, opt) if has_sm else []
    items = []
    head = []
    if has_qk:
        head.append(I_salu(f"s_add_u32 s{S_KOFF}, s{S_KOFF}, 0x10000"))
        head.append(I_salu(f"s_and_b32 s{S_KOFF}, s{S_KOFF}, 0xfffff"))
        head.append(I_salu(f"s_cmp_lt_u32 s{S_I}, {NT-2}"))
        head.append(I_salu(f"s_cselect_b32 s{S_KUSE}, s{S_KOFF}, 0x100000"))
    if has_pv:
        head.append(I_salu(f"s_add_u32 s{S_VOFF}, s{S_VOFF}, 0x10000"))
        head.append(I_salu(f"s_and_b32 s{S_VOFF}, s{S_VOFF}, 0xfffff"))
    n = len(mf)
    if n == 0:
        return head + reads + sm
    gaps = [[] for _ in range(n)]
    if nqk:
        for k, r in enumerate(reads):
            gaps[min(k, n - 1)].append(r)
    else:
        head = head + reads
    if sm:
        g0 = opt.sm_g0 if n == 64 else 0
        g1 = opt.sm_g1 if n == 64 else n - 1
        tot = sum(x.cost for x in sm)
        cum = 0
        for x in sm:
            g = g0 + int((cum / tot) * (g1 - g0 + 1))
            g = min(g, n - 1)
            gaps[g].append(x)
            cum += x.cost
    first = True
    for k, (pre, m, post) in enumerate(mf):
        items += pre
        items.append(m)
        if first:
            items += head
            first = False
        items += post
        items += gaps[k]
    return ablate(items, opt)

import re as _re
def ablate(items, opt):
    out = []
    for it in items:
        if opt.abl_noK and ((it.kind == "vm" and it.tag[0] == "K" and it.tag[1] >= 2) or (it.kind == "wvm" and it.tag[0] == "K" and it.tag[1] >= 2)):
            continue
        if opt.abl_noV and ((it.kind == "vm" and it.tag[0] == "V") or (it.kind == "wvm" and it.tag[0] == "V")):
            continue
        if opt.abl_nosm and it.kind == "valu":
            continue
        if opt.abl_noexp and it.kind == "valu" and "v_exp" in it.text:
            continue
        if opt.abl_nolds and (it.kind == "lds" or it.kind == "wlds" and it.tag != "all"):
            continue
        if opt.abl_nomfma and it.kind == "mfma":
            continue
        if opt.abl_16 and it.kind == "mfma":
            m = _re.match(r"v_mfma_f32_32x32x16_bf16 ([av])\[(\d+):(\d+)\], (\S+), (\S+), (.*)", it.text)
            t, lo, hi, A, B, C = m.groups()
            lo = int(lo)
            for h in range(2):
                q = (ablate.cnt % 2) * 2 + h
                d = f"{t}[{lo+4*q}:{lo+4*q+3}]"
                c = "0" if C == "0" else d
                out.append(I_mfma(f"v_mfma_f32_16x16x32_bf16 {d}, {A}, {B}, {c}"))
            ablate.cnt += 1
            continue
        out.append(it)
    return out
ablate.cnt = 0

def resolve_waits(blocks):
    vmq = []; ldq = []
    res = {}
    cmark = {}
    for name, items in blocks:
        for idx, it in enumerate(items):
            if it.kind == "vm":
                vmq.append(it.tag)
            elif it.kind == "vmc":
                cmark[it.tag] = len(vmq)
            elif it.kind == "lds":
                ldq.append(it.tag)
            elif it.kind == "wvm":
                if it.tag in cmark:
                    n = len(vmq) - cmark[it.tag]
                else:
                    pos = max(k for k, t in enumerate(vmq) if t == it.tag)
                    n = len(vmq) - 1 - pos
                res[(name, idx)] = min(res.get((name, idx), 63), n)
            elif it.kind == "wlds":
                if it.tag == "all":
                    n = 0
                else:
                    pos = max(k for k, t in enumerate(ldq) if t == it.tag)
                    n = len(ldq) - 1 - pos
                res[(name, idx)] = min(res.get((name, idx), 15), n)
    return res

def emit_block(a, name, items, waits):
    for idx, it in enumerate(items):
        if it.kind == "wvm":
            n = waits[(name, idx)]
            if n < 63:
                a(f"s_waitcnt vmcnt({n})")
        elif it.kind == "wlds":
            n = waits[(name, idx)]
            a(f"s_waitcnt lgkmcnt({min(n,15)})")
        else:
            a(it.text)

def rope_q_exact(a, src, out, T):
    M = S_MASK
    for t in range(4):
        ql, qh, cl, ch, sl, sh = (src + 4 * k + t for k in range(6))
        a0, a1, b0, b1 = T, T + 1, T + 2, T + 3
        x = T + 4
        tmp = T + 12
        a(f"v_lshlrev_b32 v{a0}, 16, v{ql}"); a(f"v_and_b32 v{a1}, s{M}, v{ql}")
        a(f"v_lshlrev_b32 v{b0}, 16, v{qh}"); a(f"v_and_b32 v{b1}, s{M}, v{qh}")
        a(f"v_lshlrev_b32 v{x}, 16, v{cl}"); a(f"v_and_b32 v{x+1}, s{M}, v{cl}")
        a(f"v_lshlrev_b32 v{x+2}, 16, v{sl}"); a(f"v_and_b32 v{x+3}, s{M}, v{sl}")
        a(f"v_lshlrev_b32 v{x+4}, 16, v{ch}"); a(f"v_and_b32 v{x+5}, s{M}, v{ch}")
        a(f"v_lshlrev_b32 v{x+6}, 16, v{sh}"); a(f"v_and_b32 v{x+7}, s{M}, v{sh}")
        a(f"v_mul_f32 v{x}, v{a0}, v{x}"); a(f"v_mul_f32 v{x+1}, v{a1}, v{x+1}")
        a(f"v_mul_f32 v{x+2}, v{b0}, v{x+2}"); a(f"v_mul_f32 v{x+3}, v{b1}, v{x+3}")
        a(f"v_mul_f32 v{x+4}, v{b0}, v{x+4}"); a(f"v_mul_f32 v{x+5}, v{b1}, v{x+5}")
        a(f"v_mul_f32 v{x+6}, v{a0}, v{x+6}"); a(f"v_mul_f32 v{x+7}, v{a1}, v{x+7}")
        for k in range(0, 8, 2):
            rnd2(a, x + k, x + k + 1, tmp, M)
        a(f"v_sub_f32 v{x}, v{x}, v{x+2}"); a(f"v_sub_f32 v{x+1}, v{x+1}, v{x+3}")
        a(f"v_add_f32 v{x+4}, v{x+4}, v{x+6}"); a(f"v_add_f32 v{x+5}, v{x+5}, v{x+7}")
        a(f"v_cvt_pk_bf16_f32 v{out+t}, v{x}, v{x+1}")
        a(f"v_cvt_pk_bf16_f32 v{out+4+t}, v{x+4}, v{x+5}")

STAMP_BASE = 60
class Stamper:
    def __init__(self, a, opt):
        self.a = a; self.on = opt.stamp; self.n = 0
    def __call__(self, real=False):
        if not self.on: return
        if real: return
        r = STAMP_BASE + 4 * self.n
        self.a(f"s_memtime s[{r}:{r+1}]")
        self.a(f"s_memrealtime s[{r+2}:{r+3}]")
        self.a("s_waitcnt lgkmcnt(0)")
        self.n += 1
    def finish(self, wsptr, vtmp=250):
        if not self.on: return
        a = self.a
        a("s_waitcnt vmcnt(0)")
        a(f"s_lshl_b32 s58, s2, 8")
        a(f"s_lshl_b32 s59, s{S_W}, 6")
        a("s_add_u32 s58, s58, s59")
        a("s_add_u32 s58, s58, 0x8000000")
        a(f"s_add_u32 s58, s{wsptr}, s58")
        a(f"s_addc_u32 s59, s{wsptr+1}, 0")
        a(f"v_mov_b32 v{vtmp}, 0")
        for k in range(self.n):
            a(f"v_mov_b32 v{vtmp+1}, s{STAMP_BASE+4*k}")
            a(f"global_store_dword v{vtmp}, v{vtmp+1}, s[58:59] offset:{4*k}")
            a(f"v_mov_b32 v{vtmp+1}, s{STAMP_BASE+4*k+2}")
            a(f"global_store_dword v{vtmp}, v{vtmp+1}, s[58:59] offset:{32+4*k}")
        a("s_waitcnt vmcnt(0)")

def gen_attn(a, opt):
    NT = 16
    st = Stamper(a, opt)
    a.label("attn_kernel")
    a("s_cmp_ge_u32 s2, 256")
    a("s_cbranch_scc1 L_attn_done")
    st(real=True)
    st()
    a("s_load_dwordx2 s[36:37], s[0:1], 0")
    a("s_load_dwordx4 s[40:43], s[0:1], 56")
    a("s_load_dwordx2 s[44:45], s[0:1], 88")
    a("s_load_dwordx2 s[46:47], s[0:1], 104")
    a("s_and_b32 s38, s2, 7")
    a("s_lshr_b32 s39, s2, 3")
    a("v_and_b32 v16, 63, v0")
    a("v_lshrrev_b32 v17, 6, v0")
    a("v_and_b32 v18, 31, v0")
    a("v_bfe_u32 v19, v0, 5, 1")
    a(f"v_readfirstlane_b32 s{S_W}, v17")
    a(f"s_mov_b32 s{S_MASK}, 0xffff0000")
    a(f"s_mov_b32 s{S_C}, 0x{f32bits(math.log2(math.e)/16.0):08x}")
    if opt.rot:
        a(f"s_and_b32 s{S_ROT}, s39, 15")
    else:
        a(f"s_mov_b32 s{S_ROT}, 0")
    a(f"v_lshlrev_b32 v{V_OFF}, 4, v16")
    a(f"v_lshl_add_u32 v{V_OFF}, v17, 14, v{V_OFF}")
    for k in range(1, 4):
        a(f"v_add_u32 v{V_OFF+k}, {4096*k}, v{V_OFF}")
    a(f"v_lshlrev_b32 v20, 4, v16")
    a(f"v_add_u32 v20, {LDS_P}, v20")
    a(f"v_lshl_add_u32 v{V_PW}, v17, 12, v20")
    for t in range(1, 4):
        a(f"v_add_u32 v21, {t}, v17")
        a(f"v_and_b32 v21, 3, v21")
        a(f"v_lshl_add_u32 v{V_PR+t-1}, v21, 12, v20")
    a("v_lshrrev_b32 v22, 4, v16")
    a("v_and_b32 v23, 15, v16")
    a("v_lshl_add_u32 v24, v17, 4, v22")
    a("v_lshlrev_b32 v224, 9, v24")
    a("v_lshl_add_u32 v224, v23, 4, v224")
    a("v_lshrrev_b32 v25, 1, v17")
    a(f"v_mul_u32_u24 v225, {16*KFS}, v25")
    a("v_lshrrev_b32 v25, 1, v23")
    a(f"v_mul_u32_u24 v25, {KFS}, v25")
    a("v_add_u32 v225, v225, v25")
    a("v_and_b32 v25, 1, v23")
    a(f"v_mul_u32_u24 v25, {KHS}, v25")
    a("v_add_u32 v225, v225, v25")
    a("v_and_b32 v25, 1, v17")
    a("v_lshl_add_u32 v25, v25, 4, v22")
    a("v_lshl_add_u32 v225, v25, 4, v225")
    a(f"v_mul_u32_u24 v226, {KHS}, v19")
    a("v_lshl_add_u32 v226, v18, 4, v226")
    a(f"v_lshlrev_b32 v228, 5, v18")
    a(f"v_add_u32 v228, {LDS_L}, v228")
    a(f"v_lshl_add_u32 v227, v17, 3, v228")
    a(f"v_lshl_add_u32 v227, v19, 2, v227")
    a("v_lshlrev_b32 v229, 9, v18")
    a("v_lshl_add_u32 v229, v17, 7, v229")
    a("v_lshl_add_u32 v229, v19, 4, v229")
    a("s_waitcnt lgkmcnt(0)")
    a("s_lshl_b32 s48, s38, 20")
    make_srd(a, S_KSRD, 46, 48, 0x100000)
    a("s_add_u32 s48, s48, 0x800000")
    make_srd(a, S_VSRD, 46, 48, 0x100000)
    a("s_lshl_b32 s48, s38, 20")
    a("s_lshl_b32 s49, s39, 15")
    a("s_add_u32 s48, s48, s49")
    make_srd(a, S_QSRD, 36, 48, 32768)
    make_srd(a, S_OSRD, 44, 48, 32768)
    make_srd(a, S_CSRD, 40, 49, 32768)
    make_srd(a, S_SSRD, 42, 49, 32768)
    a("s_mov_b32 s50, 4096")
    a("s_mov_b32 s51, 16384")
    for it in range(4):
        so = "0" if it < 2 else "s50"
        io = (it & 1) * 2048
        b = 16 + 24 * it
        for k, srd in enumerate((S_QSRD, S_CSRD, S_SSRD)):
            a(f"buffer_load_dwordx4 v[{b+8*k}:{b+8*k+3}], v224, s[{srd}:{srd+3}], {so} offen offset:{io}")
            a(f"buffer_load_dwordx4 v[{b+8*k+4}:{b+8*k+7}], v224, s[{srd}:{srd+3}], {so} offen offset:{io+256}")
    a(f"s_lshl_b32 s{S_KOFF}, s{S_ROT}, 16")
    a(f"s_mov_b32 s{S_VOFF}, s{S_KOFF}")
    a(f"s_mov_b32 s{S_KUSE}, s{S_KOFF}")
    pro = []
    for s in range(16):
        pro.append(kload(0, s, S_KUSE))
    for f in range(16):
        pro.append(vload(0, f, S_VOFF))
    for it in pro:
        a(it.text)
    for r in range(64):
        a(f"v_accvgpr_write_b32 a{A_O+r}, 0")
    for r in (V_MC, V_MC + 1, V_L, V_L + 1):
        a(f"v_mov_b32 v{r}, 0")
    for it in range(4):
        a(f"s_waitcnt vmcnt({32 + (3 - it) * 6})")
        if it == 0: st()
        rope_q_exact(a, 16 + 24 * it, 232, 240)
        a(f"ds_write_b128 v225, v[232:235] offset:{it*64}")
        a(f"ds_write_b128 v225, v[236:239] offset:{it*64 + 8*KFS}")
    a("s_waitcnt lgkmcnt(0)")
    a("s_barrier")
    for qb in range(2):
        for s in range(16):
            b = A_Q + (qb * 16 + s) * 4
            a(f"ds_read_b128 a[{b}:{b+3}], v226 offset:{(qb*16+s)*KFS}")
    a("s_waitcnt lgkmcnt(0)")
    st()
    pre = []
    pre.append(I_salu(f"s_add_u32 s{S_KOFF}, s{S_KOFF}, 0x10000"))
    pre.append(I_salu(f"s_and_b32 s{S_KOFF}, s{S_KOFF}, 0xfffff"))
    pre.append(I_salu(f"s_mov_b32 s{S_KUSE}, s{S_KOFF}"))
    S = V_S
    for s in range(16):
        pre.append(I_wvm(("K", 0, s)))
        for qb in range(2):
            d = f"v[{S+qb*16}:{S+qb*16+15}]"
            c = "0" if s == 0 else d
            pre.append(I_mfma(f"v_mfma_f32_32x32x16_bf16 {d}, a[{A_K+4*s}:{A_K+4*s+3}], a[{A_Q+(qb*16+s)*4}:{A_Q+(qb*16+s)*4+3}], {c}"))
        pre.append(kload(1, s, S_KUSE))
    pre.append(I_raw("s_nop 15"))
    pre.append(I_salu(f"s_mov_b32 s{S_I}, 0"))
    endbar = [I_wlds("all"), I_raw("s_barrier")]
    blocks = [("pro", pro), ("pre", pre)]
    it0 = build_iter(0, opt) + endbar + [I_salu(f"s_mov_b32 s{S_I}, 1")]
    blocks.append(("it0", it0))
    loop_odd = build_iter(1, opt) + [I_salu(f"s_add_u32 s{S_I}, s{S_I}, 1")] + endbar
    dyn = []
    stat = {}
    for i in range(1, 15):
        items = build_iter(i, opt) + [I_salu(f"s_add_u32 s{S_I}, s{S_I}, 1")]
        if i % 2 == 0:
            items = items + [I_salu(f"s_cmp_lt_u32 s{S_I}, 15")]
        items = items + endbar
        nm = "odd" if i % 2 else "even"
        blocks.append((nm, items))
        if nm not in stat:
            stat[nm] = items
        else:
            assert [x.text for x in stat[nm]] == [x.text for x in items], nm
    it15 = build_iter(15, opt)
    it15 += [I_lds(f"ds_write_b32 v227, v{V_L}", ("LW", 0)), I_lds(f"ds_write_b32 v227, v{V_L+1} offset:1024", ("LW", 1))] + endbar
    blocks.append(("it15", it15))
    it16 = build_iter(16, opt)
    blocks.append(("it16", it16))
    waits = resolve_waits(blocks)
    emit_block(a, "pre", pre, waits)
    emit_block(a, "it0", it0, waits)
    st()
    a.label("L_loop")
    emit_block(a, "odd", stat["odd"], waits)
    emit_block(a, "even", stat["even"], waits)
    a("s_cbranch_scc1 L_loop")
    st()
    emit_block(a, "it15", it15, waits)
    for qb in range(2):
        a(f"ds_read_b128 v[{232+8*qb}:{235+8*qb}], v228 offset:{qb*1024}")
        a(f"ds_read_b128 v[{236+8*qb}:{239+8*qb}], v228 offset:{qb*1024+16}")
    emit_block(a, "it16", it16, waits)
    a("s_waitcnt lgkmcnt(0)")
    for qb in range(2):
        b = 232 + 8 * qb
        a(f"v_add_f32 v{b}, v{b}, v{b+1}"); a(f"v_add_f32 v{b+2}, v{b+2}, v{b+3}")
        a(f"v_add_f32 v{b+4}, v{b+4}, v{b+5}"); a(f"v_add_f32 v{b+6}, v{b+6}, v{b+7}")
        a(f"v_add_f32 v{b}, v{b}, v{b+2}"); a(f"v_add_f32 v{b+4}, v{b+4}, v{b+6}")
        a(f"v_add_f32 v{b}, v{b}, v{b+4}")
        a(f"v_rcp_f32 v{b}, v{b}")
    a("s_nop 15")
    st()
    for qb in range(2):
        inv = 232 + 8 * qb
        for R in range(4):
            o = 16 + (qb * 4 + R) * 4
            for k in range(4):
                r = 4 * R + k
                a(f"v_accvgpr_read_b32 v248, a{A_O+(0*2+qb)*16+r}")
                a(f"v_accvgpr_read_b32 v249, a{A_O+(1*2+qb)*16+r}")
                a(f"v_mul_f32 v248, v248, v{inv}")
                a(f"v_mul_f32 v249, v249, v{inv}")
                a(f"v_cvt_pk_bf16_f32 v{o+k}, v248, v249")
            so = "0" if qb == 0 else "s51"
            a(f"buffer_store_dwordx4 v[{o}:{o+3}], v229, s[{S_OSRD}:{S_OSRD+3}], {so} offen offset:{R*32}")
    if opt.stamp:
        a("s_waitcnt vmcnt(0)")
        st()
        st(real=True)
        st.finish(46)
    a.label("L_attn_done")
    a("s_endpgm")

def main():
    ap = argparse.ArgumentParser()
    ap.add_argument("-o", default=f"cdna_kernels/{NAME}.s")
    ap.add_argument("--rot", type=int, default=1)
    ap.add_argument("--stamp", type=int, default=0)
    for n in ("noK", "noV", "nosm", "noexp", "nolds", "nomfma", "16"):
        ap.add_argument("--abl_" + n, type=int, default=0)
    ap.add_argument("--wgrp", type=int, default=1)
    ap.add_argument("--one_lds_wait", type=int, default=1)
    ap.add_argument("--sm_g0", type=int, default=0)
    ap.add_argument("--sm_g1", type=int, default=57)
    ap.add_argument("--loop_kloads_always", type=int, default=1)
    ap.add_argument("--ldflags", default="")
    opt = ap.parse_args()
    global LDFLAGS
    LDFLAGS = (" " + opt.ldflags.replace("+", " ")) if opt.ldflags else ""
    hdr = open(f"cdna_kernels/{NAME}.s.ref").read().split("\n")
    head = []
    for l in hdr:
        if l.startswith("; Override") or l.startswith("; grid=") or l.startswith("; @launch"):
            continue
        if not l.startswith(";"):
            break
        head.append(l)
    out = "\n".join(head) + "\n"
    out += f"; @launch kernel=prep_kernel grid=(512,1,1) block=(256,1,1) lds={16*KFS}\n"
    out += f"; @launch kernel=attn_kernel grid=(256,1,1) block=(256,1,1) lds={LDS_TOTAL}\n"
    out += '.amdgcn_target "amdgcn-amd-amdhsa--gfx950"\n.text\n'
    a = Asm()
    gen_prep(a, opt)
    out += ".globl prep_kernel\n.p2align 8\n.type prep_kernel,@function\n" + a.text()
    a = Asm()
    gen_attn(a, opt)
    out += ".globl attn_kernel\n.p2align 8\n.type attn_kernel,@function\n" + a.text()
    out += kd("prep_kernel", 184, 96, 184)
    out += kd("attn_kernel", 512, 100, 256)
    open(opt.o, "w").write(out)

if __name__ == "__main__":
    main()
```

```python
import sys, os, argparse, math, struct
sys.path.insert(0, "dev")
from gen import Asm, f32bits, make_srd, rnd2, kd, NAME, Item, I_valu, I_raw, I_salu, I_vm, I_lds, I_wvm, I_wlds, I_mfma, resolve_waits, emit_block
import gen

MF = "v_mfma_f32_16x16x32_bf16"

KS_SS, KS_GS = 576, 144
KSCR = 8 * KS_SS

def k_task_compute(a, u, cs, sc, zr, T, smask, vldsw, exact=True):
    for r in range(4):
        yield r
        x = u + r * 8
        c4 = cs + r * 8
        a(f"v_lshlrev_b32 v{sc+r}, 16, v{sc+r}")
        a(f"v_lshlrev_b32 v{zr+r}, 16, v{zr+r}")
        for c in range(8):
            a(f"v_cvt_f32_i32 v{x+c}, v{x+c}")
        for c in range(8):
            a(f"v_sub_f32 v{x+c}, v{x+c}, v{zr+r}")
        for c in range(0, 8, 2):
            rnd2(a, x + c, x + c + 1, T, smask)
        for c in range(8):
            a(f"v_mul_f32 v{x+c}, v{x+c}, v{sc+r}")
        for c in range(0, 8, 2):
            rnd2(a, x + c, x + c + 1, T, smask)
        for k in range(4):
            src = c4 + 2 * k
            dst = T + 1 + 4 * k
            a(f"v_lshlrev_b32 v{dst}, 16, v{src}")
            a(f"v_and_b32 v{dst+1}, s{smask}, v{src}")
            a(f"v_lshlrev_b32 v{dst+2}, 16, v{src+1}")
            a(f"v_and_b32 v{dst+3}, s{smask}, v{src+1}")
        cA, cB, sA, sB = T + 1, T + 5, T + 9, T + 13
        for c in range(4):
            a(f"v_mul_f32 v{cA+c}, v{x+c}, v{cA+c}")
            a(f"v_mul_f32 v{sA+c}, v{x+4+c}, v{sA+c}")
            a(f"v_mul_f32 v{cB+c}, v{x+4+c}, v{cB+c}")
            a(f"v_mul_f32 v{sB+c}, v{x+c}, v{sB+c}")
        for base in (cA, cB, sA, sB):
            rnd2(a, base, base + 1, T, smask)
            rnd2(a, base + 2, base + 3, T, smask)
        for c in range(4):
            a(f"v_sub_f32 v{cA+c}, v{cA+c}, v{sA+c}")
            a(f"v_add_f32 v{cB+c}, v{cB+c}, v{sB+c}")
        o = T + 18
        assert o % 2 == 0
        a(f"v_cvt_pk_bf16_f32 v{o}, v{cA}, v{cA+1}")
        a(f"v_cvt_pk_bf16_f32 v{o+1}, v{cA+2}, v{cA+3}")
        a(f"v_cvt_pk_bf16_f32 v{o+2}, v{cB}, v{cB+1}")
        a(f"v_cvt_pk_bf16_f32 v{o+3}, v{cB+2}, v{cB+3}")
        a(f"ds_write_b64 v{vldsw}, v[{o}:{o+1}] offset:{r*32}")
        a(f"ds_write_b64 v{vldsw}, v[{o+2}:{o+3}] offset:{r*32 + 4*KS_SS}")

def v_task_compute(a, u, vs, vz, T, O, smask):
    for g2 in range(2):
        for (src, dst) in ((vs + 2 * g2, T + 4 * g2), (vz + 2 * g2, T + 8 + 4 * g2)):
            a(f"v_lshlrev_b32 v{dst}, 16, v{src}")
            a(f"v_and_b32 v{dst+1}, s{smask}, v{src}")
            a(f"v_lshlrev_b32 v{dst+2}, 16, v{src+1}")
            a(f"v_and_b32 v{dst+3}, s{smask}, v{src+1}")
    for j in range(8):
        b = u + j * 4
        for c in range(4):
            a(f"v_cvt_f32_i32 v{b+c}, v{b+c}")
        for c in range(4):
            a(f"v_sub_f32 v{b+c}, v{b+c}, v{T+8+j}")
        rnd2(a, b, b + 1, T + 16, smask)
        rnd2(a, b + 2, b + 3, T + 16, smask)
        for c in range(4):
            a(f"v_mul_f32 v{b+c}, v{b+c}, v{T+j}")
    for db in range(4):
        for jj in range(4):
            a(f"v_cvt_pk_bf16_f32 v{O+db*4+jj}, v{u+(2*jj)*4+db}, v{u+(2*jj+1)*4+db}")

def gen_prep(a, opt):
    a.label("prep_kernel")
    a("s_cmp_ge_u32 s2, 512")
    a("s_cbranch_scc1 L_prep_done")
    a("s_load_dwordx4 s[36:39], s[0:1], 8")
    a("s_load_dwordx4 s[40:43], s[0:1], 24")
    a("s_load_dwordx4 s[44:47], s[0:1], 40")
    a("s_load_dwordx4 s[48:51], s[0:1], 72")
    a("s_load_dwordx2 s[52:53], s[0:1], 104")
    a("s_and_b32 s3, s2, 7")
    a("s_lshr_b32 s4, s2, 3")
    a("v_and_b32 v1, 63, v0")
    a("v_lshrrev_b32 v2, 6, v0")
    a("v_and_b32 v3, 31, v0")
    a("v_bfe_u32 v4, v0, 5, 1")
    a("v_readfirstlane_b32 s5, v2")
    a("s_mov_b32 s72, 0xffff0000")
    a("s_lshl_b32 s6, s3, 21")
    a("s_lshl_b32 s7, s4, 15")
    a("s_add_u32 s6, s6, s7")
    a("s_lshl_b32 s7, s4, 14")
    a("s_lshl_b32 s54, s3, 12")
    a("s_lshl_b32 s55, s4, 6")
    a("s_add_u32 s54, s54, s55")
    a("s_lshl_b32 s55, s3, 20")
    a("s_add_u32 s73, s55, s7")
    a("s_lshr_b32 s74, s4, 2")
    a("s_lshl_b32 s74, s74, 16")
    a("s_add_u32 s74, s74, s55")
    a("s_add_u32 s74, s74, 0x800000")
    a("s_mov_b32 s75, 4096")
    a("s_mov_b32 s77, 16384")
    a("v_lshl_add_u32 v5, v2, 3, v4")
    a("v_lshlrev_b32 v6, 10, v5")
    a("v_lshl_add_u32 v6, v3, 4, v6")
    a("v_lshlrev_b32 v7, 9, v5")
    a("v_lshl_add_u32 v7, v3, 3, v7")
    a("v_lshlrev_b32 v176, 1, v5")
    a("v_and_b32 v184, 15, v0")
    a("v_bfe_u32 v185, v0, 4, 2")
    a("v_lshlrev_b32 v177, 12, v185")
    a("v_lshl_add_u32 v177, v2, 8, v177")
    a("v_lshl_add_u32 v177, v184, 4, v177")
    a("v_lshlrev_b32 v178, 3, v185")
    a("s_waitcnt lgkmcnt(0)")
    make_srd(a, 8, 36, 6, 32768)
    make_srd(a, 12, 48, 7, 16384)
    make_srd(a, 16, 50, 7, 16384)
    make_srd(a, 20, 38, 54, 64)
    make_srd(a, 24, 40, 54, 64)
    make_srd(a, 28, 42, 6, 32768)
    make_srd(a, 56, 44, 54, 64)
    make_srd(a, 60, 46, 54, 64)
    make_srd(a, 64, 52, 73, 16384)
    make_srd(a, 68, 52, 74, 65536)
    for r in range(4):
        so = "0" if r < 2 else "s75"
        io = (r & 1) * 2048
        b = 8 + r * 8
        a(f"buffer_load_dwordx4 v[{b}:{b+3}], v6, s[8:11], {so} offen offset:{io}")
        a(f"buffer_load_dwordx4 v[{b+4}:{b+7}], v6, s[8:11], {so} offen offset:{io+512}")
        b = 40 + r * 8
        a(f"buffer_load_dwordx2 v[{b}:{b+1}], v7, s[12:15], 0 offen offset:{r*1024}")
        a(f"buffer_load_dwordx2 v[{b+2}:{b+3}], v7, s[12:15], 0 offen offset:{r*1024+256}")
        a(f"buffer_load_dwordx2 v[{b+4}:{b+5}], v7, s[16:19], 0 offen offset:{r*1024}")
        a(f"buffer_load_dwordx2 v[{b+6}:{b+7}], v7, s[16:19], 0 offen offset:{r*1024+256}")
        a(f"buffer_load_ushort v{72+r}, v176, s[20:23], 0 offen offset:{r*4}")
        a(f"buffer_load_ushort v{76+r}, v176, s[24:27], 0 offen offset:{r*4}")
    for j in range(8):
        b = 80 + j * 4
        so = "0" if j < 4 else "s77"
        a(f"buffer_load_dwordx4 v[{b}:{b+3}], v177, s[28:31], {so} offen offset:{(j&3)*1024}")
    for g2 in range(2):
        a(f"buffer_load_dwordx2 v[{112+2*g2}:{113+2*g2}], v178, s[56:59], 0 offen offset:{g2*32}")
        a(f"buffer_load_dwordx2 v[{116+2*g2}:{117+2*g2}], v178, s[60:63], 0 offen offset:{g2*32}")
    nV = 12
    a("v_lshrrev_b32 v179, 3, v3")
    a(f"v_mul_u32_u24 v179, {KS_SS}, v179")
    a("v_bfe_u32 v180, v3, 1, 2")
    a(f"v_mul_u32_u24 v180, {KS_GS}, v180")
    a("v_add_u32 v179, v179, v180")
    a("v_and_b32 v180, 1, v3")
    a("v_lshl_add_u32 v179, v180, 3, v179")
    a("v_lshl_add_u32 v179, v4, 4, v179")
    a(f"v_mul_u32_u24 v186, {KSCR}, v2")
    a("v_add_u32 v179, v179, v186")
    for r in k_task_compute(a, 8, 40, 72, 76, 128, 72, 179):
        a(f"s_waitcnt vmcnt({(3-r)*8 + nV})")
    a(f"v_mul_u32_u24 v182, {KS_SS}, v4")
    a("v_bfe_u32 v183, v0, 3, 2")
    a(f"v_mul_u32_u24 v187, {KS_GS}, v183")
    a("v_add_u32 v182, v182, v187")
    a("v_and_b32 v187, 7, v0")
    a("v_lshl_add_u32 v182, v187, 4, v182")
    a("v_add_u32 v182, v182, v186")
    a("v_lshlrev_b32 v188, 10, v4")
    a("v_lshl_add_u32 v188, v183, 8, v188")
    a("v_lshl_add_u32 v188, v187, 4, v188")
    a("s_lshr_b32 s79, s5, 1")
    a("s_lshl_b32 s79, s79, 13")
    a("s_and_b32 s80, s5, 1")
    a("s_lshl_b32 s80, s80, 7")
    a("s_add_u32 s79, s79, s80")
    a("s_add_u32 s80, s79, 4096")
    a("s_waitcnt lgkmcnt(0)")
    for k in range(4):
        a(f"ds_read_b128 v[{8+4*k}:{11+4*k}], v182 offset:{k*2*KS_SS}")
    for k in range(4):
        a(f"s_waitcnt lgkmcnt({3-k})")
        a(f"buffer_store_dwordx4 v[{8+4*k}:{11+4*k}], v188, s[64:67], s{79+(k>>1)} offen offset:{(k&1)*2048}")
    a("s_waitcnt vmcnt(4)")
    v_task_compute(a, 80, 112, 116, 128, 148, 72)
    a("s_and_b32 s81, s4, 3")
    a("s_sub_u32 s81, s81, s5")
    a("s_and_b32 s81, s81, 3")
    a("s_lshl_b32 s81, s81, 10")
    a("s_lshl_b32 s82, s5, 14")
    a("s_add_u32 s81, s81, s82")
    a("v_lshlrev_b32 v181, 4, v1")
    for db in range(4):
        a(f"s_add_u32 s82, s81, {db*4096}")
        a(f"buffer_store_dwordx4 v[{148+4*db}:{151+4*db}], v181, s[68:71], s82 offen")
    a.label("L_prep_done")
    a("s_endpgm")

V_OFF = 1
V_PW = 5
V_PR = 6
V_L = 9
V_S = 16
V_PO = 80
V_PF = 112
V_V = 160
A_O = 0
A_Q = 64
A_K = 192
QFS, QGS = 1088, 272

LDS_Q = 0
LDS_P = 34816
LDS_L = LDS_P + 32768
LDS_TOTAL = LDS_L + 1024

S_KSRD, S_VSRD, S_QSRD, S_CSRD, S_SSRD, S_OSRD = 4, 8, 12, 16, 20, 24
S_KOFF, S_VOFF, S_I, S_ROT, S_C, S_W, S_MASK, S_KUSE = 28, 29, 30, 31, 32, 33, 34, 35
LDFLAGS = ""

def kload(tile, f, soff):
    return I_vm(f"buffer_load_dwordx4 a[{A_K+4*f}:{A_K+4*f+3}], v{V_OFF+(f>>2)}, s[{S_KSRD}:{S_KSRD+3}], s{soff} offen offset:{(f&3)*1024}{LDFLAGS}", ("K", tile, f))
def vload(tile, f, soff):
    return I_vm(f"buffer_load_dwordx4 v[{V_V+4*f}:{V_V+4*f+3}], v{V_OFF+(f>>2)}, s[{S_VSRD}:{S_VSRD+3}], s{soff} offen offset:{(f&3)*1024}{LDFLAGS}", ("V", tile, f))

def softmax_stream(i, opt):
    par = i & 1
    S = V_S + 32 * par
    PO = V_PO + 16 * par
    pairs = []
    for qb in range(4):
        for kb in range(2):
            for h in range(2):
                pairs.append((qb, kb * 2 + h, S + (kb * 4 + qb) * 4 + 2 * h))
    out = []
    n = len(pairs)
    def s1(k):
        qb, jj, r = pairs[k]
        return [I_valu(f"v_exp_f32 v{r}, v{r}", 8), I_valu(f"v_exp_f32 v{r+1}, v{r+1}", 8)]
    def s2(k):
        qb, jj, r = pairs[k]
        l = [I_valu(f"v_add_f32 v{V_L+qb}, v{V_L+qb}, v{r}"),
             I_valu(f"v_add_f32 v{V_L+qb}, v{V_L+qb}, v{r+1}"),
             I_valu(f"v_cvt_pk_bf16_f32 v{PO+qb*4+jj}, v{r}, v{r+1}")]
        w = []
        if jj == 3:
            w = [I_lds(f"ds_write_b128 v{V_PW}, v[{PO+qb*4}:{PO+qb*4+3}] offset:{par*16384+qb*1024}", ("PW", i, qb))]
        return l, w
    for k in range(n + 1):
        e = s1(k) if k < n else None
        if k >= 1:
            l, w = s2(k - 1)
        if e and k >= 1:
            out += [e[0], l[0], e[1], l[1], l[2]] + w
        elif e:
            out += [e[0], e[1]]
        else:
            out += [I_raw("s_nop 0")] + l + w
    return out

def qk_mfmas(t, opt, NT, loads=True):
    mf = []
    S = V_S + 32 * (t & 1)
    for kb in range(2):
        for qb in range(4):
            for s in range(8):
                f = kb * 8 + s
                d = f"v[{S+(kb*4+qb)*4}:{S+(kb*4+qb)*4+3}]"
                c = "0" if s == 0 else d
                pre = []
                if qb == 0 and (s % opt.kgrp == 0):
                    pre.append(I_wvm(("K", t, kb * 8 + min(7, s + opt.kgrp - 1))))
                post = []
                if qb == 3 and loads:
                    post.append(kload(t + 1, f, S_KUSE))
                mf.append([pre, I_mfma(f"{MF} {d}, a[{A_K+4*f}:{A_K+4*f+3}], a[{A_Q+(qb*8+s)*4}:{A_Q+(qb*8+s)*4+3}], {c}"), post])
    return mf

S_VPREV = 53
def respread_loads(mf, i, NT, opt):
    n = len(mf)
    if n != 128 or not opt.spread:
        return []
    NE = 9
    kl = []; vl = []
    for k in range(n):
        for x in mf[k][2]:
            (kl if x.tag[0] == "K" else vl).append((k, x))
        mf[k][2] = []
    for j, (k, x) in enumerate(kl):
        g = 28 + 4 * j
        assert g >= k
        mf[g][2].append(x)
    for j, (k, x) in enumerate(vl):
        if j < NE:
            g = 92 + 4 * j
            assert g >= k, (g, k)
            mf[g][2].append(x)
    for j in range(NE, 16):
        g = 4 * (j - NE)
        mf[g][2].append(vload(i - 1, j, S_VOFF))
    return []


def build_iter(i, opt, NT=16):
    has_qk = (i + 1) < NT
    has_sm = 0 <= i < NT
    has_pv = 1 <= i <= NT
    mf = []
    if has_qk:
        mf += qk_mfmas(i + 1, opt, NT)
    nqk = len(mf)
    if has_pv:
        t = i - 1
        par = t & 1
        for db in range(4):
            for qb in range(4):
                for p in range(4):
                    f = db * 4 + p
                    o = A_O + (db * 4 + qb) * 4
                    b = V_PO + 16 * par + qb * 4 if p == 0 else V_PF + (p - 1) * 16 + qb * 4
                    pre = []
                    if qb == 0 and (p % opt.wgrp == 0):
                        pre.append(I_wvm(("V", t, db * 4 + min(3, p + opt.wgrp - 1))))
                    if db == 0 and qb == 0 and p == 1:
                        pre.append(I_wlds(("PR", t, 3, 3)))
                    post = []
                    if qb == 3 and t + 1 < NT:
                        post.append(vload(t + 1, f, S_VOFF))
                    mf.append([pre, I_mfma(f"{MF} a[{o}:{o+3}], v[{V_V+4*f}:{V_V+4*f+3}], v[{b}:{b+3}], a[{o}:{o+3}]"), post])
    respread_loads(mf, i, NT, opt)
    if opt.spread and i == 15:
        mf[0][2] = [vload(14, j, S_VOFF) for j in range(9, 16)] + mf[0][2]
    reads = []
    if has_pv:
        t = i - 1
        par = t & 1
        for p in range(1, 4):
            for qb in range(4):
                dst = V_PF + (p - 1) * 16 + qb * 4
                reads.append(I_lds(f"ds_read_b128 v[{dst}:{dst+3}], v{V_PR+p-1} offset:{par*16384+qb*1024}", ("PR", t, p, qb)))
    sm = softmax_stream(i, opt) if has_sm else []
    head = []
    if has_qk:
        head.append(I_salu(f"s_add_u32 s{S_KOFF}, s{S_KOFF}, 0x10000"))
        head.append(I_salu(f"s_and_b32 s{S_KOFF}, s{S_KOFF}, 0xfffff"))
        head.append(I_salu(f"s_cmp_lt_u32 s{S_I}, {NT-2}"))
        head.append(I_salu(f"s_cselect_b32 s{S_KUSE}, s{S_KOFF}, 0x100000"))
    if has_pv:
        vup = [I_salu(f"s_add_u32 s{S_VOFF}, s{S_VOFF}, 0x10000"), I_salu(f"s_and_b32 s{S_VOFF}, s{S_VOFF}, 0xfffff")]
        if len(mf) == 128 and opt.spread:
            mf[41][2] += vup
        else:
            head += vup
    n = len(mf)
    return ablate(schedule(mf, head, reads, sm, nqk, opt), opt)

def slots(x):
    if x.kind in ("wvm", "wlds"): return 1
    if x.kind == "raw" and x.text.startswith("s_nop"): return 1
    return 2 if x.cost == 8 else 1

def schedule(mf, head, reads, sm, nqk, opt):
    n = len(mf)
    CAP = opt.cap
    gaps = [[] for _ in range(n)]
    used = [0] * n
    for k, (pre, m, post) in enumerate(mf):
        used[k] += sum(slots(x) for x in post)
        if k > 0:
            used[k - 1] += sum(slots(x) for x in pre)
    q = list(head) + list(reads)
    g = 0
    if nqk == 0:
        for x in q:
            gaps[0].append(x); used[0] += slots(x)
        q = []
    for x in q:
        while g < n - 1 and used[g] + slots(x) > CAP:
            g += 1
        gaps[g].append(x); used[g] += slots(x)
        if x.kind == "lds" and opt.read_spread: g = min(n - 1, g + opt.read_spread)
    if sm:
        g0 = opt.sm_g0 if n == 128 else 0
        g1 = min(opt.sm_g1, n - 1) if n == 128 else n - 1
        tot = sum(slots(x) for x in sm)
        free = sum(max(0, CAP - used[k]) for k in range(g0, g1 + 1))
        ratio = min(1.0, tot / max(free, 1))
        g = g0
        budget = 0.0
        idx = 0
        for k in range(g0, n):
            room = CAP - used[k]
            if k <= g1:
                budget += max(0, room) * ratio if opt.pace else max(0, room)
            else:
                budget += 100
            while idx < len(sm) and slots(sm[idx]) <= room and budget >= slots(sm[idx]) - 1e-9 + (0 if opt.pace else 0):
                x = sm[idx]; gaps[k].append(x); used[k] += slots(x); room -= slots(x); budget -= slots(x); idx += 1
            if k == n - 1:
                while idx < len(sm):
                    gaps[k].append(sm[idx]); idx += 1
    items = []
    for k, (pre, m, post) in enumerate(mf):
        items += pre
        items.append(m)
        items += post
        items += gaps[k]
    return items

def ablate(items, opt):
    out = []
    for it in items:
        if opt.abl_noK and it.kind in ("vm", "wvm") and it.tag[0] == "K" and it.tag[1] >= 2:
            continue
        if opt.abl_noV and it.kind in ("vm", "wvm") and it.tag[0] == "V":
            continue
        if opt.abl_nosm and it.kind == "valu":
            continue
        if opt.abl_nomfma and it.kind == "mfma":
            continue
        out.append(it)
    return out

def rope_q(a, src, out, T, opt):
    M = S_MASK
    for t in range(4):
        ql, qh, cl, ch, sl, sh = (src + 4 * k + t for k in range(6))
        a0, a1, b0, b1 = T, T + 1, T + 2, T + 3
        x = T + 4
        a(f"v_lshlrev_b32 v{a0}, 16, v{ql}"); a(f"v_and_b32 v{a1}, s{M}, v{ql}")
        a(f"v_lshlrev_b32 v{b0}, 16, v{qh}"); a(f"v_and_b32 v{b1}, s{M}, v{qh}")
        a(f"v_mul_f32 v{a0}, s{S_C}, v{a0}"); a(f"v_mul_f32 v{a1}, s{S_C}, v{a1}")
        a(f"v_mul_f32 v{b0}, s{S_C}, v{b0}"); a(f"v_mul_f32 v{b1}, s{S_C}, v{b1}")
        a(f"v_lshlrev_b32 v{x}, 16, v{cl}"); a(f"v_and_b32 v{x+1}, s{M}, v{cl}")
        a(f"v_lshlrev_b32 v{x+2}, 16, v{sl}"); a(f"v_and_b32 v{x+3}, s{M}, v{sl}")
        a(f"v_lshlrev_b32 v{x+4}, 16, v{ch}"); a(f"v_and_b32 v{x+5}, s{M}, v{ch}")
        a(f"v_lshlrev_b32 v{x+6}, 16, v{sh}"); a(f"v_and_b32 v{x+7}, s{M}, v{sh}")
        a(f"v_mul_f32 v{x}, v{a0}, v{x}"); a(f"v_mul_f32 v{x+1}, v{a1}, v{x+1}")
        a(f"v_mul_f32 v{x+4}, v{b0}, v{x+4}"); a(f"v_mul_f32 v{x+5}, v{b1}, v{x+5}")
        a(f"v_fma_f32 v{x}, -v{b0}, v{x+2}, v{x}"); a(f"v_fma_f32 v{x+1}, -v{b1}, v{x+3}, v{x+1}")
        a(f"v_fma_f32 v{x+4}, v{a0}, v{x+6}, v{x+4}"); a(f"v_fma_f32 v{x+5}, v{a1}, v{x+7}, v{x+5}")
        a(f"v_cvt_pk_bf16_f32 v{out+t}, v{x}, v{x+1}")
        a(f"v_cvt_pk_bf16_f32 v{out+4+t}, v{x+4}, v{x+5}")

class Stamper(gen.Stamper):
    pass

def gen_attn(a, opt):
    NT = 16
    st = Stamper(a, opt)
    a.label("attn_kernel")
    a("s_cmp_ge_u32 s2, 256")
    a("s_cbranch_scc1 L_attn_done")
    st()
    a("s_load_dwordx2 s[36:37], s[0:1], 0")
    a("s_load_dwordx4 s[40:43], s[0:1], 56")
    a("s_load_dwordx2 s[44:45], s[0:1], 88")
    a("s_load_dwordx2 s[46:47], s[0:1], 104")
    a("s_and_b32 s38, s2, 7")
    a("s_lshr_b32 s39, s2, 3")
    a("v_and_b32 v16, 63, v0")
    a("v_lshrrev_b32 v17, 6, v0")
    a("v_and_b32 v18, 15, v0")
    a("v_bfe_u32 v19, v0, 4, 2")
    a(f"v_readfirstlane_b32 s{S_W}, v17")
    a(f"s_mov_b32 s{S_MASK}, 0xffff0000")
    a(f"s_mov_b32 s{S_C}, 0x{f32bits(math.log2(math.e)/16.0):08x}")
    if opt.rot:
        a(f"s_and_b32 s{S_ROT}, s39, 15")
    else:
        a(f"s_mov_b32 s{S_ROT}, 0")
    a(f"v_lshlrev_b32 v{V_OFF}, 4, v16")
    a(f"v_lshl_add_u32 v{V_OFF}, v17, 14, v{V_OFF}")
    for k in range(1, 4):
        a(f"v_add_u32 v{V_OFF+k}, {4096*k}, v{V_OFF}")
    a(f"v_lshlrev_b32 v20, 4, v16")
    a(f"v_add_u32 v20, {LDS_P}, v20")
    a(f"v_lshl_add_u32 v{V_PW}, v17, 12, v20")
    for t in range(1, 4):
        a(f"v_add_u32 v21, {t}, v17")
        a(f"v_and_b32 v21, 3, v21")
        a(f"v_lshl_add_u32 v{V_PR+t-1}, v21, 12, v20")
    a("v_lshl_add_u32 v24, v17, 4, v19")
    a("v_lshlrev_b32 v224, 9, v24")
    a("v_lshl_add_u32 v224, v18, 4, v224")
    a(f"v_mul_u32_u24 v225, {8*QFS}, v17")
    a("v_lshrrev_b32 v25, 2, v18")
    a(f"v_mul_u32_u24 v25, {QFS}, v25")
    a("v_add_u32 v225, v225, v25")
    a("v_and_b32 v25, 3, v18")
    a(f"v_mul_u32_u24 v25, {QGS}, v25")
    a("v_add_u32 v225, v225, v25")
    a("v_lshl_add_u32 v225, v19, 4, v225")
    a(f"v_mul_u32_u24 v226, {QGS}, v19")
    a("v_lshl_add_u32 v226, v18, 4, v226")
    a(f"v_lshlrev_b32 v228, 4, v18")
    a(f"v_add_u32 v228, {LDS_L}, v228")
    a(f"v_lshl_add_u32 v227, v17, 2, v228")
    a("v_lshlrev_b32 v229, 9, v18")
    a("v_lshl_add_u32 v229, v17, 7, v229")
    a("v_lshl_add_u32 v229, v19, 5, v229")
    a("s_waitcnt lgkmcnt(0)")
    if opt.stamp == 2: st()
    a("s_lshl_b32 s48, s38, 20")
    make_srd(a, S_KSRD, 46, 48, 0x100000)
    a("s_add_u32 s48, s48, 0x800000")
    make_srd(a, S_VSRD, 46, 48, 0x100000)
    a("s_lshl_b32 s48, s38, 20")
    a("s_lshl_b32 s49, s39, 15")
    a("s_add_u32 s48, s48, s49")
    make_srd(a, S_QSRD, 36, 48, 32768)
    make_srd(a, S_OSRD, 44, 48, 32768)
    make_srd(a, S_CSRD, 40, 49, 32768)
    make_srd(a, S_SSRD, 42, 49, 32768)
    a("s_mov_b32 s50, 4096")
    for it in range(4):
        so = "0" if it < 2 else "s50"
        io = (it & 1) * 2048
        b = 16 + 24 * it
        for k, srd in enumerate((S_QSRD, S_CSRD, S_SSRD)):
            a(f"buffer_load_dwordx4 v[{b+8*k}:{b+8*k+3}], v224, s[{srd}:{srd+3}], {so} offen offset:{io}")
            a(f"buffer_load_dwordx4 v[{b+8*k+4}:{b+8*k+7}], v224, s[{srd}:{srd+3}], {so} offen offset:{io+256}")
    a(f"s_lshl_b32 s{S_KOFF}, s{S_ROT}, 16")
    a(f"s_mov_b32 s{S_VOFF}, s{S_KOFF}")
    a(f"s_mov_b32 s{S_KUSE}, s{S_KOFF}")
    nv0 = 0 if opt.spread else 16
    pro = [kload(0, f, S_KUSE) for f in range(16)] + [vload(0, f, S_VOFF) for f in range(nv0)]
    for it in pro:
        a(it.text)
    for r in range(64):
        a(f"v_accvgpr_write_b32 a{A_O+r}, 0")
    for r in range(4):
        a(f"v_mov_b32 v{V_L+r}, 0")
    for it in range(4):
        a(f"s_waitcnt vmcnt({16 + nv0 + (3 - it) * 6})")
        if it == 0: st()
        rope_q(a, 16 + 24 * it, 232, 240, opt)
        a(f"ds_write_b128 v225, v[232:235] offset:{it*64}")
        a(f"ds_write_b128 v225, v[236:239] offset:{it*64 + 4*QFS}")
    a("s_waitcnt lgkmcnt(0)")
    a("s_barrier")
    for qb in range(4):
        for s in range(8):
            b = A_Q + (qb * 8 + s) * 4
            a(f"ds_read_b128 a[{b}:{b+3}], v226 offset:{(qb*8+s)*QFS}")
    a("s_waitcnt lgkmcnt(0)")
    st()
    pre = []
    pre.append(I_salu(f"s_add_u32 s{S_KOFF}, s{S_KOFF}, 0x10000"))
    pre.append(I_salu(f"s_and_b32 s{S_KOFF}, s{S_KOFF}, 0xfffff"))
    pre.append(I_salu(f"s_mov_b32 s{S_KUSE}, s{S_KOFF}"))
    for (p_, m, post) in qk_mfmas(0, opt, NT):
        pre += p_ + [m] + post
    pre.append(I_raw("s_nop 7"))
    pre.append(I_salu(f"s_mov_b32 s{S_I}, 0"))
    endbar = [I_wlds("all"), I_raw("s_barrier")]
    blocks = [("pro", pro), ("pre", pre)]
    it0 = build_iter(0, opt) + ([vload(0, f, S_VOFF) for f in range(9)] if opt.spread else []) + endbar + [I_salu(f"s_mov_b32 s{S_I}, 1")]
    blocks.append(("it0", it0))
    stat = {}
    for i in range(1, 15):
        items = build_iter(i, opt) + [I_salu(f"s_add_u32 s{S_I}, s{S_I}, 1")]
        if i % 2 == 0:
            items = items + [I_salu(f"s_cmp_lt_u32 s{S_I}, 15")]
        items = items + endbar
        nm = "odd" if i % 2 else "even"
        blocks.append((nm, items))
        if nm not in stat:
            stat[nm] = items
        else:
            assert [x.text for x in stat[nm]] == [x.text for x in items], nm
    it15 = build_iter(15, opt)
    red = []
    for qb in range(4):
        l = V_L + qb
        red.append(I_valu(f"v_mov_b32 v{232+qb}, v{l}"))
    red.append(I_raw("s_nop 1"))
    for qb in range(4):
        red.append(I_valu(f"v_permlane32_swap_b32 v{232+qb}, v{V_L+qb}"))
    red.append(I_raw("s_nop 1"))
    for qb in range(4):
        red.append(I_valu(f"v_add_f32 v{V_L+qb}, v{V_L+qb}, v{232+qb}"))
    for qb in range(4):
        red.append(I_valu(f"v_mov_b32 v{232+qb}, v{V_L+qb}"))
    red.append(I_raw("s_nop 1"))
    for qb in range(4):
        red.append(I_valu(f"v_permlane16_swap_b32 v{232+qb}, v{V_L+qb}"))
    red.append(I_raw("s_nop 1"))
    for qb in range(4):
        red.append(I_valu(f"v_add_f32 v{V_L+qb}, v{V_L+qb}, v{232+qb}"))
    for qb in range(4):
        red.append(I_lds(f"ds_write_b32 v227, v{V_L+qb} offset:{qb*256}", ("LW", qb)))
    it15 += red + endbar
    blocks.append(("it15", it15))
    it16 = build_iter(16, opt)
    blocks.append(("it16", it16))
    waits = resolve_waits(blocks)
    emit_block(a, "pre", pre, waits)
    emit_block(a, "it0", it0, waits)
    st()
    a.label("L_loop")
    emit_block(a, "odd", stat["odd"], waits)
    emit_block(a, "even", stat["even"], waits)
    a("s_cbranch_scc1 L_loop")
    st()
    emit_block(a, "it15", it15, waits)
    for qb in range(4):
        a(f"ds_read_b128 v[{232+4*qb}:{235+4*qb}], v228 offset:{qb*256}")
    emit_block(a, "it16", it16, waits)
    a("s_waitcnt lgkmcnt(0)")
    for qb in range(4):
        b = 232 + 4 * qb
        a(f"v_add_f32 v{b}, v{b}, v{b+1}"); a(f"v_add_f32 v{b+2}, v{b+2}, v{b+3}")
        a(f"v_add_f32 v{b}, v{b}, v{b+2}")
        a(f"v_rcp_f32 v{b}, v{b}")
    a("s_nop 7")
    if opt.stamp != 2: st()
    a("s_mov_b32 s51, 8192")
    for qb in range(4):
        inv = 232 + 4 * qb
        for half in range(2):
            o = 16 + (qb * 2 + half) * 4
            for kk in range(4):
                k = half * 4 + kk
                r = k >> 1
                c = 2 * (k & 1)
                a(f"v_accvgpr_read_b32 v248, a{A_O+((c)*4+qb)*4+r}")
                a(f"v_accvgpr_read_b32 v249, a{A_O+((c+1)*4+qb)*4+r}")
                a(f"v_mul_f32 v248, v248, v{inv}")
                a(f"v_mul_f32 v249, v249, v{inv}")
                a(f"v_cvt_pk_bf16_f32 v{o+kk}, v248, v249")
            if qb == 0: so = "0"
            else:
                so = "s52"
                if half == 0: a(f"s_mov_b32 s52, {qb*8192}")
            a(f"buffer_store_dwordx4 v[{o}:{o+3}], v229, s[{S_OSRD}:{S_OSRD+3}], {so} offen offset:{half*16}")
    if opt.stamp:
        a("s_waitcnt vmcnt(0)")
        st()
        st.finish(46)
    a.label("L_attn_done")
    a("s_endpgm")

def header():
    hdr = open(f"cdna_kernels/{NAME}.s.ref").read().split("\n")
    head = []
    for l in hdr:
        if l.startswith("; Override") or l.startswith("; grid=") or l.startswith("; @launch"):
            continue
        if not l.startswith(";"):
            break
        head.append(l)
    return "\n".join(head) + "\n"

def main():
    ap = argparse.ArgumentParser()
    ap.add_argument("-o", default=f"cdna_kernels/{NAME}.s")
    ap.add_argument("--rot", type=int, default=1)
    ap.add_argument("--stamp", type=int, default=0)
    ap.add_argument("--wgrp", type=int, default=4)
    ap.add_argument("--kgrp", type=int, default=8)
    ap.add_argument("--spread", type=int, default=1)
    ap.add_argument("--cap", type=int, default=2)
    ap.add_argument("--pace", type=int, default=1)
    ap.add_argument("--read_spread", type=int, default=1)
    ap.add_argument("--sm_g0", type=int, default=0)
    ap.add_argument("--sm_g1", type=int, default=117)
    ap.add_argument("--ldflags", default="")
    for n in ("noK", "noV", "nosm", "nomfma"):
        ap.add_argument("--abl_" + n, type=int, default=0)
    opt = ap.parse_args()
    global LDFLAGS
    LDFLAGS = (" " + opt.ldflags.replace("+", " ")) if opt.ldflags else ""
    out = header()
    out += f"; @launch kernel=prep_kernel grid=(512,1,1) block=(256,1,1) lds={4*KSCR}\n"
    out += f"; @launch kernel=attn_kernel grid=(256,1,1) block=(256,1,1) lds={LDS_TOTAL}\n"
    out += '.amdgcn_target "amdgcn-amd-amdhsa--gfx950"\n.text\n'
    a = Asm()
    gen_prep(a, opt)
    out += ".globl prep_kernel\n.p2align 8\n.type prep_kernel,@function\n" + a.text()
    a = Asm()
    gen_attn(a, opt)
    out += ".globl attn_kernel\n.p2align 8\n.type attn_kernel,@function\n" + a.text()
    out += kd("prep_kernel", 192, 96, 192)
    out += kd("attn_kernel", 512, 100, 256)
    open(opt.o, "w").write(out)

if __name__ == "__main__":
    main()
```

```python
import sys, os, argparse, math, struct
sys.path.insert(0, "dev")
from gen import Asm, f32bits, make_srd, kd, NAME, Item, I_valu, I_raw, I_salu, I_vm, I_lds, I_wvm, I_wlds, I_mfma, resolve_waits, emit_block
import gen, gen2
from gen2 import (MF, V_OFF, V_PW, V_PR, V_L, V_S, V_PO, V_PF, V_V, A_O, A_Q, A_K, QFS, QGS,
                  S_KSRD, S_VSRD, S_QSRD, S_CSRD, S_SSRD, S_OSRD, S_KOFF, S_VOFF, S_I, S_ROT, S_C, S_W, S_MASK, S_KUSE,
                  kload, vload, softmax_stream, qk_mfmas, schedule, respread_loads, rope_q, header)

KNAME = NAME + "_kernel"

LDS_Q = 0
LDS_P = 0
LDS_L = 34816
LDS_WK = LDS_L + 1024
LDS_SC = LDS_WK + 4096
LDS_TOTAL = LDS_SC + 4 * 2560

S_RAWK, S_RAWV, S_KCOS, S_KSIN = 56, 60, 64, 68
S_KSC, S_KZ, S_VSC, S_VZ = 72, 76, 80, 84
S_DBG = 88
S_J = 90
S_NEED = 91
S_T0, S_T1, S_T2, S_T3, S_T4 = 92, 93, 94, 95, 96
S_SPIN = 97
S_SO = 98
S_HEAD = 99
S_NONCE = 39
S_FLG = 50
S_RANGE = 53
V_NON = 193
V_FLAG = 13
V_FADDR = 14
class RM: pass
PR = RM()
PR.kraw, PR.krr, PR.ksc, PR.kst, PR.vraw, PR.vsc, PR.vst = 1, 2, 3, 4, 5, 6, 7
PR.wk = 160
V_WQ = 176
V_QPOS = 184
V_QW = 8; V_QR = 9; SCA = 10; SCB = 194; V_QOFF = 14
V_LW = 231; V_LR = 232; V_OUT = 233
V_STAMP = 15
V_TMP = 240
PUBT = 158
R = PR

class Stamp:
    def __init__(self, a, opt):
        self.a = a; self.on = opt.stamp; self.n = 0
    def __call__(self, again=False):
        if not self.on: return
        if again: self.n -= 1
        a = self.a
        a("s_memtime s[54:55]")
        a("s_memrealtime s[100:101]")
        a("s_waitcnt lgkmcnt(0)")
        a(f"v_writelane_b32 v{V_STAMP}, s54, {2*self.n}")
        a(f"v_writelane_b32 v{V_STAMP}, s100, {2*self.n+1}")
        self.n += 1
    def dyn(self, base):
        if self.on != 3: return
        a = self.a
        a("s_memtime s[54:55]")
        a("s_memrealtime s[100:101]")
        a(f"s_add_u32 s52, s{S_I}, {base}")
        a("s_lshl_b32 s52, s52, 1")
        a("s_waitcnt lgkmcnt(0)")
        a("s_mov_b32 m0, s52")
        a("s_nop 1")
        a(f"v_writelane_b32 v{V_STAMP}, s54, m0")
        a("s_add_u32 m0, s52, 1")
        a("s_nop 1")
        a(f"v_writelane_b32 v{V_STAMP}, s100, m0")
    def finish(self):
        if not self.on: return
        a = self.a
        a("s_waitcnt vmcnt(0)")
        a(f"s_lshl_b32 s46, s{S_J}, 3")
        a(f"s_add_u32 s46, s46, s{S_HEAD}")
        a(f"s_lshl_b32 s46, s46, 10")
        a(f"s_lshl_b32 s47, s{S_W}, 8")
        a("s_add_u32 s46, s46, s47")
        a("s_add_u32 s46, s46, 0x8000000")
        a("s_add_u32 s46, s36, s46")
        a("s_addc_u32 s47, s37, 0")
        a("v_and_b32 v16, 63, v0")
        a("v_lshlrev_b32 v16, 2, v16")
        a(f"global_store_dword v16, v{V_STAMP}, s[46:47]")
        a("s_waitcnt vmcnt(0)")

STF = " sc1"

def k_task_loads(a, X, rowreg):
    a(f"s_lshl_b32 s{S_T0}, s{rowreg}, 10")
    for c in range(4):
        for hf in range(2):
            b = X + c * 8 + hf * 4
            a(f"buffer_load_dwordx4 v[{b}:{b+3}], v{R.kraw}, s[{S_RAWK}:{S_RAWK+3}], s{S_T0} offen offset:{c*256+hf*16}")
    return 8

def k_task_scale_loads(a, rowreg, dst):
    a(f"s_lshl_b32 s{S_T2}, s{rowreg}, 1")
    a(f"buffer_load_ushort v{dst}, v{R.ksc}, s[{S_KSC}:{S_KSC+3}], s{S_T2} offen")
    a(f"buffer_load_ushort v{dst+1}, v{R.ksc}, s[{S_KZ}:{S_KZ+3}], s{S_T2} offen")
    return 2

LOG2_10000_128 = math.log2(10000.0) / 128.0
LOG2_2PI = math.log2(2 * math.pi)

def freq_consts(a, dst, n, dbase_v, offs, tmp):
    a(f"s_mov_b32 s{S_T0}, 0x{f32bits(-LOG2_10000_128):08x}")
    for k in range(n):
        b = -LOG2_10000_128 * offs[k] - LOG2_2PI
        a(f"v_mov_b32 v{dst+k}, 0x{f32bits(b):08x}")
    for k in range(n):
        a(f"v_fma_f32 v{dst+k}, v{dbase_v}, s{S_T0}, v{dst+k}")
    for k in range(n):
        a(f"v_exp_f32 v{dst+k}, v{dst+k}")
    a("s_nop 0")

def sincos2(a, pos, w0, w1, t):
    a(f"v_mul_f32 v{t}, v{pos}, v{w0}")
    a(f"v_mul_f32 v{t+2}, v{pos}, v{w1}")
    a(f"v_fract_f32 v{t}, v{t}")
    a(f"v_fract_f32 v{t+2}, v{t+2}")
    a(f"v_sin_f32 v{t+1}, v{t}")
    a(f"v_sin_f32 v{t+3}, v{t+2}")
    a(f"v_cos_f32 v{t}, v{t}")
    a(f"v_cos_f32 v{t+2}, v{t+2}")

def k_task_compute(a, X, sc, T, rowreg):
    a(f"v_lshlrev_b32 v{sc}, 16, v{sc}")
    a(f"v_lshlrev_b32 v{sc+1}, 16, v{sc+1}")
    a(f"v_mul_f32 v{sc+1}, v{sc+1}, v{sc}")
    pos = T + 10
    a(f"v_cvt_f32_u32 v{pos}, v{R.krr}")
    a(f"v_cvt_f32_u32 v{pos+1}, s{rowreg}")
    for k in range(32):
        a(f"v_cvt_f32_i32 v{X+k}, v{X+k}")
    a(f"v_add_f32 v{pos}, v{pos}, v{pos+1}")
    for k in range(32):
        a(f"v_fma_f32 v{X+k}, v{X+k}, v{sc}, -v{sc+1}")
    for c in range(2):
        for k in range(4):
            x1 = X + c * 8 + 2 * k
            x2 = X + (c + 2) * 8 + 2 * k
            t = T + (k & 1) * 4 if False else T
            sincos2(a, pos, R.wk + c * 8 + 2 * k, R.wk + c * 8 + 2 * k + 1, t)
            u = T + 4
            a(f"v_mul_f32 v{u}, v{x2}, v{t+1}")
            a(f"v_mul_f32 v{u+1}, v{x2+1}, v{t+3}")
            a(f"v_mul_f32 v{u+2}, v{x1}, v{t+1}")
            a(f"v_mul_f32 v{u+3}, v{x1+1}, v{t+3}")
            a(f"v_fma_f32 v{u}, v{x1}, v{t}, -v{u}")
            a(f"v_fma_f32 v{u+1}, v{x1+1}, v{t+2}, -v{u+1}")
            a(f"v_fma_f32 v{u+2}, v{x2}, v{t}, v{u+2}")
            a(f"v_fma_f32 v{u+3}, v{x2+1}, v{t+2}, v{u+3}")
            a(f"v_cvt_pk_bf16_f32 v{X+c*8+k}, v{u}, v{u+1}")
            a(f"v_cvt_pk_bf16_f32 v{X+(c+2)*8+k}, v{u+2}, v{u+3}")
    a(f"s_lshr_b32 s{S_T0}, s{rowreg}, 4")
    a(f"s_lshl_b32 s{S_T0}, s{S_T0}, 13")
    a(f"s_and_b32 s{S_T1}, s{rowreg}, 8")
    a(f"s_lshl_b32 s{S_T1}, s{S_T1}, 4")
    a(f"s_add_u32 s{S_T0}, s{S_T0}, s{S_T1}")
    a(f"s_add_u32 s{S_T1}, s{S_T0}, 4096")
    for c in range(4):
        b = X + c * 8
        so = S_T0 if c < 2 else S_T1
        a(f"buffer_store_dwordx4 v[{b}:{b+3}], v{R.kst}, s[{S_KSRD}:{S_KSRD+3}], s{so} offen offset:{(c&1)*2048}{STF}")

def rope_q2(a, src, out, T, pos, wq):
    M = S_MASK
    for t4 in range(4):
        ql, qh = src + t4, src + 4 + t4
        t = T; u = T + 4; q = T + 8
        sincos2(a, pos, wq + 2 * t4, wq + 2 * t4 + 1, t)
        a(f"v_lshlrev_b32 v{q}, 16, v{ql}"); a(f"v_and_b32 v{q+1}, s{M}, v{ql}")
        a(f"v_lshlrev_b32 v{q+2}, 16, v{qh}"); a(f"v_and_b32 v{q+3}, s{M}, v{qh}")
        for k in range(4):
            a(f"v_mul_f32 v{t+k}, s{S_C}, v{t+k}")
        a(f"v_mul_f32 v{u}, v{q+2}, v{t+1}")
        a(f"v_mul_f32 v{u+1}, v{q+3}, v{t+3}")
        a(f"v_mul_f32 v{u+2}, v{q}, v{t+1}")
        a(f"v_mul_f32 v{u+3}, v{q+1}, v{t+3}")
        a(f"v_fma_f32 v{u}, v{q}, v{t}, -v{u}")
        a(f"v_fma_f32 v{u+1}, v{q+1}, v{t+2}, -v{u+1}")
        a(f"v_fma_f32 v{u+2}, v{q+2}, v{t}, v{u+2}")
        a(f"v_fma_f32 v{u+3}, v{q+3}, v{t+2}, v{u+3}")
        a(f"v_cvt_pk_bf16_f32 v{out+t4}, v{u}, v{u+1}")
        a(f"v_cvt_pk_bf16_f32 v{out+4+t4}, v{u+2}, v{u+3}")

def v_task_loads(a, X, treg, wreg):
    a(f"s_lshl_b32 s{S_T0}, s{treg}, 15")
    a(f"s_lshl_b32 s{S_T1}, s{wreg}, 8")
    a(f"s_add_u32 s{S_T0}, s{S_T0}, s{S_T1}")
    a(f"s_add_u32 s{S_T1}, s{S_T0}, 16384")
    for j in range(8):
        b = X + j * 4
        so = S_T0 if j < 4 else S_T1
        a(f"buffer_load_dwordx4 v[{b}:{b+3}], v{R.vraw}, s[{S_RAWV}:{S_RAWV+3}], s{so} offen offset:{(j&3)*1024}")
    a(f"s_lshl_b32 s{S_T2}, s{treg}, 6")
    for g2 in range(2):
        a(f"buffer_load_dwordx2 v[{X+32+2*g2}:{X+33+2*g2}], v{R.vsc}, s[{S_VSC}:{S_VSC+3}], s{S_T2} offen offset:{g2*32}")
        a(f"buffer_load_dwordx2 v[{X+36+2*g2}:{X+37+2*g2}], v{R.vsc}, s[{S_VZ}:{S_VZ+3}], s{S_T2} offen offset:{g2*32}")
    return 12

def v_task_compute(a, X, treg, wreg, SC=None, TT=None):
    M = S_MASK
    if SC is None: SC = X + 32
    if TT is None: TT = X + 40
    S8 = TT; Z8 = TT + 8
    for g2 in range(2):
        for (src, dst) in ((SC + 2 * g2, S8 + 4 * g2), (SC + 4 + 2 * g2, Z8 + 4 * g2)):
            a(f"v_lshlrev_b32 v{dst}, 16, v{src}")
            a(f"v_and_b32 v{dst+1}, s{M}, v{src}")
            a(f"v_lshlrev_b32 v{dst+2}, 16, v{src+1}")
            a(f"v_and_b32 v{dst+3}, s{M}, v{src+1}")
    for j in range(8):
        a(f"v_mul_f32 v{Z8+j}, v{Z8+j}, v{S8+j}")
    for j in range(8):
        for c in range(4):
            a(f"v_cvt_f32_i32 v{X+4*j+c}, v{X+4*j+c}")
    for j in range(8):
        for c in range(4):
            a(f"v_fma_f32 v{X+4*j+c}, v{X+4*j+c}, v{S8+j}, -v{Z8+j}")
    O = TT
    for db in range(4):
        for jj in range(4):
            a(f"v_cvt_pk_bf16_f32 v{O+db*4+jj}, v{X+(2*jj)*4+db}, v{X+(2*jj+1)*4+db}")
    a(f"s_lshr_b32 s{S_T0}, s{treg}, 2")
    a(f"s_lshl_b32 s{S_T0}, s{S_T0}, 16")
    a(f"s_lshl_b32 s{S_T1}, s{wreg}, 14")
    a(f"s_add_u32 s{S_T0}, s{S_T0}, s{S_T1}")
    a(f"s_sub_u32 s{S_T1}, s{treg}, s{wreg}")
    a(f"s_and_b32 s{S_T1}, s{S_T1}, 3")
    a(f"s_lshl_b32 s{S_T1}, s{S_T1}, 10")
    a(f"s_add_u32 s{S_T0}, s{S_T0}, s{S_T1}")
    for db in range(4):
        if db:
            a(f"s_add_u32 s{S_T0}, s{S_T0}, 4096")
        a(f"buffer_store_dwordx4 v[{O+4*db}:{O+4*db+3}], v{R.vst}, s[{S_VSRD}:{S_VSRD+3}], s{S_T0} offen{STF}")

def v_task_raw_loads(a, X, treg, wreg):
    a(f"s_lshl_b32 s{S_T0}, s{treg}, 15")
    a(f"s_lshl_b32 s{S_T1}, s{wreg}, 8")
    a(f"s_add_u32 s{S_T0}, s{S_T0}, s{S_T1}")
    a(f"s_add_u32 s{S_T1}, s{S_T0}, 16384")
    for j in range(8):
        b = X + j * 4
        so = S_T0 if j < 4 else S_T1
        a(f"buffer_load_dwordx4 v[{b}:{b+3}], v{R.vraw}, s[{S_RAWV}:{S_RAWV+3}], s{so} offen offset:{(j&3)*1024}")
    return 8

def v_task_scale_loads(a, SC, treg):
    a(f"s_lshl_b32 s{S_T2}, s{treg}, 6")
    for g2 in range(2):
        a(f"buffer_load_dwordx2 v[{SC+2*g2}:{SC+1+2*g2}], v{R.vsc}, s[{S_VSC}:{S_VSC+3}], s{S_T2} offen offset:{g2*32}")
        a(f"buffer_load_dwordx2 v[{SC+4+2*g2}:{SC+5+2*g2}], v{R.vsc}, s[{S_VZ}:{S_VZ+3}], s{S_T2} offen offset:{g2*32}")
    return 4

S_PK, S_PT, S_PW = 40, 41, 42
S_PK2, S_PT2, S_PW2 = 43, 44, 45

def task_params(a, rnd, pk, pt, pw):
    a(f"s_and_b32 s{S_T0}, s{S_W}, 1")
    a(f"s_lshl_b32 s{S_T1}, s{S_J}, 1")
    a(f"s_add_u32 s{S_T0}, s{S_T0}, s{S_T1}")
    a(f"s_lshl_b32 s{pk}, s{S_T0}, 3")
    a(f"s_add_u32 s{pk}, s{pk}, {512*rnd}")
    a(f"s_lshr_b32 s{pt}, s{S_T0}, 2")
    a(f"s_add_u32 s{pt}, s{pt}, {16*rnd}")
    a(f"s_and_b32 s{pw}, s{S_T0}, 3")

def task_params_s(a, rreg, pk, pt, pw):
    a(f"s_and_b32 s{S_T0}, s{S_W}, 1")
    a(f"s_lshl_b32 s{S_T1}, s{S_J}, 1")
    a(f"s_add_u32 s{S_T0}, s{S_T0}, s{S_T1}")
    a(f"s_lshl_b32 s{pk}, s{S_T0}, 3")
    a(f"s_lshl_b32 s{S_T1}, s{rreg}, 9")
    a(f"s_add_u32 s{pk}, s{pk}, s{S_T1}")
    a(f"s_lshr_b32 s{pt}, s{S_T0}, 2")
    a(f"s_lshl_b32 s{S_T1}, s{rreg}, 4")
    a(f"s_add_u32 s{pt}, s{pt}, s{S_T1}")
    a(f"s_and_b32 s{pw}, s{S_T0}, 3")

def task_addr_regs(a, kind, tmp):
    if kind == "K":
        a(f"v_and_b32 v{tmp}, 7, v0")
        a(f"v_bfe_u32 v{R.krr}, v0, 3, 3")
        a(f"v_lshlrev_b32 v{R.kraw}, 10, v{R.krr}")
        a(f"v_lshl_add_u32 v{R.kraw}, v{tmp}, 5, v{R.kraw}")
        a(f"v_lshrrev_b32 v{tmp+1}, 2, v{tmp}")
        a(f"v_lshlrev_b32 v{R.kst}, 10, v{tmp+1}")
        a(f"v_and_b32 v{tmp+1}, 3, v{tmp}")
        a(f"v_lshl_add_u32 v{R.kst}, v{tmp+1}, 8, v{R.kst}")
        a(f"v_lshl_add_u32 v{R.kst}, v{R.krr}, 4, v{R.kst}")
    else:
        a(f"v_and_b32 v{tmp}, 15, v0")
        a(f"v_bfe_u32 v{tmp+1}, v0, 4, 2")
        a(f"v_lshlrev_b32 v{R.vraw}, 12, v{tmp+1}")
        a(f"v_lshl_add_u32 v{R.vraw}, v{tmp}, 4, v{R.vraw}")
        a(f"v_and_b32 v{R.vst}, 63, v0")
        a(f"v_lshlrev_b32 v{R.vst}, 4, v{R.vst}")

HR = RM()
HR.krr, HR.kraw, HR.kst, HR.vraw, HR.vst = 150, 151, 152, 153, 154
HR.wk = 112
H_SC = 128
H_T = 136
H_A = 156
H_X = 224
S_RND = 38

def kind_branch(a, lblV):
    a(f"s_lshr_b32 s{S_T0}, s{S_W}, 1")
    a(f"s_xor_b32 s{S_T0}, s{S_T0}, s{S_RND}")
    a(f"s_and_b32 s{S_T0}, s{S_T0}, 1")
    a(f"s_cmp_eq_u32 s{S_T0}, 1")
    a(f"s_cbranch_scc1 {lblV}")

def hook_issue(a, tag):
    global R
    R = HR
    task_params_s(a, S_RND, S_PK, S_PT, S_PW)
    kind_branch(a, f"L_hi_V_{tag}")
    task_addr_regs(a, "K", H_A + 1)
    k_task_loads(a, H_X, S_PK)
    a(f"s_branch L_hi_done_{tag}")
    a.label(f"L_hi_V_{tag}")
    task_addr_regs(a, "V", H_A + 1)
    v_task_raw_loads(a, H_X, S_PT, S_PW)
    a.label(f"L_hi_done_{tag}")
    R = PR

def hook_comp(a, tag):
    global R
    R = HR
    task_params_s(a, S_RND, S_PK, S_PT, S_PW)
    a(f"v_and_b32 v{H_A}, 63, v0")
    a(f"s_mul_i32 s{S_T1}, s{S_W}, 2560")
    a(f"s_add_u32 s{S_T1}, s{S_T1}, {LDS_SC}")
    kind_branch(a, f"L_hc_V_{tag}")
    a(f"v_lshlrev_b32 v{H_A+1}, 4, v{H_A}")
    for k in range(4):
        a(f"ds_read_b128 v[{HR.wk+4*k}:{HR.wk+4*k+3}], v{H_A+1} offset:{LDS_WK+k*1024}")
    a(f"v_lshlrev_b32 v{H_A+1}, 3, v{H_A}")
    a(f"v_add_u32 v{H_A+1}, s{S_T1}, v{H_A+1}")
    a(f"ds_read_b64 v[{H_SC}:{H_SC+1}], v{H_A+1}")
    task_addr_regs(a, "K", H_A + 1)
    a("s_waitcnt lgkmcnt(0)")
    k_task_compute(a, H_X, H_SC, H_T, S_PK)
    a(f"s_branch L_hc_done_{tag}")
    a.label(f"L_hc_V_{tag}")
    a(f"v_lshlrev_b32 v{H_A+1}, 4, v{H_A}")
    a(f"v_add_u32 v{H_A+1}, s{S_T1}, v{H_A+1}")
    a(f"ds_read_b128 v[{H_SC}:{H_SC+3}], v{H_A+1} offset:512")
    a(f"ds_read_b128 v[{H_SC+4}:{H_SC+7}], v{H_A+1} offset:1536")
    task_addr_regs(a, "V", H_A + 2)
    a("s_waitcnt lgkmcnt(0)")
    v_task_compute(a, H_X, S_PT, S_PW, H_SC, 112)
    a.label(f"L_hc_done_{tag}")
    R = PR

def publish(a, val, lbl, val_sgpr=None):
    a(f"s_cmp_lg_u32 s{S_W}, 0")
    a(f"s_cbranch_scc1 {lbl}")
    a(f"s_mov_b64 exec, 1")
    if val_sgpr is None:
        a(f"s_add_u32 s{S_T1}, s{S_NONCE}, {val}")
    else:
        a(f"s_add_u32 s{S_T1}, s{S_NONCE}, s{val_sgpr}")
    a(f"v_mov_b32 v{PUBT}, s{S_T1}")
    a(f"s_lshl_b32 s{S_T0}, s{S_HEAD}, 5")
    a(f"s_add_u32 s{S_T0}, s{S_T0}, s{S_J}")
    a(f"s_lshl_b32 s{S_T0}, s{S_T0}, 7")
    a(f"v_mov_b32 v{PUBT+1}, s{S_T0}")
    a(f"global_store_dword v{PUBT+1}, v{PUBT}, s[{S_FLG}:{S_FLG+1}] sc1")
    a(f"s_mov_b64 exec, -1")
    a.label(lbl)

def check_flags_valu():
    return [I_valu(f"v_subrev_u32 v{V_FLAG}, s{S_NEED}, v{V_FLAG}"),
            I_valu(f"v_cmp_lt_u32 vcc, s{S_RANGE}, v{V_FLAG}")]

def flag_load_text():
    return f"global_load_dword v{V_FLAG}, v{V_FADDR}, s[{S_FLG}:{S_FLG+1}] sc1"

def spin(a, name):
    a(f"s_mov_b32 s{S_SPIN}, 0")
    a.label(f"L_spin_{name}")
    a(flag_load_text())
    a("s_waitcnt vmcnt(0)")
    for it in check_flags_valu():
        a(it.text)
    a(f"s_add_u32 s{S_SPIN}, s{S_SPIN}, 1")
    a(f"s_cmp_lt_u32 s{S_SPIN}, 0x8000")
    a(f"s_cbranch_scc0 L_spin_{name}_done")
    a("s_nop 3")
    a(f"s_cbranch_vccnz L_spin_{name}")
    a.label(f"L_spin_{name}_done")

def tile_off(dst, tadd, tmp):
    return [I_salu(f"s_add_u32 s{dst}, s{S_I}, {tadd}"),
            I_salu(f"s_add_u32 s{tmp}, s{dst}, s{S_ROT}"),
            I_salu(f"s_and_b32 s{tmp}, s{tmp}, 3"),
            I_salu(f"s_and_b32 s{dst}, s{dst}, 12"),
            I_salu(f"s_or_b32 s{dst}, s{dst}, s{tmp}"),
            I_salu(f"s_lshl_b32 s{dst}, s{dst}, 16")]

def build_iter(i, opt, NT=16):
    has_qk = (i + 1) < NT
    has_sm = 0 <= i < NT
    has_pv = 1 <= i <= NT
    mf = []
    if has_qk:
        mf += qk_mfmas(i + 1, opt, NT)
    nqk = len(mf)
    if has_pv:
        t = i - 1
        par = t & 1
        for db in range(4):
            for qb in range(4):
                for p in range(4):
                    f = db * 4 + p
                    o = A_O + (db * 4 + qb) * 4
                    b = V_PO + 16 * par + qb * 4 if p == 0 else V_PF + (p - 1) * 16 + qb * 4
                    pre = []
                    if qb == 0 and (p % opt.wgrp == 0):
                        pre.append(I_wvm(("V", t, db * 4 + min(3, p + opt.wgrp - 1))))
                    if db == 0 and qb == 0 and p == 1:
                        pre.append(I_wlds(("PR", t, 3, 3)))
                    post = []
                    if qb == 3 and t + 1 < NT:
                        post.append(vload(t + 1, f, S_VOFF))
                    mf.append([pre, I_mfma(f"{MF} a[{o}:{o+3}], v[{V_V+4*f}:{V_V+4*f+3}], v[{b}:{b+3}], a[{o}:{o+3}]"), post])
    respread_loads(mf, i, NT, opt)
    if i == 15:
        mf[0][2] = [vload(14, j, S_VOFF) for j in range(9, 16)] + mf[0][2]
    reads = []
    if has_pv:
        t = i - 1
        par = t & 1
        for p in range(1, 4):
            for qb in range(4):
                dst = V_PF + (p - 1) * 16 + qb * 4
                reads.append(I_lds(f"ds_read_b128 v[{dst}:{dst+3}], v{V_PR+p-1} offset:{par*16384+qb*1024}", ("PR", t, p, qb)))
    sm = softmax_stream(i, opt) if has_sm else []
    head = []
    full = len(mf) == 128
    if has_qk:
        kup = tile_off(S_KOFF, 2, S_T4) + [I_salu(f"s_cmp_lt_u32 s{S_I}, {NT-2}"), I_salu(f"s_cselect_b32 s{S_KUSE}, s{S_KOFF}, 0x100000")]
        head += kup
    if has_pv:
        vup = tile_off(S_VOFF, 0, S_T3)
        if full:
            for k, x in enumerate(vup):
                mf[41 + k][2].append(x)
        else:
            head += vup
    if full and i % 2 == 1:
        txt = (f"s_and_b32 s{S_T2}, s{S_I}, 3\ns_cmp_eq_u32 s{S_T2}, 1\ns_cbranch_scc0 L_noflagld\n" + flag_load_text() + "\nL_noflagld:")
        mf[20][2].append(Item("vmc", txt, ("F", i), cost=4))
    if full and i % 2 == 0:
        chk = [I_salu(f"s_add_u32 s{S_NEED}, s{S_I}, 2"), I_salu(f"s_lshr_b32 s{S_NEED}, s{S_NEED}, 2"),
               I_salu(f"s_add_u32 s{S_NEED}, s{S_NEED}, 1"), I_salu(f"s_min_u32 s{S_NEED}, s{S_NEED}, 4"),
               I_salu(f"s_sub_u32 s{S_RANGE}, 4, s{S_NEED}"), I_salu(f"s_add_u32 s{S_NEED}, s{S_NEED}, s{S_NONCE}"),
               I_wvm(("F", i - 1))] + check_flags_valu()
        txt = f"s_and_b32 s{S_T2}, s{S_I}, 3\ns_cmp_eq_u32 s{S_T2}, 2\ns_cbranch_scc0 L_slowpoll_ret"
        mf[12][2].append(I_raw(txt))
        for x in chk:
            mf[12][2].append(x)
        mf[12][2].append(I_raw(f"s_nop 4\ns_cbranch_vccnz L_slowpoll\nL_slowpoll_ret:"))
    return schedule(mf, head, reads, sm, nqk, opt)

class EA(Asm):
    def __call__(self, s):
        for l in s.split("\n"):
            l = l.strip()
            if not l: continue
            if l.endswith(":"):
                self.lines.append(l)
            else:
                self.lines.append("    " + l)

def R1BLOCK(a, st, X, Y, T, SK, SV):
    global R
    R2 = RM(); R2.krr, R2.kst, R2.vst, R2.wk = 190, 191, 192, PR.wk
    R = R2
    a(f"v_and_b32 v{T}, 63, v0")
    a(f"s_mul_i32 s{S_T1}, s{S_W}, 2560")
    a(f"s_add_u32 s{S_T1}, s{S_T1}, {LDS_SC}")
    a(f"v_lshlrev_b32 v{T+1}, 3, v{T}")
    a(f"v_add_u32 v{T+1}, s{S_T1}, v{T+1}")
    a(f"ds_write_b64 v{T+1}, v[{SK}:{SK+1}]")
    a(f"v_lshlrev_b32 v{T+1}, 4, v{T}")
    a(f"v_add_u32 v{T+1}, s{S_T1}, v{T+1}")
    a(f"ds_write_b128 v{T+1}, v[{SV}:{SV+3}] offset:512")
    a(f"ds_write_b128 v{T+1}, v[{SV+4}:{SV+7}] offset:1536")
    a(f"s_cmp_ge_u32 s{S_W}, 2")
    a("s_cbranch_scc1 L_B_r1")
    v_task_compute(a, Y, S_PT2, S_PW2)
    a("s_branch L_rdone")
    a.label("L_B_r1")
    k_task_compute(a, Y, SCB, V_TMP, S_PK2)
    a.label("L_rdone")
    a("s_waitcnt lgkmcnt(0)")
    a("s_barrier")
    st()
    R = PR

def gen_fused(a, opt):
    NT = 16
    st = Stamp(a, opt)
    a.label(KNAME)
    a("s_cmp_ge_u32 s2, 256")
    a("s_cbranch_scc1 L_done")
    st()
    a("s_load_dwordx16 s[40:55], s[0:1], 0")
    a("s_load_dwordx8 s[56:63], s[0:1], 64")
    a("s_load_dwordx4 s[64:67], s[0:1], 96")
    a(f"s_and_b32 s{S_HEAD}, s2, 7")
    a(f"s_lshr_b32 s{S_J}, s2, 3")
    a("v_and_b32 v16, 63, v0")
    a("v_lshrrev_b32 v17, 6, v0")
    a("v_and_b32 v18, 15, v0")
    a("v_bfe_u32 v19, v0, 4, 2")
    a(f"v_readfirstlane_b32 s{S_W}, v17")
    a(f"s_mov_b32 s{S_MASK}, 0xffff0000")
    a(f"s_mov_b32 s{S_C}, 0x{f32bits(math.log2(math.e)/16.0):08x}")
    a(f"s_and_b32 s{S_ROT}, s{S_J}, 3")
    a("v_and_b32 v20, 7, v0")
    a(f"v_bfe_u32 v{R.krr}, v0, 3, 3")
    a(f"v_lshlrev_b32 v{R.kraw}, 10, v{R.krr}")
    a(f"v_lshl_add_u32 v{R.kraw}, v20, 5, v{R.kraw}")
    a(f"v_lshlrev_b32 v{R.ksc}, 1, v{R.krr}")
    a("v_lshrrev_b32 v22, 2, v20")
    a(f"v_lshlrev_b32 v{R.kst}, 10, v22")
    a("v_and_b32 v22, 3, v20")
    a(f"v_lshl_add_u32 v{R.kst}, v22, 8, v{R.kst}")
    a(f"v_lshl_add_u32 v{R.kst}, v{R.krr}, 4, v{R.kst}")
    a(f"v_lshlrev_b32 v{R.vraw}, 12, v19")
    a(f"v_lshl_add_u32 v{R.vraw}, v18, 4, v{R.vraw}")
    a(f"v_lshlrev_b32 v{R.vsc}, 3, v19")
    a(f"v_lshlrev_b32 v{R.vst}, 4, v16")
    a("v_lshl_add_u32 v24, v17, 4, v19")
    a(f"v_lshlrev_b32 v{V_QOFF}, 9, v24")
    a(f"v_lshl_add_u32 v{V_QOFF}, v18, 4, v{V_QOFF}")
    a("v_lshlrev_b32 v185, 3, v20")
    a("v_cvt_f32_u32 v185, v185")
    a("v_lshlrev_b32 v186, 3, v18")
    a("v_cvt_f32_u32 v186, v186")
    a(f"s_lshl_b32 s{S_T0}, s{S_J}, 6")
    a(f"v_add_u32 v{V_QPOS}, s{S_T0}, v24")
    a(f"v_cvt_f32_u32 v{V_QPOS}, v{V_QPOS}")
    a("s_waitcnt lgkmcnt(0)")
    a(f"s_lshl_b32 s{S_T1}, s{S_HEAD}, 21")
    make_srd(a, S_RAWK, 42, S_T1, 0x200000)
    a(f"s_lshl_b32 s{S_T2}, s{S_HEAD}, 12")
    make_srd(a, S_KSC, 44, S_T2, 4096)
    make_srd(a, S_KZ, 46, S_T2, 4096)
    make_srd(a, S_VSC, 50, S_T2, 4096)
    make_srd(a, S_VZ, 52, S_T2, 4096)
    a(f"s_lshl_b32 s{S_T0}, s{S_HEAD}, 20")
    a(f"s_lshl_b32 s{S_T3}, s{S_J}, 15")
    a(f"s_add_u32 s{S_T2}, s{S_T0}, s{S_T3}")
    make_srd(a, S_OSRD, 62, S_T2, 32768)
    make_srd(a, S_RAWV, 48, S_T1, 0x200000)
    make_srd(a, S_QSRD, 40, S_T2, 32768)
    X, Y, QD = 16, 72, 128
    a(f"s_mov_b32 s{S_DBG}, s64"); a(f"s_mov_b32 s{S_DBG+1}, s65")
    a(f"s_or_b32 s{S_T0}, s{S_HEAD}, s{S_J}")
    a(f"s_or_b32 s{S_T0}, s{S_T0}, s{S_W}")
    a(f"s_cmp_lg_u32 s{S_T0}, 0")
    a("s_cbranch_scc1 L_nononce")
    a("s_memrealtime s[100:101]")
    a("s_waitcnt lgkmcnt(0)")
    a("s_lshl_b32 s100, s100, 3")
    a("s_or_b32 s100, s100, 0x80000000")
    a("s_and_b32 s100, s100, 0xfffffff8")
    a("v_mov_b32 v190, s100")
    a("v_mov_b32 v191, 0")
    a("s_mov_b64 exec, 1")
    a(f"global_store_dword v191, v190, s[{S_DBG}:{S_DBG+1}] sc1")
    a("s_mov_b64 exec, -1")
    a.label("L_nononce")
    task_params(a, 0, S_PK, S_PT, S_PW)
    a(f"s_cmp_ge_u32 s{S_W}, 2")
    a("s_cbranch_scc1 L_B_issue0")
    nA0 = k_task_loads(a, X, S_PK) + k_task_scale_loads(a, S_PK, SCA)
    a("s_branch L_issueQ")
    a.label("L_B_issue0")
    nB0 = v_task_loads(a, X, S_PT, S_PW)
    a.label("L_issueQ")
    a("s_mov_b32 s50, 4096")
    for it in range(4):
        so = "0" if it < 2 else "s50"
        io = (it & 1) * 2048
        b = QD + 8 * it
        a(f"buffer_load_dwordx4 v[{b}:{b+3}], v{V_QOFF}, s[{S_QSRD}:{S_QSRD+3}], {so} offen offset:{io}")
        a(f"buffer_load_dwordx4 v[{b+4}:{b+7}], v{V_QOFF}, s[{S_QSRD}:{S_QSRD+3}], {so} offen offset:{io+256}")
    a(f"v_mov_b32 v192, 0")
    a(f"global_load_dword v{V_NON}, v192, s[{S_DBG}:{S_DBG+1}] sc1")
    make_srd(a, S_KSRD, 66, S_T0 if False else S_T4, 0x100000) if False else None
    a(f"s_lshl_b32 s{S_T0}, s{S_HEAD}, 20")
    make_srd(a, S_KSRD, 66, S_T0, 0x100000)
    a(f"s_add_u32 s{S_T1}, s{S_T0}, 0x800000")
    make_srd(a, S_VSRD, 66, S_T1, 0x100000)
    if opt.stamp:
        a("s_mov_b32 s36, s66"); a("s_mov_b32 s37, s67")
    task_params(a, 1, S_PK2, S_PT2, S_PW2)
    T = V_TMP
    freq_consts(a, R.wk, 16, 185, [64 * (k >> 3) + (k & 7) for k in range(16)], T)
    freq_consts(a, V_WQ, 8, 186, list(range(8)), T)
    a(f"v_lshrrev_b32 v{T}, 6, v0")
    a(f"v_and_b32 v{T+1}, 15, v0")
    a(f"v_bfe_u32 v{T+2}, v0, 4, 2")
    a(f"v_mul_u32_u24 v{V_QW}, {8*QFS}, v{T}")
    a(f"v_lshrrev_b32 v{T+3}, 2, v{T+1}")
    a(f"v_mul_u32_u24 v{T+3}, {QFS}, v{T+3}")
    a(f"v_add_u32 v{V_QW}, v{V_QW}, v{T+3}")
    a(f"v_and_b32 v{T+3}, 3, v{T+1}")
    a(f"v_mul_u32_u24 v{T+3}, {QGS}, v{T+3}")
    a(f"v_add_u32 v{V_QW}, v{V_QW}, v{T+3}")
    a(f"v_lshl_add_u32 v{V_QW}, v{T+2}, 4, v{V_QW}")
    a(f"v_mul_u32_u24 v{V_QR}, {QGS}, v{T+2}")
    a(f"v_lshl_add_u32 v{V_QR}, v{T+1}, 4, v{V_QR}")
    for r in range(64):
        a(f"v_accvgpr_write_b32 a{A_O+r}, 0")
    a(f"v_and_b32 v{T}, 63, v0")
    a(f"v_lshlrev_b32 v{T+1}, 4, v{T}")
    for k in range(4):
        a(f"ds_write_b128 v{T+1}, v[{R.wk+4*k}:{R.wk+4*k+3}] offset:{LDS_WK+k*1024}")
    task_params(a, 2, 46, 47, 48)
    task_params(a, 3, 49, 51, 52)
    SK, SV = 196, 200
    a(f"s_cmp_ge_u32 s{S_W}, 2")
    a("s_cbranch_scc1 L_B_comp0")
    a(f"s_waitcnt vmcnt(9)")
    st()
    k_task_compute(a, X, SCA, V_TMP, S_PK)
    nA1 = v_task_loads(a, Y, S_PT2, S_PW2)
    k_task_scale_loads(a, 46, SK); v_task_scale_loads(a, SV, 51)
    a("s_branch L_rope")
    a.label("L_B_comp0")
    a(f"s_waitcnt vmcnt(9)")
    st(again=True)
    v_task_compute(a, X, S_PT, S_PW)
    nB1 = k_task_loads(a, Y, S_PK2) + k_task_scale_loads(a, S_PK2, SCB)
    k_task_scale_loads(a, 49, SK); v_task_scale_loads(a, SV, 47)
    a.label("L_rope")
    if opt.stamp == 2: st()
    nmin = min(nA1, nB1)
    QO = 208
    for it in range(4):
        a(f"s_waitcnt vmcnt({min(63, nmin + 6 + 4 + 1 + (3 - it) * 2)})")
        if it:
            a(f"v_add_f32 v{V_QPOS}, 4.0, v{V_QPOS}")
        rope_q2(a, QD + 8 * it, QO, QO + 8, V_QPOS, V_WQ)
        a(f"ds_write_b128 v{V_QW}, v[{QO}:{QO+3}] offset:{it*64}")
        a(f"ds_write_b128 v{V_QW}, v[{QO+4}:{QO+7}] offset:{it*64 + 4*QFS}")
    if opt.stamp == 2: st()
    a(f"s_waitcnt vmcnt({nmin + 6}) lgkmcnt(0)")
    if opt.stamp == 2: st()
    a(f"v_readfirstlane_b32 s{S_NONCE}, v{V_NON}")
    a(f"s_cmp_lg_u32 s{S_NONCE}, 0")
    a("s_cbranch_scc1 L_have_nonce")
    a(f"s_mov_b32 s{S_SPIN}, 0")
    a.label("L_nonce_spin")
    a(f"global_load_dword v{V_NON}, v192, s[{S_DBG}:{S_DBG+1}] sc1")
    a("s_waitcnt vmcnt(0)")
    a(f"v_readfirstlane_b32 s{S_NONCE}, v{V_NON}")
    a(f"s_add_u32 s{S_SPIN}, s{S_SPIN}, 1")
    a(f"s_cmp_ge_u32 s{S_SPIN}, 0x8000")
    a("s_cbranch_scc1 L_have_nonce")
    a(f"s_cmp_eq_u32 s{S_NONCE}, 0")
    a("s_cbranch_scc1 L_nonce_spin")
    a.label("L_have_nonce")
    a(f"s_add_u32 s{S_FLG}, s66, 0x1000000")
    a(f"s_addc_u32 s{S_FLG+1}, s67, 0")
    a("s_barrier")
    publish(a, 1, "L_pub1")
    st()
    for qb in range(4):
        for s in range(8):
            b = A_Q + (qb * 8 + s) * 4
            a(f"ds_read_b128 a[{b}:{b+3}], v{V_QR} offset:{(qb*8+s)*QFS}")
    a(f"v_mov_b32 v190, v{R.krr}")
    a(f"v_mov_b32 v191, v{R.kst}")
    a(f"v_mov_b32 v192, v{R.vst}")
    a("s_waitcnt lgkmcnt(0)")
    a("v_and_b32 v16, 63, v0")
    a("v_lshrrev_b32 v17, 6, v0")
    a(f"v_and_b32 v{V_FADDR}, 31, v0")
    a(f"s_lshl_b32 s{S_T0}, s{S_HEAD}, 5")
    a(f"v_add_u32 v{V_FADDR}, s{S_T0}, v{V_FADDR}")
    a(f"v_lshlrev_b32 v{V_FADDR}, 7, v{V_FADDR}")
    a(f"v_lshlrev_b32 v20, 4, v16")
    a(f"v_add_u32 v21, {LDS_P}, v20")
    for t in range(1, 4):
        a(f"v_add_u32 v22, {t}, v17")
        a(f"v_and_b32 v22, 3, v22")
        a(f"v_lshl_add_u32 v{V_PR+t-1}, v22, 12, v21")
    a(f"v_lshl_add_u32 v{V_PW}, v17, 12, v21")
    a(f"v_lshl_add_u32 v{V_OFF}, v17, 14, v20")
    for k in range(1, 4):
        a(f"v_add_u32 v{V_OFF+k}, {4096*k}, v{V_OFF}")
    for r in range(4):
        a(f"v_mov_b32 v{V_L+r}, 0")
    a(f"s_add_u32 s{S_NEED}, s{S_NONCE}, 1")
    a(f"s_mov_b32 s{S_RANGE}, 3")
    spin(a, "r0")
    st()
    a(f"s_lshl_b32 s{S_KOFF}, s{S_ROT}, 16")
    a(f"s_mov_b32 s{S_VOFF}, s{S_KOFF}")
    a(f"s_mov_b32 s{S_KUSE}, s{S_KOFF}")
    pro = [kload(0, f, S_KUSE) for f in range(16)]
    for it in pro:
        a(it.text)
    R1BLOCK(a, st, X, Y, T, SK, SV)
    pre = [I_salu(f"s_mov_b32 s{S_I}, -1")] + tile_off(S_KUSE, 2, S_T4)
    for (p_, m, post) in qk_mfmas(0, opt, NT):
        pre += p_ + [m] + post
    pre.append(I_raw("s_nop 7"))
    pre.append(I_salu(f"s_mov_b32 s{S_I}, 0"))
    endbar = [I_wlds("all"), I_raw("s_barrier")]
    blocks = [("pro", pro + [I_vm("", ("ST", k)) for k in range(4)]), ("pre", pre)]
    it0 = build_iter(0, opt) + [vload(0, f, S_VOFF) for f in range(9)] + [I_raw("s_waitcnt vmcnt(25)")] + endbar + [I_salu(f"s_mov_b32 s{S_I}, 1")]
    blocks.append(("it0", it0))
    stat = {}
    for i in range(1, 15):
        items = build_iter(i, opt) + [I_salu(f"s_add_u32 s{S_I}, s{S_I}, 1")]
        items = items + endbar
        nm = "odd" if i % 2 else "even"
        blocks.append((nm, items))
        if nm not in stat:
            stat[nm] = items
        else:
            assert [x.text for x in stat[nm]] == [x.text for x in items], nm
    it15 = build_iter(15, opt)
    red = []
    T = V_TMP
    red += [I_valu(f"v_and_b32 v224, 15, v0"), I_valu(f"v_lshrrev_b32 v225, 6, v0"), I_valu(f"v_bfe_u32 v226, v0, 4, 2"),
            I_valu(f"v_lshlrev_b32 v{V_LR}, 4, v224"), I_valu(f"v_add_u32 v{V_LR}, {LDS_L}, v{V_LR}"),
            I_valu(f"v_lshl_add_u32 v{V_LW}, v225, 2, v{V_LR}"), I_valu(f"v_lshlrev_b32 v{V_OUT}, 9, v224"),
            I_valu(f"v_lshl_add_u32 v{V_OUT}, v225, 7, v{V_OUT}"), I_valu(f"v_lshl_add_u32 v{V_OUT}, v226, 5, v{V_OUT}")]
    for qb in range(4):
        red.append(I_valu(f"v_mov_b32 v{T+qb}, v{V_L+qb}"))
    red.append(I_raw("s_nop 1"))
    for qb in range(4):
        red.append(I_valu(f"v_permlane32_swap_b32 v{T+qb}, v{V_L+qb}"))
    red.append(I_raw("s_nop 1"))
    for qb in range(4):
        red.append(I_valu(f"v_add_f32 v{V_L+qb}, v{V_L+qb}, v{T+qb}"))
    for qb in range(4):
        red.append(I_valu(f"v_mov_b32 v{T+qb}, v{V_L+qb}"))
    red.append(I_raw("s_nop 1"))
    for qb in range(4):
        red.append(I_valu(f"v_permlane16_swap_b32 v{T+qb}, v{V_L+qb}"))
    red.append(I_raw("s_nop 1"))
    for qb in range(4):
        red.append(I_valu(f"v_add_f32 v{V_L+qb}, v{V_L+qb}, v{T+qb}"))
    for qb in range(4):
        red.append(I_lds(f"ds_write_b32 v{V_LW}, v{V_L+qb} offset:{qb*256}", ("LW", qb)))
    it15 += red + endbar
    blocks.append(("it15", it15))
    it16 = build_iter(16, opt)
    blocks.append(("it16", it16))
    waits = resolve_waits(blocks)
    emit_block(a, "pre", pre, waits)
    emit_block(a, "it0", it0, waits)
    publish(a, 2, "L_pub2")
    a(f"s_mov_b32 s{S_RND}, 2")
    hook_issue(a, "r2")
    st()
    a.label("L_loop")
    emit_block(a, "odd", stat["odd"], waits)
    a(f"s_cmp_le_u32 s{S_I}, 4")
    a("s_cbranch_scc1 L_hook_odd")
    a.label("L_ret_odd")
    base = st.n - 2
    st.dyn(base)
    emit_block(a, "even", stat["even"], waits)
    a(f"s_cmp_le_u32 s{S_I}, 5")
    a("s_cbranch_scc1 L_hook_even")
    a.label("L_ret_even")
    st.dyn(base)
    if opt.stamp == 3: st.n = base + 16
    a(f"s_cmp_lt_u32 s{S_I}, 15")
    a("s_cbranch_scc1 L_loop")
    if opt.stamp != 3: st()
    emit_block(a, "it15", it15, waits)
    for qb in range(4):
        a(f"ds_read_b128 v[{T+4*qb}:{T+4*qb+3}], v{V_LR} offset:{qb*256}")
    emit_block(a, "it16", it16, waits)
    a("s_waitcnt lgkmcnt(0)")
    for qb in range(4):
        b = T + 4 * qb
        a(f"v_add_f32 v{b}, v{b}, v{b+1}"); a(f"v_add_f32 v{b+2}, v{b+2}, v{b+3}")
        a(f"v_add_f32 v{b}, v{b}, v{b+2}")
        a(f"v_rcp_f32 v{b}, v{b}")
    a("s_nop 7")
    for qb in range(4):
        inv = T + 4 * qb
        for half in range(2):
            o = 16 + (qb * 2 + half) * 4
            for kk in range(4):
                k = half * 4 + kk
                r = k >> 1
                c = 2 * (k & 1)
                a(f"v_accvgpr_read_b32 v48, a{A_O+((c)*4+qb)*4+r}")
                a(f"v_accvgpr_read_b32 v49, a{A_O+((c+1)*4+qb)*4+r}")
                a(f"v_mul_f32 v48, v48, v{inv}")
                a(f"v_mul_f32 v49, v49, v{inv}")
                a(f"v_cvt_pk_bf16_f32 v{o+kk}, v48, v49")
            if qb == 0: so = "0"
            else:
                so = "s52"
                if half == 0: a(f"s_mov_b32 s52, {qb*8192}")
            a(f"buffer_store_dwordx4 v[{o}:{o+3}], v{V_OUT}, s[{S_OSRD}:{S_OSRD+3}], {so} offen offset:{half*16}")
    if opt.stamp:
        a("s_waitcnt vmcnt(0)")
        st()
        st.finish()
    a("s_endpgm")
    a.label("L_hook_odd")
    a(f"s_lshr_b32 s{S_RND}, s{S_I}, 1")
    a(f"s_add_u32 s{S_RND}, s{S_RND}, 1")
    hook_comp(a, "o")
    a("s_branch L_ret_odd")
    a.label("L_hook_even")
    a(f"s_lshr_b32 s{S_T2}, s{S_I}, 1")
    a(f"s_add_u32 s{S_T2}, s{S_T2}, 2")
    publish(a, None, "L_pube", S_T2)
    a(f"s_cmp_lg_u32 s{S_I}, 3")
    a("s_cbranch_scc1 L_ret_even")
    a(f"s_mov_b32 s{S_RND}, 3")
    hook_issue(a, "r3")
    a("s_branch L_ret_even")
    a.label("L_slowpoll")
    spin(a, "slow")
    a("s_branch L_slowpoll_ret")
    a.label("L_done")
    a("s_endpgm")

def main():
    ap = argparse.ArgumentParser()
    ap.add_argument("-o", default=f"cdna_kernels/{NAME}.s")
    ap.add_argument("--stamp", type=int, default=0)
    ap.add_argument("--wgrp", type=int, default=4)
    ap.add_argument("--kgrp", type=int, default=8)
    ap.add_argument("--spread", type=int, default=1)
    ap.add_argument("--cap", type=int, default=2)
    ap.add_argument("--pace", type=int, default=1)
    ap.add_argument("--read_spread", type=int, default=1)
    ap.add_argument("--sm_g0", type=int, default=0)
    ap.add_argument("--sm_g1", type=int, default=117)
    ap.add_argument("--ldflags", default="sc1")
    opt = ap.parse_args()
    gen2.LDFLAGS = (" " + opt.ldflags.replace("+", " ")) if opt.ldflags else ""
    out = header()
    out += f"; @launch grid=(256,1,1) block=(256,1,1) lds={LDS_TOTAL}\n"
    out += '.amdgcn_target "amdgcn-amd-amdhsa--gfx950"\n.text\n'
    a = EA()
    gen_fused(a, opt)
    out += f".globl {KNAME}\n.p2align 8\n.type {KNAME},@function\n" + a.text()
    out += kd(KNAME, 512, 102, 256)
    open(opt.o, "w").write(out)

if __name__ == "__main__":
    main()
```

```python
import sys, os, argparse, math, struct
sys.path.insert(0, "dev")
from gen import f32bits, make_srd, kd, NAME, Item, I_valu, I_raw, I_salu, I_vm, I_lds, I_wvm, I_wlds, I_mfma, resolve_waits, emit_block
import gen2
from gen2 import (MF, V_OFF, V_PW, V_PR, V_L, V_S, V_PO, V_PF, V_V, A_O, A_Q, A_K, QFS, QGS,
                  S_KSRD, S_VSRD, S_QSRD, S_OSRD, S_KOFF, S_VOFF, S_I, S_ROT, S_C, S_W, S_MASK, S_KUSE,
                  kload, vload, softmax_stream, qk_mfmas, schedule, respread_loads, header)

KNAME = NAME + "_kernel"

class EA:
    def __init__(self): self.lines = []
    def __call__(self, s):
        for l in s.split("\n"):
            l = l.strip()
            if not l: continue
            self.lines.append(l if l.endswith(":") else "    " + l)
    def label(self, l): self.lines.append(l + ":")
    def text(self): return "\n".join(self.lines) + "\n"

LDS_Q = 0
LDS_L = 34816
LDS_SC = LDS_L + 1024
LDS_WK = LDS_SC + 4 * 2560
LDS_P = 51200
LDS_TOTAL = LDS_P + 32768
assert LDS_WK + 4096 <= LDS_P

S_STW = 36
S_NONCE = 39
S_PK, S_PT, S_PW = 40, 41, 42
S_PK2, S_PT2, S_PW2 = 43, 44, 45
S_HK, S_HT, S_HW = 46, 47, 48
S_FLG = 50
S_RANGE = 53
S_FMASK = 49
S_HMASK = 38
S_G = 68
S_RET = 70
S_RAWK, S_RAWV = 56, 60
S_KSC, S_KZ, S_VSC, S_VZ = 72, 76, 80, 84
S_DBG = 88
S_J, S_NEED = 90, 91
S_T0, S_T1, S_T2, S_T3, S_T4 = 92, 93, 94, 95, 96
S_SPIN, S_HEAD = 97, 99
V_FLAG, V_FADDR, V_STAMP = 13, 14, 15
STF = " sc1"

class RM: pass

class Stamp:
    def __init__(self, a, opt):
        self.a = a; self.on = opt.stamp; self.n = 0
    def _emit(self, idx_sgpr=None):
        a = self.a
        a("s_memtime s[54:55]")
        a("s_memrealtime s[100:101]")
        a("s_waitcnt lgkmcnt(0)")
        if idx_sgpr is None:
            a(f"v_writelane_b32 v{V_STAMP}, s54, {2*self.n}")
            a(f"v_writelane_b32 v{V_STAMP}, s100, {2*self.n+1}")
        else:
            a(f"s_mov_b32 m0, s{idx_sgpr}"); a("s_nop 1")
            a(f"v_writelane_b32 v{V_STAMP}, s54, m0")
            a(f"s_add_u32 m0, s{idx_sgpr}, 1"); a("s_nop 1")
            a(f"v_writelane_b32 v{V_STAMP}, s100, m0")
    def __call__(self, again=False, level=1, force=False):
        if not self.on: return
        if self.on == 9 and not force: return
        if level == 2 and self.on != 2: return
        if again: self.n -= 1
        self._emit()
        self.n += 1
    def dyn(self, mul, add, cap):
        a = self.a
        a(f"s_min_u32 s52, s{S_I}, {cap}")
        a(f"s_mul_i32 s52, s52, {2*mul}")
        a(f"s_add_u32 s52, s52, {2*add}")
        self._emit(52)
    def finish(self):
        if not self.on: return
        a = self.a
        a("s_waitcnt vmcnt(0)")
        a(f"s_lshl_b32 s46, s{S_J}, 3")
        a(f"s_add_u32 s46, s46, s{S_HEAD}")
        a(f"s_lshl_b32 s46, s46, 10")
        a(f"s_lshl_b32 s47, s{S_W}, 8")
        a("s_add_u32 s46, s46, s47")
        a("s_add_u32 s46, s46, 0x8000000")
        a(f"s_add_u32 s46, s{S_STW}, s46")
        a(f"s_addc_u32 s47, s{S_STW+1}, 0")
        a("v_and_b32 v16, 63, v0")
        a("v_lshlrev_b32 v16, 2, v16")
        a(f"global_store_dword v16, v{V_STAMP}, s[46:47]")
        a("s_waitcnt vmcnt(0)")

LOG2_10000_128 = math.log2(10000.0) / 128.0
LOG2_2PI = math.log2(2 * math.pi)

def vp(r): return f"v[{r}:{r+1}]"

def k_raw_loads(a, R, X, rowreg):
    a(f"s_lshl_b32 s{S_T0}, s{rowreg}, 10")
    for c in range(4):
        for hf in range(2):
            b = X + c * 8 + hf * 4
            a(f"buffer_load_dwordx4 v[{b}:{b+3}], v{R.kraw}, s[{S_RAWK}:{S_RAWK+3}], s{S_T0} offen offset:{c*256+hf*16}")
    return 8
def k_scale_loads(a, R, rowreg, dst):
    a(f"s_lshl_b32 s{S_T2}, s{rowreg}, 1")
    a(f"buffer_load_ushort v{dst}, v{R.ksc}, s[{S_KSC}:{S_KSC+3}], s{S_T2} offen")
    a(f"buffer_load_ushort v{dst+1}, v{R.ksc}, s[{S_KZ}:{S_KZ+3}], s{S_T2} offen")
    return 2
def v_raw_loads(a, R, X, treg, wreg):
    a(f"s_lshl_b32 s{S_T0}, s{treg}, 15")
    a(f"s_lshl_b32 s{S_T1}, s{wreg}, 8")
    a(f"s_add_u32 s{S_T0}, s{S_T0}, s{S_T1}")
    a(f"s_add_u32 s{S_T1}, s{S_T0}, 16384")
    for j in range(8):
        b = X + j * 4
        so = S_T0 if j < 4 else S_T1
        a(f"buffer_load_dwordx4 v[{b}:{b+3}], v{R.vraw}, s[{S_RAWV}:{S_RAWV+3}], s{so} offen offset:{(j&3)*1024}")
    return 8
def v_scale_loads(a, R, SC, treg):
    a(f"s_lshl_b32 s{S_T2}, s{treg}, 6")
    for g2 in range(2):
        a(f"buffer_load_dwordx2 v[{SC+2*g2}:{SC+1+2*g2}], v{R.vsc}, s[{S_VSC}:{S_VSC+3}], s{S_T2} offen offset:{g2*32}")
        a(f"buffer_load_dwordx2 v[{SC+4+2*g2}:{SC+5+2*g2}], v{R.vsc}, s[{S_VZ}:{S_VZ+3}], s{S_T2} offen offset:{g2*32}")
    return 4

def sincos8(a, pos, w, cs, sn):
    for k in range(4):
        a(f"v_pk_mul_f32 {vp(sn+2*k)}, {vp(w+2*k)}, {vp(pos)} op_sel_hi:[1,0]")
    for e in range(8):
        a(f"v_fract_f32 v{sn+e}, v{sn+e}")
    for e in range(8):
        a(f"v_cos_f32 v{cs+e}, v{sn+e}")
    for e in range(8):
        a(f"v_sin_f32 v{sn+e}, v{sn+e}")

def rope8(a, x1, x2, cs, sn, u, o1dst, o2dst):
    for k in range(4):
        a(f"v_pk_mul_f32 {vp(u+2*k)}, {vp(x2+2*k)}, {vp(sn+2*k)}")
    for k in range(4):
        a(f"v_pk_mul_f32 {vp(sn+2*k)}, {vp(x1+2*k)}, {vp(sn+2*k)}")
    for k in range(4):
        a(f"v_pk_fma_f32 {vp(u+2*k)}, {vp(x1+2*k)}, {vp(cs+2*k)}, {vp(u+2*k)} neg_lo:[0,0,1] neg_hi:[0,0,1]")
    for k in range(4):
        a(f"v_pk_fma_f32 {vp(sn+2*k)}, {vp(x2+2*k)}, {vp(cs+2*k)}, {vp(sn+2*k)}")
    for k in range(4):
        a(f"v_cvt_pk_bf16_f32 v{o1dst+k}, v{u+2*k}, v{u+2*k+1}")
    for k in range(4):
        a(f"v_cvt_pk_bf16_f32 v{o2dst+k}, v{sn+2*k}, v{sn+2*k+1}")

def k_compute(a, R, X, sc, WK, T, rowreg):
    assert sc % 2 == 0 and T % 2 == 0 and X % 4 == 0
    pos, cs, sn, u = T, T + 2, T + 10, T + 18
    a(f"v_lshlrev_b32 v{sc}, 16, v{sc}")
    a(f"v_lshlrev_b32 v{sc+1}, 16, v{sc+1}")
    a(f"v_cvt_f32_u32 v{pos}, v{R.krr}")
    a(f"v_cvt_f32_u32 v{pos+1}, s{rowreg}")
    a(f"v_mul_f32 v{sc+1}, v{sc+1}, v{sc}")
    a(f"v_add_f32 v{pos}, v{pos}, v{pos+1}")
    for k in range(32):
        a(f"v_cvt_f32_i32 v{X+k}, v{X+k}")
    sincos8(a, pos, WK, cs, sn)
    for k in range(16):
        a(f"v_pk_fma_f32 {vp(X+2*k)}, {vp(X+2*k)}, {vp(sc)}, {vp(sc)} op_sel:[0,0,1] op_sel_hi:[1,0,1] neg_lo:[0,0,1] neg_hi:[0,0,1]")
    rope8(a, X, X + 16, cs, sn, u, X, X + 16)
    sincos8(a, pos, WK + 8, cs, sn)
    a("s_nop 0")
    rope8(a, X + 8, X + 24, cs, sn, u, X + 8, X + 24)
    a(f"s_lshr_b32 s{S_T0}, s{rowreg}, 4")
    a(f"s_lshl_b32 s{S_T0}, s{S_T0}, 13")
    a(f"s_and_b32 s{S_T1}, s{rowreg}, 8")
    a(f"s_lshl_b32 s{S_T1}, s{S_T1}, 4")
    a(f"s_add_u32 s{S_T0}, s{S_T0}, s{S_T1}")
    a(f"s_add_u32 s{S_T1}, s{S_T0}, 4096")
    for c in range(4):
        b = X + c * 8
        so = S_T0 if c < 2 else S_T1
        a(f"buffer_store_dwordx4 v[{b}:{b+3}], v{R.kst}, s[{S_KSRD}:{S_KSRD+3}], s{so} offen offset:{(c&1)*2048}{STF}")

def v_compute(a, R, X, SC, T, treg, wreg):
    M = S_MASK
    SZ = T
    for j in range(8):
        src_s = SC + 2 * (j >> 2) + ((j & 3) >> 1)
        src_z = SC + 4 + 2 * (j >> 2) + ((j & 3) >> 1)
        if j & 1:
            a(f"v_and_b32 v{SZ+2*j}, s{M}, v{src_s}"); a(f"v_and_b32 v{SZ+2*j+1}, s{M}, v{src_z}")
        else:
            a(f"v_lshlrev_b32 v{SZ+2*j}, 16, v{src_s}"); a(f"v_lshlrev_b32 v{SZ+2*j+1}, 16, v{src_z}")
    for k in range(32):
        a(f"v_cvt_f32_i32 v{X+k}, v{X+k}")
    for j in range(8):
        a(f"v_mul_f32 v{SZ+2*j+1}, v{SZ+2*j+1}, v{SZ+2*j}")
    for j in range(8):
        for h in range(2):
            x = X + 4 * j + 2 * h
            a(f"v_pk_fma_f32 {vp(x)}, {vp(x)}, {vp(SZ+2*j)}, {vp(SZ+2*j)} op_sel:[0,0,1] op_sel_hi:[1,0,1] neg_lo:[0,0,1] neg_hi:[0,0,1]")
    O = T
    for db in range(4):
        for jj in range(4):
            a(f"v_cvt_pk_bf16_f32 v{O+db*4+jj}, v{X+(2*jj)*4+db}, v{X+(2*jj+1)*4+db}")
    a(f"s_lshr_b32 s{S_T0}, s{treg}, 2")
    a(f"s_lshl_b32 s{S_T0}, s{S_T0}, 16")
    a(f"s_lshl_b32 s{S_T1}, s{wreg}, 14")
    a(f"s_add_u32 s{S_T0}, s{S_T0}, s{S_T1}")
    a(f"s_sub_u32 s{S_T1}, s{treg}, s{wreg}")
    a(f"s_and_b32 s{S_T1}, s{S_T1}, 3")
    a(f"s_lshl_b32 s{S_T1}, s{S_T1}, 10")
    a(f"s_add_u32 s{S_T0}, s{S_T0}, s{S_T1}")
    for db in range(4):
        if db:
            a(f"s_add_u32 s{S_T0}, s{S_T0}, 4096")
        a(f"buffer_store_dwordx4 v[{O+4*db}:{O+4*db+3}], v{R.vst}, s[{S_VSRD}:{S_VSRD+3}], s{S_T0} offen{STF}")

def freq_consts(a, dst, n, dbase_v, offs):
    a(f"s_mov_b32 s{S_T0}, 0x{f32bits(-LOG2_10000_128):08x}")
    for k in range(n):
        a(f"v_mov_b32 v{dst+k}, 0x{f32bits(-LOG2_10000_128 * offs[k] - LOG2_2PI):08x}")
    for k in range(n):
        a(f"v_fma_f32 v{dst+k}, v{dbase_v}, s{S_T0}, v{dst+k}")
    for k in range(n):
        a(f"v_exp_f32 v{dst+k}, v{dst+k}")
    a("s_nop 0")

def rope_q(a, src, T, pos, wq):
    M = S_MASK
    q1, q2, cs, sn, u, out = T, T + 8, T + 16, T + 24, T + 32, T + 40
    sincos8(a, pos, wq, cs, sn)
    for k in range(4):
        a(f"v_lshlrev_b32 v{q1+2*k}, 16, v{src+k}"); a(f"v_and_b32 v{q1+2*k+1}, s{M}, v{src+k}")
        a(f"v_lshlrev_b32 v{q2+2*k}, 16, v{src+4+k}"); a(f"v_and_b32 v{q2+2*k+1}, s{M}, v{src+4+k}")
    for k in range(4):
        a(f"v_pk_mul_f32 {vp(cs+2*k)}, {vp(cs+2*k)}, s[{S_C}:{S_C+1}] op_sel_hi:[1,0]")
    for k in range(4):
        a(f"v_pk_mul_f32 {vp(sn+2*k)}, {vp(sn+2*k)}, s[{S_C}:{S_C+1}] op_sel_hi:[1,0]")
    rope8(a, q1, q2, cs, sn, u, out, out + 4)
    return out

def task_params(a, rnd, pk, pt, pw):
    a(f"s_and_b32 s{S_T0}, s{S_W}, 1")
    a(f"s_lshl_b32 s{S_T1}, s{S_J}, 1")
    a(f"s_add_u32 s{S_T0}, s{S_T0}, s{S_T1}")
    if pk is not None:
        a(f"s_lshl_b32 s{pk}, s{S_T0}, 3")
        if isinstance(rnd, int): a(f"s_add_u32 s{pk}, s{pk}, {512*rnd}")
        else:
            a(f"s_lshl_b32 s{S_T1}, s{rnd[1]}, 9"); a(f"s_add_u32 s{pk}, s{pk}, s{S_T1}")
    if pt is not None:
        a(f"s_lshr_b32 s{pt}, s{S_T0}, 2")
        if isinstance(rnd, int): a(f"s_add_u32 s{pt}, s{pt}, {16*rnd}")
        else:
            a(f"s_lshl_b32 s{S_T1}, s{rnd[1]}, 4"); a(f"s_add_u32 s{pt}, s{pt}, s{S_T1}")
        a(f"s_and_b32 s{pw}, s{S_T0}, 3")

def task_addr(a, R, tmp, k=True, v=True):
    if k:
        a(f"v_and_b32 v{tmp}, 7, v0")
        a(f"v_bfe_u32 v{R.krr}, v0, 3, 3")
        a(f"v_lshlrev_b32 v{R.kraw}, 10, v{R.krr}")
        a(f"v_lshl_add_u32 v{R.kraw}, v{tmp}, 5, v{R.kraw}")
        a(f"v_lshrrev_b32 v{tmp+1}, 2, v{tmp}")
        a(f"v_lshlrev_b32 v{R.kst}, 10, v{tmp+1}")
        a(f"v_and_b32 v{tmp+1}, 3, v{tmp}")
        a(f"v_lshl_add_u32 v{R.kst}, v{tmp+1}, 8, v{R.kst}")
        a(f"v_lshl_add_u32 v{R.kst}, v{R.krr}, 4, v{R.kst}")
    if v:
        a(f"v_and_b32 v{tmp}, 15, v0")
        a(f"v_bfe_u32 v{tmp+1}, v0, 4, 2")
        a(f"v_lshlrev_b32 v{R.vraw}, 12, v{tmp+1}")
        a(f"v_lshl_add_u32 v{R.vraw}, v{tmp}, 4, v{R.vraw}")
        a(f"v_and_b32 v{R.vst}, 63, v0")
        a(f"v_lshlrev_b32 v{R.vst}, 4, v{R.vst}")

def publish(a, val, lbl, t):
    a(f"s_cmp_lg_u32 s{S_W}, 0")
    a(f"s_cbranch_scc1 {lbl}")
    a(f"s_mov_b64 exec, 1")
    a(f"s_add_u32 s{S_T1}, s{S_NONCE}, {val}")
    a(f"v_mov_b32 v{t}, s{S_T1}")
    a(f"s_lshl_b32 s{S_T0}, s{S_HEAD}, 5")
    a(f"s_add_u32 s{S_T0}, s{S_T0}, s{S_J}")
    a(f"s_lshl_b32 s{S_T0}, s{S_T0}, 7")
    a(f"v_mov_b32 v{t+1}, s{S_T0}")
    a(f"global_store_dword v{t+1}, v{t}, s[{S_FLG}:{S_FLG+1}] sc1")
    a(f"s_mov_b64 exec, -1")
    a.label(lbl)

def flag_load(a):
    a(f"global_load_dword v{V_FLAG}, v{V_FADDR}, s[{S_FLG}:{S_FLG+1}] sc1")
def flag_check(a):
    a(f"v_subrev_u32 v{V_FLAG}, s{S_NEED}, v{V_FLAG}")
    a(f"v_cmp_lt_u32 vcc, s{S_RANGE}, v{V_FLAG}")
def set_need(a, need):
    a(f"s_add_u32 s{S_NEED}, s{S_NONCE}, {need}")
    a(f"s_mov_b32 s{S_RANGE}, {4-need}")
def spin(a, name):
    a(f"s_mov_b32 s{S_SPIN}, 0")
    a.label(f"L_spin_{name}")
    flag_load(a)
    a("s_waitcnt vmcnt(0)")
    flag_check(a)
    a(f"s_add_u32 s{S_SPIN}, s{S_SPIN}, 1")
    a(f"s_cmp_lt_u32 s{S_SPIN}, 0x8000")
    a(f"s_cbranch_scc0 L_spin_{name}_done")
    a("s_nop 3")
    a(f"s_cbranch_vccnz L_spin_{name}")
    a.label(f"L_spin_{name}_done")

def tile_off(dst, tadd, tmp):
    return [I_salu(f"s_add_u32 s{dst}, s{S_I}, {tadd}"),
            I_salu(f"s_add_u32 s{tmp}, s{dst}, s{S_ROT}"),
            I_salu(f"s_and_b32 s{tmp}, s{tmp}, 3"),
            I_salu(f"s_and_b32 s{dst}, s{dst}, 12"),
            I_salu(f"s_or_b32 s{dst}, s{dst}, s{tmp}"),
            I_salu(f"s_lshl_b32 s{dst}, s{dst}, 16")]

def pv_item(t, db, qb, p):
    par = t & 1
    f = db * 4 + p
    o = A_O + (db * 4 + qb) * 4
    b = V_PO + 16 * par + qb * 4 if p == 0 else V_PF + (p - 1) * 16 + qb * 4
    return I_mfma(f"{MF} a[{o}:{o+3}], v[{V_V+4*f}:{V_V+4*f+3}], v[{b}:{b+3}], a[{o}:{o+3}]")

def p_reads(t):
    par = t & 1
    r = []
    for p in range(1, 4):
        for qb in range(4):
            dst = V_PF + (p - 1) * 16 + qb * 4
            r.append(I_lds(f"ds_read_b128 v[{dst}:{dst+3}], v{V_PR+p-1} offset:{par*16384+qb*1024}", ("PR", t, p, qb)))
    return r

def build_iter(i, opt, NT=16):
    has_qk = (i + 1) < NT
    has_sm = 0 <= i < NT
    has_pv = 1 <= i <= NT
    mf = []
    if has_qk:
        mf += qk_mfmas(i + 1, opt, NT)
    nqk = len(mf)
    if has_pv:
        t = i - 1
        for db in range(4):
            for qb in range(4):
                for p in range(4):
                    pre = []
                    if qb == 0 and p == 0:
                        pre.append(I_wvm(("V", t, db * 4 + 3)))
                    if db == 0 and qb == 0 and p == 1:
                        pre.append(I_wlds(("PR", t, 3, 3)))
                    post = []
                    if qb == 3 and t + 1 < NT:
                        post.append(vload(t + 1, db * 4 + p, S_VOFF))
                    mf.append([pre, pv_item(t, db, qb, p), post])
    respread_loads(mf, i, NT, opt)
    if i == 15:
        mf[0][2] = [vload(14, j, S_VOFF) for j in range(9, 16)] + mf[0][2]
    reads = p_reads(i - 1) if has_pv else []
    sm = softmax_stream(i, opt) if has_sm else []
    head = []
    full = len(mf) == 128
    if has_qk:
        head += tile_off(S_KOFF, 2, S_T4) + [I_salu(f"s_cmp_lt_u32 s{S_I}, {NT-2}"), I_salu(f"s_cselect_b32 s{S_KUSE}, s{S_KOFF}, 0x100000")]
    if has_pv:
        vup = tile_off(S_VOFF, 0, S_T3)
        if full:
            for k, x in enumerate(vup):
                mf[41 + k][2].append(x)
        else:
            head += vup
    if full and i % 2 == 1:
        txt = (f"s_bitcmp1_b32 s{S_FMASK}, s{S_I}\ns_cbranch_scc0 L_noflagld\n"
               f"global_load_dword v{V_FLAG}, v{V_FADDR}, s[{S_FLG}:{S_FLG+1}] sc1\nL_noflagld:")
        mf[opt.flag_gap][2].append(I_raw(txt))
    return schedule(mf, head, reads, sm, nqk, opt)

def build_last(opt, T, V_OUT):
    t = 15
    mf = []
    for qb in range(4):
        for db in range(4):
            for p in range(4):
                pre = []
                if qb == 0 and p == 0:
                    pre.append(I_wvm(("V", t, db * 4 + 3)))
                if qb == 0 and db == 0 and p == 1:
                    pre.append(I_wlds(("PR", t, 3, 3)))
                mf.append([pre, pv_item(t, db, qb, p), []])
    def epi(qb):
        it = []
        inv = T + 4 * qb
        tb = 48 + (qb & 1) * 16
        for par in range(2):
            for k in range(par, 8, 2):
                r = k >> 1
                c = 2 * (k & 1)
                x = tb + 2 * k
                it.append(I_valu(f"v_accvgpr_read_b32 v{x}, a{A_O+((c)*4+qb)*4+r}"))
                it.append(I_valu(f"v_accvgpr_read_b32 v{x+1}, a{A_O+((c+1)*4+qb)*4+r}"))
        for k in range(8):
            x = tb + 2 * k
            it.append(I_valu(f"v_pk_mul_f32 {vp(x)}, {vp(x)}, {vp(inv)} op_sel_hi:[1,0]"))
        for half in range(2):
            o = 16 + (qb * 2 + half) * 4
            for kk in range(4):
                x = tb + 2 * (half * 4 + kk)
                it.append(I_valu(f"v_cvt_pk_bf16_f32 v{o+kk}, v{x}, v{x+1}"))
            so = "0" if qb == 0 else f"s{S_T0+qb-1}"
            it.append(I_vm(f"buffer_store_dwordx4 v[{o}:{o+3}], v{V_OUT}, s[{S_OSRD}:{S_OSRD+3}], {so} offen offset:{half*16}{OUTF}", ("O", qb, half)))
        return it
    linv = [I_wlds(("LR", 3))]
    for qb in range(4):
        b = T + 4 * qb
        linv += [I_valu(f"v_add_f32 v{b}, v{b}, v{b+1}"), I_valu(f"v_add_f32 v{b+2}, v{b+2}, v{b+3}")]
    for qb in range(4):
        b = T + 4 * qb
        linv.append(I_valu(f"v_add_f32 v{b}, v{b}, v{b+2}"))
    for qb in range(4):
        b = T + 4 * qb
        linv.append(I_valu(f"v_rcp_f32 v{b}, v{b}", 8))
    items = []
    lreads = [I_lds(f"ds_read_b128 v[{T+4*qb}:{T+4*qb+3}], v{LRREG} offset:{qb*256}", ("LR", qb)) for qb in range(4)]
    head = [I_salu(f"s_mov_b32 s{S_T0+k}, {8192*(k+1)}") for k in range(3)] + p_reads(t) + lreads
    gaps = [[] for _ in range(64)]
    q = list(linv)
    g = 4
    while q:
        gaps[g] += q[:2]; q = q[2:]; g = min(g + 1, 15) if g < 15 else 15
    for qb in range(3):
        e = epi(qb)
        g0 = 16 * (qb + 1) + 3
        per = (len(e) + 12) // 13
        g = g0
        while e:
            gaps[g] += e[:per]; e = e[per:]; g = min(g + 1, 63)
    for k, (pre, m, post) in enumerate(mf):
        items += pre
        items.append(m)
        if k == 0:
            items += head
        items += gaps[k]
    items.append(I_raw("s_nop 7"))
    items += epi(3)
    return items

def gen_fused(a, opt):
    global OUTF, LRREG
    NT = 16
    st = Stamp(a, opt)
    P = RM()
    P.kraw, P.krr, P.ksc, P.kst, P.vraw, P.vsc, P.vst = 1, 2, 3, 4, 5, 6, 7
    V_QW, V_QR, SCA, V_QOFF = 8, 9, 10, 14
    X, XS, TT, Y, YS, QD = 16, 48, 56, 104, 136, 144
    WK, WQ, QPOS, V_NON, V_ZERO = 176, 192, 200, 202, 203
    SK, SV = 208, 212
    T = 240
    a.label(KNAME)
    a("s_cmp_ge_u32 s2, 256" if not opt.empty else "s_cmp_ge_u32 s2, 0")
    a("s_cbranch_scc1 L_done")
    st(force=True)
    a("s_load_dwordx16 s[40:55], s[0:1], 0")
    a("s_load_dwordx2 s[62:63], s[0:1], 88")
    a("s_load_dwordx4 s[64:67], s[0:1], 96")
    a(f"s_and_b32 s{S_HEAD}, s2, 7")
    a(f"s_lshr_b32 s{S_J}, s2, 3")
    a("v_lshrrev_b32 v17, 6, v0")
    a("v_and_b32 v18, 15, v0")
    a("v_bfe_u32 v19, v0, 4, 2")
    a(f"v_readfirstlane_b32 s{S_W}, v17")
    a(f"s_mov_b32 s{S_MASK}, 0xffff0000")
    a(f"s_mov_b32 s{S_C}, 0x{f32bits(math.log2(math.e)/16.0):08x}")
    a(f"s_and_b32 s{S_ROT}, s{S_J}, 3")
    task_addr(a, P, 20)
    a(f"v_lshlrev_b32 v{P.ksc}, 1, v{P.krr}")
    a(f"v_lshlrev_b32 v{P.vsc}, 3, v19")
    a("v_lshl_add_u32 v24, v17, 4, v19")
    a(f"v_lshlrev_b32 v{V_QOFF}, 9, v24")
    a(f"v_lshl_add_u32 v{V_QOFF}, v18, 4, v{V_QOFF}")
    a(f"s_lshl_b32 s{S_T0}, s{S_J}, 6")
    a(f"v_add_u32 v{QPOS}, s{S_T0}, v24")
    a(f"v_mov_b32 v{V_ZERO}, 0")
    task_params(a, 0, 68, 69, 70)
    a("s_waitcnt lgkmcnt(0)")
    a(f"s_lshl_b32 s{S_T1}, s{S_HEAD}, 21")
    make_srd(a, S_RAWK, 42, S_T1, 0x200000)
    a(f"s_lshl_b32 s{S_T0}, s{S_HEAD}, 20")
    a(f"s_lshl_b32 s{S_T3}, s{S_J}, 15")
    a(f"s_add_u32 s{S_T2}, s{S_T0}, s{S_T3}")
    make_srd(a, S_OSRD, 62, S_T2, 32768)
    make_srd(a, S_RAWV, 48, S_T1, 0x200000)
    make_srd(a, S_QSRD, 40, S_T2, 32768)
    a(f"s_lshl_b32 s{S_T2}, s{S_HEAD}, 12")
    make_srd(a, S_KSC, 44, S_T2, 4096)
    make_srd(a, S_KZ, 46, S_T2, 4096)
    make_srd(a, S_VSC, 50, S_T2, 4096)
    make_srd(a, S_VZ, 52, S_T2, 4096)
    a(f"s_mov_b32 s{S_PK}, s68"); a(f"s_mov_b32 s{S_PT}, s69"); a(f"s_mov_b32 s{S_PW}, s70")
    a(f"s_cmp_ge_u32 s{S_W}, 2")
    a("s_cbranch_scc1 L_B_issue0")
    k_raw_loads(a, P, X, S_PK); k_scale_loads(a, P, S_PK, SCA)
    a("s_branch L_issueQ")
    a.label("L_B_issue0")
    v_raw_loads(a, P, X, S_PT, S_PW); v_scale_loads(a, P, XS, S_PT)
    a.label("L_issueQ")
    a("s_mov_b32 s49, 4096")
    for it in range(4):
        so = "0" if it < 2 else "s49"
        io = (it & 1) * 2048
        b = QD + 8 * it
        a(f"buffer_load_dwordx4 v[{b}:{b+3}], v{V_QOFF}, s[{S_QSRD}:{S_QSRD+3}], {so} offen offset:{io}")
        a(f"buffer_load_dwordx4 v[{b+4}:{b+7}], v{V_QOFF}, s[{S_QSRD}:{S_QSRD+3}], {so} offen offset:{io+256}")
    a(f"s_mov_b32 s{S_DBG}, s64"); a(f"s_mov_b32 s{S_DBG+1}, s65")
    a(f"s_or_b32 s{S_T0}, s{S_HEAD}, s{S_J}")
    a(f"s_or_b32 s{S_T0}, s{S_T0}, s{S_W}")
    a(f"s_cmp_lg_u32 s{S_T0}, 0")
    a("s_cbranch_scc1 L_nononce")
    a("s_memrealtime s[100:101]")
    a("s_waitcnt lgkmcnt(0)")
    a("s_lshl_b32 s100, s100, 3")
    a("s_or_b32 s100, s100, 0x80000000")
    a("s_and_b32 s100, s100, 0xfffffff8")
    a("v_mov_b32 v204, s100")
    a("s_mov_b64 exec, 1")
    a(f"global_store_dword v{V_ZERO}, v204, s[{S_DBG}:{S_DBG+1}] sc1")
    a("s_mov_b64 exec, -1")
    a.label("L_nononce")
    a(f"global_load_dword v{V_NON}, v{V_ZERO}, s[{S_DBG}:{S_DBG+1}] sc1")
    a(f"s_lshl_b32 s{S_T0}, s{S_HEAD}, 20")
    make_srd(a, S_KSRD, 66, S_T0, 0x100000)
    a(f"s_add_u32 s{S_T1}, s{S_T0}, 0x800000")
    make_srd(a, S_VSRD, 66, S_T1, 0x100000)
    a(f"s_add_u32 s{S_FLG}, s66, 0x1000000")
    a(f"s_addc_u32 s{S_FLG+1}, s67, 0")
    if opt.stamp:
        a(f"s_mov_b32 s{S_STW}, s66"); a(f"s_mov_b32 s{S_STW+1}, s67")
    NPT = 0
    if opt.pretouch:
        a(f"s_lshl_b32 s{S_T0}, s{S_HEAD}, 5")
        a(f"s_add_u32 s{S_T0}, s{S_T0}, s{S_J}")
        a(f"s_lshl_b32 s{S_T0}, s{S_T0}, 7")
        a(f"v_mov_b32 v205, s{S_T0}")
        a(f"global_load_dword v206, v205, s[{S_FLG}:{S_FLG+1}] sc1")
        a(f"buffer_load_dword v207, v{V_ZERO}, s[{S_OSRD}:{S_OSRD+3}], 0 offen")
        NPT = 2
    task_params(a, 1, S_PK2, S_PT2, S_PW2)
    a(f"s_lshr_b32 s{S_T2}, s{S_W}, 1")
    a(f"s_add_u32 s{S_T2}, s{S_T2}, 2")
    task_params(a, ('s', S_T2), S_HK, None, None)
    a(f"s_lshr_b32 s{S_T2}, s{S_W}, 1")
    a(f"s_sub_u32 s{S_T2}, 3, s{S_T2}")
    task_params(a, ('s', S_T2), None, S_HT, S_HW)
    a("v_and_b32 v220, 7, v0"); a("v_lshlrev_b32 v220, 3, v220"); a("v_cvt_f32_u32 v220, v220")
    a("v_and_b32 v221, 15, v0"); a("v_lshlrev_b32 v221, 3, v221"); a("v_cvt_f32_u32 v221, v221")
    a(f"v_cvt_f32_u32 v{QPOS}, v{QPOS}")
    freq_consts(a, WK, 16, 220, [64 * (k >> 3) + (k & 7) for k in range(16)])
    freq_consts(a, WQ, 8, 221, list(range(8)))
    a(f"v_lshrrev_b32 v{T}, 6, v0")
    a(f"v_and_b32 v{T+1}, 15, v0")
    a(f"v_bfe_u32 v{T+2}, v0, 4, 2")
    a(f"v_mul_u32_u24 v{V_QW}, {8*QFS}, v{T}")
    a(f"v_lshrrev_b32 v{T+3}, 2, v{T+1}")
    a(f"v_mul_u32_u24 v{T+3}, {QFS}, v{T+3}")
    a(f"v_add_u32 v{V_QW}, v{V_QW}, v{T+3}")
    a(f"v_and_b32 v{T+3}, 3, v{T+1}")
    a(f"v_mul_u32_u24 v{T+3}, {QGS}, v{T+3}")
    a(f"v_add_u32 v{V_QW}, v{V_QW}, v{T+3}")
    a(f"v_lshl_add_u32 v{V_QW}, v{T+2}, 4, v{V_QW}")
    a(f"v_mul_u32_u24 v{V_QR}, {QGS}, v{T+2}")
    a(f"v_lshl_add_u32 v{V_QR}, v{T+1}, 4, v{V_QR}")
    a(f"v_and_b32 v{T}, 63, v0")
    a(f"v_lshlrev_b32 v{T+1}, 4, v{T}")
    for k in range(4):
        a(f"ds_write_b128 v{T+1}, v[{WK+4*k}:{WK+4*k+3}] offset:{LDS_WK+k*1024}")
    for r in range(64):
        a(f"v_accvgpr_write_b32 a{A_O+r}, 0")
    NY = 9 + NPT
    a(f"s_cmp_ge_u32 s{S_W}, 2")
    a("s_cbranch_scc1 L_B_comp0")
    a(f"s_waitcnt vmcnt({NY})")
    st()
    k_compute(a, P, X, SCA, WK, TT, S_PK)
    nA1 = v_raw_loads(a, P, Y, S_PT2, S_PW2) + v_scale_loads(a, P, YS, S_PT2)
    a("s_branch L_sc23")
    a.label("L_B_comp0")
    a(f"s_waitcnt vmcnt({NY})")
    st(again=True)
    v_compute(a, P, X, XS, TT, S_PT, S_PW)
    nB1 = k_raw_loads(a, P, Y, S_PK2) + k_scale_loads(a, P, S_PK2, YS)
    a.label("L_sc23")
    k_scale_loads(a, P, S_HK, SK); v_scale_loads(a, P, SV, S_HT)
    st(level=2)
    nmin = min(nA1, nB1)
    def rope_it(it):
        if it:
            a(f"v_add_f32 v{QPOS}, 4.0, v{QPOS}")
        o = rope_q(a, QD + 8 * it, TT, QPOS, WQ)
        a(f"ds_write_b128 v{V_QW}, v[{o}:{o+3}] offset:{it*64}")
        a(f"ds_write_b128 v{V_QW}, v[{o+4}:{o+7}] offset:{it*64 + 4*QFS}")
    a(f"s_waitcnt vmcnt({nmin + 6 + 4 + 1 + NPT})")
    for it in range(opt.rope_first):
        rope_it(it)
    st(level=2)
    a(f"s_waitcnt vmcnt({nmin + 6})")
    st(level=2)
    a(f"v_readfirstlane_b32 s{S_NONCE}, v{V_NON}")
    a(f"s_cmp_lg_u32 s{S_NONCE}, 0")
    a("s_cbranch_scc1 L_have_nonce")
    a(f"s_mov_b32 s{S_SPIN}, 0")
    a.label("L_nonce_spin")
    a(f"global_load_dword v{V_NON}, v{V_ZERO}, s[{S_DBG}:{S_DBG+1}] sc1")
    a("s_waitcnt vmcnt(0)")
    a(f"v_readfirstlane_b32 s{S_NONCE}, v{V_NON}")
    a(f"s_add_u32 s{S_SPIN}, s{S_SPIN}, 1")
    a(f"s_cmp_ge_u32 s{S_SPIN}, 0x8000")
    a("s_cbranch_scc1 L_have_nonce")
    a(f"s_cmp_eq_u32 s{S_NONCE}, 0")
    a("s_cbranch_scc1 L_nonce_spin")
    a.label("L_have_nonce")
    a("s_barrier")
    publish(a, 1, "L_pub1", 204)
    st()
    for it in range(opt.rope_first, 4):
        rope_it(it)
    a("s_waitcnt lgkmcnt(0)")
    a("s_barrier")
    for qb in range(4):
        for s in range(8):
            b = A_Q + (qb * 8 + s) * 4
            a(f"ds_read_b128 a[{b}:{b+3}], v{V_QR} offset:{(qb*8+s)*QFS}")
    P2 = RM(); P2.krr, P2.kst, P2.vst = 220, 221, 222
    a(f"v_mov_b32 v{P2.krr}, v{P.krr}")
    a(f"v_mov_b32 v{P2.kst}, v{P.kst}")
    a(f"v_mov_b32 v{P2.vst}, v{P.vst}")
    a("s_waitcnt lgkmcnt(0)")
    a(f"v_and_b32 v{T}, 63, v0")
    a(f"v_lshrrev_b32 v{T+1}, 6, v0")
    a(f"v_and_b32 v{V_FADDR}, 31, v0")
    a(f"s_lshl_b32 s{S_T0}, s{S_HEAD}, 5")
    a(f"v_add_u32 v{V_FADDR}, s{S_T0}, v{V_FADDR}")
    a(f"v_lshlrev_b32 v{V_FADDR}, 7, v{V_FADDR}")
    a(f"v_lshlrev_b32 v{T+2}, 4, v{T}")
    a(f"v_add_u32 v{T+3}, {LDS_P}, v{T+2}")
    for t in range(1, 4):
        a(f"v_add_u32 v{T+4}, {t}, v{T+1}")
        a(f"v_and_b32 v{T+4}, 3, v{T+4}")
        a(f"v_lshl_add_u32 v{V_PR+t-1}, v{T+4}, 12, v{T+3}")
    a(f"v_lshl_add_u32 v{V_PW}, v{T+1}, 12, v{T+3}")
    a(f"v_lshl_add_u32 v{V_OFF}, v{T+1}, 14, v{T+2}")
    for k in range(1, 4):
        a(f"v_add_u32 v{V_OFF+k}, {4096*k}, v{V_OFF}")
    for r in range(4):
        a(f"v_mov_b32 v{V_L+r}, 0")
    a(f"s_mov_b32 s{S_FMASK}, 0x222")
    if opt.ngroups == 3:
        a(f"s_mul_i32 s{S_T0}, s{S_J}, 43")
        a(f"s_lshr_b32 s{S_T0}, s{S_T0}, 7")
        a(f"s_mul_i32 s{S_T0}, s{S_T0}, 3")
        a(f"s_sub_u32 s{S_G}, s{S_J}, s{S_T0}")
    elif opt.ngroups == 2:
        a(f"s_and_b32 s{S_G}, s{S_J}, 1")
        a(f"s_lshl_b32 s{S_G}, s{S_G}, 1")
    else:
        a(f"s_mov_b32 s{S_G}, 0")
    a(f"s_lshl_b32 s{S_HMASK}, 0x3e, s{S_G}")
    a(f"s_or_b32 s{S_HMASK}, s{S_HMASK}, 0x444")
    set_need(a, 1)
    spin(a, "r0")
    st()
    a(f"s_lshl_b32 s{S_KOFF}, s{S_ROT}, 16")
    a(f"s_mov_b32 s{S_VOFF}, s{S_KOFF}")
    a(f"s_mov_b32 s{S_KUSE}, s{S_KOFF}")
    pro = [kload(0, f, S_KUSE) for f in range(16)]
    for it in pro:
        a(it.text)
    a(f"s_mul_i32 s{S_T1}, s{S_W}, 2560")
    a(f"s_add_u32 s{S_T1}, s{S_T1}, {LDS_SC}")
    a(f"v_lshlrev_b32 v{T+1}, 3, v{T}")
    a(f"v_add_u32 v{T+1}, s{S_T1}, v{T+1}")
    a(f"ds_write_b64 v{T+1}, v[{SK}:{SK+1}]")
    a(f"v_add_u32 v{T+2}, s{S_T1}, v{T+2}")
    a(f"ds_write_b128 v{T+2}, v[{SV}:{SV+3}] offset:512")
    a(f"ds_write_b128 v{T+2}, v[{SV+4}:{SV+7}] offset:1536")
    a(f"s_cmp_ge_u32 s{S_W}, 2")
    a("s_cbranch_scc1 L_B_r1")
    v_compute(a, P2, Y, YS, TT, S_PT2, S_PW2)
    a("s_branch L_rdone")
    a.label("L_B_r1")
    k_compute(a, P2, Y, YS, WK, TT, S_PK2)
    a.label("L_rdone")
    H = RM(); H.krr, H.kraw, H.kst, H.vraw, H.vst = 156, 158, 157, 158, 157
    a("s_waitcnt lgkmcnt(0)")
    st()
    pre = [I_salu(f"s_mov_b32 s{S_I}, -1")] + tile_off(S_KUSE, 2, S_T4)
    for (p_, m, post) in qk_mfmas(0, opt, NT):
        pre += p_ + [m] + post
    pf = []
    if opt.prefetch:
        pf += [I_valu(f"v_and_b32 v224, 63, v0"), I_valu(f"v_lshlrev_b32 v225, 7, v224"),
               I_valu(f"v_lshrrev_b32 v226, 1, v224"), I_valu(f"v_lshlrev_b32 v226, 10, v226"),
               I_valu(f"v_and_b32 v224, 1, v224"), I_valu(f"v_lshl_add_u32 v226, v224, 7, v226"),
               I_salu(f"s_lshl_b32 s{S_T0}, s{S_HK}, 10"),
               I_salu(f"s_lshl_b32 s{S_T1}, s{S_HT}, 15"), I_salu(f"s_lshl_b32 s{S_T2}, s{S_HW}, 8"),
               I_salu(f"s_add_u32 s{S_T1}, s{S_T1}, s{S_T2}")]
        for off in (0, 64)[:opt.prefetch]:
            pf.append(I_raw(f"buffer_load_dword v227, v225, s[{S_RAWK}:{S_RAWK+3}], s{S_T0} offen offset:{off}"))
            pf.append(I_raw(f"buffer_load_dword v228, v226, s[{S_RAWV}:{S_RAWV+3}], s{S_T1} offen offset:{off}"))
    pre += pf
    pre.append(I_raw("s_nop 7"))
    pre.append(I_salu(f"s_mov_b32 s{S_I}, 0"))
    endbar = [I_wlds("all"), I_raw("s_barrier")]
    blocks = [("pro", pro + [I_vm("", ("ST", k)) for k in range(4)]), ("pre", pre)]
    it0 = build_iter(0, opt) + [vload(0, f, S_VOFF) for f in range(9)] + [I_raw("s_waitcnt vmcnt(25)")] + endbar + [I_salu(f"s_mov_b32 s{S_I}, 1")]
    blocks.append(("it0", it0))
    stat = {}
    for i in range(1, 15):
        items = build_iter(i, opt) + [I_salu(f"s_add_u32 s{S_I}, s{S_I}, 1")] + endbar
        nm = "odd" if i % 2 else "even"
        blocks.append((nm, items))
        if nm not in stat: stat[nm] = items
        else: assert [x.text for x in stat[nm]] == [x.text for x in items], nm
    it15 = build_iter(15, opt)
    V_LW, V_LR, V_OUT = 231, 232, 233
    LRREG = V_LR
    red = [I_valu(f"v_and_b32 v224, 15, v0"), I_valu(f"v_lshrrev_b32 v225, 6, v0"), I_valu(f"v_bfe_u32 v226, v0, 4, 2"),
           I_valu(f"v_lshlrev_b32 v{V_LR}, 4, v224"), I_valu(f"v_add_u32 v{V_LR}, {LDS_L}, v{V_LR}"),
           I_valu(f"v_lshl_add_u32 v{V_LW}, v225, 2, v{V_LR}"), I_valu(f"v_lshlrev_b32 v{V_OUT}, 9, v224"),
           I_valu(f"v_lshl_add_u32 v{V_OUT}, v225, 7, v{V_OUT}"), I_valu(f"v_lshl_add_u32 v{V_OUT}, v226, 5, v{V_OUT}")]
    for qb in range(4): red.append(I_valu(f"v_mov_b32 v{T+qb}, v{V_L+qb}"))
    red.append(I_raw("s_nop 1"))
    for qb in range(4): red.append(I_valu(f"v_permlane32_swap_b32 v{T+qb}, v{V_L+qb}"))
    red.append(I_raw("s_nop 1"))
    for qb in range(4): red.append(I_valu(f"v_add_f32 v{V_L+qb}, v{V_L+qb}, v{T+qb}"))
    for qb in range(4): red.append(I_valu(f"v_mov_b32 v{T+qb}, v{V_L+qb}"))
    red.append(I_raw("s_nop 1"))
    for qb in range(4): red.append(I_valu(f"v_permlane16_swap_b32 v{T+qb}, v{V_L+qb}"))
    red.append(I_raw("s_nop 1"))
    for qb in range(4): red.append(I_valu(f"v_add_f32 v{V_L+qb}, v{V_L+qb}, v{T+qb}"))
    for qb in range(4): red.append(I_lds(f"ds_write_b32 v{V_LW}, v{V_L+qb} offset:{qb*256}", ("LW", qb)))
    it15 += red + endbar
    blocks.append(("it15", it15))
    it16 = build_last(opt, T, V_OUT)
    blocks.append(("it16", it16))
    waits = resolve_waits(blocks)
    emit_block(a, "pre", pre, waits)
    if opt.stamp == 5: st()
    emit_block(a, "it0", it0, waits)
    publish(a, 2, "L_pub2", 158)
    def hook_site(name):
        a(f"s_bitcmp1_b32 s{S_HMASK}, s{S_I}")
        a(f"s_cbranch_scc0 L_nohook_{name}")
        a(f"s_call_b64 s[{S_RET}:{S_RET+1}], L_hook")
        a.label(f"L_nohook_{name}")
    hook_site("it0")
    st()
    a.label("L_loop")
    base = st.n
    emit_block(a, "odd", stat["odd"], waits)
    if opt.stamp == 4: st.dyn(2, base - 4, 9)
    hook_site("odd")
    if opt.stamp == 3: st.dyn(1, base - 2, 15)
    if opt.stamp == 4: st.dyn(2, base - 3, 9)
    emit_block(a, "even", stat["even"], waits)
    if opt.stamp == 4: st.dyn(2, base - 4, 9)
    hook_site("even")
    if opt.stamp == 3:
        st.dyn(1, base - 2, 15); st.n = base + 14
    if opt.stamp == 4:
        st.dyn(2, base - 3, 9); st.n = base + 16
    a(f"s_cmp_lt_u32 s{S_I}, 15")
    a("s_cbranch_scc1 L_loop")
    if opt.stamp in (1, 2): st()
    emit_block(a, "it15", it15, waits)
    emit_block(a, "it16", it16, waits)
    if opt.stamp:
        hk = st.n
        if opt.stamp == 5: st.n += 5
        a("s_waitcnt vmcnt(0)")
        st(force=True)
        st.finish()
    a("s_endpgm")
    a.label("L_hook")
    a(f"s_and_b32 s{S_T0}, s{S_I}, 3")
    a(f"s_cmp_lg_u32 s{S_T0}, 2")
    a("s_cbranch_scc1 L_hook_d")
    a(f"s_lshr_b32 s{S_T0}, s{S_I}, 2")
    a(f"s_add_u32 s{S_T0}, s{S_T0}, 2")
    a(f"s_add_u32 s{S_NEED}, s{S_NONCE}, s{S_T0}")
    a(f"s_sub_u32 s{S_RANGE}, 4, s{S_T0}")
    nyoung = sum(1 for j in range(16) if 28 + 4 * j > opt.flag_gap) + sum(1 for j in range(9) if 92 + 4 * j > opt.flag_gap)
    a(f"s_waitcnt vmcnt({nyoung})")
    flag_check(a)
    a("s_nop 4")
    a(f"s_cbranch_vccz L_hook_d")
    spin(a, "hk")
    a.label("L_hook_d")
    a(f"s_sub_u32 s{S_T3}, s{S_I}, s{S_G}")
    a(f"s_cmp_eq_u32 s{S_T3}, 1"); a("s_cbranch_scc1 L_h_issue1")
    a(f"s_cmp_eq_u32 s{S_T3}, 2"); a("s_cbranch_scc1 L_h_comp1")
    a(f"s_cmp_eq_u32 s{S_T3}, 3"); a("s_cbranch_scc1 L_h_pub3")
    a(f"s_cmp_eq_u32 s{S_T3}, 4"); a("s_cbranch_scc1 L_h_comp2")
    a(f"s_cmp_eq_u32 s{S_T3}, 5"); a("s_cbranch_scc0 L_hook_ret")
    publish(a, 4, "L_pub4", 158)
    a("s_branch L_hook_ret")
    a.label("L_h_pub3")
    publish(a, 3, "L_pub3", 158)
    a(f"s_mov_b32 s{S_T4}, 1")
    a("s_branch L_h_issue")
    a.label("L_h_issue1")
    a(f"s_mov_b32 s{S_T4}, 0")
    a.label("L_h_issue")
    a(f"s_lshr_b32 s{S_T0}, s{S_W}, 1")
    a(f"s_xor_b32 s{S_T0}, s{S_T0}, s{S_T4}")
    a(f"s_cmp_eq_u32 s{S_T0}, 1"); a("s_cbranch_scc1 L_h_issueV")
    task_addr(a, H, 140, v=False)
    k_raw_loads(a, H, 224, S_HK)
    a("s_branch L_hook_ret")
    a.label("L_h_issueV")
    task_addr(a, H, 140, k=False)
    v_raw_loads(a, H, 224, S_HT, S_HW)
    a("s_branch L_hook_ret")
    a.label("L_h_comp2")
    a(f"s_mov_b32 s{S_T4}, 1")
    a("s_branch L_h_comp")
    a.label("L_h_comp1")
    a(f"s_mov_b32 s{S_T4}, 0")
    a.label("L_h_comp")
    a(f"v_and_b32 v142, 63, v0")
    a(f"s_mul_i32 s{S_T1}, s{S_W}, 2560")
    a(f"s_add_u32 s{S_T1}, s{S_T1}, {LDS_SC}")
    a(f"s_lshr_b32 s{S_T0}, s{S_W}, 1")
    a(f"s_xor_b32 s{S_T0}, s{S_T0}, s{S_T4}")
    a(f"s_cmp_eq_u32 s{S_T0}, 1"); a("s_cbranch_scc1 L_h_compV")
    a(f"v_lshlrev_b32 v143, 4, v142")
    for k in range(4):
        a(f"ds_read_b128 v[{112+4*k}:{115+4*k}], v143 offset:{LDS_WK+k*1024}")
    a(f"v_lshlrev_b32 v142, 3, v142")
    a(f"v_add_u32 v142, s{S_T1}, v142")
    a(f"ds_read_b64 v[128:129], v142")
    task_addr(a, H, 140, v=False)
    a("s_waitcnt lgkmcnt(0)")
    k_compute(a, H, 224, 128, 112, 130, S_HK)
    a("s_branch L_hook_ret")
    a.label("L_h_compV")
    a(f"v_lshlrev_b32 v143, 4, v142")
    a(f"v_add_u32 v143, s{S_T1}, v143")
    a(f"ds_read_b128 v[112:115], v143 offset:512")
    a(f"ds_read_b128 v[116:119], v143 offset:1536")
    task_addr(a, H, 140, k=False)
    a("s_waitcnt lgkmcnt(0)")
    v_compute(a, H, 224, 112, 120, S_HT, S_HW)
    a.label("L_hook_ret")
    a(f"s_setpc_b64 s[{S_RET}:{S_RET+1}]")
    a.label("L_done")
    a("s_endpgm")

def main():
    global OUTF
    ap = argparse.ArgumentParser()
    ap.add_argument("-o", default=f"cdna_kernels/{NAME}.s")
    ap.add_argument("--stamp", type=int, default=0)
    ap.add_argument("--wgrp", type=int, default=4)
    ap.add_argument("--kgrp", type=int, default=8)
    ap.add_argument("--spread", type=int, default=1)
    ap.add_argument("--cap", type=int, default=2)
    ap.add_argument("--pace", type=int, default=1)
    ap.add_argument("--read_spread", type=int, default=1)
    ap.add_argument("--sm_g0", type=int, default=0)
    ap.add_argument("--sm_g1", type=int, default=117)
    ap.add_argument("--ldflags", default="sc1")
    ap.add_argument("--outflags", default="nt")
    ap.add_argument("--empty", type=int, default=0)
    ap.add_argument("--pretouch", type=int, default=1)
    ap.add_argument("--rope_first", type=int, default=1)
    ap.add_argument("--prefetch", type=int, default=0)
    ap.add_argument("--flag_gap", type=int, default=57)
    ap.add_argument("--ngroups", type=int, default=3)
    opt = ap.parse_args()
    OUTF = (" " + opt.outflags.replace("+", " ")) if opt.outflags else ""
    gen2.LDFLAGS = (" " + opt.ldflags.replace("+", " ")) if opt.ldflags else ""
    out = header()
    out += f"; @launch grid=(256,1,1) block=(256,1,1) lds={LDS_TOTAL}\n"
    out += '.amdgcn_target "amdgcn-amd-amdhsa--gfx950"\n.text\n'
    a = EA()
    gen_fused(a, opt)
    out += f".globl {KNAME}\n.p2align 8\n.type {KNAME},@function\n" + a.text()
    out += kd(KNAME, 512, 102, 256)
    open(opt.o, "w").write(out)

if __name__ == "__main__":
    main()
```

```python
import sys, os, argparse, math, struct
sys.path.insert(0, "dev")
from gen import f32bits, make_srd, kd, NAME, Item, I_valu, I_raw, I_salu, I_vm, I_lds, I_wvm, I_wlds, I_mfma, resolve_waits, emit_block
import gen2
from gen2 import (MF, V_OFF, V_PW, V_PR, V_L, V_S, V_PO, V_PF, V_V, A_O, A_Q, A_K, QFS, QGS,
                  S_KSRD, S_VSRD, S_QSRD, S_OSRD, S_KOFF, S_VOFF, S_I, S_ROT, S_C, S_W, S_MASK, S_KUSE,
                  kload, vload, softmax_stream, qk_mfmas, schedule, respread_loads, header)

KNAME = NAME + "_kernel"

class EA:
    def __init__(self): self.lines = []
    def __call__(self, s):
        for l in s.split("\n"):
            l = l.strip()
            if not l: continue
            self.lines.append(l if l.endswith(":") else "    " + l)
    def label(self, l): self.lines.append(l + ":")
    def text(self): return "\n".join(self.lines) + "\n"

LDS_Q = 0
LDS_L = 34816
LDS_SC = LDS_L + 1024
LDS_WK = LDS_SC + 4 * 2560
LDS_P = 51200
LDS_TOTAL = LDS_P + 32768
assert LDS_WK + 4096 <= LDS_P

S_STW = 36
S_NONCE = 39
S_PK, S_PT, S_PW = 40, 41, 42
S_PK2, S_PT2, S_PW2 = 43, 44, 45
S_HK, S_HT, S_HW = 46, 47, 48
S_FLG = 50
S_RANGE = 53
S_FMASK = 49
S_HMASK = 38
S_G = 68
S_RET = 70
S_RAWK, S_RAWV = 56, 60
S_KSC, S_KZ, S_VSC, S_VZ = 72, 76, 80, 84
S_DBG = 88
S_J, S_NEED = 90, 91
S_T0, S_T1, S_T2, S_T3, S_T4 = 92, 93, 94, 95, 96
S_SPIN, S_HEAD = 97, 99
V_FLAG, V_FADDR, V_STAMP = 13, 14, 15
STF = " sc1"

class RM: pass

class Stamp:
    def __init__(self, a, opt):
        self.a = a; self.on = opt.stamp; self.n = 0
    def _emit(self, idx_sgpr=None):
        a = self.a
        a("s_memtime s[54:55]")
        a("s_memrealtime s[100:101]")
        a("s_waitcnt lgkmcnt(0)")
        if idx_sgpr is None:
            a(f"v_writelane_b32 v{V_STAMP}, s54, {2*self.n}")
            a(f"v_writelane_b32 v{V_STAMP}, s100, {2*self.n+1}")
        else:
            a(f"s_mov_b32 m0, s{idx_sgpr}"); a("s_nop 1")
            a(f"v_writelane_b32 v{V_STAMP}, s54, m0")
            a(f"s_add_u32 m0, s{idx_sgpr}, 1"); a("s_nop 1")
            a(f"v_writelane_b32 v{V_STAMP}, s100, m0")
    def __call__(self, again=False, level=1, force=False):
        if not self.on: return
        if self.on == 9 and not force: return
        if level == 2 and self.on != 2: return
        if again: self.n -= 1
        self._emit()
        self.n += 1
    def dyn(self, mul, add, cap):
        a = self.a
        a(f"s_min_u32 s52, s{S_I}, {cap}")
        a(f"s_mul_i32 s52, s52, {2*mul}")
        a(f"s_add_u32 s52, s52, {2*add}")
        self._emit(52)
    def finish(self):
        if not self.on: return
        a = self.a
        a("s_waitcnt vmcnt(0)")
        a(f"s_lshl_b32 s46, s{S_J}, 3")
        a(f"s_add_u32 s46, s46, s{S_HEAD}")
        a(f"s_lshl_b32 s46, s46, 10")
        a(f"s_lshl_b32 s47, s{S_W}, 8")
        a("s_add_u32 s46, s46, s47")
        a("s_add_u32 s46, s46, 0x8000000")
        a(f"s_add_u32 s46, s{S_STW}, s46")
        a(f"s_addc_u32 s47, s{S_STW+1}, 0")
        a("v_and_b32 v16, 63, v0")
        a("v_lshlrev_b32 v16, 2, v16")
        a(f"global_store_dword v16, v{V_STAMP}, s[46:47]")
        a("s_waitcnt vmcnt(0)")

LOG2_10000_128 = math.log2(10000.0) / 128.0
LOG2_2PI = math.log2(2 * math.pi)

def vp(r): return f"v[{r}:{r+1}]"

def k_raw_loads(a, R, X, rowreg):
    a(f"s_lshl_b32 s{S_T0}, s{rowreg}, 10")
    for c in range(4):
        for hf in range(2):
            b = X + c * 8 + hf * 4
            a(f"buffer_load_dwordx4 v[{b}:{b+3}], v{R.kraw}, s[{S_RAWK}:{S_RAWK+3}], s{S_T0} offen offset:{c*256+hf*16}")
    return 8
def k_scale_loads(a, R, rowreg, dst):
    a(f"s_lshl_b32 s{S_T2}, s{rowreg}, 1")
    a(f"buffer_load_ushort v{dst}, v{R.ksc}, s[{S_KSC}:{S_KSC+3}], s{S_T2} offen")
    a(f"buffer_load_ushort v{dst+1}, v{R.ksc}, s[{S_KZ}:{S_KZ+3}], s{S_T2} offen")
    return 2
def v_raw_loads(a, R, X, treg, wreg):
    a(f"s_lshl_b32 s{S_T0}, s{treg}, 15")
    a(f"s_lshl_b32 s{S_T1}, s{wreg}, 8")
    a(f"s_add_u32 s{S_T0}, s{S_T0}, s{S_T1}")
    a(f"s_add_u32 s{S_T1}, s{S_T0}, 16384")
    for j in range(8):
        b = X + j * 4
        so = S_T0 if j < 4 else S_T1
        a(f"buffer_load_dwordx4 v[{b}:{b+3}], v{R.vraw}, s[{S_RAWV}:{S_RAWV+3}], s{so} offen offset:{(j&3)*1024}")
    return 8
def v_scale_loads(a, R, SC, treg):
    a(f"s_lshl_b32 s{S_T2}, s{treg}, 6")
    for g2 in range(2):
        a(f"buffer_load_dwordx2 v[{SC+2*g2}:{SC+1+2*g2}], v{R.vsc}, s[{S_VSC}:{S_VSC+3}], s{S_T2} offen offset:{g2*32}")
        a(f"buffer_load_dwordx2 v[{SC+4+2*g2}:{SC+5+2*g2}], v{R.vsc}, s[{S_VZ}:{S_VZ+3}], s{S_T2} offen offset:{g2*32}")
    return 4

def sincos8(a, pos, w, cs, sn):
    for k in range(4):
        a(f"v_pk_mul_f32 {vp(sn+2*k)}, {vp(w+2*k)}, {vp(pos)} op_sel_hi:[1,0]")
    for e in range(8):
        a(f"v_fract_f32 v{sn+e}, v{sn+e}")
    for e in range(8):
        a(f"v_cos_f32 v{cs+e}, v{sn+e}")
    for e in range(8):
        a(f"v_sin_f32 v{sn+e}, v{sn+e}")

def rope8(a, x1, x2, cs, sn, u, o1dst, o2dst):
    for k in range(4):
        a(f"v_pk_mul_f32 {vp(u+2*k)}, {vp(x2+2*k)}, {vp(sn+2*k)}")
    for k in range(4):
        a(f"v_pk_mul_f32 {vp(sn+2*k)}, {vp(x1+2*k)}, {vp(sn+2*k)}")
    for k in range(4):
        a(f"v_pk_fma_f32 {vp(u+2*k)}, {vp(x1+2*k)}, {vp(cs+2*k)}, {vp(u+2*k)} neg_lo:[0,0,1] neg_hi:[0,0,1]")
    for k in range(4):
        a(f"v_pk_fma_f32 {vp(sn+2*k)}, {vp(x2+2*k)}, {vp(cs+2*k)}, {vp(sn+2*k)}")
    for k in range(4):
        a(f"v_cvt_pk_bf16_f32 v{o1dst+k}, v{u+2*k}, v{u+2*k+1}")
    for k in range(4):
        a(f"v_cvt_pk_bf16_f32 v{o2dst+k}, v{sn+2*k}, v{sn+2*k+1}")

def k_compute(a, R, X, sc, WK, T, rowreg):
    assert sc % 2 == 0 and T % 2 == 0 and X % 4 == 0
    pos, cs, sn, u = T, T + 2, T + 10, T + 18
    a(f"v_lshlrev_b32 v{sc}, 16, v{sc}")
    a(f"v_lshlrev_b32 v{sc+1}, 16, v{sc+1}")
    a(f"v_cvt_f32_u32 v{pos}, v{R.krr}")
    a(f"v_cvt_f32_u32 v{pos+1}, s{rowreg}")
    a(f"v_mul_f32 v{sc+1}, v{sc+1}, v{sc}")
    a(f"v_add_f32 v{pos}, v{pos}, v{pos+1}")
    for k in range(32):
        a(f"v_cvt_f32_i32 v{X+k}, v{X+k}")
    sincos8(a, pos, WK, cs, sn)
    for k in range(16):
        a(f"v_pk_fma_f32 {vp(X+2*k)}, {vp(X+2*k)}, {vp(sc)}, {vp(sc)} op_sel:[0,0,1] op_sel_hi:[1,0,1] neg_lo:[0,0,1] neg_hi:[0,0,1]")
    rope8(a, X, X + 16, cs, sn, u, X, X + 16)
    sincos8(a, pos, WK + 8, cs, sn)
    a("s_nop 0")
    rope8(a, X + 8, X + 24, cs, sn, u, X + 8, X + 24)
    a(f"s_lshr_b32 s{S_T0}, s{rowreg}, 4")
    a(f"s_lshl_b32 s{S_T0}, s{S_T0}, 13")
    a(f"s_and_b32 s{S_T1}, s{rowreg}, 8")
    a(f"s_lshl_b32 s{S_T1}, s{S_T1}, 4")
    a(f"s_add_u32 s{S_T0}, s{S_T0}, s{S_T1}")
    a(f"s_add_u32 s{S_T1}, s{S_T0}, 4096")
    for c in range(4):
        b = X + c * 8
        so = S_T0 if c < 2 else S_T1
        a(f"buffer_store_dwordx4 v[{b}:{b+3}], v{R.kst}, s[{S_KSRD}:{S_KSRD+3}], s{so} offen offset:{(c&1)*2048}{STF}")

def v_compute(a, R, X, SC, T, treg, wreg):
    M = S_MASK
    SZ = T
    for j in range(8):
        src_s = SC + 2 * (j >> 2) + ((j & 3) >> 1)
        src_z = SC + 4 + 2 * (j >> 2) + ((j & 3) >> 1)
        if j & 1:
            a(f"v_and_b32 v{SZ+2*j}, s{M}, v{src_s}"); a(f"v_and_b32 v{SZ+2*j+1}, s{M}, v{src_z}")
        else:
            a(f"v_lshlrev_b32 v{SZ+2*j}, 16, v{src_s}"); a(f"v_lshlrev_b32 v{SZ+2*j+1}, 16, v{src_z}")
    for k in range(32):
        a(f"v_cvt_f32_i32 v{X+k}, v{X+k}")
    for j in range(8):
        a(f"v_mul_f32 v{SZ+2*j+1}, v{SZ+2*j+1}, v{SZ+2*j}")
    for j in range(8):
        for h in range(2):
            x = X + 4 * j + 2 * h
            a(f"v_pk_fma_f32 {vp(x)}, {vp(x)}, {vp(SZ+2*j)}, {vp(SZ+2*j)} op_sel:[0,0,1] op_sel_hi:[1,0,1] neg_lo:[0,0,1] neg_hi:[0,0,1]")
    O = T
    for db in range(4):
        for jj in range(4):
            a(f"v_cvt_pk_bf16_f32 v{O+db*4+jj}, v{X+(2*jj)*4+db}, v{X+(2*jj+1)*4+db}")
    a(f"s_lshr_b32 s{S_T0}, s{treg}, 2")
    a(f"s_lshl_b32 s{S_T0}, s{S_T0}, 16")
    a(f"s_lshl_b32 s{S_T1}, s{wreg}, 14")
    a(f"s_add_u32 s{S_T0}, s{S_T0}, s{S_T1}")
    a(f"s_sub_u32 s{S_T1}, s{treg}, s{wreg}")
    a(f"s_and_b32 s{S_T1}, s{S_T1}, 3")
    a(f"s_lshl_b32 s{S_T1}, s{S_T1}, 10")
    a(f"s_add_u32 s{S_T0}, s{S_T0}, s{S_T1}")
    for db in range(4):
        if db:
            a(f"s_add_u32 s{S_T0}, s{S_T0}, 4096")
        a(f"buffer_store_dwordx4 v[{O+4*db}:{O+4*db+3}], v{R.vst}, s[{S_VSRD}:{S_VSRD+3}], s{S_T0} offen{STF}")

def freq_consts(a, dst, n, dbase_v, offs):
    a(f"s_mov_b32 s{S_T0}, 0x{f32bits(-LOG2_10000_128):08x}")
    for k in range(n):
        a(f"v_mov_b32 v{dst+k}, 0x{f32bits(-LOG2_10000_128 * offs[k] - LOG2_2PI):08x}")
    for k in range(n):
        a(f"v_fma_f32 v{dst+k}, v{dbase_v}, s{S_T0}, v{dst+k}")
    for k in range(n):
        a(f"v_exp_f32 v{dst+k}, v{dst+k}")
    a("s_nop 0")

def rope_q(a, src, T, pos, wq):
    M = S_MASK
    q1, q2, cs, sn, u, out = T, T + 8, T + 16, T + 24, T + 32, T + 40
    sincos8(a, pos, wq, cs, sn)
    for k in range(4):
        a(f"v_lshlrev_b32 v{q1+2*k}, 16, v{src+k}"); a(f"v_and_b32 v{q1+2*k+1}, s{M}, v{src+k}")
        a(f"v_lshlrev_b32 v{q2+2*k}, 16, v{src+4+k}"); a(f"v_and_b32 v{q2+2*k+1}, s{M}, v{src+4+k}")
    for k in range(4):
        a(f"v_pk_mul_f32 {vp(cs+2*k)}, {vp(cs+2*k)}, s[{S_C}:{S_C+1}] op_sel_hi:[1,0]")
    for k in range(4):
        a(f"v_pk_mul_f32 {vp(sn+2*k)}, {vp(sn+2*k)}, s[{S_C}:{S_C+1}] op_sel_hi:[1,0]")
    rope8(a, q1, q2, cs, sn, u, out, out + 4)
    return out

def task_params(a, rnd, pk, pt, pw):
    a(f"s_and_b32 s{S_T0}, s{S_W}, 1")
    a(f"s_lshl_b32 s{S_T1}, s{S_J}, 1")
    a(f"s_add_u32 s{S_T0}, s{S_T0}, s{S_T1}")
    if pk is not None:
        a(f"s_lshl_b32 s{pk}, s{S_T0}, 3")
        if isinstance(rnd, int): a(f"s_add_u32 s{pk}, s{pk}, {512*rnd}")
        else:
            a(f"s_lshl_b32 s{S_T1}, s{rnd[1]}, 9"); a(f"s_add_u32 s{pk}, s{pk}, s{S_T1}")
    if pt is not None:
        a(f"s_lshr_b32 s{pt}, s{S_T0}, 2")
        if isinstance(rnd, int): a(f"s_add_u32 s{pt}, s{pt}, {16*rnd}")
        else:
            a(f"s_lshl_b32 s{S_T1}, s{rnd[1]}, 4"); a(f"s_add_u32 s{pt}, s{pt}, s{S_T1}")
        a(f"s_and_b32 s{pw}, s{S_T0}, 3")

def task_addr(a, R, tmp, k=True, v=True):
    if k:
        a(f"v_and_b32 v{tmp}, 7, v0")
        a(f"v_bfe_u32 v{R.krr}, v0, 3, 3")
        a(f"v_lshlrev_b32 v{R.kraw}, 10, v{R.krr}")
        a(f"v_lshl_add_u32 v{R.kraw}, v{tmp}, 5, v{R.kraw}")
        a(f"v_lshrrev_b32 v{tmp+1}, 2, v{tmp}")
        a(f"v_lshlrev_b32 v{R.kst}, 10, v{tmp+1}")
        a(f"v_and_b32 v{tmp+1}, 3, v{tmp}")
        a(f"v_lshl_add_u32 v{R.kst}, v{tmp+1}, 8, v{R.kst}")
        a(f"v_lshl_add_u32 v{R.kst}, v{R.krr}, 4, v{R.kst}")
    if v:
        a(f"v_and_b32 v{tmp}, 15, v0")
        a(f"v_bfe_u32 v{tmp+1}, v0, 4, 2")
        a(f"v_lshlrev_b32 v{R.vraw}, 12, v{tmp+1}")
        a(f"v_lshl_add_u32 v{R.vraw}, v{tmp}, 4, v{R.vraw}")
        a(f"v_and_b32 v{R.vst}, 63, v0")
        a(f"v_lshlrev_b32 v{R.vst}, 4, v{R.vst}")

def publish(a, val, lbl, t):
    a(f"s_cmp_lg_u32 s{S_W}, 0")
    a(f"s_cbranch_scc1 {lbl}")
    a(f"s_mov_b64 exec, 1")
    a(f"s_add_u32 s{S_T1}, s{S_NONCE}, {val}")
    a(f"v_mov_b32 v{t}, s{S_T1}")
    a(f"s_lshl_b32 s{S_T0}, s{S_HEAD}, 5")
    a(f"s_add_u32 s{S_T0}, s{S_T0}, s{S_J}")
    a(f"s_lshl_b32 s{S_T0}, s{S_T0}, 7")
    a(f"v_mov_b32 v{t+1}, s{S_T0}")
    a(f"global_store_dword v{t+1}, v{t}, s[{S_FLG}:{S_FLG+1}] sc1")
    a(f"s_mov_b64 exec, -1")
    a.label(lbl)

def flag_load(a):
    a(f"global_load_dword v{V_FLAG}, v{V_FADDR}, s[{S_FLG}:{S_FLG+1}] sc1")
def flag_check(a):
    a(f"v_subrev_u32 v{V_FLAG}, s{S_NEED}, v{V_FLAG}")
    a(f"v_cmp_lt_u32 vcc, s{S_RANGE}, v{V_FLAG}")
def set_need(a, need):
    a(f"s_add_u32 s{S_NEED}, s{S_NONCE}, {need}")
    a(f"s_mov_b32 s{S_RANGE}, {4-need}")
def spin(a, name):
    a(f"s_mov_b32 s{S_SPIN}, 0")
    a.label(f"L_spin_{name}")
    flag_load(a)
    a("s_waitcnt vmcnt(0)")
    flag_check(a)
    a(f"s_add_u32 s{S_SPIN}, s{S_SPIN}, 1")
    a(f"s_cmp_lt_u32 s{S_SPIN}, 0x8000")
    a(f"s_cbranch_scc0 L_spin_{name}_done")
    a("s_nop 3")
    a(f"s_cbranch_vccnz L_spin_{name}")
    a.label(f"L_spin_{name}_done")

def tile_off(dst, tadd, tmp):
    return [I_salu(f"s_add_u32 s{dst}, s{S_I}, {tadd}"),
            I_salu(f"s_add_u32 s{tmp}, s{dst}, s{S_ROT}"),
            I_salu(f"s_and_b32 s{tmp}, s{tmp}, 3"),
            I_salu(f"s_and_b32 s{dst}, s{dst}, 12"),
            I_salu(f"s_or_b32 s{dst}, s{dst}, s{tmp}"),
            I_salu(f"s_lshl_b32 s{dst}, s{dst}, 16")]

def pv_item(t, db, qb, p):
    par = t & 1
    f = db * 4 + p
    o = A_O + (db * 4 + qb) * 4
    b = V_PO + 16 * par + qb * 4 if p == 0 else V_PF + (p - 1) * 16 + qb * 4
    return I_mfma(f"{MF} a[{o}:{o+3}], v[{V_V+4*f}:{V_V+4*f+3}], v[{b}:{b+3}], a[{o}:{o+3}]")

def p_reads(t):
    par = t & 1
    r = []
    for p in range(1, 4):
        for qb in range(4):
            dst = V_PF + (p - 1) * 16 + qb * 4
            r.append(I_lds(f"ds_read_b128 v[{dst}:{dst+3}], v{V_PR+p-1} offset:{par*16384+qb*1024}", ("PR", t, p, qb)))
    return r

def build_iter(i, opt, NT=16):
    has_qk = (i + 1) < NT
    has_sm = 0 <= i < NT
    has_pv = 1 <= i <= NT
    mf = []
    if has_qk:
        mf += qk_mfmas(i + 1, opt, NT)
    nqk = len(mf)
    if has_pv:
        t = i - 1
        for db in range(4):
            for qb in range(4):
                for p in range(4):
                    pre = []
                    if qb == 0 and p == 0:
                        pre.append(I_wvm(("V", t, db * 4 + 3)))
                    if db == 0 and qb == 0 and p == 1:
                        pre.append(I_wlds(("PR", t, 3, 3)))
                    post = []
                    if qb == 3 and t + 1 < NT:
                        post.append(vload(t + 1, db * 4 + p, S_VOFF))
                    mf.append([pre, pv_item(t, db, qb, p), post])
    respread_loads(mf, i, NT, opt)
    if i == 15:
        mf[0][2] = [vload(14, j, S_VOFF) for j in range(9, 16)] + mf[0][2]
    reads = p_reads(i - 1) if has_pv else []
    sm = softmax_stream(i, opt) if has_sm else []
    head = []
    full = len(mf) == 128
    if has_qk:
        head += tile_off(S_KOFF, 2, S_T4) + [I_salu(f"s_cmp_lt_u32 s{S_I}, {NT-2}"), I_salu(f"s_cselect_b32 s{S_KUSE}, s{S_KOFF}, 0x100000")]
    if has_pv:
        vup = tile_off(S_VOFF, 0, S_T3)
        if full:
            for k, x in enumerate(vup):
                mf[41 + k][2].append(x)
        else:
            head += vup
    if full and i % 2 == 1:
        txt = (f"s_bitcmp1_b32 s{S_FMASK}, s{S_I}\ns_cbranch_scc0 L_noflagld\n"
               f"global_load_dword v{V_FLAG}, v{V_FADDR}, s[{S_FLG}:{S_FLG+1}] sc1\nL_noflagld:")
        mf[opt.flag_gap][2].append(I_raw(txt))
    return schedule(mf, head, reads, sm, nqk, opt)

def build_last(opt, T, V_OUT):
    t = 15
    mf = []
    for qb in range(4):
        for db in range(4):
            for p in range(4):
                pre = []
                if qb == 0 and p == 0:
                    pre.append(I_wvm(("V", t, db * 4 + 3)))
                if qb == 0 and db == 0 and p == 1:
                    pre.append(I_wlds(("PR", t, 3, 3)))
                mf.append([pre, pv_item(t, db, qb, p), []])
    def epi(qb):
        it = []
        inv = T + 4 * qb
        tb = 48 + (qb & 1) * 16
        for par in range(2):
            for k in range(par, 8, 2):
                r = k >> 1
                c = 2 * (k & 1)
                x = tb + 2 * k
                it.append(I_valu(f"v_accvgpr_read_b32 v{x}, a{A_O+((c)*4+qb)*4+r}"))
                it.append(I_valu(f"v_accvgpr_read_b32 v{x+1}, a{A_O+((c+1)*4+qb)*4+r}"))
        for k in range(8):
            x = tb + 2 * k
            it.append(I_valu(f"v_pk_mul_f32 {vp(x)}, {vp(x)}, {vp(inv)} op_sel_hi:[1,0]"))
        for half in range(2):
            o = 16 + (qb * 2 + half) * 4
            for kk in range(4):
                x = tb + 2 * (half * 4 + kk)
                it.append(I_valu(f"v_cvt_pk_bf16_f32 v{o+kk}, v{x}, v{x+1}"))
            so = "0" if qb == 0 else f"s{S_T0+qb-1}"
            it.append(I_vm(f"buffer_store_dwordx4 v[{o}:{o+3}], v{V_OUT}, s[{S_OSRD}:{S_OSRD+3}], {so} offen offset:{half*16}{OUTF}", ("O", qb, half)))
        return it
    linv = [I_wlds(("LR", 3))]
    for qb in range(4):
        b = T + 4 * qb
        linv += [I_valu(f"v_add_f32 v{b}, v{b}, v{b+1}"), I_valu(f"v_add_f32 v{b+2}, v{b+2}, v{b+3}")]
    for qb in range(4):
        b = T + 4 * qb
        linv.append(I_valu(f"v_add_f32 v{b}, v{b}, v{b+2}"))
    for qb in range(4):
        b = T + 4 * qb
        linv.append(I_valu(f"v_rcp_f32 v{b}, v{b}", 8))
    items = []
    lreads = [I_lds(f"ds_read_b128 v[{T+4*qb}:{T+4*qb+3}], v{LRREG} offset:{qb*256}", ("LR", qb)) for qb in range(4)]
    head = [I_salu(f"s_mov_b32 s{S_T0+k}, {8192*(k+1)}") for k in range(3)] + p_reads(t) + lreads
    gaps = [[] for _ in range(64)]
    q = list(linv)
    g = 4
    while q:
        gaps[g] += q[:2]; q = q[2:]; g = min(g + 1, 15) if g < 15 else 15
    for qb in range(3):
        e = epi(qb)
        g0 = 16 * (qb + 1) + 3
        per = (len(e) + 12) // 13
        g = g0
        while e:
            gaps[g] += e[:per]; e = e[per:]; g = min(g + 1, 63)
    for k, (pre, m, post) in enumerate(mf):
        items += pre
        items.append(m)
        if k == 0:
            items += head
        items += gaps[k]
    items.append(I_raw("s_nop 7"))
    items += epi(3)
    return items

def gen_fused(a, opt):
    global OUTF, LRREG
    NT = 16
    st = Stamp(a, opt)
    P = RM()
    P.kraw, P.krr, P.ksc, P.kst, P.vraw, P.vsc, P.vst = 1, 2, 3, 4, 5, 6, 7
    V_QW, V_QR, SCA, V_QOFF = 8, 9, 10, 14
    X, XS, TT, Y, YS, QD = 16, 48, 56, 104, 136, 144
    WK, WQ, QPOS, V_NON, V_ZERO = 176, 192, 200, 202, 203
    SK, SV = 208, 212
    T = 240
    a.label(KNAME)
    a("s_cmp_ge_u32 s2, 256" if not opt.empty else "s_cmp_ge_u32 s2, 0")
    a("s_cbranch_scc1 L_done")
    st(force=True)
    if opt.codepf:
        a("s_getpc_b64 s[4:5]")
        a.label("L_pc")
        a("v_lshlrev_b32 v30, 7, v0")
        a(f"v_min_u32 v30, L_code_end-L_pc-4, v30")
        a("global_load_dword v31, v30, s[4:5]")
    a("s_load_dwordx16 s[40:55], s[0:1], 0")
    a("s_load_dwordx2 s[62:63], s[0:1], 88")
    a("s_load_dwordx4 s[64:67], s[0:1], 96")
    a(f"s_and_b32 s{S_HEAD}, s2, 7")
    a(f"s_lshr_b32 s{S_J}, s2, 3")
    a("v_lshrrev_b32 v17, 6, v0")
    a("v_and_b32 v18, 15, v0")
    a("v_bfe_u32 v19, v0, 4, 2")
    a(f"v_readfirstlane_b32 s{S_W}, v17")
    a(f"s_mov_b32 s{S_MASK}, 0xffff0000")
    a(f"s_mov_b32 s{S_C}, 0x{f32bits(math.log2(math.e)/16.0):08x}")
    a(f"s_and_b32 s{S_ROT}, s{S_J}, 3")
    task_addr(a, P, 20)
    a(f"v_lshlrev_b32 v{P.ksc}, 1, v{P.krr}")
    a(f"v_lshlrev_b32 v{P.vsc}, 3, v19")
    a("v_lshl_add_u32 v24, v17, 4, v19")
    a(f"v_lshlrev_b32 v{V_QOFF}, 9, v24")
    a(f"v_lshl_add_u32 v{V_QOFF}, v18, 4, v{V_QOFF}")
    a(f"s_lshl_b32 s{S_T0}, s{S_J}, 6")
    a(f"v_add_u32 v{QPOS}, s{S_T0}, v24")
    a(f"v_mov_b32 v{V_ZERO}, 0")
    task_params(a, 0, 68, 69, 70)
    a("s_waitcnt lgkmcnt(0)")
    a(f"s_lshl_b32 s{S_T1}, s{S_HEAD}, 21")
    make_srd(a, S_RAWK, 42, S_T1, 0x200000)
    a(f"s_lshl_b32 s{S_T0}, s{S_HEAD}, 20")
    a(f"s_lshl_b32 s{S_T3}, s{S_J}, 15")
    a(f"s_add_u32 s{S_T2}, s{S_T0}, s{S_T3}")
    make_srd(a, S_OSRD, 62, S_T2, 32768)
    make_srd(a, S_RAWV, 48, S_T1, 0x200000)
    make_srd(a, S_QSRD, 40, S_T2, 32768)
    a(f"s_lshl_b32 s{S_T2}, s{S_HEAD}, 12")
    make_srd(a, S_KSC, 44, S_T2, 4096)
    make_srd(a, S_KZ, 46, S_T2, 4096)
    make_srd(a, S_VSC, 50, S_T2, 4096)
    make_srd(a, S_VZ, 52, S_T2, 4096)
    a(f"s_mov_b32 s{S_PK}, s68"); a(f"s_mov_b32 s{S_PT}, s69"); a(f"s_mov_b32 s{S_PW}, s70")
    a(f"s_cmp_ge_u32 s{S_W}, 2")
    a("s_cbranch_scc1 L_B_issue0")
    k_raw_loads(a, P, X, S_PK); k_scale_loads(a, P, S_PK, SCA)
    a("s_branch L_issueQ")
    a.label("L_B_issue0")
    v_raw_loads(a, P, X, S_PT, S_PW); v_scale_loads(a, P, XS, S_PT)
    a.label("L_issueQ")
    a("s_mov_b32 s49, 4096")
    for it in range(4):
        so = "0" if it < 2 else "s49"
        io = (it & 1) * 2048
        b = QD + 8 * it
        a(f"buffer_load_dwordx4 v[{b}:{b+3}], v{V_QOFF}, s[{S_QSRD}:{S_QSRD+3}], {so} offen offset:{io}")
        a(f"buffer_load_dwordx4 v[{b+4}:{b+7}], v{V_QOFF}, s[{S_QSRD}:{S_QSRD+3}], {so} offen offset:{io+256}")
    a(f"s_mov_b32 s{S_DBG}, s64"); a(f"s_mov_b32 s{S_DBG+1}, s65")
    a(f"s_or_b32 s{S_T0}, s{S_HEAD}, s{S_J}")
    a(f"s_or_b32 s{S_T0}, s{S_T0}, s{S_W}")
    a(f"s_cmp_lg_u32 s{S_T0}, 0")
    a("s_cbranch_scc1 L_nononce")
    a("s_memrealtime s[100:101]")
    a("s_waitcnt lgkmcnt(0)")
    a("s_lshl_b32 s100, s100, 3")
    a("s_or_b32 s100, s100, 0x80000000")
    a("s_and_b32 s100, s100, 0xfffffff8")
    a("v_mov_b32 v204, s100")
    a("s_mov_b64 exec, 1")
    a(f"global_store_dword v{V_ZERO}, v204, s[{S_DBG}:{S_DBG+1}] sc1")
    a("s_mov_b64 exec, -1")
    a.label("L_nononce")
    a(f"global_load_dword v{V_NON}, v{V_ZERO}, s[{S_DBG}:{S_DBG+1}] sc1")
    a(f"s_lshl_b32 s{S_T0}, s{S_HEAD}, 20")
    make_srd(a, S_KSRD, 66, S_T0, 0x100000)
    a(f"s_add_u32 s{S_T1}, s{S_T0}, 0x800000")
    make_srd(a, S_VSRD, 66, S_T1, 0x100000)
    a(f"s_add_u32 s{S_FLG}, s66, 0x1000000")
    a(f"s_addc_u32 s{S_FLG+1}, s67, 0")
    if opt.stamp:
        a(f"s_mov_b32 s{S_STW}, s66"); a(f"s_mov_b32 s{S_STW+1}, s67")
    NPT = 0
    if opt.pretouch:
        a(f"s_lshl_b32 s{S_T0}, s{S_HEAD}, 5")
        a(f"s_add_u32 s{S_T0}, s{S_T0}, s{S_J}")
        a(f"s_lshl_b32 s{S_T0}, s{S_T0}, 7")
        a(f"v_mov_b32 v205, s{S_T0}")
        a(f"global_load_dword v206, v205, s[{S_FLG}:{S_FLG+1}] sc1")
        a(f"buffer_load_dword v207, v{V_ZERO}, s[{S_OSRD}:{S_OSRD+3}], 0 offen")
        NPT = 2
    task_params(a, 1, S_PK2, S_PT2, S_PW2)
    task_params(a, 2, 68, 69, 70)
    task_params(a, 3, 46, 47, 48)
    SC1, SC2, SC3 = 208, 216, 224
    a(f"s_cmp_ge_u32 s{S_W}, 2")
    a("s_cbranch_scc1 L_B_sc")
    v_scale_loads(a, P, SC1, S_PT2); k_scale_loads(a, P, 68, SC2); v_scale_loads(a, P, SC3, 47)
    a("s_branch L_sc_done")
    a.label("L_B_sc")
    k_scale_loads(a, P, S_PK2, SC1); v_scale_loads(a, P, SC2, 69); k_scale_loads(a, P, 46, SC3)
    a.label("L_sc_done")
    NSA, NSB = 10, 8
    a("v_and_b32 v236, 7, v0"); a("v_lshlrev_b32 v236, 3, v236"); a("v_cvt_f32_u32 v236, v236")
    a("v_and_b32 v237, 15, v0"); a("v_lshlrev_b32 v237, 3, v237"); a("v_cvt_f32_u32 v237, v237")
    a(f"v_cvt_f32_u32 v{QPOS}, v{QPOS}")
    freq_consts(a, WK, 16, 236, [64 * (k >> 3) + (k & 7) for k in range(16)])
    freq_consts(a, WQ, 8, 237, list(range(8)))
    a(f"v_lshrrev_b32 v{T}, 6, v0")
    a(f"v_and_b32 v{T+1}, 15, v0")
    a(f"v_bfe_u32 v{T+2}, v0, 4, 2")
    a(f"v_mul_u32_u24 v{V_QW}, {8*QFS}, v{T}")
    a(f"v_lshrrev_b32 v{T+3}, 2, v{T+1}")
    a(f"v_mul_u32_u24 v{T+3}, {QFS}, v{T+3}")
    a(f"v_add_u32 v{V_QW}, v{V_QW}, v{T+3}")
    a(f"v_and_b32 v{T+3}, 3, v{T+1}")
    a(f"v_mul_u32_u24 v{T+3}, {QGS}, v{T+3}")
    a(f"v_add_u32 v{V_QW}, v{V_QW}, v{T+3}")
    a(f"v_lshl_add_u32 v{V_QW}, v{T+2}, 4, v{V_QW}")
    a(f"v_mul_u32_u24 v{V_QR}, {QGS}, v{T+2}")
    a(f"v_lshl_add_u32 v{V_QR}, v{T+1}, 4, v{V_QR}")
    for r in range(64):
        a(f"v_accvgpr_write_b32 a{A_O+r}, 0")
    PP = RM(); PP.kraw, PP.krr, PP.kst, PP.vraw, PP.vst = 232, 233, 234, 235, 236
    for nm in ("kraw", "krr", "kst", "vraw", "vst"):
        a(f"v_mov_b32 v{getattr(PP, nm)}, v{getattr(P, nm)}")
    isB = lambda lbl: (a(f"s_cmp_ge_u32 s{S_W}, 2"), a(f"s_cbranch_scc1 {lbl}"))
    NS = min(NSA, NSB)
    isB("L_B_c0")
    a(f"s_waitcnt vmcnt({8 + 1 + NPT + NSA})")
    st()
    k_compute(a, PP, X, SCA, WK, TT, S_PK)
    v_raw_loads(a, PP, Y, S_PT2, S_PW2)
    a("s_branch L_c0_done")
    a.label("L_B_c0")
    a(f"s_waitcnt vmcnt({8 + 1 + NPT + NSB})")
    st(again=True)
    v_compute(a, PP, X, XS, TT, S_PT, S_PW)
    k_raw_loads(a, PP, Y, S_PK2)
    a.label("L_c0_done")
    st(level=2)
    def rope_it(it):
        if it:
            a(f"v_add_f32 v{QPOS}, 4.0, v{QPOS}")
        o = rope_q(a, QD + 8 * it, TT, QPOS, WQ)
        a(f"ds_write_b128 v{V_QW}, v[{o}:{o+3}] offset:{it*64}")
        a(f"ds_write_b128 v{V_QW}, v[{o+4}:{o+7}] offset:{it*64 + 4*QFS}")
    a(f"s_waitcnt vmcnt(12)")
    for it in range(opt.rope_first):
        rope_it(it)
    st(level=2)
    a(f"s_waitcnt vmcnt(8)")
    st(level=2)
    a(f"v_readfirstlane_b32 s{S_NONCE}, v{V_NON}")
    a(f"s_cmp_lg_u32 s{S_NONCE}, 0")
    a("s_cbranch_scc1 L_have_nonce")
    a(f"s_mov_b32 s{S_SPIN}, 0")
    a.label("L_nonce_spin")
    a(f"global_load_dword v{V_NON}, v{V_ZERO}, s[{S_DBG}:{S_DBG+1}] sc1")
    a("s_waitcnt vmcnt(0)")
    a(f"v_readfirstlane_b32 s{S_NONCE}, v{V_NON}")
    a(f"s_add_u32 s{S_SPIN}, s{S_SPIN}, 1")
    a(f"s_cmp_ge_u32 s{S_SPIN}, 0x8000")
    a("s_cbranch_scc1 L_have_nonce")
    a(f"s_cmp_eq_u32 s{S_NONCE}, 0")
    a("s_cbranch_scc1 L_nonce_spin")
    a.label("L_have_nonce")
    a("s_barrier")
    publish(a, 1, "L_pub1", 204)
    st()
    isB("L_B_i2")
    k_raw_loads(a, PP, X, 68)
    a("s_branch L_i2_done")
    a.label("L_B_i2")
    v_raw_loads(a, PP, X, 69, 70)
    a.label("L_i2_done")
    for it in range(opt.rope_first, 4):
        rope_it(it)
    a("s_waitcnt lgkmcnt(0)")
    a("s_barrier")
    for qb in range(4):
        for s in range(8):
            b = A_Q + (qb * 8 + s) * 4
            a(f"ds_read_b128 a[{b}:{b+3}], v{V_QR} offset:{(qb*8+s)*QFS}")
    a(f"v_and_b32 v{T}, 63, v0")
    a(f"v_lshrrev_b32 v{T+1}, 6, v0")
    a(f"v_and_b32 v{V_FADDR}, 31, v0")
    a(f"s_lshl_b32 s{S_T0}, s{S_HEAD}, 5")
    a(f"v_add_u32 v{V_FADDR}, s{S_T0}, v{V_FADDR}")
    a(f"v_lshlrev_b32 v{V_FADDR}, 7, v{V_FADDR}")
    a(f"v_lshlrev_b32 v{T+2}, 4, v{T}")
    a(f"v_add_u32 v{T+3}, {LDS_P}, v{T+2}")
    a("s_waitcnt lgkmcnt(0)")
    for t in range(1, 4):
        a(f"v_add_u32 v{T+4}, {t}, v{T+1}")
        a(f"v_and_b32 v{T+4}, 3, v{T+4}")
        a(f"v_lshl_add_u32 v{V_PR+t-1}, v{T+4}, 12, v{T+3}")
    a(f"v_lshl_add_u32 v{V_PW}, v{T+1}, 12, v{T+3}")
    a(f"v_lshl_add_u32 v{V_OFF}, v{T+1}, 14, v{T+2}")
    for k in range(1, 4):
        a(f"v_add_u32 v{V_OFF+k}, {4096*k}, v{V_OFF}")
    for r in range(4):
        a(f"v_mov_b32 v{V_L+r}, 0")
    a(f"s_mov_b32 s{S_FMASK}, 0x2")
    a("s_waitcnt vmcnt(8)")
    st(level=2)
    flag_load(a)
    isB("L_B_c1")
    v_compute(a, PP, Y, SC1, TT, S_PT2, S_PW2)
    v_raw_loads(a, PP, Y, 47, 48)
    a("s_branch L_c1_done")
    a.label("L_B_c1")
    k_compute(a, PP, Y, SC1, WK, TT, S_PK2)
    k_raw_loads(a, PP, Y, 46)
    a.label("L_c1_done")
    set_need(a, 1)
    a("s_waitcnt vmcnt(12)")
    flag_check(a)
    a("s_nop 4")
    a("s_cbranch_vccz L_chk_r0_ok")
    spin(a, "r0")
    a.label("L_chk_r0_ok")
    st()
    a(f"s_lshl_b32 s{S_KOFF}, s{S_ROT}, 16")
    a(f"s_mov_b32 s{S_VOFF}, s{S_KOFF}")
    a(f"s_mov_b32 s{S_KUSE}, s{S_KOFF}")
    pro = [kload(0, f, S_KUSE) for f in range(16)]
    for it in pro:
        a(it.text)
    isB("L_B_c2")
    k_compute(a, PP, X, SC2, WK, TT, 68)
    a("s_waitcnt vmcnt(20)")
    v_compute(a, PP, Y, SC3, TT, 47, 48)
    a("s_branch L_c3_done")
    a.label("L_B_c2")
    v_compute(a, PP, X, SC2, TT, 69, 70)
    a("s_waitcnt vmcnt(20)")
    k_compute(a, PP, Y, SC3, WK, TT, 46)
    a.label("L_c3_done")
    st()
    pre = [I_salu(f"s_mov_b32 s{S_I}, -1")] + tile_off(S_KUSE, 2, S_T4)
    for (p_, m, post) in qk_mfmas(0, opt, NT):
        pre += p_ + [m] + post
    pf = []
    if opt.prefetch:
        pf += [I_valu(f"v_and_b32 v224, 63, v0"), I_valu(f"v_lshlrev_b32 v225, 7, v224"),
               I_valu(f"v_lshrrev_b32 v226, 1, v224"), I_valu(f"v_lshlrev_b32 v226, 10, v226"),
               I_valu(f"v_and_b32 v224, 1, v224"), I_valu(f"v_lshl_add_u32 v226, v224, 7, v226"),
               I_salu(f"s_lshl_b32 s{S_T0}, s{S_HK}, 10"),
               I_salu(f"s_lshl_b32 s{S_T1}, s{S_HT}, 15"), I_salu(f"s_lshl_b32 s{S_T2}, s{S_HW}, 8"),
               I_salu(f"s_add_u32 s{S_T1}, s{S_T1}, s{S_T2}")]
        for off in (0, 64)[:opt.prefetch]:
            pf.append(I_raw(f"buffer_load_dword v227, v225, s[{S_RAWK}:{S_RAWK+3}], s{S_T0} offen offset:{off}"))
            pf.append(I_raw(f"buffer_load_dword v228, v226, s[{S_RAWV}:{S_RAWV+3}], s{S_T1} offen offset:{off}"))
    pre += pf
    pre.append(I_raw("s_nop 7"))
    pre.append(I_salu(f"s_mov_b32 s{S_I}, 0"))
    endbar = [I_wlds("all"), I_raw("s_barrier")]
    blocks = [("pro", pro + [I_vm("", ("ST", k)) for k in range(8)]), ("pre", pre)]
    it0 = build_iter(0, opt) + [vload(0, f, S_VOFF) for f in range(9)] + [I_raw("s_waitcnt vmcnt(25)")] + endbar + [I_salu(f"s_mov_b32 s{S_I}, 1")]
    blocks.append(("it0", it0))
    stat = {}
    for i in range(1, 15):
        items = build_iter(i, opt) + [I_salu(f"s_add_u32 s{S_I}, s{S_I}, 1")] + endbar
        nm = "odd" if i % 2 else "even"
        blocks.append((nm, items))
        if nm not in stat: stat[nm] = items
        else: assert [x.text for x in stat[nm]] == [x.text for x in items], nm
    it15 = build_iter(15, opt)
    V_LW, V_LR, V_OUT = 231, 232, 233
    LRREG = V_LR
    red = [I_valu(f"v_and_b32 v224, 15, v0"), I_valu(f"v_lshrrev_b32 v225, 6, v0"), I_valu(f"v_bfe_u32 v226, v0, 4, 2"),
           I_valu(f"v_lshlrev_b32 v{V_LR}, 4, v224"), I_valu(f"v_add_u32 v{V_LR}, {LDS_L}, v{V_LR}"),
           I_valu(f"v_lshl_add_u32 v{V_LW}, v225, 2, v{V_LR}"), I_valu(f"v_lshlrev_b32 v{V_OUT}, 9, v224"),
           I_valu(f"v_lshl_add_u32 v{V_OUT}, v225, 7, v{V_OUT}"), I_valu(f"v_lshl_add_u32 v{V_OUT}, v226, 5, v{V_OUT}")]
    for qb in range(4): red.append(I_valu(f"v_mov_b32 v{T+qb}, v{V_L+qb}"))
    red.append(I_raw("s_nop 1"))
    for qb in range(4): red.append(I_valu(f"v_permlane32_swap_b32 v{T+qb}, v{V_L+qb}"))
    red.append(I_raw("s_nop 1"))
    for qb in range(4): red.append(I_valu(f"v_add_f32 v{V_L+qb}, v{V_L+qb}, v{T+qb}"))
    for qb in range(4): red.append(I_valu(f"v_mov_b32 v{T+qb}, v{V_L+qb}"))
    red.append(I_raw("s_nop 1"))
    for qb in range(4): red.append(I_valu(f"v_permlane16_swap_b32 v{T+qb}, v{V_L+qb}"))
    red.append(I_raw("s_nop 1"))
    for qb in range(4): red.append(I_valu(f"v_add_f32 v{V_L+qb}, v{V_L+qb}, v{T+qb}"))
    for qb in range(4): red.append(I_lds(f"ds_write_b32 v{V_LW}, v{V_L+qb} offset:{qb*256}", ("LW", qb)))
    it15 += red + endbar
    blocks.append(("it15", it15))
    it16 = build_last(opt, T, V_OUT)
    blocks.append(("it16", it16))
    waits = resolve_waits(blocks)
    emit_block(a, "pre", pre, waits)
    if opt.stamp == 5: st()
    emit_block(a, "it0", it0, waits)
    publish(a, 4, "L_pub4", 158)
    def hook_site(name):
        if name == "odd":
            a(f"s_cmp_eq_u32 s{S_I}, 2")
            a(f"s_cbranch_scc1 L_hook")
            a.label("L_hook_ret")
    st()
    a.label("L_loop")
    base = st.n
    emit_block(a, "odd", stat["odd"], waits)
    if opt.stamp == 4: st.dyn(2, base - 4, 9)
    hook_site("odd")
    if opt.stamp == 3: st.dyn(1, base - 2, 15)
    if opt.stamp == 4: st.dyn(2, base - 3, 9)
    emit_block(a, "even", stat["even"], waits)
    if opt.stamp == 4: st.dyn(2, base - 4, 9)
    hook_site("even")
    if opt.stamp == 3:
        st.dyn(1, base - 2, 15); st.n = base + 14
    if opt.stamp == 4:
        st.dyn(2, base - 3, 9); st.n = base + 16
    a(f"s_cmp_lt_u32 s{S_I}, 15")
    a("s_cbranch_scc1 L_loop")
    if opt.stamp in (1, 2): st()
    emit_block(a, "it15", it15, waits)
    emit_block(a, "it16", it16, waits)
    if opt.stamp:
        hk = st.n
        if opt.stamp == 5: st.n += 5
        a("s_waitcnt vmcnt(0)")
        st(force=True)
        st.finish()
    a("s_endpgm")
    a.label("L_hook")
    set_need(a, 4)
    nyoung = sum(1 for j in range(16) if 28 + 4 * j > opt.flag_gap) + sum(1 for j in range(9) if 92 + 4 * j > opt.flag_gap)
    a(f"s_waitcnt vmcnt({nyoung})")
    flag_check(a)
    a("s_nop 4")
    a(f"s_cbranch_vccz L_hook_ret")
    spin(a, "hk")
    a("s_branch L_hook_ret")
    a.label("L_done")
    a("s_endpgm")
    a.label("L_code_end")

def main():
    global OUTF
    ap = argparse.ArgumentParser()
    ap.add_argument("-o", default=f"cdna_kernels/{NAME}.s")
    ap.add_argument("--stamp", type=int, default=0)
    ap.add_argument("--wgrp", type=int, default=4)
    ap.add_argument("--kgrp", type=int, default=8)
    ap.add_argument("--spread", type=int, default=1)
    ap.add_argument("--cap", type=int, default=2)
    ap.add_argument("--pace", type=int, default=1)
    ap.add_argument("--read_spread", type=int, default=1)
    ap.add_argument("--sm_g0", type=int, default=0)
    ap.add_argument("--sm_g1", type=int, default=117)
    ap.add_argument("--ldflags", default="sc1")
    ap.add_argument("--outflags", default="nt")
    ap.add_argument("--empty", type=int, default=0)
    ap.add_argument("--codepf", type=int, default=1)
    ap.add_argument("--pretouch", type=int, default=1)
    ap.add_argument("--rope_first", type=int, default=1)
    ap.add_argument("--prefetch", type=int, default=0)
    ap.add_argument("--flag_gap", type=int, default=57)
    ap.add_argument("--ngroups", type=int, default=3)
    opt = ap.parse_args()
    OUTF = (" " + opt.outflags.replace("+", " ")) if opt.outflags else ""
    gen2.LDFLAGS = (" " + opt.ldflags.replace("+", " ")) if opt.ldflags else ""
    out = header()
    out += f"; @launch grid=(256,1,1) block=(256,1,1) lds={LDS_TOTAL}\n"
    out += '.amdgcn_target "amdgcn-amd-amdhsa--gfx950"\n.text\n'
    a = EA()
    gen_fused(a, opt)
    out += f".globl {KNAME}\n.p2align 8\n.type {KNAME},@function\n" + a.text()
    out += kd(KNAME, 512, 102, 256)
    open(opt.o, "w").write(out)

if __name__ == "__main__":
    main()
```

```python
import sys, os, argparse, math, struct
sys.path.insert(0, "dev")
from gen import f32bits, make_srd, kd, NAME, Item, I_valu, I_raw, I_salu, I_vm, I_lds, I_wvm, I_wlds, I_mfma, resolve_waits, emit_block
import gen2
from gen2 import (MF, V_OFF, V_PW, V_PR, V_L, V_S, V_PO, V_PF, V_V, A_O, A_Q, A_K, QFS, QGS,
                  S_KSRD, S_VSRD, S_QSRD, S_OSRD, S_KOFF, S_VOFF, S_I, S_ROT, S_C, S_W, S_MASK, S_KUSE,
                  kload, vload, softmax_stream, qk_mfmas, schedule, respread_loads, header)

KNAME = NAME + "_kernel"

class EA:
    def __init__(self): self.lines = []
    def __call__(self, s):
        for l in s.split("\n"):
            l = l.strip()
            if not l: continue
            self.lines.append(l if l.endswith(":") else "    " + l)
    def label(self, l): self.lines.append(l + ":")
    def text(self): return "\n".join(self.lines) + "\n"

LDS_Q = 0
LDS_L = 34816
LDS_SC = LDS_L + 1024
LDS_WK = LDS_SC + 4 * 2560
LDS_P = 51200
LDS_TOTAL = LDS_P + 32768
assert LDS_WK + 4096 <= LDS_P

S_STW = 36
S_NONCE = 39
S_PK, S_PT, S_PW = 40, 41, 42
S_PK2, S_PT2, S_PW2 = 43, 44, 45
S_HK, S_HT, S_HW = 46, 47, 48
S_FLG = 50
S_RANGE = 53
S_FMASK = 49
S_HMASK = 38
S_G = 68
S_RET = 70
S_RAWK, S_RAWV = 56, 60
S_KSC, S_KZ, S_VSC, S_VZ = 72, 76, 80, 84
S_DBG = 88
S_J, S_NEED = 90, 91
S_T0, S_T1, S_T2, S_T3, S_T4 = 92, 93, 94, 95, 96
S_SPIN, S_HEAD = 97, 99
V_FLAG, V_FADDR, V_STAMP = 13, 14, 15
STF = " sc1"

class RM: pass

class Stamp:
    def __init__(self, a, opt):
        self.a = a; self.on = opt.stamp; self.n = 0
    def _emit(self, idx_sgpr=None):
        a = self.a
        a("s_memtime s[54:55]")
        a("s_memrealtime s[100:101]")
        a("s_waitcnt lgkmcnt(0)")
        if idx_sgpr is None:
            a(f"v_writelane_b32 v{V_STAMP}, s54, {2*self.n}")
            a(f"v_writelane_b32 v{V_STAMP}, s100, {2*self.n+1}")
        else:
            a(f"s_mov_b32 m0, s{idx_sgpr}"); a("s_nop 1")
            a(f"v_writelane_b32 v{V_STAMP}, s54, m0")
            a(f"s_add_u32 m0, s{idx_sgpr}, 1"); a("s_nop 1")
            a(f"v_writelane_b32 v{V_STAMP}, s100, m0")
    def __call__(self, again=False, level=1, force=False):
        if not self.on: return
        if self.on == 9 and not force: return
        if level == 2 and self.on != 2: return
        if again: self.n -= 1
        self._emit()
        self.n += 1
    def dyn(self, mul, add, cap):
        a = self.a
        a(f"s_min_u32 s52, s{S_I}, {cap}")
        a(f"s_mul_i32 s52, s52, {2*mul}")
        a(f"s_add_u32 s52, s52, {2*add}")
        self._emit(52)
    def finish(self):
        if not self.on: return
        a = self.a
        a("s_waitcnt vmcnt(0)")
        a(f"s_lshl_b32 s46, s{S_J}, 3")
        a(f"s_add_u32 s46, s46, s{S_HEAD}")
        a(f"s_lshl_b32 s46, s46, 10")
        a(f"s_lshl_b32 s47, s{S_W}, 8")
        a("s_add_u32 s46, s46, s47")
        a("s_add_u32 s46, s46, 0x8000000")
        a(f"s_add_u32 s46, s{S_STW}, s46")
        a(f"s_addc_u32 s47, s{S_STW+1}, 0")
        a("v_and_b32 v16, 63, v0")
        a("v_lshlrev_b32 v16, 2, v16")
        a(f"global_store_dword v16, v{V_STAMP}, s[46:47]")
        a("s_waitcnt vmcnt(0)")

LOG2_10000_128 = math.log2(10000.0) / 128.0
LOG2_2PI = math.log2(2 * math.pi)

def vp(r): return f"v[{r}:{r+1}]"

def k_raw_loads(a, R, X, rowreg):
    a(f"s_lshl_b32 s{S_T0}, s{rowreg}, 10")
    for c in range(4):
        for hf in range(2):
            b = X + c * 8 + hf * 4
            a(f"buffer_load_dwordx4 v[{b}:{b+3}], v{R.kraw}, s[{S_RAWK}:{S_RAWK+3}], s{S_T0} offen offset:{c*256+hf*16}")
    return 8
def k_scale_loads(a, R, rowreg, dst):
    a(f"s_lshl_b32 s{S_T2}, s{rowreg}, 1")
    a(f"buffer_load_ushort v{dst}, v{R.ksc}, s[{S_KSC}:{S_KSC+3}], s{S_T2} offen")
    a(f"buffer_load_ushort v{dst+1}, v{R.ksc}, s[{S_KZ}:{S_KZ+3}], s{S_T2} offen")
    return 2
def v_raw_loads(a, R, X, treg, wreg):
    a(f"s_lshl_b32 s{S_T0}, s{treg}, 15")
    a(f"s_lshl_b32 s{S_T1}, s{wreg}, 8")
    a(f"s_add_u32 s{S_T0}, s{S_T0}, s{S_T1}")
    a(f"s_add_u32 s{S_T1}, s{S_T0}, 16384")
    for j in range(8):
        b = X + j * 4
        so = S_T0 if j < 4 else S_T1
        a(f"buffer_load_dwordx4 v[{b}:{b+3}], v{R.vraw}, s[{S_RAWV}:{S_RAWV+3}], s{so} offen offset:{(j&3)*1024}")
    return 8
def v_scale_loads(a, R, SC, treg):
    a(f"s_lshl_b32 s{S_T2}, s{treg}, 6")
    for g2 in range(2):
        a(f"buffer_load_dwordx2 v[{SC+2*g2}:{SC+1+2*g2}], v{R.vsc}, s[{S_VSC}:{S_VSC+3}], s{S_T2} offen offset:{g2*32}")
        a(f"buffer_load_dwordx2 v[{SC+4+2*g2}:{SC+5+2*g2}], v{R.vsc}, s[{S_VZ}:{S_VZ+3}], s{S_T2} offen offset:{g2*32}")
    return 4

def sincos8(a, pos, w, cs, sn):
    for k in range(4):
        a(f"v_pk_mul_f32 {vp(sn+2*k)}, {vp(w+2*k)}, {vp(pos)} op_sel_hi:[1,0]")
    for e in range(8):
        a(f"v_fract_f32 v{sn+e}, v{sn+e}")
    for e in range(8):
        a(f"v_cos_f32 v{cs+e}, v{sn+e}")
    for e in range(8):
        a(f"v_sin_f32 v{sn+e}, v{sn+e}")

def rope8(a, x1, x2, cs, sn, u, o1dst, o2dst):
    for k in range(4):
        a(f"v_pk_mul_f32 {vp(u+2*k)}, {vp(x2+2*k)}, {vp(sn+2*k)}")
    for k in range(4):
        a(f"v_pk_mul_f32 {vp(sn+2*k)}, {vp(x1+2*k)}, {vp(sn+2*k)}")
    for k in range(4):
        a(f"v_pk_fma_f32 {vp(u+2*k)}, {vp(x1+2*k)}, {vp(cs+2*k)}, {vp(u+2*k)} neg_lo:[0,0,1] neg_hi:[0,0,1]")
    for k in range(4):
        a(f"v_pk_fma_f32 {vp(sn+2*k)}, {vp(x2+2*k)}, {vp(cs+2*k)}, {vp(sn+2*k)}")
    for k in range(4):
        a(f"v_cvt_pk_bf16_f32 v{o1dst+k}, v{u+2*k}, v{u+2*k+1}")
    for k in range(4):
        a(f"v_cvt_pk_bf16_f32 v{o2dst+k}, v{sn+2*k}, v{sn+2*k+1}")

def k_compute(a, R, X, sc, WK, T, rowreg):
    assert sc % 2 == 0 and T % 2 == 0 and X % 4 == 0
    pos, cs, sn, u = T, T + 2, T + 10, T + 18
    a(f"v_lshlrev_b32 v{sc}, 16, v{sc}")
    a(f"v_lshlrev_b32 v{sc+1}, 16, v{sc+1}")
    a(f"v_cvt_f32_u32 v{pos}, v{R.krr}")
    a(f"v_cvt_f32_u32 v{pos+1}, s{rowreg}")
    a(f"v_mul_f32 v{sc+1}, v{sc+1}, v{sc}")
    a(f"v_add_f32 v{pos}, v{pos}, v{pos+1}")
    for k in range(32):
        a(f"v_cvt_f32_i32 v{X+k}, v{X+k}")
    sincos8(a, pos, WK, cs, sn)
    for k in range(16):
        a(f"v_pk_fma_f32 {vp(X+2*k)}, {vp(X+2*k)}, {vp(sc)}, {vp(sc)} op_sel:[0,0,1] op_sel_hi:[1,0,1] neg_lo:[0,0,1] neg_hi:[0,0,1]")
    rope8(a, X, X + 16, cs, sn, u, X, X + 16)
    sincos8(a, pos, WK + 8, cs, sn)
    a("s_nop 0")
    rope8(a, X + 8, X + 24, cs, sn, u, X + 8, X + 24)
    a(f"s_lshr_b32 s{S_T0}, s{rowreg}, 4")
    a(f"s_lshl_b32 s{S_T0}, s{S_T0}, 13")
    a(f"s_and_b32 s{S_T1}, s{rowreg}, 8")
    a(f"s_lshl_b32 s{S_T1}, s{S_T1}, 4")
    a(f"s_add_u32 s{S_T0}, s{S_T0}, s{S_T1}")
    a(f"s_add_u32 s{S_T1}, s{S_T0}, 4096")
    for c in range(4):
        b = X + c * 8
        so = S_T0 if c < 2 else S_T1
        a(f"buffer_store_dwordx4 v[{b}:{b+3}], v{R.kst}, s[{S_KSRD}:{S_KSRD+3}], s{so} offen offset:{(c&1)*2048}{STF}")

def v_compute(a, R, X, SC, T, treg, wreg):
    M = S_MASK
    SZ = T
    for j in range(8):
        src_s = SC + 2 * (j >> 2) + ((j & 3) >> 1)
        src_z = SC + 4 + 2 * (j >> 2) + ((j & 3) >> 1)
        if j & 1:
            a(f"v_and_b32 v{SZ+2*j}, s{M}, v{src_s}"); a(f"v_and_b32 v{SZ+2*j+1}, s{M}, v{src_z}")
        else:
            a(f"v_lshlrev_b32 v{SZ+2*j}, 16, v{src_s}"); a(f"v_lshlrev_b32 v{SZ+2*j+1}, 16, v{src_z}")
    for k in range(32):
        a(f"v_cvt_f32_i32 v{X+k}, v{X+k}")
    for j in range(8):
        a(f"v_mul_f32 v{SZ+2*j+1}, v{SZ+2*j+1}, v{SZ+2*j}")
    for j in range(8):
        for h in range(2):
            x = X + 4 * j + 2 * h
            a(f"v_pk_fma_f32 {vp(x)}, {vp(x)}, {vp(SZ+2*j)}, {vp(SZ+2*j)} op_sel:[0,0,1] op_sel_hi:[1,0,1] neg_lo:[0,0,1] neg_hi:[0,0,1]")
    O = T
    for db in range(4):
        for jj in range(4):
            a(f"v_cvt_pk_bf16_f32 v{O+db*4+jj}, v{X+(2*jj)*4+db}, v{X+(2*jj+1)*4+db}")
    a(f"s_lshr_b32 s{S_T0}, s{treg}, 2")
    a(f"s_lshl_b32 s{S_T0}, s{S_T0}, 16")
    a(f"s_lshl_b32 s{S_T1}, s{wreg}, 14")
    a(f"s_add_u32 s{S_T0}, s{S_T0}, s{S_T1}")
    a(f"s_sub_u32 s{S_T1}, s{treg}, s{wreg}")
    a(f"s_and_b32 s{S_T1}, s{S_T1}, 3")
    a(f"s_lshl_b32 s{S_T1}, s{S_T1}, 10")
    a(f"s_add_u32 s{S_T0}, s{S_T0}, s{S_T1}")
    for db in range(4):
        if db:
            a(f"s_add_u32 s{S_T0}, s{S_T0}, 4096")
        a(f"buffer_store_dwordx4 v[{O+4*db}:{O+4*db+3}], v{R.vst}, s[{S_VSRD}:{S_VSRD+3}], s{S_T0} offen{STF}")

def freq_consts(a, dst, n, dbase_v, offs):
    a(f"s_mov_b32 s{S_T0}, 0x{f32bits(-LOG2_10000_128):08x}")
    for k in range(n):
        a(f"v_mov_b32 v{dst+k}, 0x{f32bits(-LOG2_10000_128 * offs[k] - LOG2_2PI):08x}")
    for k in range(n):
        a(f"v_fma_f32 v{dst+k}, v{dbase_v}, s{S_T0}, v{dst+k}")
    for k in range(n):
        a(f"v_exp_f32 v{dst+k}, v{dst+k}")
    a("s_nop 0")

def rope_q(a, src, T, pos, wq):
    M = S_MASK
    q1, q2, cs, sn, u, out = T, T + 8, T + 16, T + 24, T + 32, T
    sincos8(a, pos, wq, cs, sn)
    for k in range(4):
        a(f"v_lshlrev_b32 v{q1+2*k}, 16, v{src+k}"); a(f"v_and_b32 v{q1+2*k+1}, s{M}, v{src+k}")
        a(f"v_lshlrev_b32 v{q2+2*k}, 16, v{src+4+k}"); a(f"v_and_b32 v{q2+2*k+1}, s{M}, v{src+4+k}")
    for k in range(4):
        a(f"v_pk_mul_f32 {vp(cs+2*k)}, {vp(cs+2*k)}, s[{S_C}:{S_C+1}] op_sel_hi:[1,0]")
    for k in range(4):
        a(f"v_pk_mul_f32 {vp(sn+2*k)}, {vp(sn+2*k)}, s[{S_C}:{S_C+1}] op_sel_hi:[1,0]")
    rope8(a, q1, q2, cs, sn, u, out, out + 4)
    return out

def task_params(a, rnd, pk, pt, pw):
    a(f"s_and_b32 s{S_T0}, s{S_W}, 1")
    a(f"s_lshl_b32 s{S_T1}, s{S_J}, 1")
    a(f"s_add_u32 s{S_T0}, s{S_T0}, s{S_T1}")
    if pk is not None:
        a(f"s_lshl_b32 s{pk}, s{S_T0}, 3")
        if isinstance(rnd, int): a(f"s_add_u32 s{pk}, s{pk}, {512*rnd}")
        else:
            a(f"s_lshl_b32 s{S_T1}, s{rnd[1]}, 9"); a(f"s_add_u32 s{pk}, s{pk}, s{S_T1}")
    if pt is not None:
        a(f"s_lshr_b32 s{pt}, s{S_T0}, 2")
        if isinstance(rnd, int): a(f"s_add_u32 s{pt}, s{pt}, {16*rnd}")
        else:
            a(f"s_lshl_b32 s{S_T1}, s{rnd[1]}, 4"); a(f"s_add_u32 s{pt}, s{pt}, s{S_T1}")
        a(f"s_and_b32 s{pw}, s{S_T0}, 3")

def task_addr(a, R, tmp, k=True, v=True):
    if k:
        a(f"v_and_b32 v{tmp}, 7, v0")
        a(f"v_bfe_u32 v{R.krr}, v0, 3, 3")
        a(f"v_lshlrev_b32 v{R.kraw}, 10, v{R.krr}")
        a(f"v_lshl_add_u32 v{R.kraw}, v{tmp}, 5, v{R.kraw}")
        a(f"v_lshrrev_b32 v{tmp+1}, 2, v{tmp}")
        a(f"v_lshlrev_b32 v{R.kst}, 10, v{tmp+1}")
        a(f"v_and_b32 v{tmp+1}, 3, v{tmp}")
        a(f"v_lshl_add_u32 v{R.kst}, v{tmp+1}, 8, v{R.kst}")
        a(f"v_lshl_add_u32 v{R.kst}, v{R.krr}, 4, v{R.kst}")
    if v:
        a(f"v_and_b32 v{tmp}, 15, v0")
        a(f"v_bfe_u32 v{tmp+1}, v0, 4, 2")
        a(f"v_lshlrev_b32 v{R.vraw}, 12, v{tmp+1}")
        a(f"v_lshl_add_u32 v{R.vraw}, v{tmp}, 4, v{R.vraw}")
        a(f"v_and_b32 v{R.vst}, 63, v0")
        a(f"v_lshlrev_b32 v{R.vst}, 4, v{R.vst}")

def publish(a, val, lbl, t):
    a(f"s_cmp_lg_u32 s{S_W}, 0")
    a(f"s_cbranch_scc1 {lbl}")
    a(f"s_mov_b64 exec, 1")
    a(f"s_add_u32 s{S_T1}, s{S_NONCE}, {val}")
    a(f"v_mov_b32 v{t}, s{S_T1}")
    a(f"s_lshl_b32 s{S_T0}, s{S_HEAD}, 5")
    a(f"s_add_u32 s{S_T0}, s{S_T0}, s{S_J}")
    a(f"s_lshl_b32 s{S_T0}, s{S_T0}, 7")
    a(f"v_mov_b32 v{t+1}, s{S_T0}")
    a(f"global_store_dword v{t+1}, v{t}, s[{S_FLG}:{S_FLG+1}] sc1")
    a(f"s_mov_b64 exec, -1")
    a.label(lbl)

def flag_load(a):
    a(f"global_load_dword v{V_FLAG}, v{V_FADDR}, s[{S_FLG}:{S_FLG+1}] sc1")
def flag_check(a):
    a(f"v_subrev_u32 v{V_FLAG}, s{S_NEED}, v{V_FLAG}")
    a(f"v_cmp_lt_u32 vcc, s{S_RANGE}, v{V_FLAG}")
def set_need(a, need):
    a(f"s_add_u32 s{S_NEED}, s{S_NONCE}, {need}")
    a(f"s_mov_b32 s{S_RANGE}, {4-need}")
def spin(a, name):
    a(f"s_mov_b32 s{S_SPIN}, 0")
    a.label(f"L_spin_{name}")
    flag_load(a)
    a("s_waitcnt vmcnt(0)")
    flag_check(a)
    a(f"s_add_u32 s{S_SPIN}, s{S_SPIN}, 1")
    a(f"s_cmp_lt_u32 s{S_SPIN}, 0x8000")
    a(f"s_cbranch_scc0 L_spin_{name}_done")
    a("s_nop 3")
    a(f"s_cbranch_vccnz L_spin_{name}")
    a.label(f"L_spin_{name}_done")

def tile_off(dst, tadd, tmp):
    return [I_salu(f"s_add_u32 s{dst}, s{S_I}, {tadd}"),
            I_salu(f"s_add_u32 s{tmp}, s{dst}, s{S_ROT}"),
            I_salu(f"s_and_b32 s{tmp}, s{tmp}, 3"),
            I_salu(f"s_and_b32 s{dst}, s{dst}, 12"),
            I_salu(f"s_or_b32 s{dst}, s{dst}, s{tmp}"),
            I_salu(f"s_lshl_b32 s{dst}, s{dst}, 16")]

def pv_item(t, db, qb, p):
    par = t & 1
    f = db * 4 + p
    o = A_O + (db * 4 + qb) * 4
    b = V_PO + 16 * par + qb * 4 if p == 0 else V_PF + (p - 1) * 16 + qb * 4
    return I_mfma(f"{MF} a[{o}:{o+3}], v[{V_V+4*f}:{V_V+4*f+3}], v[{b}:{b+3}], a[{o}:{o+3}]")

def p_reads(t):
    par = t & 1
    r = []
    for p in range(1, 4):
        for qb in range(4):
            dst = V_PF + (p - 1) * 16 + qb * 4
            r.append(I_lds(f"ds_read_b128 v[{dst}:{dst+3}], v{V_PR+p-1} offset:{par*16384+qb*1024}", ("PR", t, p, qb)))
    return r

def build_iter(i, opt, NT=16):
    has_qk = (i + 1) < NT
    has_sm = 0 <= i < NT
    has_pv = 1 <= i <= NT
    mf = []
    if has_qk:
        mf += qk_mfmas(i + 1, opt, NT)
    nqk = len(mf)
    if has_pv:
        t = i - 1
        for db in range(4):
            for qb in range(4):
                for p in range(4):
                    pre = []
                    if qb == 0 and p == 0:
                        pre.append(I_wvm(("V", t, db * 4 + 3)))
                    if db == 0 and qb == 0 and p == 1:
                        pre.append(I_wlds(("PR", t, 3, 3)))
                    post = []
                    if qb == 3 and t + 1 < NT:
                        post.append(vload(t + 1, db * 4 + p, S_VOFF))
                    mf.append([pre, pv_item(t, db, qb, p), post])
    respread_loads(mf, i, NT, opt)
    if i == 15:
        mf[0][2] = [vload(14, j, S_VOFF) for j in range(9, 16)] + mf[0][2]
    reads = p_reads(i - 1) if has_pv else []
    sm = softmax_stream(i, opt) if has_sm else []
    head = []
    full = len(mf) == 128
    if has_qk:
        head += tile_off(S_KOFF, 2, S_T4) + [I_salu(f"s_cmp_lt_u32 s{S_I}, {NT-2}"), I_salu(f"s_cselect_b32 s{S_KUSE}, s{S_KOFF}, 0x100000")]
    if has_pv:
        vup = tile_off(S_VOFF, 0, S_T3)
        if full:
            for k, x in enumerate(vup):
                mf[41 + k][2].append(x)
        else:
            head += vup
    if full and i % 2 == 1:
        txt = (f"s_bitcmp1_b32 s{S_FMASK}, s{S_I}\ns_cbranch_scc0 L_noflagld\n"
               f"global_load_dword v{V_FLAG}, v{V_FADDR}, s[{S_FLG}:{S_FLG+1}] sc1\nL_noflagld:")
        mf[opt.flag_gap][2].append(I_raw(txt))
    return schedule(mf, head, reads, sm, nqk, opt)

def build_last(opt, T, V_OUT):
    t = 15
    mf = []
    for qb in range(4):
        for db in range(4):
            for p in range(4):
                pre = []
                if qb == 0 and p == 0:
                    pre.append(I_wvm(("V", t, db * 4 + 3)))
                if qb == 0 and db == 0 and p == 1:
                    pre.append(I_wlds(("PR", t, 3, 3)))
                mf.append([pre, pv_item(t, db, qb, p), []])
    def epi(qb):
        it = []
        inv = T + 4 * qb
        tb = 48 + (qb & 1) * 16
        for par in range(2):
            for k in range(par, 8, 2):
                r = k >> 1
                c = 2 * (k & 1)
                x = tb + 2 * k
                it.append(I_valu(f"v_accvgpr_read_b32 v{x}, a{A_O+((c)*4+qb)*4+r}"))
                it.append(I_valu(f"v_accvgpr_read_b32 v{x+1}, a{A_O+((c+1)*4+qb)*4+r}"))
        for k in range(8):
            x = tb + 2 * k
            it.append(I_valu(f"v_pk_mul_f32 {vp(x)}, {vp(x)}, {vp(inv)} op_sel_hi:[1,0]"))
        for half in range(2):
            o = 16 + (qb * 2 + half) * 4
            for kk in range(4):
                x = tb + 2 * (half * 4 + kk)
                it.append(I_valu(f"v_cvt_pk_bf16_f32 v{o+kk}, v{x}, v{x+1}"))
            so = "0" if qb == 0 else f"s{S_T0+qb-1}"
            it.append(I_vm(f"buffer_store_dwordx4 v[{o}:{o+3}], v{V_OUT}, s[{S_OSRD}:{S_OSRD+3}], {so} offen offset:{half*16}{OUTF}", ("O", qb, half)))
        return it
    linv = [I_wlds(("LR", 3))]
    for qb in range(4):
        b = T + 4 * qb
        linv += [I_valu(f"v_add_f32 v{b}, v{b}, v{b+1}"), I_valu(f"v_add_f32 v{b+2}, v{b+2}, v{b+3}")]
    for qb in range(4):
        b = T + 4 * qb
        linv.append(I_valu(f"v_add_f32 v{b}, v{b}, v{b+2}"))
    for qb in range(4):
        b = T + 4 * qb
        linv.append(I_valu(f"v_rcp_f32 v{b}, v{b}", 8))
    items = []
    lreads = [I_lds(f"ds_read_b128 v[{T+4*qb}:{T+4*qb+3}], v{LRREG} offset:{qb*256}", ("LR", qb)) for qb in range(4)]
    head = [I_salu(f"s_mov_b32 s{S_T0+k}, {8192*(k+1)}") for k in range(3)] + p_reads(t) + lreads
    gaps = [[] for _ in range(64)]
    q = list(linv)
    g = 4
    while q:
        gaps[g] += q[:2]; q = q[2:]; g = min(g + 1, 15) if g < 15 else 15
    for qb in range(3):
        e = epi(qb)
        g0 = 16 * (qb + 1) + 3
        per = (len(e) + 12) // 13
        g = g0
        while e:
            gaps[g] += e[:per]; e = e[per:]; g = min(g + 1, 63)
    for k, (pre, m, post) in enumerate(mf):
        items += pre
        items.append(m)
        if k == 0:
            items += head
        items += gaps[k]
    items.append(I_raw("s_nop 7"))
    items += epi(3)
    return items

def gen_fused(a, opt):
    global OUTF, LRREG
    NT = 16
    st = Stamp(a, opt)
    PP = RM(); PP.kraw, PP.krr, PP.kst, PP.vraw, PP.vst = 248, 249, 250, 251, 252
    PP.ksc, PP.vsc = 253, 254
    V_QW, V_QR, V_QOFF = 8, 9, 14
    X, Y, Z, QD, TT = 16, 48, 80, 112, 144
    WK, WQ = 184, 200
    SC0, SC1, SC2, SC3 = 208, 216, 224, 232
    QPOS, V_NON, V_ZERO, VJ = 240, 242, 243, 244
    T = 240
    a.label(KNAME)
    a("s_cmp_ge_u32 s2, 256" if not opt.empty else "s_cmp_ge_u32 s2, 0")
    a("s_cbranch_scc1 L_done")
    st(force=True)
    if opt.dbgspan:
        a("s_memrealtime s[72:73]")
        a("s_waitcnt lgkmcnt(0)")
        a("s_not_b32 s98, s72")
    a("s_load_dwordx16 s[40:55], s[0:1], 0")
    a("s_load_dwordx2 s[62:63], s[0:1], 88")
    a("s_load_dwordx4 s[64:67], s[0:1], 96")
    if opt.codepf:
        a("s_getpc_b64 s[4:5]")
        a.label("L_pc")
        a("v_lshlrev_b32 v30, 7, v0")
        a(f"v_min_u32 v30, L_code_end-L_pc-4, v30")
        a("global_load_dword v31, v30, s[4:5]")
    a(f"s_and_b32 s{S_HEAD}, s2, 7")
    a(f"s_lshr_b32 s{S_J}, s2, 3")
    a("v_lshrrev_b32 v1, 6, v0")
    a("v_and_b32 v2, 15, v0")
    a("v_bfe_u32 v3, v0, 4, 2")
    a(f"v_readfirstlane_b32 s{S_W}, v1")
    task_addr(a, PP, 4)
    a("v_lshl_add_u32 v4, v1, 4, v3")
    a(f"v_lshlrev_b32 v{V_QOFF}, 9, v4")
    a(f"v_lshl_add_u32 v{V_QOFF}, v2, 4, v{V_QOFF}")
    task_params(a, 0, 68, 69, 70)
    a(f"s_lshl_b32 s{S_T4}, s{S_HEAD}, 21")
    a("s_waitcnt lgkmcnt(0)")
    isB = lambda lbl: (a(f"s_cmp_ge_u32 s{S_W}, 2"), a(f"s_cbranch_scc1 {lbl}"))
    make_srd(a, S_RAWK, 42, S_T4, 0x200000)
    a(f"s_lshl_b32 s{S_T0}, s{S_HEAD}, 20")
    a(f"s_lshl_b32 s{S_T3}, s{S_J}, 15")
    a(f"s_add_u32 s{S_T2}, s{S_T0}, s{S_T3}")
    make_srd(a, S_OSRD, 62, S_T2, 32768)
    make_srd(a, S_RAWV, 48, S_T4, 0x200000)
    make_srd(a, S_QSRD, 40, S_T2, 32768)
    isB("L_B_i0")
    k_raw_loads(a, PP, X, 68)
    a(f"s_lshl_b32 s{S_T2}, s{S_HEAD}, 12")
    make_srd(a, S_KSC, 44, S_T2, 4096)
    make_srd(a, S_KZ, 46, S_T2, 4096)
    a(f"v_lshlrev_b32 v{PP.ksc}, 1, v{PP.krr}")
    k_scale_loads(a, PP, 68, SC0)
    a(f"s_lshl_b32 s{S_T2}, s{S_HEAD}, 12")
    make_srd(a, S_VSC, 50, S_T2, 4096)
    make_srd(a, S_VZ, 52, S_T2, 4096)
    a(f"v_lshlrev_b32 v{PP.vsc}, 3, v3")
    a("s_branch L_i0_done")
    a.label("L_B_i0")
    v_raw_loads(a, PP, X, 69, 70)
    a(f"s_lshl_b32 s{S_T2}, s{S_HEAD}, 12")
    make_srd(a, S_VSC, 50, S_T2, 4096)
    make_srd(a, S_VZ, 52, S_T2, 4096)
    a(f"v_lshlrev_b32 v{PP.vsc}, 3, v3")
    v_scale_loads(a, PP, SC0, 69)
    a(f"s_lshl_b32 s{S_T2}, s{S_HEAD}, 12")
    make_srd(a, S_KSC, 44, S_T2, 4096)
    make_srd(a, S_KZ, 46, S_T2, 4096)
    a(f"v_lshlrev_b32 v{PP.ksc}, 1, v{PP.krr}")
    a.label("L_i0_done")
    a("s_mov_b32 s41, 4096")
    for it in range(4):
        so = "0" if it < 2 else "s41"
        io = (it & 1) * 2048
        b = QD + 8 * it
        a(f"buffer_load_dwordx4 v[{b}:{b+3}], v{V_QOFF}, s[{S_QSRD}:{S_QSRD+3}], {so} offen offset:{io}")
        a(f"buffer_load_dwordx4 v[{b+4}:{b+7}], v{V_QOFF}, s[{S_QSRD}:{S_QSRD+3}], {so} offen offset:{io+256}")
    a(f"s_mov_b32 s{S_PK}, s68"); a(f"s_mov_b32 s{S_PT}, s69"); a(f"s_mov_b32 s{S_PW}, s70")
    task_params(a, 1, S_PK2, S_PT2, S_PW2)
    task_params(a, 2, 68, 69, 70)
    task_params(a, 3, 46, 47, 48)
    a(f"v_mov_b32 v{V_ZERO}, 0")
    isB("L_B_sc")
    v_scale_loads(a, PP, SC1, S_PT2); k_scale_loads(a, PP, 68, SC2); v_scale_loads(a, PP, SC3, 47)
    a("s_branch L_sc_done")
    a.label("L_B_sc")
    k_scale_loads(a, PP, S_PK2, SC1); v_scale_loads(a, PP, SC2, 69); k_scale_loads(a, PP, 46, SC3)
    a.label("L_sc_done")
    NSA, NSB = 10, 8
    a(f"s_mov_b32 s{S_DBG}, s64"); a(f"s_mov_b32 s{S_DBG+1}, s65")
    a(f"s_or_b32 s{S_T0}, s{S_HEAD}, s{S_J}")
    a(f"s_or_b32 s{S_T0}, s{S_T0}, s{S_W}")
    a(f"s_cmp_lg_u32 s{S_T0}, 0")
    a("s_cbranch_scc1 L_nononce")
    a("s_memrealtime s[100:101]")
    a("s_waitcnt lgkmcnt(0)")
    a("s_lshl_b32 s100, s100, 3")
    a("s_or_b32 s100, s100, 0x80000000")
    a("s_and_b32 s100, s100, 0xfffffff8")
    a(f"v_mov_b32 v{VJ}, s100")
    a("s_mov_b64 exec, 1")
    a(f"global_store_dword v{V_ZERO}, v{VJ}, s[{S_DBG}:{S_DBG+1}] sc1")
    a("s_mov_b64 exec, -1")
    a.label("L_nononce")
    a(f"global_load_dword v{V_NON}, v{V_ZERO}, s[{S_DBG}:{S_DBG+1}] sc1")
    def issue(kind_for_A, buf, pk, pt, pw, tag):
        isB(f"L_B_{tag}")
        (k_raw_loads(a, PP, buf, pk) if kind_for_A == "K" else v_raw_loads(a, PP, buf, pt, pw))
        a(f"s_branch L_{tag}_done")
        a.label(f"L_B_{tag}")
        (v_raw_loads(a, PP, buf, pt, pw) if kind_for_A == "K" else k_raw_loads(a, PP, buf, pk))
        a.label(f"L_{tag}_done")
    def comp(kind_for_A, buf, sc, pk, pt, pw, tag):
        isB(f"L_B_{tag}")
        (k_compute(a, PP, buf, sc, WK, TT, pk) if kind_for_A == "K" else v_compute(a, PP, buf, sc, TT, pt, pw))
        a(f"s_branch L_{tag}_done")
        a.label(f"L_B_{tag}")
        (v_compute(a, PP, buf, sc, TT, pt, pw) if kind_for_A == "K" else k_compute(a, PP, buf, sc, WK, TT, pk))
        a.label(f"L_{tag}_done")
    if opt.r1early:
        issue("V", Y, S_PK2, S_PT2, S_PW2, "i1")
    NR1 = 8 if opt.r1early else 0
    a(f"s_mov_b32 s{S_MASK}, 0xffff0000")
    a(f"s_mov_b32 s{S_C}, 0x{f32bits(math.log2(math.e)/16.0):08x}")
    a(f"s_and_b32 s{S_ROT}, s{S_J}, 3")
    a(f"s_lshl_b32 s{S_T0}, s{S_HEAD}, 20")
    make_srd(a, S_KSRD, 66, S_T0, 0x100000)
    a(f"s_add_u32 s{S_T1}, s{S_T0}, 0x800000")
    make_srd(a, S_VSRD, 66, S_T1, 0x100000)
    a(f"s_add_u32 s{S_FLG}, s66, 0x1000000")
    a(f"s_addc_u32 s{S_FLG+1}, s67, 0")
    if opt.stamp:
        a(f"s_mov_b32 s{S_STW}, s66"); a(f"s_mov_b32 s{S_STW+1}, s67")
    a(f"s_lshl_b32 s{S_T0}, s{S_J}, 6")
    a(f"v_add_u32 v{QPOS}, s{S_T0}, v4")
    a(f"v_cvt_f32_u32 v{QPOS}, v{QPOS}")
    a(f"v_and_b32 v{TT}, 7, v0"); a(f"v_lshlrev_b32 v{TT}, 3, v{TT}"); a(f"v_cvt_f32_u32 v{TT}, v{TT}")
    a(f"v_lshlrev_b32 v{TT+1}, 3, v2"); a(f"v_cvt_f32_u32 v{TT+1}, v{TT+1}")
    freq_consts(a, WK, 16, TT, [64 * (k >> 3) + (k & 7) for k in range(16)])
    freq_consts(a, WQ, 8, TT + 1, list(range(8)))
    a(f"v_mul_u32_u24 v{V_QW}, {8*QFS}, v1")
    a(f"v_lshrrev_b32 v{TT}, 2, v2")
    a(f"v_mul_u32_u24 v{TT}, {QFS}, v{TT}")
    a(f"v_add_u32 v{V_QW}, v{V_QW}, v{TT}")
    a(f"v_and_b32 v{TT}, 3, v2")
    a(f"v_mul_u32_u24 v{TT}, {QGS}, v{TT}")
    a(f"v_add_u32 v{V_QW}, v{V_QW}, v{TT}")
    a(f"v_lshl_add_u32 v{V_QW}, v3, 4, v{V_QW}")
    a(f"v_mul_u32_u24 v{V_QR}, {QGS}, v3")
    a(f"v_lshl_add_u32 v{V_QR}, v2, 4, v{V_QR}")
    for r in range(64):
        a(f"v_accvgpr_write_b32 a{A_O+r}, 0")
    a(f"s_waitcnt vmcnt({8 + NSB + 1 + NR1})")
    st()
    comp("K", X, SC0, S_PK, S_PT, S_PW, "c0")
    if not opt.r1early:
        issue("V", Y, S_PK2, S_PT2, S_PW2, "i1")
    issue("K", Z, 68, 69, 70, "i2")
    st(level=2)
    a(f"s_waitcnt vmcnt(20)")
    def rope_it(it):
        if it:
            a(f"v_add_f32 v{QPOS}, 4.0, v{QPOS}")
        o = rope_q(a, QD + 8 * it, TT, QPOS, WQ)
        a(f"ds_write_b128 v{V_QW}, v[{o}:{o+3}] offset:{it*64}")
        a(f"ds_write_b128 v{V_QW}, v[{o+4}:{o+7}] offset:{it*64 + 4*QFS}")
    for it in range(4):
        rope_it(it)
    st(level=2)
    a(f"s_waitcnt vmcnt({8 if opt.r1early else 16})")
    st(level=2)
    a(f"v_readfirstlane_b32 s{S_NONCE}, v{V_NON}")
    a(f"s_cmp_lg_u32 s{S_NONCE}, 0")
    a("s_cbranch_scc1 L_have_nonce")
    a(f"s_mov_b32 s{S_SPIN}, 0")
    a.label("L_nonce_spin")
    a(f"global_load_dword v{V_NON}, v{V_ZERO}, s[{S_DBG}:{S_DBG+1}] sc1")
    a("s_waitcnt vmcnt(0)")
    a(f"v_readfirstlane_b32 s{S_NONCE}, v{V_NON}")
    a(f"s_add_u32 s{S_SPIN}, s{S_SPIN}, 1")
    a(f"s_cmp_ge_u32 s{S_SPIN}, 0x8000")
    a("s_cbranch_scc1 L_have_nonce")
    a(f"s_cmp_eq_u32 s{S_NONCE}, 0")
    a("s_cbranch_scc1 L_nonce_spin")
    a.label("L_have_nonce")
    a("s_waitcnt lgkmcnt(0)")
    a("s_barrier")
    publish(a, 1, "L_pub1", VJ)
    st()
    for qb in range(4):
        for s in range(8):
            b = A_Q + (qb * 8 + s) * 4
            a(f"ds_read_b128 a[{b}:{b+3}], v{V_QR} offset:{(qb*8+s)*QFS}")
    a("s_waitcnt vmcnt(8)")
    comp("V", Y, SC1, S_PK2, S_PT2, S_PW2, "c1")
    a("s_waitcnt lgkmcnt(0)")
    a(f"v_and_b32 v{TT}, 63, v0")
    a(f"v_lshrrev_b32 v{TT+1}, 6, v0")
    a(f"v_and_b32 v{V_FADDR}, 31, v0")
    a(f"s_lshl_b32 s{S_T0}, s{S_HEAD}, 5")
    a(f"v_add_u32 v{V_FADDR}, s{S_T0}, v{V_FADDR}")
    a(f"v_lshlrev_b32 v{V_FADDR}, 7, v{V_FADDR}")
    flag_load(a)
    issue("V", Y, 46, 47, 48, "i3")
    a(f"v_lshlrev_b32 v{TT+2}, 4, v{TT}")
    a(f"v_add_u32 v{TT+3}, {LDS_P}, v{TT+2}")
    for t in range(1, 4):
        a(f"v_add_u32 v{TT+4}, {t}, v{TT+1}")
        a(f"v_and_b32 v{TT+4}, 3, v{TT+4}")
        a(f"v_lshl_add_u32 v{V_PR+t-1}, v{TT+4}, 12, v{TT+3}")
    a(f"v_lshl_add_u32 v{V_PW}, v{TT+1}, 12, v{TT+3}")
    a(f"v_lshl_add_u32 v{V_OFF}, v{TT+1}, 14, v{TT+2}")
    for k in range(1, 4):
        a(f"v_add_u32 v{V_OFF+k}, {4096*k}, v{V_OFF}")
    for r in range(4):
        a(f"v_mov_b32 v{V_L+r}, 0")
    a(f"s_mov_b32 s{S_FMASK}, 0x2")
    set_need(a, 1)
    a("s_waitcnt vmcnt(8)")
    flag_check(a)
    a("s_nop 4")
    a("s_cbranch_vccz L_chk_r0_ok")
    spin(a, "r0")
    a.label("L_chk_r0_ok")
    st()
    a(f"s_lshl_b32 s{S_KOFF}, s{S_ROT}, 16")
    a(f"s_mov_b32 s{S_VOFF}, s{S_KOFF}")
    a(f"s_mov_b32 s{S_KUSE}, s{S_KOFF}")
    pro = [kload(0, f, S_KUSE) for f in range(16)]
    for it in pro:
        a(it.text)
    comp("K", Z, SC2, 68, 69, 70, "c2")
    a("s_waitcnt vmcnt(20)")
    comp("V", Y, SC3, 46, 47, 48, "c3")
    st()
    pre = [I_salu(f"s_mov_b32 s{S_I}, -1")] + tile_off(S_KUSE, 2, S_T4)
    for (p_, m, post) in qk_mfmas(0, opt, NT):
        pre += p_ + [m] + post
    pf = []
    if opt.prefetch:
        pf += [I_valu(f"v_and_b32 v224, 63, v0"), I_valu(f"v_lshlrev_b32 v225, 7, v224"),
               I_valu(f"v_lshrrev_b32 v226, 1, v224"), I_valu(f"v_lshlrev_b32 v226, 10, v226"),
               I_valu(f"v_and_b32 v224, 1, v224"), I_valu(f"v_lshl_add_u32 v226, v224, 7, v226"),
               I_salu(f"s_lshl_b32 s{S_T0}, s{S_HK}, 10"),
               I_salu(f"s_lshl_b32 s{S_T1}, s{S_HT}, 15"), I_salu(f"s_lshl_b32 s{S_T2}, s{S_HW}, 8"),
               I_salu(f"s_add_u32 s{S_T1}, s{S_T1}, s{S_T2}")]
        for off in (0, 64)[:opt.prefetch]:
            pf.append(I_raw(f"buffer_load_dword v227, v225, s[{S_RAWK}:{S_RAWK+3}], s{S_T0} offen offset:{off}"))
            pf.append(I_raw(f"buffer_load_dword v228, v226, s[{S_RAWV}:{S_RAWV+3}], s{S_T1} offen offset:{off}"))
    pre += pf
    pre.append(I_raw("s_nop 7"))
    pre.append(I_salu(f"s_mov_b32 s{S_I}, 0"))
    endbar = [I_wlds("all"), I_raw("s_barrier")]
    blocks = [("pro", pro + [I_vm("", ("ST", k)) for k in range(8)]), ("pre", pre)]
    it0 = build_iter(0, opt) + [vload(0, f, S_VOFF) for f in range(9)] + [I_raw("s_waitcnt vmcnt(25)")] + endbar + [I_salu(f"s_mov_b32 s{S_I}, 1")]
    blocks.append(("it0", it0))
    stat = {}
    for i in range(1, 15):
        items = build_iter(i, opt) + [I_salu(f"s_add_u32 s{S_I}, s{S_I}, 1")] + endbar
        nm = "odd" if i % 2 else "even"
        blocks.append((nm, items))
        if nm not in stat: stat[nm] = items
        else: assert [x.text for x in stat[nm]] == [x.text for x in items], nm
    it15 = build_iter(15, opt)
    V_LW, V_LR, V_OUT = 231, 232, 233
    LRREG = V_LR
    red = [I_valu(f"v_and_b32 v224, 15, v0"), I_valu(f"v_lshrrev_b32 v225, 6, v0"), I_valu(f"v_bfe_u32 v226, v0, 4, 2"),
           I_valu(f"v_lshlrev_b32 v{V_LR}, 4, v224"), I_valu(f"v_add_u32 v{V_LR}, {LDS_L}, v{V_LR}"),
           I_valu(f"v_lshl_add_u32 v{V_LW}, v225, 2, v{V_LR}"), I_valu(f"v_lshlrev_b32 v{V_OUT}, 9, v224"),
           I_valu(f"v_lshl_add_u32 v{V_OUT}, v225, 7, v{V_OUT}"), I_valu(f"v_lshl_add_u32 v{V_OUT}, v226, 5, v{V_OUT}")]
    for qb in range(4): red.append(I_valu(f"v_mov_b32 v{T+qb}, v{V_L+qb}"))
    red.append(I_raw("s_nop 1"))
    for qb in range(4): red.append(I_valu(f"v_permlane32_swap_b32 v{T+qb}, v{V_L+qb}"))
    red.append(I_raw("s_nop 1"))
    for qb in range(4): red.append(I_valu(f"v_add_f32 v{V_L+qb}, v{V_L+qb}, v{T+qb}"))
    for qb in range(4): red.append(I_valu(f"v_mov_b32 v{T+qb}, v{V_L+qb}"))
    red.append(I_raw("s_nop 1"))
    for qb in range(4): red.append(I_valu(f"v_permlane16_swap_b32 v{T+qb}, v{V_L+qb}"))
    red.append(I_raw("s_nop 1"))
    for qb in range(4): red.append(I_valu(f"v_add_f32 v{V_L+qb}, v{V_L+qb}, v{T+qb}"))
    for qb in range(4): red.append(I_lds(f"ds_write_b32 v{V_LW}, v{V_L+qb} offset:{qb*256}", ("LW", qb)))
    it15 += red + endbar
    blocks.append(("it15", it15))
    it16 = build_last(opt, T, V_OUT)
    blocks.append(("it16", it16))
    waits = resolve_waits(blocks)
    emit_block(a, "pre", pre, waits)
    if opt.stamp == 5: st()
    emit_block(a, "it0", it0, waits)
    publish(a, 4, "L_pub4", 158)
    def hook_site(name):
        if name == "odd":
            a(f"s_cmp_eq_u32 s{S_I}, 2")
            a(f"s_cbranch_scc1 L_hook")
            a.label("L_hook_ret")
    st()
    a.label("L_loop")
    base = st.n
    emit_block(a, "odd", stat["odd"], waits)
    if opt.stamp == 4: st.dyn(2, base - 4, 9)
    hook_site("odd")
    if opt.stamp == 3: st.dyn(1, base - 2, 15)
    if opt.stamp == 4: st.dyn(2, base - 3, 9)
    emit_block(a, "even", stat["even"], waits)
    if opt.stamp == 4: st.dyn(2, base - 4, 9)
    hook_site("even")
    if opt.stamp == 3:
        st.dyn(1, base - 2, 15); st.n = base + 14
    if opt.stamp == 4:
        st.dyn(2, base - 3, 9); st.n = base + 16
    a(f"s_cmp_lt_u32 s{S_I}, 15")
    a("s_cbranch_scc1 L_loop")
    if opt.stamp in (1, 2): st()
    emit_block(a, "it15", it15, waits)
    emit_block(a, "it16", it16, waits)
    if opt.stamp:
        hk = st.n
        if opt.stamp == 5: st.n += 5
        a("s_waitcnt vmcnt(0)")
        st(force=True)
        st.finish()
    if opt.dbgspan:
        a("s_waitcnt vmcnt(0)")
        a("s_memrealtime s[72:73]")
        a("s_waitcnt lgkmcnt(0)")
        a("v_mov_b32 v16, 8"); a("v_mov_b32 v17, s98"); a("v_mov_b32 v18, 12"); a("v_mov_b32 v19, s72")
        a("s_mov_b64 exec, 1")
        a(f"global_atomic_umax v16, v17, s[{S_DBG}:{S_DBG+1}]")
        a(f"global_atomic_umax v18, v19, s[{S_DBG}:{S_DBG+1}]")
        a("s_waitcnt vmcnt(0)")
    a("s_endpgm")
    a.label("L_hook")
    set_need(a, 4)
    nyoung = sum(1 for j in range(16) if 28 + 4 * j > opt.flag_gap) + sum(1 for j in range(9) if 92 + 4 * j > opt.flag_gap)
    a(f"s_waitcnt vmcnt({nyoung})")
    flag_check(a)
    a("s_nop 4")
    a(f"s_cbranch_vccz L_hook_ret")
    spin(a, "hk")
    a("s_branch L_hook_ret")
    a.label("L_done")
    a("s_endpgm")
    a.label("L_code_end")

def main():
    global OUTF
    ap = argparse.ArgumentParser()
    ap.add_argument("-o", default=f"cdna_kernels/{NAME}.s")
    ap.add_argument("--stamp", type=int, default=0)
    ap.add_argument("--wgrp", type=int, default=4)
    ap.add_argument("--kgrp", type=int, default=8)
    ap.add_argument("--spread", type=int, default=1)
    ap.add_argument("--cap", type=int, default=2)
    ap.add_argument("--pace", type=int, default=1)
    ap.add_argument("--read_spread", type=int, default=1)
    ap.add_argument("--sm_g0", type=int, default=0)
    ap.add_argument("--sm_g1", type=int, default=117)
    ap.add_argument("--ldflags", default="sc1")
    ap.add_argument("--outflags", default="nt")
    ap.add_argument("--empty", type=int, default=0)
    ap.add_argument("--dbgspan", type=int, default=0)
    ap.add_argument("--codepf", type=int, default=1)
    ap.add_argument("--r1early", type=int, default=1)
    ap.add_argument("--pretouch", type=int, default=1)
    ap.add_argument("--rope_first", type=int, default=1)
    ap.add_argument("--prefetch", type=int, default=0)
    ap.add_argument("--flag_gap", type=int, default=57)
    ap.add_argument("--ngroups", type=int, default=3)
    opt = ap.parse_args()
    OUTF = (" " + opt.outflags.replace("+", " ")) if opt.outflags else ""
    gen2.LDFLAGS = (" " + opt.ldflags.replace("+", " ")) if opt.ldflags else ""
    out = header()
    out += f"; @launch grid=(256,1,1) block=(256,1,1) lds={LDS_TOTAL}\n"
    out += '.amdgcn_target "amdgcn-amd-amdhsa--gfx950"\n.text\n'
    a = EA()
    gen_fused(a, opt)
    out += f".globl {KNAME}\n.p2align 8\n.type {KNAME},@function\n" + a.text()
    out += kd(KNAME, 512, 102, 256)
    open(opt.o, "w").write(out)

if __name__ == "__main__":
    main()
```

```python
import sys, os, argparse, math, struct
sys.path.insert(0, "dev")
from gen import f32bits, make_srd, kd, NAME, Item, I_valu, I_raw, I_salu, I_vm, I_lds, I_wvm, I_wlds, I_mfma, resolve_waits, emit_block
import gen2
from gen2 import (MF, V_OFF, V_PW, V_PR, V_L, V_S, V_PO, V_PF, V_V, A_O, A_Q, A_K, QFS, QGS,
                  S_KSRD, S_VSRD, S_QSRD, S_OSRD, S_KOFF, S_VOFF, S_I, S_ROT, S_C, S_W, S_MASK, S_KUSE,
                  kload, vload, softmax_stream, qk_mfmas, schedule, respread_loads, header)

KNAME = NAME + "_kernel"

class EA:
    def __init__(self): self.lines = []
    def __call__(self, s):
        for l in s.split("\n"):
            l = l.strip()
            if not l: continue
            self.lines.append(l if l.endswith(":") else "    " + l)
    def label(self, l): self.lines.append(l + ":")
    def text(self): return "\n".join(self.lines) + "\n"

LDS_Q = 0
LDS_L = 34816
LDS_SC = LDS_L + 1024
LDS_WK = LDS_SC + 4 * 2560
LDS_P = 51200
LDS_TOTAL = LDS_P + 32768
assert LDS_WK + 4096 <= LDS_P

S_STW = 36
S_NONCE = 39
S_PK, S_PT, S_PW = 40, 41, 42
S_PK2, S_PT2, S_PW2 = 43, 44, 45
S_HK, S_HT, S_HW = 46, 47, 48
S_FLG = 50
S_RANGE = 53
S_FMASK = 49
S_HMASK = 38
S_G = 68
S_RET = 70
S_RAWK, S_RAWV = 56, 60
S_KSC, S_KZ, S_VSC, S_VZ = 72, 76, 80, 84
S_DBG = 88
S_J, S_NEED = 90, 91
S_T0, S_T1, S_T2, S_T3, S_T4 = 92, 93, 94, 95, 96
S_SPIN, S_HEAD = 97, 99
V_FLAG, V_FADDR, V_STAMP = 13, 14, 15
STF = " sc1"

class RM: pass

class Stamp:
    def __init__(self, a, opt):
        self.a = a; self.on = opt.stamp; self.n = 0
    def _emit(self, idx_sgpr=None):
        a = self.a
        a("s_memtime s[54:55]")
        a("s_memrealtime s[100:101]")
        a("s_waitcnt lgkmcnt(0)")
        if idx_sgpr is None:
            a(f"v_writelane_b32 v{V_STAMP}, s54, {2*self.n}")
            a(f"v_writelane_b32 v{V_STAMP}, s100, {2*self.n+1}")
        else:
            a(f"s_mov_b32 m0, s{idx_sgpr}"); a("s_nop 1")
            a(f"v_writelane_b32 v{V_STAMP}, s54, m0")
            a(f"s_add_u32 m0, s{idx_sgpr}, 1"); a("s_nop 1")
            a(f"v_writelane_b32 v{V_STAMP}, s100, m0")
    def __call__(self, again=False, level=1, force=False):
        if not self.on: return
        if self.on == 9 and not force: return
        if level == 2 and self.on != 2: return
        if again: self.n -= 1
        self._emit()
        self.n += 1
    def dyn(self, mul, add, cap):
        a = self.a
        a(f"s_min_u32 s52, s{S_I}, {cap}")
        a(f"s_mul_i32 s52, s52, {2*mul}")
        a(f"s_add_u32 s52, s52, {2*add}")
        self._emit(52)
    def finish(self):
        if not self.on: return
        a = self.a
        a("s_waitcnt vmcnt(0)")
        a(f"s_lshl_b32 s46, s{S_J}, 3")
        a(f"s_add_u32 s46, s46, s{S_HEAD}")
        a(f"s_lshl_b32 s46, s46, 10")
        a(f"s_lshl_b32 s47, s{S_W}, 8")
        a("s_add_u32 s46, s46, s47")
        a("s_add_u32 s46, s46, 0x8000000")
        a(f"s_add_u32 s46, s{S_STW}, s46")
        a(f"s_addc_u32 s47, s{S_STW+1}, 0")
        a("v_and_b32 v16, 63, v0")
        a("v_lshlrev_b32 v16, 2, v16")
        a(f"global_store_dword v16, v{V_STAMP}, s[46:47]")
        a("s_waitcnt vmcnt(0)")

LOG2_10000_128 = math.log2(10000.0) / 128.0
LOG2_2PI = math.log2(2 * math.pi)

def vp(r): return f"v[{r}:{r+1}]"

def k_raw_loads(a, R, X, rowreg):
    a(f"s_lshl_b32 s{S_T0}, s{rowreg}, 10")
    for c in range(4):
        for hf in range(2):
            b = X + c * 8 + hf * 4
            a(f"buffer_load_dwordx4 v[{b}:{b+3}], v{R.kraw}, s[{S_RAWK}:{S_RAWK+3}], s{S_T0} offen offset:{c*256+hf*16}")
    return 8
def k_scale_loads(a, R, rowreg, dst):
    a(f"s_lshl_b32 s{S_T2}, s{rowreg}, 1")
    a(f"buffer_load_ushort v{dst}, v{R.ksc}, s[{S_KSC}:{S_KSC+3}], s{S_T2} offen")
    a(f"buffer_load_ushort v{dst+1}, v{R.ksc}, s[{S_KZ}:{S_KZ+3}], s{S_T2} offen")
    return 2
def v_raw_loads(a, R, X, treg, wreg):
    a(f"s_lshl_b32 s{S_T0}, s{treg}, 15")
    a(f"s_lshl_b32 s{S_T1}, s{wreg}, 8")
    a(f"s_add_u32 s{S_T0}, s{S_T0}, s{S_T1}")
    a(f"s_add_u32 s{S_T1}, s{S_T0}, 16384")
    for j in range(8):
        b = X + j * 4
        so = S_T0 if j < 4 else S_T1
        a(f"buffer_load_dwordx4 v[{b}:{b+3}], v{R.vraw}, s[{S_RAWV}:{S_RAWV+3}], s{so} offen offset:{(j&3)*1024}")
    return 8
def v_scale_loads(a, R, SC, treg):
    a(f"s_lshl_b32 s{S_T2}, s{treg}, 6")
    for g2 in range(2):
        a(f"buffer_load_dwordx2 v[{SC+2*g2}:{SC+1+2*g2}], v{R.vsc}, s[{S_VSC}:{S_VSC+3}], s{S_T2} offen offset:{g2*32}")
        a(f"buffer_load_dwordx2 v[{SC+4+2*g2}:{SC+5+2*g2}], v{R.vsc}, s[{S_VZ}:{S_VZ+3}], s{S_T2} offen offset:{g2*32}")
    return 4

def sincos8(a, pos, w, cs, sn):
    for k in range(4):
        a(f"v_pk_mul_f32 {vp(sn+2*k)}, {vp(w+2*k)}, {vp(pos)} op_sel_hi:[1,0]")
    for e in range(8):
        a(f"v_fract_f32 v{sn+e}, v{sn+e}")
    for e in range(8):
        a(f"v_cos_f32 v{cs+e}, v{sn+e}")
    for e in range(8):
        a(f"v_sin_f32 v{sn+e}, v{sn+e}")

def rope8(a, x1, x2, cs, sn, u, o1dst, o2dst):
    for k in range(4):
        a(f"v_pk_mul_f32 {vp(u+2*k)}, {vp(x2+2*k)}, {vp(sn+2*k)}")
    for k in range(4):
        a(f"v_pk_mul_f32 {vp(sn+2*k)}, {vp(x1+2*k)}, {vp(sn+2*k)}")
    for k in range(4):
        a(f"v_pk_fma_f32 {vp(u+2*k)}, {vp(x1+2*k)}, {vp(cs+2*k)}, {vp(u+2*k)} neg_lo:[0,0,1] neg_hi:[0,0,1]")
    for k in range(4):
        a(f"v_pk_fma_f32 {vp(sn+2*k)}, {vp(x2+2*k)}, {vp(cs+2*k)}, {vp(sn+2*k)}")
    for k in range(4):
        a(f"v_cvt_pk_bf16_f32 v{o1dst+k}, v{u+2*k}, v{u+2*k+1}")
    for k in range(4):
        a(f"v_cvt_pk_bf16_f32 v{o2dst+k}, v{sn+2*k}, v{sn+2*k+1}")

def k_compute(a, R, X, sc, WK, T, rowreg):
    assert sc % 2 == 0 and T % 2 == 0 and X % 4 == 0
    pos, cs, sn, u = T, T + 2, T + 10, T + 18
    a(f"v_lshlrev_b32 v{sc}, 16, v{sc}")
    a(f"v_lshlrev_b32 v{sc+1}, 16, v{sc+1}")
    a(f"v_cvt_f32_u32 v{pos}, v{R.krr}")
    a(f"v_cvt_f32_u32 v{pos+1}, s{rowreg}")
    a(f"v_mul_f32 v{sc+1}, v{sc+1}, v{sc}")
    a(f"v_add_f32 v{pos}, v{pos}, v{pos+1}")
    for k in range(32):
        a(f"v_cvt_f32_i32 v{X+k}, v{X+k}")
    sincos8(a, pos, WK, cs, sn)
    for k in range(16):
        a(f"v_pk_fma_f32 {vp(X+2*k)}, {vp(X+2*k)}, {vp(sc)}, {vp(sc)} op_sel:[0,0,1] op_sel_hi:[1,0,1] neg_lo:[0,0,1] neg_hi:[0,0,1]")
    rope8(a, X, X + 16, cs, sn, u, X, X + 16)
    sincos8(a, pos, WK + 8, cs, sn)
    a("s_nop 0")
    rope8(a, X + 8, X + 24, cs, sn, u, X + 8, X + 24)
    a(f"s_lshr_b32 s{S_T0}, s{rowreg}, 4")
    a(f"s_lshl_b32 s{S_T0}, s{S_T0}, 13")
    a(f"s_and_b32 s{S_T1}, s{rowreg}, 8")
    a(f"s_lshl_b32 s{S_T1}, s{S_T1}, 4")
    a(f"s_add_u32 s{S_T0}, s{S_T0}, s{S_T1}")
    a(f"s_add_u32 s{S_T1}, s{S_T0}, 4096")
    for c in range(4):
        b = X + c * 8
        so = S_T0 if c < 2 else S_T1
        a(f"buffer_store_dwordx4 v[{b}:{b+3}], v{R.kst}, s[{S_KSRD}:{S_KSRD+3}], s{so} offen offset:{(c&1)*2048}{STF}")

def v_compute(a, R, X, SC, T, treg, wreg):
    M = S_MASK
    SZ = T
    for j in range(8):
        src_s = SC + 2 * (j >> 2) + ((j & 3) >> 1)
        src_z = SC + 4 + 2 * (j >> 2) + ((j & 3) >> 1)
        if j & 1:
            a(f"v_and_b32 v{SZ+2*j}, s{M}, v{src_s}"); a(f"v_and_b32 v{SZ+2*j+1}, s{M}, v{src_z}")
        else:
            a(f"v_lshlrev_b32 v{SZ+2*j}, 16, v{src_s}"); a(f"v_lshlrev_b32 v{SZ+2*j+1}, 16, v{src_z}")
    for k in range(32):
        a(f"v_cvt_f32_i32 v{X+k}, v{X+k}")
    for j in range(8):
        a(f"v_mul_f32 v{SZ+2*j+1}, v{SZ+2*j+1}, v{SZ+2*j}")
    for j in range(8):
        for h in range(2):
            x = X + 4 * j + 2 * h
            a(f"v_pk_fma_f32 {vp(x)}, {vp(x)}, {vp(SZ+2*j)}, {vp(SZ+2*j)} op_sel:[0,0,1] op_sel_hi:[1,0,1] neg_lo:[0,0,1] neg_hi:[0,0,1]")
    O = T
    for db in range(4):
        for jj in range(4):
            a(f"v_cvt_pk_bf16_f32 v{O+db*4+jj}, v{X+(2*jj)*4+db}, v{X+(2*jj+1)*4+db}")
    a(f"s_lshr_b32 s{S_T0}, s{treg}, 2")
    a(f"s_lshl_b32 s{S_T0}, s{S_T0}, 16")
    a(f"s_lshl_b32 s{S_T1}, s{wreg}, 14")
    a(f"s_add_u32 s{S_T0}, s{S_T0}, s{S_T1}")
    a(f"s_sub_u32 s{S_T1}, s{treg}, s{wreg}")
    a(f"s_and_b32 s{S_T1}, s{S_T1}, 3")
    a(f"s_lshl_b32 s{S_T1}, s{S_T1}, 10")
    a(f"s_add_u32 s{S_T0}, s{S_T0}, s{S_T1}")
    for db in range(4):
        if db:
            a(f"s_add_u32 s{S_T0}, s{S_T0}, 4096")
        a(f"buffer_store_dwordx4 v[{O+4*db}:{O+4*db+3}], v{R.vst}, s[{S_VSRD}:{S_VSRD+3}], s{S_T0} offen{STF}")

def freq_consts(a, dst, n, dbase_v, offs):
    a(f"s_mov_b32 s{S_T0}, 0x{f32bits(-LOG2_10000_128):08x}")
    for k in range(n):
        a(f"v_mov_b32 v{dst+k}, 0x{f32bits(-LOG2_10000_128 * offs[k] - LOG2_2PI):08x}")
    for k in range(n):
        a(f"v_fma_f32 v{dst+k}, v{dbase_v}, s{S_T0}, v{dst+k}")
    for k in range(n):
        a(f"v_exp_f32 v{dst+k}, v{dst+k}")
    a("s_nop 0")

def rope_q(a, src, T, pos, wq):
    M = S_MASK
    q1, q2, cs, sn, u, out = T, T + 8, T + 16, T + 24, T + 32, T
    sincos8(a, pos, wq, cs, sn)
    for k in range(4):
        a(f"v_lshlrev_b32 v{q1+2*k}, 16, v{src+k}"); a(f"v_and_b32 v{q1+2*k+1}, s{M}, v{src+k}")
        a(f"v_lshlrev_b32 v{q2+2*k}, 16, v{src+4+k}"); a(f"v_and_b32 v{q2+2*k+1}, s{M}, v{src+4+k}")
    for k in range(4):
        a(f"v_pk_mul_f32 {vp(cs+2*k)}, {vp(cs+2*k)}, s[{S_C}:{S_C+1}] op_sel_hi:[1,0]")
    for k in range(4):
        a(f"v_pk_mul_f32 {vp(sn+2*k)}, {vp(sn+2*k)}, s[{S_C}:{S_C+1}] op_sel_hi:[1,0]")
    rope8(a, q1, q2, cs, sn, u, out, out + 4)
    return out

def task_params(a, rnd, pk, pt, pw):
    a(f"s_and_b32 s{S_T0}, s{S_W}, 1")
    a(f"s_lshl_b32 s{S_T1}, s{S_J}, 1")
    a(f"s_add_u32 s{S_T0}, s{S_T0}, s{S_T1}")
    if pk is not None:
        a(f"s_lshl_b32 s{pk}, s{S_T0}, 3")
        if isinstance(rnd, int): a(f"s_add_u32 s{pk}, s{pk}, {512*rnd}")
        else:
            a(f"s_lshl_b32 s{S_T1}, s{rnd[1]}, 9"); a(f"s_add_u32 s{pk}, s{pk}, s{S_T1}")
    if pt is not None:
        a(f"s_lshr_b32 s{pt}, s{S_T0}, 2")
        if isinstance(rnd, int): a(f"s_add_u32 s{pt}, s{pt}, {16*rnd}")
        else:
            a(f"s_lshl_b32 s{S_T1}, s{rnd[1]}, 4"); a(f"s_add_u32 s{pt}, s{pt}, s{S_T1}")
        a(f"s_and_b32 s{pw}, s{S_T0}, 3")

def task_addr(a, R, tmp, k=True, v=True):
    if k:
        a(f"v_and_b32 v{tmp}, 7, v0")
        a(f"v_bfe_u32 v{R.krr}, v0, 3, 3")
        a(f"v_lshlrev_b32 v{R.kraw}, 10, v{R.krr}")
        a(f"v_lshl_add_u32 v{R.kraw}, v{tmp}, 5, v{R.kraw}")
        a(f"v_lshrrev_b32 v{tmp+1}, 2, v{tmp}")
        a(f"v_lshlrev_b32 v{R.kst}, 10, v{tmp+1}")
        a(f"v_and_b32 v{tmp+1}, 3, v{tmp}")
        a(f"v_lshl_add_u32 v{R.kst}, v{tmp+1}, 8, v{R.kst}")
        a(f"v_lshl_add_u32 v{R.kst}, v{R.krr}, 4, v{R.kst}")
    if v:
        a(f"v_and_b32 v{tmp}, 15, v0")
        a(f"v_bfe_u32 v{tmp+1}, v0, 4, 2")
        a(f"v_lshlrev_b32 v{R.vraw}, 12, v{tmp+1}")
        a(f"v_lshl_add_u32 v{R.vraw}, v{tmp}, 4, v{R.vraw}")
        a(f"v_and_b32 v{R.vst}, 63, v0")
        a(f"v_lshlrev_b32 v{R.vst}, 4, v{R.vst}")

def publish(a, val, lbl, t):
    a(f"s_cmp_lg_u32 s{S_W}, 0")
    a(f"s_cbranch_scc1 {lbl}")
    a(f"s_mov_b64 exec, 1")
    a(f"s_add_u32 s{S_T1}, s{S_NONCE}, {val}")
    a(f"v_mov_b32 v{t}, s{S_T1}")
    a(f"s_lshl_b32 s{S_T0}, s{S_HEAD}, 5")
    a(f"s_add_u32 s{S_T0}, s{S_T0}, s{S_J}")
    a(f"s_lshl_b32 s{S_T0}, s{S_T0}, 7")
    a(f"v_mov_b32 v{t+1}, s{S_T0}")
    a(f"global_store_dword v{t+1}, v{t}, s[{S_FLG}:{S_FLG+1}] sc1")
    a(f"s_mov_b64 exec, -1")
    a.label(lbl)

def flag_load(a):
    a(f"global_load_dword v{V_FLAG}, v{V_FADDR}, s[{S_FLG}:{S_FLG+1}] sc1")
def flag_check(a):
    a(f"v_subrev_u32 v{V_FLAG}, s{S_NEED}, v{V_FLAG}")
    a(f"v_cmp_lt_u32 vcc, s{S_RANGE}, v{V_FLAG}")
def set_need(a, need):
    a(f"s_add_u32 s{S_NEED}, s{S_NONCE}, {need}")
    a(f"s_mov_b32 s{S_RANGE}, {4-need}")
def spin(a, name):
    a(f"s_mov_b32 s{S_SPIN}, 0")
    a.label(f"L_spin_{name}")
    flag_load(a)
    a("s_waitcnt vmcnt(0)")
    flag_check(a)
    a(f"s_add_u32 s{S_SPIN}, s{S_SPIN}, 1")
    a(f"s_cmp_lt_u32 s{S_SPIN}, 0x8000")
    a(f"s_cbranch_scc0 L_spin_{name}_done")
    a("s_nop 3")
    a(f"s_cbranch_vccnz L_spin_{name}")
    a.label(f"L_spin_{name}_done")

def tile_off(dst, tadd, tmp):
    return [I_salu(f"s_add_u32 s{dst}, s{S_I}, {tadd}"),
            I_salu(f"s_add_u32 s{tmp}, s{dst}, s{S_ROT}"),
            I_salu(f"s_and_b32 s{tmp}, s{tmp}, 3"),
            I_salu(f"s_and_b32 s{dst}, s{dst}, 12"),
            I_salu(f"s_or_b32 s{dst}, s{dst}, s{tmp}"),
            I_salu(f"s_lshl_b32 s{dst}, s{dst}, 16")]

def pv_item(t, db, qb, p):
    par = t & 1
    f = db * 4 + p
    o = A_O + (db * 4 + qb) * 4
    b = V_PO + 16 * par + qb * 4 if p == 0 else V_PF + (p - 1) * 16 + qb * 4
    return I_mfma(f"{MF} a[{o}:{o+3}], v[{V_V+4*f}:{V_V+4*f+3}], v[{b}:{b+3}], a[{o}:{o+3}]")

def p_reads(t):
    par = t & 1
    r = []
    for p in range(1, 4):
        for qb in range(4):
            dst = V_PF + (p - 1) * 16 + qb * 4
            r.append(I_lds(f"ds_read_b128 v[{dst}:{dst+3}], v{V_PR+p-1} offset:{par*16384+qb*1024}", ("PR", t, p, qb)))
    return r

def build_iter(i, opt, NT=16):
    has_qk = (i + 1) < NT
    has_sm = 0 <= i < NT
    has_pv = 1 <= i <= NT
    mf = []
    if has_qk:
        mf += qk_mfmas(i + 1, opt, NT)
    nqk = len(mf)
    if has_pv:
        t = i - 1
        for db in range(4):
            for qb in range(4):
                for p in range(4):
                    pre = []
                    if qb == 0 and p == 0:
                        pre.append(I_wvm(("V", t, db * 4 + 3)))
                    if db == 0 and qb == 0 and p == 1:
                        pre.append(I_wlds(("PR", t, 3, 3)))
                    post = []
                    if qb == 3 and t + 1 < NT:
                        post.append(vload(t + 1, db * 4 + p, S_VOFF))
                    mf.append([pre, pv_item(t, db, qb, p), post])
    respread_loads(mf, i, NT, opt)
    if i == 15:
        mf[0][2] = [vload(14, j, S_VOFF) for j in range(9, 16)] + mf[0][2]
    reads = p_reads(i - 1) if has_pv else []
    sm = softmax_stream(i, opt) if has_sm else []
    head = []
    full = len(mf) == 128
    if has_qk:
        head += tile_off(S_KOFF, 2, S_T4) + [I_salu(f"s_cmp_lt_u32 s{S_I}, {NT-2}"), I_salu(f"s_cselect_b32 s{S_KUSE}, s{S_KOFF}, 0x100000")]
    if has_pv:
        vup = tile_off(S_VOFF, 0, S_T3)
        if full:
            for k, x in enumerate(vup):
                mf[41 + k][2].append(x)
        else:
            head += vup
    if full and i % 2 == 1:
        txt = (f"s_bitcmp1_b32 s{S_FMASK}, s{S_I}\ns_cbranch_scc0 L_noflagld\n"
               f"global_load_dword v{V_FLAG}, v{V_FADDR}, s[{S_FLG}:{S_FLG+1}] sc1\nL_noflagld:")
        mf[opt.flag_gap][2].append(I_raw(txt))
    return schedule(mf, head, reads, sm, nqk, opt)

def build_it0_k1o(opt):
    mf = []
    S = V_S + 32
    for kb in range(2):
        for qb in range(4):
            for s in range(8):
                f = kb * 8 + s
                d = f"v[{S+(kb*4+qb)*4}:{S+(kb*4+qb)*4+3}]"
                c = "0" if s == 0 else d
                pre = [I_wvm(("K", 1, kb * 8 + 7))] if (qb == 0 and s == 0) else []
                mf.append([pre, I_mfma(f"{MF} {d}, a[{A_O+4*f}:{A_O+4*f+3}], a[{A_Q+(qb*8+s)*4}:{A_Q+(qb*8+s)*4+3}], {c}"), []])
    for k in range(32):
        mf[32 + k][2].append(I_valu(f"v_accvgpr_write_b32 a{A_O+k}, 0"))
    items = schedule(mf, [], [], softmax_stream(0, opt), 64, opt)
    items += [I_valu(f"v_accvgpr_write_b32 a{A_O+32+k}, 0") for k in range(32)]
    return items

def build_last(opt, T, V_OUT):
    t = 15
    mf = []
    for qb in range(4):
        for db in range(4):
            for p in range(4):
                pre = []
                if qb == 0 and p == 0:
                    pre.append(I_wvm(("V", t, db * 4 + 3)))
                if qb == 0 and db == 0 and p == 1:
                    pre.append(I_wlds(("PR", t, 3, 3)))
                mf.append([pre, pv_item(t, db, qb, p), []])
    def epi(qb):
        it = []
        inv = T + 4 * qb
        tb = 48 + (qb & 1) * 16
        for par in range(2):
            for k in range(par, 8, 2):
                r = k >> 1
                c = 2 * (k & 1)
                x = tb + 2 * k
                it.append(I_valu(f"v_accvgpr_read_b32 v{x}, a{A_O+((c)*4+qb)*4+r}"))
                it.append(I_valu(f"v_accvgpr_read_b32 v{x+1}, a{A_O+((c+1)*4+qb)*4+r}"))
        for k in range(8):
            x = tb + 2 * k
            it.append(I_valu(f"v_pk_mul_f32 {vp(x)}, {vp(x)}, {vp(inv)} op_sel_hi:[1,0]"))
        for half in range(2):
            o = 16 + (qb * 2 + half) * 4
            for kk in range(4):
                x = tb + 2 * (half * 4 + kk)
                it.append(I_valu(f"v_cvt_pk_bf16_f32 v{o+kk}, v{x}, v{x+1}"))
            so = "0" if qb == 0 else f"s{S_T0+qb-1}"
            it.append(I_vm(f"buffer_store_dwordx4 v[{o}:{o+3}], v{V_OUT}, s[{S_OSRD}:{S_OSRD+3}], {so} offen offset:{half*16}{OUTF}", ("O", qb, half)))
        return it
    linv = [I_wlds(("LR", 3))]
    for qb in range(4):
        b = T + 4 * qb
        linv += [I_valu(f"v_add_f32 v{b}, v{b}, v{b+1}"), I_valu(f"v_add_f32 v{b+2}, v{b+2}, v{b+3}")]
    for qb in range(4):
        b = T + 4 * qb
        linv.append(I_valu(f"v_add_f32 v{b}, v{b}, v{b+2}"))
    for qb in range(4):
        b = T + 4 * qb
        linv.append(I_valu(f"v_rcp_f32 v{b}, v{b}", 8))
    items = []
    lreads = [I_lds(f"ds_read_b128 v[{T+4*qb}:{T+4*qb+3}], v{LRREG} offset:{qb*256}", ("LR", qb)) for qb in range(4)]
    head = [I_salu(f"s_mov_b32 s{S_T0+k}, {8192*(k+1)}") for k in range(3)] + p_reads(t) + lreads
    gaps = [[] for _ in range(64)]
    q = list(linv)
    g = 4
    while q:
        gaps[g] += q[:2]; q = q[2:]; g = min(g + 1, 15) if g < 15 else 15
    for qb in range(3):
        e = epi(qb)
        g0 = 16 * (qb + 1) + 3
        per = (len(e) + 12) // 13
        g = g0
        while e:
            gaps[g] += e[:per]; e = e[per:]; g = min(g + 1, 63)
    for k, (pre, m, post) in enumerate(mf):
        items += pre
        items.append(m)
        if k == 0:
            items += head
        items += gaps[k]
    items.append(I_raw("s_nop 7"))
    items += epi(3)
    return items

def gen_fused(a, opt):
    global OUTF, LRREG
    NT = 16
    st = Stamp(a, opt)
    PP = RM(); PP.kraw, PP.krr, PP.kst, PP.vraw, PP.vst = 248, 249, 250, 251, 252
    PP.ksc, PP.vsc = 253, 254
    V_QW, V_QR, V_QOFF = 8, 9, 14
    X, Y, Z, QD, TT = 16, 48, 80, 112, 144
    WK, WQ = 184, 200
    SC0, SC1, SC2, SC3 = 208, 216, 224, 232
    QPOS, V_NON, V_ZERO, VJ = 240, 242, 243, 244
    T = 240
    a.label(KNAME)
    a("s_cmp_ge_u32 s2, 256" if not opt.empty else "s_cmp_ge_u32 s2, 0")
    a("s_cbranch_scc1 L_done")
    st(force=True)
    if opt.dbgspan:
        a("s_memrealtime s[72:73]")
        a("s_waitcnt lgkmcnt(0)")
        a("s_not_b32 s98, s72")
    a("s_load_dwordx16 s[40:55], s[0:1], 0")
    a("s_load_dwordx2 s[62:63], s[0:1], 88")
    a("s_load_dwordx4 s[64:67], s[0:1], 96")
    if opt.codepf:
        a("s_getpc_b64 s[4:5]")
        a.label("L_pc")
        a("v_lshlrev_b32 v30, 7, v0")
        a(f"v_min_u32 v30, L_code_end-L_pc-4, v30")
        a("global_load_dword v31, v30, s[4:5]")
    a(f"s_and_b32 s{S_HEAD}, s2, 7")
    a(f"s_lshr_b32 s{S_J}, s2, 3")
    a("v_lshrrev_b32 v1, 6, v0")
    a("v_and_b32 v2, 15, v0")
    a("v_bfe_u32 v3, v0, 4, 2")
    a(f"v_readfirstlane_b32 s{S_W}, v1")
    task_addr(a, PP, 4)
    a("v_lshl_add_u32 v4, v1, 4, v3")
    a(f"v_lshlrev_b32 v{V_QOFF}, 9, v4")
    a(f"v_lshl_add_u32 v{V_QOFF}, v2, 4, v{V_QOFF}")
    task_params(a, 0, 68, 69, 70)
    a(f"s_lshl_b32 s{S_T4}, s{S_HEAD}, 21")
    a("s_waitcnt lgkmcnt(0)")
    isB = lambda lbl: (a(f"s_cmp_ge_u32 s{S_W}, 2"), a(f"s_cbranch_scc1 {lbl}"))
    make_srd(a, S_RAWK, 42, S_T4, 0x200000)
    a(f"s_lshl_b32 s{S_T0}, s{S_HEAD}, 20")
    a(f"s_lshl_b32 s{S_T3}, s{S_J}, 15")
    a(f"s_add_u32 s{S_T2}, s{S_T0}, s{S_T3}")
    make_srd(a, S_OSRD, 62, S_T2, 32768)
    make_srd(a, S_RAWV, 48, S_T4, 0x200000)
    make_srd(a, S_QSRD, 40, S_T2, 32768)
    isB("L_B_i0")
    k_raw_loads(a, PP, X, 68)
    a(f"s_lshl_b32 s{S_T2}, s{S_HEAD}, 12")
    make_srd(a, S_KSC, 44, S_T2, 4096)
    make_srd(a, S_KZ, 46, S_T2, 4096)
    a(f"v_lshlrev_b32 v{PP.ksc}, 1, v{PP.krr}")
    k_scale_loads(a, PP, 68, SC0)
    a(f"s_lshl_b32 s{S_T2}, s{S_HEAD}, 12")
    make_srd(a, S_VSC, 50, S_T2, 4096)
    make_srd(a, S_VZ, 52, S_T2, 4096)
    a(f"v_lshlrev_b32 v{PP.vsc}, 3, v3")
    a("s_branch L_i0_done")
    a.label("L_B_i0")
    v_raw_loads(a, PP, X, 69, 70)
    a(f"s_lshl_b32 s{S_T2}, s{S_HEAD}, 12")
    make_srd(a, S_VSC, 50, S_T2, 4096)
    make_srd(a, S_VZ, 52, S_T2, 4096)
    a(f"v_lshlrev_b32 v{PP.vsc}, 3, v3")
    v_scale_loads(a, PP, SC0, 69)
    a(f"s_lshl_b32 s{S_T2}, s{S_HEAD}, 12")
    make_srd(a, S_KSC, 44, S_T2, 4096)
    make_srd(a, S_KZ, 46, S_T2, 4096)
    a(f"v_lshlrev_b32 v{PP.ksc}, 1, v{PP.krr}")
    a.label("L_i0_done")
    a("s_mov_b32 s41, 4096")
    for it in range(4):
        so = "0" if it < 2 else "s41"
        io = (it & 1) * 2048
        b = QD + 8 * it
        a(f"buffer_load_dwordx4 v[{b}:{b+3}], v{V_QOFF}, s[{S_QSRD}:{S_QSRD+3}], {so} offen offset:{io}")
        a(f"buffer_load_dwordx4 v[{b+4}:{b+7}], v{V_QOFF}, s[{S_QSRD}:{S_QSRD+3}], {so} offen offset:{io+256}")
    a(f"s_mov_b32 s{S_PK}, s68"); a(f"s_mov_b32 s{S_PT}, s69"); a(f"s_mov_b32 s{S_PW}, s70")
    task_params(a, 1, S_PK2, S_PT2, S_PW2)
    task_params(a, 2, 68, 69, 70)
    task_params(a, 3, 46, 47, 48)
    a(f"v_mov_b32 v{V_ZERO}, 0")
    isB("L_B_sc")
    v_scale_loads(a, PP, SC1, S_PT2); k_scale_loads(a, PP, 68, SC2); v_scale_loads(a, PP, SC3, 47)
    a("s_branch L_sc_done")
    a.label("L_B_sc")
    k_scale_loads(a, PP, S_PK2, SC1); v_scale_loads(a, PP, SC2, 69); k_scale_loads(a, PP, 46, SC3)
    a.label("L_sc_done")
    NSA, NSB = 10, 8
    a(f"s_mov_b32 s{S_DBG}, s64"); a(f"s_mov_b32 s{S_DBG+1}, s65")
    a(f"s_or_b32 s{S_T0}, s{S_HEAD}, s{S_J}")
    a(f"s_or_b32 s{S_T0}, s{S_T0}, s{S_W}")
    a(f"s_cmp_lg_u32 s{S_T0}, 0")
    a("s_cbranch_scc1 L_nononce")
    a("s_memrealtime s[100:101]")
    a("s_waitcnt lgkmcnt(0)")
    a("s_lshl_b32 s100, s100, 3")
    a("s_or_b32 s100, s100, 0x80000000")
    a("s_and_b32 s100, s100, 0xfffffff8")
    a(f"v_mov_b32 v{VJ}, s100")
    a("s_mov_b64 exec, 1")
    a(f"global_store_dword v{V_ZERO}, v{VJ}, s[{S_DBG}:{S_DBG+1}] sc1")
    a("s_mov_b64 exec, -1")
    a.label("L_nononce")
    a(f"global_load_dword v{V_NON}, v{V_ZERO}, s[{S_DBG}:{S_DBG+1}] sc1")
    def issue(kind_for_A, buf, pk, pt, pw, tag):
        isB(f"L_B_{tag}")
        (k_raw_loads(a, PP, buf, pk) if kind_for_A == "K" else v_raw_loads(a, PP, buf, pt, pw))
        a(f"s_branch L_{tag}_done")
        a.label(f"L_B_{tag}")
        (v_raw_loads(a, PP, buf, pt, pw) if kind_for_A == "K" else k_raw_loads(a, PP, buf, pk))
        a.label(f"L_{tag}_done")
    def comp(kind_for_A, buf, sc, pk, pt, pw, tag):
        isB(f"L_B_{tag}")
        (k_compute(a, PP, buf, sc, WK, TT, pk) if kind_for_A == "K" else v_compute(a, PP, buf, sc, TT, pt, pw))
        a(f"s_branch L_{tag}_done")
        a.label(f"L_B_{tag}")
        (v_compute(a, PP, buf, sc, TT, pt, pw) if kind_for_A == "K" else k_compute(a, PP, buf, sc, WK, TT, pk))
        a.label(f"L_{tag}_done")
    if opt.r1early:
        issue("V", Y, S_PK2, S_PT2, S_PW2, "i1")
    NR1 = 8 if opt.r1early else 0
    a(f"s_mov_b32 s{S_MASK}, 0xffff0000")
    a(f"s_mov_b32 s{S_C}, 0x{f32bits(math.log2(math.e)/16.0):08x}")
    a(f"s_and_b32 s{S_ROT}, s{S_J}, 3")
    a(f"s_lshl_b32 s{S_T0}, s{S_HEAD}, 20")
    make_srd(a, S_KSRD, 66, S_T0, 0x100000)
    a(f"s_add_u32 s{S_T1}, s{S_T0}, 0x800000")
    make_srd(a, S_VSRD, 66, S_T1, 0x100000)
    a(f"s_add_u32 s{S_FLG}, s66, 0x1000000")
    a(f"s_addc_u32 s{S_FLG+1}, s67, 0")
    if opt.stamp:
        a(f"s_mov_b32 s{S_STW}, s66"); a(f"s_mov_b32 s{S_STW+1}, s67")
    a(f"s_lshl_b32 s{S_T0}, s{S_J}, 6")
    a(f"v_add_u32 v{QPOS}, s{S_T0}, v4")
    a(f"v_cvt_f32_u32 v{QPOS}, v{QPOS}")
    a(f"v_and_b32 v{TT}, 7, v0"); a(f"v_lshlrev_b32 v{TT}, 3, v{TT}"); a(f"v_cvt_f32_u32 v{TT}, v{TT}")
    a(f"v_lshlrev_b32 v{TT+1}, 3, v2"); a(f"v_cvt_f32_u32 v{TT+1}, v{TT+1}")
    freq_consts(a, WK, 16, TT, [64 * (k >> 3) + (k & 7) for k in range(16)])
    freq_consts(a, WQ, 8, TT + 1, list(range(8)))
    a(f"v_mul_u32_u24 v{V_QW}, {8*QFS}, v1")
    a(f"v_lshrrev_b32 v{TT}, 2, v2")
    a(f"v_mul_u32_u24 v{TT}, {QFS}, v{TT}")
    a(f"v_add_u32 v{V_QW}, v{V_QW}, v{TT}")
    a(f"v_and_b32 v{TT}, 3, v2")
    a(f"v_mul_u32_u24 v{TT}, {QGS}, v{TT}")
    a(f"v_add_u32 v{V_QW}, v{V_QW}, v{TT}")
    a(f"v_lshl_add_u32 v{V_QW}, v3, 4, v{V_QW}")
    a(f"v_mul_u32_u24 v{V_QR}, {QGS}, v3")
    a(f"v_lshl_add_u32 v{V_QR}, v2, 4, v{V_QR}")
    if not opt.k1o:
        for r in range(64):
            a(f"v_accvgpr_write_b32 a{A_O+r}, 0")
    a(f"s_waitcnt vmcnt({8 + NSB + 1 + NR1})")
    st()
    comp("K", X, SC0, S_PK, S_PT, S_PW, "c0")
    if not opt.r1early:
        issue("V", Y, S_PK2, S_PT2, S_PW2, "i1")
    issue("K", Z, 68, 69, 70, "i2")
    st(level=2)
    a(f"s_waitcnt vmcnt(20)")
    def rope_it(it):
        if it:
            a(f"v_add_f32 v{QPOS}, 4.0, v{QPOS}")
        o = rope_q(a, QD + 8 * it, TT, QPOS, WQ)
        a(f"ds_write_b128 v{V_QW}, v[{o}:{o+3}] offset:{it*64}")
        a(f"ds_write_b128 v{V_QW}, v[{o+4}:{o+7}] offset:{it*64 + 4*QFS}")
    for it in range(4):
        rope_it(it)
    st(level=2)
    a(f"s_waitcnt vmcnt({8 if opt.r1early else 16})")
    st(level=2)
    a(f"v_readfirstlane_b32 s{S_NONCE}, v{V_NON}")
    a(f"s_cmp_lg_u32 s{S_NONCE}, 0")
    a("s_cbranch_scc1 L_have_nonce")
    a(f"s_mov_b32 s{S_SPIN}, 0")
    a.label("L_nonce_spin")
    a(f"global_load_dword v{V_NON}, v{V_ZERO}, s[{S_DBG}:{S_DBG+1}] sc1")
    a("s_waitcnt vmcnt(0)")
    a(f"v_readfirstlane_b32 s{S_NONCE}, v{V_NON}")
    a(f"s_add_u32 s{S_SPIN}, s{S_SPIN}, 1")
    a(f"s_cmp_ge_u32 s{S_SPIN}, 0x8000")
    a("s_cbranch_scc1 L_have_nonce")
    a(f"s_cmp_eq_u32 s{S_NONCE}, 0")
    a("s_cbranch_scc1 L_nonce_spin")
    a.label("L_have_nonce")
    a("s_waitcnt lgkmcnt(0)")
    a("s_barrier")
    publish(a, 1, "L_pub1", VJ)
    st()
    for qb in range(4):
        for s in range(8):
            b = A_Q + (qb * 8 + s) * 4
            a(f"ds_read_b128 a[{b}:{b+3}], v{V_QR} offset:{(qb*8+s)*QFS}")
    a("s_waitcnt vmcnt(8)")
    comp("V", Y, SC1, S_PK2, S_PT2, S_PW2, "c1")
    a("s_waitcnt lgkmcnt(0)")
    a(f"v_and_b32 v{TT}, 63, v0")
    a(f"v_lshrrev_b32 v{TT+1}, 6, v0")
    a(f"v_and_b32 v{V_FADDR}, 31, v0")
    a(f"s_lshl_b32 s{S_T0}, s{S_HEAD}, 5")
    a(f"v_add_u32 v{V_FADDR}, s{S_T0}, v{V_FADDR}")
    a(f"v_lshlrev_b32 v{V_FADDR}, 7, v{V_FADDR}")
    flag_load(a)
    issue("V", Y, 46, 47, 48, "i3")
    a(f"v_lshlrev_b32 v{TT+2}, 4, v{TT}")
    a(f"v_add_u32 v{TT+3}, {LDS_P}, v{TT+2}")
    for t in range(1, 4):
        a(f"v_add_u32 v{TT+4}, {t}, v{TT+1}")
        a(f"v_and_b32 v{TT+4}, 3, v{TT+4}")
        a(f"v_lshl_add_u32 v{V_PR+t-1}, v{TT+4}, 12, v{TT+3}")
    a(f"v_lshl_add_u32 v{V_PW}, v{TT+1}, 12, v{TT+3}")
    a(f"v_lshl_add_u32 v{V_OFF}, v{TT+1}, 14, v{TT+2}")
    for k in range(1, 4):
        a(f"v_add_u32 v{V_OFF+k}, {4096*k}, v{V_OFF}")
    for r in range(4):
        a(f"v_mov_b32 v{V_L+r}, 0")
    a(f"s_mov_b32 s{S_FMASK}, {0x202 if opt.latepub else 0x2}")
    set_need(a, 1)
    a("s_waitcnt vmcnt(8)")
    flag_check(a)
    a("s_nop 4")
    a("s_cbranch_vccz L_chk_r0_ok")
    spin(a, "r0")
    a.label("L_chk_r0_ok")
    st()
    a(f"s_lshl_b32 s{S_KOFF}, s{S_ROT}, 16")
    a(f"s_mov_b32 s{S_VOFF}, s{S_KOFF}")
    a(f"s_mov_b32 s{S_KUSE}, s{S_KOFF}")
    pro = [kload(0, f, S_KUSE) for f in range(16)]
    if opt.k1o:
        a(f"s_add_u32 s{S_T0}, s{S_ROT}, 1")
        a(f"s_and_b32 s{S_T0}, s{S_T0}, 3")
        a(f"s_lshl_b32 s{S_T4}, s{S_T0}, 16")
        for f in range(16):
            pro.append(I_vm(f"buffer_load_dwordx4 a[{A_O+4*f}:{A_O+4*f+3}], v{V_OFF+(f>>2)}, s[{S_KSRD}:{S_KSRD+3}], s{S_T4} offen offset:{(f&3)*1024}{gen2.LDFLAGS}", ("K", 1, f)))
    for it in pro:
        a(it.text)
    comp("K", Z, SC2, 68, 69, 70, "c2")
    a(f"s_waitcnt vmcnt({20 + (16 if opt.k1o else 0)})")
    comp("V", Y, SC3, 46, 47, 48, "c3")
    st()
    pre = [I_salu(f"s_mov_b32 s{S_I}, {0 if opt.k1o else -1}")] + tile_off(S_KUSE, 2, S_T4)
    for (p_, m, post) in qk_mfmas(0, opt, NT):
        if opt.k1o:
            post = [kload(2, x.tag[2], S_KUSE) for x in post]
        pre += p_ + [m] + post
    pf = []
    if opt.prefetch:
        pf += [I_valu(f"v_and_b32 v224, 63, v0"), I_valu(f"v_lshlrev_b32 v225, 7, v224"),
               I_valu(f"v_lshrrev_b32 v226, 1, v224"), I_valu(f"v_lshlrev_b32 v226, 10, v226"),
               I_valu(f"v_and_b32 v224, 1, v224"), I_valu(f"v_lshl_add_u32 v226, v224, 7, v226"),
               I_salu(f"s_lshl_b32 s{S_T0}, s{S_HK}, 10"),
               I_salu(f"s_lshl_b32 s{S_T1}, s{S_HT}, 15"), I_salu(f"s_lshl_b32 s{S_T2}, s{S_HW}, 8"),
               I_salu(f"s_add_u32 s{S_T1}, s{S_T1}, s{S_T2}")]
        for off in (0, 64)[:opt.prefetch]:
            pf.append(I_raw(f"buffer_load_dword v227, v225, s[{S_RAWK}:{S_RAWK+3}], s{S_T0} offen offset:{off}"))
            pf.append(I_raw(f"buffer_load_dword v228, v226, s[{S_RAWV}:{S_RAWV+3}], s{S_T1} offen offset:{off}"))
    pre += pf
    pre.append(I_raw("s_nop 7"))
    pre.append(I_salu(f"s_mov_b32 s{S_I}, 0"))
    endbar = [I_wlds("all"), I_raw("s_barrier")]
    blocks = [("pro", pro + [I_vm("", ("ST", k)) for k in range(8)]), ("pre", pre)]
    it0 = (build_it0_k1o(opt) if opt.k1o else build_iter(0, opt)) + [vload(0, f, S_VOFF) for f in range(9)] + [I_raw(f"s_waitcnt vmcnt({29 if opt.latepub else 25})")] + endbar + [I_salu(f"s_mov_b32 s{S_I}, 1")]
    blocks.append(("it0", it0))
    stat = {}
    for i in range(1, 15):
        items = build_iter(i, opt) + [I_salu(f"s_add_u32 s{S_I}, s{S_I}, 1")] + endbar
        nm = "odd" if i % 2 else "even"
        blocks.append((nm, items))
        if nm not in stat: stat[nm] = items
        else: assert [x.text for x in stat[nm]] == [x.text for x in items], nm
    it15 = build_iter(15, opt)
    V_LW, V_LR, V_OUT = 231, 232, 233
    LRREG = V_LR
    red = [I_valu(f"v_and_b32 v224, 15, v0"), I_valu(f"v_lshrrev_b32 v225, 6, v0"), I_valu(f"v_bfe_u32 v226, v0, 4, 2"),
           I_valu(f"v_lshlrev_b32 v{V_LR}, 4, v224"), I_valu(f"v_add_u32 v{V_LR}, {LDS_L}, v{V_LR}"),
           I_valu(f"v_lshl_add_u32 v{V_LW}, v225, 2, v{V_LR}"), I_valu(f"v_lshlrev_b32 v{V_OUT}, 9, v224"),
           I_valu(f"v_lshl_add_u32 v{V_OUT}, v225, 7, v{V_OUT}"), I_valu(f"v_lshl_add_u32 v{V_OUT}, v226, 5, v{V_OUT}")]
    for qb in range(4): red.append(I_valu(f"v_mov_b32 v{T+qb}, v{V_L+qb}"))
    red.append(I_raw("s_nop 1"))
    for qb in range(4): red.append(I_valu(f"v_permlane32_swap_b32 v{T+qb}, v{V_L+qb}"))
    red.append(I_raw("s_nop 1"))
    for qb in range(4): red.append(I_valu(f"v_add_f32 v{V_L+qb}, v{V_L+qb}, v{T+qb}"))
    for qb in range(4): red.append(I_valu(f"v_mov_b32 v{T+qb}, v{V_L+qb}"))
    red.append(I_raw("s_nop 1"))
    for qb in range(4): red.append(I_valu(f"v_permlane16_swap_b32 v{T+qb}, v{V_L+qb}"))
    red.append(I_raw("s_nop 1"))
    for qb in range(4): red.append(I_valu(f"v_add_f32 v{V_L+qb}, v{V_L+qb}, v{T+qb}"))
    for qb in range(4): red.append(I_lds(f"ds_write_b32 v{V_LW}, v{V_L+qb} offset:{qb*256}", ("LW", qb)))
    it15 += red + endbar
    blocks.append(("it15", it15))
    it16 = build_last(opt, T, V_OUT)
    blocks.append(("it16", it16))
    waits = resolve_waits(blocks)
    emit_block(a, "pre", pre, waits)
    if opt.stamp == 5: st()
    emit_block(a, "it0", it0, waits)
    publish(a, 3 if opt.latepub else 4, "L_pub4", 158)
    def hook_site(name):
        if name == "odd":
            if opt.latepub:
                a(f"s_and_b32 s{S_T0}, s{S_I}, 7")
                a(f"s_cmp_eq_u32 s{S_T0}, 2")
            else:
                a(f"s_cmp_eq_u32 s{S_I}, 2")
            a(f"s_cbranch_scc1 L_hook")
            a.label("L_hook_ret")
    st()
    a.label("L_loop")
    base = st.n
    emit_block(a, "odd", stat["odd"], waits)
    if opt.stamp == 4: st.dyn(2, base - 4, 9)
    hook_site("odd")
    if opt.stamp == 3: st.dyn(1, base - 2, 15)
    if opt.stamp == 4: st.dyn(2, base - 3, 9)
    emit_block(a, "even", stat["even"], waits)
    if opt.stamp == 4: st.dyn(2, base - 4, 9)
    hook_site("even")
    if opt.stamp == 3:
        st.dyn(1, base - 2, 15); st.n = base + 14
    if opt.stamp == 4:
        st.dyn(2, base - 3, 9); st.n = base + 16
    a(f"s_cmp_lt_u32 s{S_I}, 15")
    a("s_cbranch_scc1 L_loop")
    if opt.stamp in (1, 2): st()
    emit_block(a, "it15", it15, waits)
    emit_block(a, "it16", it16, waits)
    if opt.stamp:
        a("s_waitcnt vmcnt(0)")
        st(force=True)
        st.finish()
    if opt.dbgspan:
        a("s_waitcnt vmcnt(0)")
        a("s_memrealtime s[72:73]")
        a("s_waitcnt lgkmcnt(0)")
        a("v_mov_b32 v16, 8"); a("v_mov_b32 v17, s98"); a("v_mov_b32 v18, 12"); a("v_mov_b32 v19, s72")
        a("s_mov_b64 exec, 1")
        a(f"global_atomic_umax v16, v17, s[{S_DBG}:{S_DBG+1}]")
        a(f"global_atomic_umax v18, v19, s[{S_DBG}:{S_DBG+1}]")
        a("s_waitcnt vmcnt(0)")
    a("s_endpgm")
    a.label("L_hook")
    if opt.latepub:
        a(f"s_cmp_eq_u32 s{S_I}, 2")
        a("s_cbranch_scc0 L_hook_c4")
        publish(a, 4, "L_pub4b", 158)
        set_need(a, 3)
        a("s_branch L_hook_chk")
        a.label("L_hook_c4")
        set_need(a, 4)
        a.label("L_hook_chk")
    else:
        set_need(a, 4)
    nyoung = sum(1 for j in range(16) if 28 + 4 * j > opt.flag_gap) + sum(1 for j in range(9) if 92 + 4 * j > opt.flag_gap)
    a(f"s_waitcnt vmcnt({nyoung})")
    flag_check(a)
    a("s_nop 4")
    a(f"s_cbranch_vccz L_hook_ret")
    spin(a, "hk")
    a("s_branch L_hook_ret")
    a.label("L_done")
    a("s_endpgm")
    a.label("L_code_end")

def main():
    global OUTF
    ap = argparse.ArgumentParser()
    ap.add_argument("-o", default=f"cdna_kernels/{NAME}.s")
    ap.add_argument("--stamp", type=int, default=0)
    ap.add_argument("--wgrp", type=int, default=4)
    ap.add_argument("--kgrp", type=int, default=8)
    ap.add_argument("--spread", type=int, default=1)
    ap.add_argument("--cap", type=int, default=2)
    ap.add_argument("--pace", type=int, default=1)
    ap.add_argument("--read_spread", type=int, default=1)
    ap.add_argument("--sm_g0", type=int, default=0)
    ap.add_argument("--sm_g1", type=int, default=117)
    ap.add_argument("--ldflags", default="sc1")
    ap.add_argument("--outflags", default="nt")
    ap.add_argument("--empty", type=int, default=0)
    ap.add_argument("--dbgspan", type=int, default=0)
    ap.add_argument("--codepf", type=int, default=1)
    ap.add_argument("--r1early", type=int, default=1)
    ap.add_argument("--k1o", type=int, default=1)
    ap.add_argument("--latepub", type=int, default=1)
    ap.add_argument("--pretouch", type=int, default=1)
    ap.add_argument("--rope_first", type=int, default=1)
    ap.add_argument("--prefetch", type=int, default=0)
    ap.add_argument("--flag_gap", type=int, default=57)
    ap.add_argument("--ngroups", type=int, default=3)
    opt = ap.parse_args()
    OUTF = (" " + opt.outflags.replace("+", " ")) if opt.outflags else ""
    gen2.LDFLAGS = (" " + opt.ldflags.replace("+", " ")) if opt.ldflags else ""
    out = header()
    out += f"; @launch grid=(256,1,1) block=(256,1,1) lds={LDS_TOTAL}\n"
    out += '.amdgcn_target "amdgcn-amd-amdhsa--gfx950"\n.text\n'
    a = EA()
    gen_fused(a, opt)
    out += f".globl {KNAME}\n.p2align 8\n.type {KNAME},@function\n" + a.text()
    out += kd(KNAME, 512, 102, 256)
    open(opt.o, "w").write(out)

if __name__ == "__main__":
    main()
```

```python
import sys, os, argparse, math, struct
sys.path.insert(0, "dev")
from gen import f32bits, make_srd, kd, NAME, Item, I_valu, I_raw, I_salu, I_vm, I_lds, I_wvm, I_wlds, I_mfma, resolve_waits, emit_block
import gen2
from gen2 import (MF, V_OFF, V_PW, V_PR, V_L, V_S, V_PO, V_PF, V_V, A_O, A_Q, A_K, QFS, QGS,
                  S_KSRD, S_VSRD, S_QSRD, S_OSRD, S_KOFF, S_VOFF, S_I, S_ROT, S_C, S_W, S_MASK, S_KUSE,
                  kload, vload, softmax_stream, qk_mfmas, schedule, respread_loads, header)

KNAME = NAME + "_kernel"

class EA:
    def __init__(self): self.lines = []
    def __call__(self, s):
        for l in s.split("\n"):
            l = l.strip()
            if not l: continue
            self.lines.append(l if l.endswith(":") else "    " + l)
    def label(self, l): self.lines.append(l + ":")
    def text(self): return "\n".join(self.lines) + "\n"

LDS_Q = 0
LDS_L = 34816
LDS_SC = LDS_L + 1024
LDS_WK = LDS_SC + 4 * 2560
LDS_P = 51200
LDS_TOTAL = LDS_P + 32768
assert LDS_WK + 4096 <= LDS_P

S_STW = 36
S_NONCE = 39
S_PK, S_PT, S_PW = 40, 41, 42
S_PK2, S_PT2, S_PW2 = 43, 44, 45
S_HK, S_HT, S_HW = 46, 47, 48
S_FLG = 50
S_RANGE = 53
S_FMASK = 49
S_HMASK = 38
S_G = 68
S_RET = 70
S_RAWK, S_RAWV = 56, 60
S_KSC, S_KZ, S_VSC, S_VZ = 72, 76, 80, 84
S_DBG = 88
S_J, S_NEED = 90, 91
S_T0, S_T1, S_T2, S_T3, S_T4 = 92, 93, 94, 95, 96
S_SPIN, S_HEAD = 97, 99
V_FLAG, V_FADDR, V_STAMP = 13, 14, 15
STF = " sc1"

class RM: pass

class Stamp:
    def __init__(self, a, opt):
        self.a = a; self.on = opt.stamp; self.n = 0
    def _emit(self, idx_sgpr=None):
        a = self.a
        a("s_memtime s[54:55]")
        a("s_memrealtime s[100:101]")
        a("s_waitcnt lgkmcnt(0)")
        if idx_sgpr is None:
            a(f"v_writelane_b32 v{V_STAMP}, s54, {2*self.n}")
            a(f"v_writelane_b32 v{V_STAMP}, s100, {2*self.n+1}")
        else:
            a(f"s_mov_b32 m0, s{idx_sgpr}"); a("s_nop 1")
            a(f"v_writelane_b32 v{V_STAMP}, s54, m0")
            a(f"s_add_u32 m0, s{idx_sgpr}, 1"); a("s_nop 1")
            a(f"v_writelane_b32 v{V_STAMP}, s100, m0")
    def __call__(self, again=False, level=1, force=False):
        if not self.on: return
        if self.on == 9 and not force: return
        if level == 2 and self.on != 2: return
        if again: self.n -= 1
        self._emit()
        self.n += 1
    def dyn(self, mul, add, cap):
        a = self.a
        a(f"s_min_u32 s52, s{S_I}, {cap}")
        a(f"s_mul_i32 s52, s52, {2*mul}")
        a(f"s_add_u32 s52, s52, {2*add}")
        self._emit(52)
    def finish(self):
        if not self.on: return
        a = self.a
        a("s_waitcnt vmcnt(0)")
        a(f"s_lshl_b32 s46, s{S_J}, 3")
        a(f"s_add_u32 s46, s46, s{S_HEAD}")
        a(f"s_lshl_b32 s46, s46, 10")
        a(f"s_lshl_b32 s47, s{S_W}, 8")
        a("s_add_u32 s46, s46, s47")
        a("s_add_u32 s46, s46, 0x8000000")
        a(f"s_add_u32 s46, s{S_STW}, s46")
        a(f"s_addc_u32 s47, s{S_STW+1}, 0")
        a("v_and_b32 v16, 63, v0")
        a("v_lshlrev_b32 v16, 2, v16")
        a(f"global_store_dword v16, v{V_STAMP}, s[46:47]")
        a("s_waitcnt vmcnt(0)")

LOG2_10000_128 = math.log2(10000.0) / 128.0
LOG2_2PI = math.log2(2 * math.pi)

def vp(r): return f"v[{r}:{r+1}]"

def k_raw_loads(a, R, X, rowreg):
    a(f"s_lshl_b32 s{S_T0}, s{rowreg}, 10")
    for c in range(4):
        for hf in range(2):
            b = X + c * 8 + hf * 4
            a(f"buffer_load_dwordx4 v[{b}:{b+3}], v{R.kraw}, s[{S_RAWK}:{S_RAWK+3}], s{S_T0} offen offset:{c*256+hf*16}")
    return 8
def k_scale_loads(a, R, rowreg, dst):
    a(f"s_lshl_b32 s{S_T2}, s{rowreg}, 1")
    a(f"buffer_load_ushort v{dst}, v{R.ksc}, s[{S_KSC}:{S_KSC+3}], s{S_T2} offen")
    a(f"buffer_load_ushort v{dst+1}, v{R.ksc}, s[{S_KZ}:{S_KZ+3}], s{S_T2} offen")
    return 2
def v_raw_loads(a, R, X, treg, wreg):
    a(f"s_lshl_b32 s{S_T0}, s{treg}, 15")
    a(f"s_lshl_b32 s{S_T1}, s{wreg}, 8")
    a(f"s_add_u32 s{S_T0}, s{S_T0}, s{S_T1}")
    a(f"s_add_u32 s{S_T1}, s{S_T0}, 16384")
    for j in range(8):
        b = X + j * 4
        so = S_T0 if j < 4 else S_T1
        a(f"buffer_load_dwordx4 v[{b}:{b+3}], v{R.vraw}, s[{S_RAWV}:{S_RAWV+3}], s{so} offen offset:{(j&3)*1024}")
    return 8
def v_scale_loads(a, R, SC, treg):
    a(f"s_lshl_b32 s{S_T2}, s{treg}, 6")
    for g2 in range(2):
        a(f"buffer_load_dwordx2 v[{SC+2*g2}:{SC+1+2*g2}], v{R.vsc}, s[{S_VSC}:{S_VSC+3}], s{S_T2} offen offset:{g2*32}")
        a(f"buffer_load_dwordx2 v[{SC+4+2*g2}:{SC+5+2*g2}], v{R.vsc}, s[{S_VZ}:{S_VZ+3}], s{S_T2} offen offset:{g2*32}")
    return 4

def sincos8(a, pos, w, cs, sn):
    for k in range(4):
        a(f"v_pk_mul_f32 {vp(sn+2*k)}, {vp(w+2*k)}, {vp(pos)} op_sel_hi:[1,0]")
    for e in range(8):
        a(f"v_fract_f32 v{sn+e}, v{sn+e}")
    for e in range(8):
        a(f"v_cos_f32 v{cs+e}, v{sn+e}")
    for e in range(8):
        a(f"v_sin_f32 v{sn+e}, v{sn+e}")

def rope8(a, x1, x2, cs, sn, u, o1dst, o2dst):
    for k in range(4):
        a(f"v_pk_mul_f32 {vp(u+2*k)}, {vp(x2+2*k)}, {vp(sn+2*k)}")
    for k in range(4):
        a(f"v_pk_mul_f32 {vp(sn+2*k)}, {vp(x1+2*k)}, {vp(sn+2*k)}")
    for k in range(4):
        a(f"v_pk_fma_f32 {vp(u+2*k)}, {vp(x1+2*k)}, {vp(cs+2*k)}, {vp(u+2*k)} neg_lo:[0,0,1] neg_hi:[0,0,1]")
    for k in range(4):
        a(f"v_pk_fma_f32 {vp(sn+2*k)}, {vp(x2+2*k)}, {vp(cs+2*k)}, {vp(sn+2*k)}")
    for k in range(4):
        a(f"v_cvt_pk_bf16_f32 v{o1dst+k}, v{u+2*k}, v{u+2*k+1}")
    for k in range(4):
        a(f"v_cvt_pk_bf16_f32 v{o2dst+k}, v{sn+2*k}, v{sn+2*k+1}")

def k_compute(a, R, X, sc, WK, T, rowreg):
    assert sc % 2 == 0 and T % 2 == 0 and X % 4 == 0
    pos, cs, sn, u = T, T + 2, T + 10, T + 18
    a(f"v_lshlrev_b32 v{sc}, 16, v{sc}")
    a(f"v_lshlrev_b32 v{sc+1}, 16, v{sc+1}")
    a(f"v_cvt_f32_u32 v{pos}, v{R.krr}")
    a(f"v_cvt_f32_u32 v{pos+1}, s{rowreg}")
    a(f"v_mul_f32 v{sc+1}, v{sc+1}, v{sc}")
    a(f"v_add_f32 v{pos}, v{pos}, v{pos+1}")
    for k in range(32):
        a(f"v_cvt_f32_i32 v{X+k}, v{X+k}")
    sincos8(a, pos, WK, cs, sn)
    for k in range(16):
        a(f"v_pk_fma_f32 {vp(X+2*k)}, {vp(X+2*k)}, {vp(sc)}, {vp(sc)} op_sel:[0,0,1] op_sel_hi:[1,0,1] neg_lo:[0,0,1] neg_hi:[0,0,1]")
    rope8(a, X, X + 16, cs, sn, u, X, X + 16)
    sincos8(a, pos, WK + 8, cs, sn)
    a("s_nop 0")
    rope8(a, X + 8, X + 24, cs, sn, u, X + 8, X + 24)
    a(f"s_lshr_b32 s{S_T0}, s{rowreg}, 4")
    a(f"s_lshl_b32 s{S_T0}, s{S_T0}, 13")
    a(f"s_and_b32 s{S_T1}, s{rowreg}, 8")
    a(f"s_lshl_b32 s{S_T1}, s{S_T1}, 4")
    a(f"s_add_u32 s{S_T0}, s{S_T0}, s{S_T1}")
    a(f"s_add_u32 s{S_T1}, s{S_T0}, 4096")
    for c in range(4):
        b = X + c * 8
        so = S_T0 if c < 2 else S_T1
        a(f"buffer_store_dwordx4 v[{b}:{b+3}], v{R.kst}, s[{S_KSRD}:{S_KSRD+3}], s{so} offen offset:{(c&1)*2048}{STF}")

def v_compute(a, R, X, SC, T, treg, wreg):
    M = S_MASK
    SZ = T
    for j in range(8):
        src_s = SC + 2 * (j >> 2) + ((j & 3) >> 1)
        src_z = SC + 4 + 2 * (j >> 2) + ((j & 3) >> 1)
        if j & 1:
            a(f"v_and_b32 v{SZ+2*j}, s{M}, v{src_s}"); a(f"v_and_b32 v{SZ+2*j+1}, s{M}, v{src_z}")
        else:
            a(f"v_lshlrev_b32 v{SZ+2*j}, 16, v{src_s}"); a(f"v_lshlrev_b32 v{SZ+2*j+1}, 16, v{src_z}")
    for k in range(32):
        a(f"v_cvt_f32_i32 v{X+k}, v{X+k}")
    for j in range(8):
        a(f"v_mul_f32 v{SZ+2*j+1}, v{SZ+2*j+1}, v{SZ+2*j}")
    for j in range(8):
        for h in range(2):
            x = X + 4 * j + 2 * h
            a(f"v_pk_fma_f32 {vp(x)}, {vp(x)}, {vp(SZ+2*j)}, {vp(SZ+2*j)} op_sel:[0,0,1] op_sel_hi:[1,0,1] neg_lo:[0,0,1] neg_hi:[0,0,1]")
    O = T
    for db in range(4):
        for jj in range(4):
            a(f"v_cvt_pk_bf16_f32 v{O+db*4+jj}, v{X+(2*jj)*4+db}, v{X+(2*jj+1)*4+db}")
    a(f"s_lshr_b32 s{S_T0}, s{treg}, 2")
    a(f"s_lshl_b32 s{S_T0}, s{S_T0}, 16")
    a(f"s_lshl_b32 s{S_T1}, s{wreg}, 14")
    a(f"s_add_u32 s{S_T0}, s{S_T0}, s{S_T1}")
    a(f"s_sub_u32 s{S_T1}, s{treg}, s{wreg}")
    a(f"s_and_b32 s{S_T1}, s{S_T1}, 3")
    a(f"s_lshl_b32 s{S_T1}, s{S_T1}, 10")
    a(f"s_add_u32 s{S_T0}, s{S_T0}, s{S_T1}")
    for db in range(4):
        if db:
            a(f"s_add_u32 s{S_T0}, s{S_T0}, 4096")
        a(f"buffer_store_dwordx4 v[{O+4*db}:{O+4*db+3}], v{R.vst}, s[{S_VSRD}:{S_VSRD+3}], s{S_T0} offen{STF}")

def freq_consts(a, dst, n, dbase_v, offs):
    a(f"s_mov_b32 s{S_T0}, 0x{f32bits(-LOG2_10000_128):08x}")
    for k in range(n):
        a(f"v_mov_b32 v{dst+k}, 0x{f32bits(-LOG2_10000_128 * offs[k] - LOG2_2PI):08x}")
    for k in range(n):
        a(f"v_fma_f32 v{dst+k}, v{dbase_v}, s{S_T0}, v{dst+k}")
    for k in range(n):
        a(f"v_exp_f32 v{dst+k}, v{dst+k}")
    a("s_nop 0")

def rope_q(a, src, T, pos, wq):
    M = S_MASK
    q1, q2, cs, sn, u, out = T, T + 8, T + 16, T + 24, T + 32, T + 40
    sincos8(a, pos, wq, cs, sn)
    for k in range(4):
        a(f"v_lshlrev_b32 v{q1+2*k}, 16, v{src+k}"); a(f"v_and_b32 v{q1+2*k+1}, s{M}, v{src+k}")
        a(f"v_lshlrev_b32 v{q2+2*k}, 16, v{src+4+k}"); a(f"v_and_b32 v{q2+2*k+1}, s{M}, v{src+4+k}")
    for k in range(4):
        a(f"v_pk_mul_f32 {vp(cs+2*k)}, {vp(cs+2*k)}, s[{S_C}:{S_C+1}] op_sel_hi:[1,0]")
    for k in range(4):
        a(f"v_pk_mul_f32 {vp(sn+2*k)}, {vp(sn+2*k)}, s[{S_C}:{S_C+1}] op_sel_hi:[1,0]")
    rope8(a, q1, q2, cs, sn, u, out, out + 4)
    return out

def task_params(a, rnd, pk, pt, pw):
    a(f"s_and_b32 s{S_T0}, s{S_W}, 1")
    a(f"s_lshl_b32 s{S_T1}, s{S_J}, 1")
    a(f"s_add_u32 s{S_T0}, s{S_T0}, s{S_T1}")
    if pk is not None:
        a(f"s_lshl_b32 s{pk}, s{S_T0}, 3")
        if isinstance(rnd, int): a(f"s_add_u32 s{pk}, s{pk}, {512*rnd}")
        else:
            a(f"s_lshl_b32 s{S_T1}, s{rnd[1]}, 9"); a(f"s_add_u32 s{pk}, s{pk}, s{S_T1}")
    if pt is not None:
        a(f"s_lshr_b32 s{pt}, s{S_T0}, 2")
        if isinstance(rnd, int): a(f"s_add_u32 s{pt}, s{pt}, {16*rnd}")
        else:
            a(f"s_lshl_b32 s{S_T1}, s{rnd[1]}, 4"); a(f"s_add_u32 s{pt}, s{pt}, s{S_T1}")
        a(f"s_and_b32 s{pw}, s{S_T0}, 3")

def task_addr(a, R, tmp, k=True, v=True):
    if k:
        a(f"v_and_b32 v{tmp}, 7, v0")
        a(f"v_bfe_u32 v{R.krr}, v0, 3, 3")
        a(f"v_lshlrev_b32 v{R.kraw}, 10, v{R.krr}")
        a(f"v_lshl_add_u32 v{R.kraw}, v{tmp}, 5, v{R.kraw}")
        a(f"v_lshrrev_b32 v{tmp+1}, 2, v{tmp}")
        a(f"v_lshlrev_b32 v{R.kst}, 10, v{tmp+1}")
        a(f"v_and_b32 v{tmp+1}, 3, v{tmp}")
        a(f"v_lshl_add_u32 v{R.kst}, v{tmp+1}, 8, v{R.kst}")
        a(f"v_lshl_add_u32 v{R.kst}, v{R.krr}, 4, v{R.kst}")
    if v:
        a(f"v_and_b32 v{tmp}, 15, v0")
        a(f"v_bfe_u32 v{tmp+1}, v0, 4, 2")
        a(f"v_lshlrev_b32 v{R.vraw}, 12, v{tmp+1}")
        a(f"v_lshl_add_u32 v{R.vraw}, v{tmp}, 4, v{R.vraw}")
        a(f"v_and_b32 v{R.vst}, 63, v0")
        a(f"v_lshlrev_b32 v{R.vst}, 4, v{R.vst}")

def publish(a, val, lbl, t):
    a(f"s_cmp_lg_u32 s{S_W}, 0")
    a(f"s_cbranch_scc1 {lbl}")
    a(f"s_mov_b64 exec, 1")
    a(f"s_add_u32 s{S_T1}, s{S_NONCE}, {val}")
    a(f"v_mov_b32 v{t}, s{S_T1}")
    a(f"s_lshl_b32 s{S_T0}, s{S_HEAD}, 5")
    a(f"s_add_u32 s{S_T0}, s{S_T0}, s{S_J}")
    a(f"s_lshl_b32 s{S_T0}, s{S_T0}, 7")
    a(f"v_mov_b32 v{t+1}, s{S_T0}")
    a(f"global_store_dword v{t+1}, v{t}, s[{S_FLG}:{S_FLG+1}] sc1")
    a(f"s_mov_b64 exec, -1")
    a.label(lbl)

def flag_load(a):
    a(f"global_load_dword v{V_FLAG}, v{V_FADDR}, s[{S_FLG}:{S_FLG+1}] sc1")
def flag_check(a):
    a(f"v_subrev_u32 v{V_FLAG}, s{S_NEED}, v{V_FLAG}")
    a(f"v_cmp_lt_u32 vcc, s{S_RANGE}, v{V_FLAG}")
def set_need(a, need):
    a(f"s_add_u32 s{S_NEED}, s{S_NONCE}, {need}")
    a(f"s_mov_b32 s{S_RANGE}, {4-need}")
def spin(a, name):
    a(f"s_mov_b32 s{S_SPIN}, 0")
    a.label(f"L_spin_{name}")
    flag_load(a)
    a("s_waitcnt vmcnt(0)")
    flag_check(a)
    a(f"s_add_u32 s{S_SPIN}, s{S_SPIN}, 1")
    a(f"s_cmp_lt_u32 s{S_SPIN}, 0x8000")
    a(f"s_cbranch_scc0 L_spin_{name}_done")
    a("s_nop 3")
    a(f"s_cbranch_vccnz L_spin_{name}")
    a.label(f"L_spin_{name}_done")

def tile_off(dst, tadd, tmp):
    return [I_salu(f"s_add_u32 s{dst}, s{S_I}, {tadd}"),
            I_salu(f"s_add_u32 s{tmp}, s{dst}, s{S_ROT}"),
            I_salu(f"s_and_b32 s{tmp}, s{tmp}, 3"),
            I_salu(f"s_and_b32 s{dst}, s{dst}, 12"),
            I_salu(f"s_or_b32 s{dst}, s{dst}, s{tmp}"),
            I_salu(f"s_lshl_b32 s{dst}, s{dst}, 16")]

def pv_item(t, db, qb, p):
    par = t & 1
    f = db * 4 + p
    o = A_O + (db * 4 + qb) * 4
    b = V_PO + 16 * par + qb * 4 if p == 0 else V_PF + (p - 1) * 16 + qb * 4
    return I_mfma(f"{MF} a[{o}:{o+3}], v[{V_V+4*f}:{V_V+4*f+3}], v[{b}:{b+3}], a[{o}:{o+3}]")

def p_reads(t):
    par = t & 1
    r = []
    for p in range(1, 4):
        for qb in range(4):
            dst = V_PF + (p - 1) * 16 + qb * 4
            r.append(I_lds(f"ds_read_b128 v[{dst}:{dst+3}], v{V_PR+p-1} offset:{par*16384+qb*1024}", ("PR", t, p, qb)))
    return r

def build_iter(i, opt, NT=16):
    has_qk = (i + 1) < NT
    has_sm = 0 <= i < NT
    has_pv = 1 <= i <= NT
    mf = []
    if has_qk:
        mf += qk_mfmas(i + 1, opt, NT)
    nqk = len(mf)
    if has_pv:
        t = i - 1
        for db in range(4):
            for qb in range(4):
                for p in range(4):
                    pre = []
                    if qb == 0 and p == 0:
                        pre.append(I_wvm(("V", t, db * 4 + 3)))
                    if db == 0 and qb == 0 and p == 1:
                        pre.append(I_wlds(("PR", t, 3, 3)))
                    post = []
                    if qb == 3 and t + 1 < NT:
                        post.append(vload(t + 1, db * 4 + p, S_VOFF))
                    mf.append([pre, pv_item(t, db, qb, p), post])
    respread_loads(mf, i, NT, opt)
    if i == 15:
        mf[0][2] = [vload(14, j, S_VOFF) for j in range(9, 16)] + mf[0][2]
    reads = p_reads(i - 1) if has_pv else []
    sm = softmax_stream(i, opt) if has_sm else []
    head = []
    full = len(mf) == 128
    if has_qk:
        head += tile_off(S_KOFF, 2, S_T4) + [I_salu(f"s_cmp_lt_u32 s{S_I}, {NT-2}"), I_salu(f"s_cselect_b32 s{S_KUSE}, s{S_KOFF}, 0x100000")]
    if has_pv:
        vup = tile_off(S_VOFF, 0, S_T3)
        if full:
            for k, x in enumerate(vup):
                mf[41 + k][2].append(x)
        else:
            head += vup
    if full and i % 2 == 1:
        txt = (f"s_bitcmp1_b32 s{S_FMASK}, s{S_I}\ns_cbranch_scc0 L_noflagld\n"
               f"global_load_dword v{V_FLAG}, v{V_FADDR}, s[{S_FLG}:{S_FLG+1}] sc1\nL_noflagld:")
        mf[opt.flag_gap][2].append(I_raw(txt))
    return schedule(mf, head, reads, sm, nqk, opt)

def build_last(opt, T, V_OUT):
    t = 15
    mf = []
    for qb in range(4):
        for db in range(4):
            for p in range(4):
                pre = []
                if qb == 0 and p == 0:
                    pre.append(I_wvm(("V", t, db * 4 + 3)))
                if qb == 0 and db == 0 and p == 1:
                    pre.append(I_wlds(("PR", t, 3, 3)))
                mf.append([pre, pv_item(t, db, qb, p), []])
    def epi(qb):
        it = []
        inv = T + 4 * qb
        tb = 48 + (qb & 1) * 16
        for par in range(2):
            for k in range(par, 8, 2):
                r = k >> 1
                c = 2 * (k & 1)
                x = tb + 2 * k
                it.append(I_valu(f"v_accvgpr_read_b32 v{x}, a{A_O+((c)*4+qb)*4+r}"))
                it.append(I_valu(f"v_accvgpr_read_b32 v{x+1}, a{A_O+((c+1)*4+qb)*4+r}"))
        for k in range(8):
            x = tb + 2 * k
            it.append(I_valu(f"v_pk_mul_f32 {vp(x)}, {vp(x)}, {vp(inv)} op_sel_hi:[1,0]"))
        for half in range(2):
            o = 16 + (qb * 2 + half) * 4
            for kk in range(4):
                x = tb + 2 * (half * 4 + kk)
                it.append(I_valu(f"v_cvt_pk_bf16_f32 v{o+kk}, v{x}, v{x+1}"))
            so = "0" if qb == 0 else f"s{S_T0+qb-1}"
            it.append(I_vm(f"buffer_store_dwordx4 v[{o}:{o+3}], v{V_OUT}, s[{S_OSRD}:{S_OSRD+3}], {so} offen offset:{half*16}{OUTF}", ("O", qb, half)))
        return it
    linv = [I_wlds(("LR", 3))]
    for qb in range(4):
        b = T + 4 * qb
        linv += [I_valu(f"v_add_f32 v{b}, v{b}, v{b+1}"), I_valu(f"v_add_f32 v{b+2}, v{b+2}, v{b+3}")]
    for qb in range(4):
        b = T + 4 * qb
        linv.append(I_valu(f"v_add_f32 v{b}, v{b}, v{b+2}"))
    for qb in range(4):
        b = T + 4 * qb
        linv.append(I_valu(f"v_rcp_f32 v{b}, v{b}", 8))
    items = []
    lreads = [I_lds(f"ds_read_b128 v[{T+4*qb}:{T+4*qb+3}], v{LRREG} offset:{qb*256}", ("LR", qb)) for qb in range(4)]
    head = [I_salu(f"s_mov_b32 s{S_T0+k}, {8192*(k+1)}") for k in range(3)] + p_reads(t) + lreads
    gaps = [[] for _ in range(64)]
    q = list(linv)
    g = 4
    while q:
        gaps[g] += q[:2]; q = q[2:]; g = min(g + 1, 15) if g < 15 else 15
    for qb in range(3):
        e = epi(qb)
        g0 = 16 * (qb + 1) + 3
        per = (len(e) + 12) // 13
        g = g0
        while e:
            gaps[g] += e[:per]; e = e[per:]; g = min(g + 1, 63)
    for k, (pre, m, post) in enumerate(mf):
        items += pre
        items.append(m)
        if k == 0:
            items += head
        items += gaps[k]
    items.append(I_raw("s_nop 7"))
    items += epi(3)
    return items

def gen_fused(a, opt):
    global OUTF, LRREG
    NT = 16
    st = Stamp(a, opt)
    P = RM()
    P.kraw, P.krr, P.ksc, P.kst, P.vraw, P.vsc, P.vst = 1, 2, 3, 4, 5, 6, 7
    V_QW, V_QR, SCA, V_QOFF = 8, 9, 10, 14
    X, XS, TT, Y, YS, QD = 16, 48, 56, 104, 136, 144
    WK, WQ, QPOS, V_NON, V_ZERO = 176, 192, 200, 202, 203
    SK, SV = 208, 212
    T = 240
    a.label(KNAME)
    a("s_cmp_ge_u32 s2, 256" if not opt.empty else "s_cmp_ge_u32 s2, 0")
    a("s_cbranch_scc1 L_done")
    st(force=True)
    if opt.codepf:
        a("s_getpc_b64 s[4:5]")
        a.label("L_pc")
        a("v_lshlrev_b32 v30, 7, v0")
        a(f"v_min_u32 v30, L_code_end-L_pc-4, v30")
        a("global_load_dword v31, v30, s[4:5]")
    a("s_load_dwordx16 s[40:55], s[0:1], 0")
    a("s_load_dwordx2 s[62:63], s[0:1], 88")
    a("s_load_dwordx4 s[64:67], s[0:1], 96")
    a(f"s_and_b32 s{S_HEAD}, s2, 7")
    a(f"s_lshr_b32 s{S_J}, s2, 3")
    a("v_lshrrev_b32 v17, 6, v0")
    a("v_and_b32 v18, 15, v0")
    a("v_bfe_u32 v19, v0, 4, 2")
    a(f"v_readfirstlane_b32 s{S_W}, v17")
    a(f"s_mov_b32 s{S_MASK}, 0xffff0000")
    a(f"s_mov_b32 s{S_C}, 0x{f32bits(math.log2(math.e)/16.0):08x}")
    a(f"s_and_b32 s{S_ROT}, s{S_J}, 3")
    task_addr(a, P, 20)
    a(f"v_lshlrev_b32 v{P.ksc}, 1, v{P.krr}")
    a(f"v_lshlrev_b32 v{P.vsc}, 3, v19")
    a("v_lshl_add_u32 v24, v17, 4, v19")
    a(f"v_lshlrev_b32 v{V_QOFF}, 9, v24")
    a(f"v_lshl_add_u32 v{V_QOFF}, v18, 4, v{V_QOFF}")
    a(f"s_lshl_b32 s{S_T0}, s{S_J}, 6")
    a(f"v_add_u32 v{QPOS}, s{S_T0}, v24")
    a(f"v_mov_b32 v{V_ZERO}, 0")
    task_params(a, 0, 68, 69, 70)
    a("s_waitcnt lgkmcnt(0)")
    a(f"s_lshl_b32 s{S_T1}, s{S_HEAD}, 21")
    make_srd(a, S_RAWK, 42, S_T1, 0x200000)
    a(f"s_lshl_b32 s{S_T0}, s{S_HEAD}, 20")
    a(f"s_lshl_b32 s{S_T3}, s{S_J}, 15")
    a(f"s_add_u32 s{S_T2}, s{S_T0}, s{S_T3}")
    make_srd(a, S_OSRD, 62, S_T2, 32768)
    make_srd(a, S_RAWV, 48, S_T1, 0x200000)
    make_srd(a, S_QSRD, 40, S_T2, 32768)
    a(f"s_lshl_b32 s{S_T2}, s{S_HEAD}, 12")
    make_srd(a, S_KSC, 44, S_T2, 4096)
    make_srd(a, S_KZ, 46, S_T2, 4096)
    make_srd(a, S_VSC, 50, S_T2, 4096)
    make_srd(a, S_VZ, 52, S_T2, 4096)
    a(f"s_mov_b32 s{S_PK}, s68"); a(f"s_mov_b32 s{S_PT}, s69"); a(f"s_mov_b32 s{S_PW}, s70")
    a(f"s_cmp_ge_u32 s{S_W}, 2")
    a("s_cbranch_scc1 L_B_issue0")
    k_raw_loads(a, P, X, S_PK); k_scale_loads(a, P, S_PK, SCA)
    a("s_branch L_issueQ")
    a.label("L_B_issue0")
    v_raw_loads(a, P, X, S_PT, S_PW); v_scale_loads(a, P, XS, S_PT)
    a.label("L_issueQ")
    a("s_mov_b32 s49, 4096")
    for it in range(4):
        so = "0" if it < 2 else "s49"
        io = (it & 1) * 2048
        b = QD + 8 * it
        a(f"buffer_load_dwordx4 v[{b}:{b+3}], v{V_QOFF}, s[{S_QSRD}:{S_QSRD+3}], {so} offen offset:{io}")
        a(f"buffer_load_dwordx4 v[{b+4}:{b+7}], v{V_QOFF}, s[{S_QSRD}:{S_QSRD+3}], {so} offen offset:{io+256}")
    a(f"s_mov_b32 s{S_DBG}, s64"); a(f"s_mov_b32 s{S_DBG+1}, s65")
    a(f"s_or_b32 s{S_T0}, s{S_HEAD}, s{S_J}")
    a(f"s_or_b32 s{S_T0}, s{S_T0}, s{S_W}")
    a(f"s_cmp_lg_u32 s{S_T0}, 0")
    a("s_cbranch_scc1 L_nononce")
    a("s_memrealtime s[100:101]")
    a("s_waitcnt lgkmcnt(0)")
    a("s_lshl_b32 s100, s100, 3")
    a("s_or_b32 s100, s100, 0x80000000")
    a("s_and_b32 s100, s100, 0xfffffff8")
    a("v_mov_b32 v204, s100")
    a("s_mov_b64 exec, 1")
    a(f"global_store_dword v{V_ZERO}, v204, s[{S_DBG}:{S_DBG+1}] sc1")
    a("s_mov_b64 exec, -1")
    a.label("L_nononce")
    a(f"global_load_dword v{V_NON}, v{V_ZERO}, s[{S_DBG}:{S_DBG+1}] sc1")
    a(f"s_lshl_b32 s{S_T0}, s{S_HEAD}, 20")
    make_srd(a, S_KSRD, 66, S_T0, 0x100000)
    a(f"s_add_u32 s{S_T1}, s{S_T0}, 0x800000")
    make_srd(a, S_VSRD, 66, S_T1, 0x100000)
    a(f"s_add_u32 s{S_FLG}, s66, 0x1000000")
    a(f"s_addc_u32 s{S_FLG+1}, s67, 0")
    if opt.stamp:
        a(f"s_mov_b32 s{S_STW}, s66"); a(f"s_mov_b32 s{S_STW+1}, s67")
    NPT = 0
    if opt.pretouch:
        a(f"s_lshl_b32 s{S_T0}, s{S_HEAD}, 5")
        a(f"s_add_u32 s{S_T0}, s{S_T0}, s{S_J}")
        a(f"s_lshl_b32 s{S_T0}, s{S_T0}, 7")
        a(f"v_mov_b32 v205, s{S_T0}")
        a(f"global_load_dword v206, v205, s[{S_FLG}:{S_FLG+1}] sc1")
        a(f"buffer_load_dword v207, v{V_ZERO}, s[{S_OSRD}:{S_OSRD+3}], 0 offen")
        NPT = 2
    task_params(a, 1, S_PK2, S_PT2, S_PW2)
    a(f"s_lshr_b32 s{S_T2}, s{S_W}, 1")
    a(f"s_add_u32 s{S_T2}, s{S_T2}, 2")
    task_params(a, ('s', S_T2), S_HK, None, None)
    a(f"s_lshr_b32 s{S_T2}, s{S_W}, 1")
    a(f"s_sub_u32 s{S_T2}, 3, s{S_T2}")
    task_params(a, ('s', S_T2), None, S_HT, S_HW)
    a("v_and_b32 v220, 7, v0"); a("v_lshlrev_b32 v220, 3, v220"); a("v_cvt_f32_u32 v220, v220")
    a("v_and_b32 v221, 15, v0"); a("v_lshlrev_b32 v221, 3, v221"); a("v_cvt_f32_u32 v221, v221")
    a(f"v_cvt_f32_u32 v{QPOS}, v{QPOS}")
    freq_consts(a, WK, 16, 220, [64 * (k >> 3) + (k & 7) for k in range(16)])
    freq_consts(a, WQ, 8, 221, list(range(8)))
    a(f"v_lshrrev_b32 v{T}, 6, v0")
    a(f"v_and_b32 v{T+1}, 15, v0")
    a(f"v_bfe_u32 v{T+2}, v0, 4, 2")
    a(f"v_mul_u32_u24 v{V_QW}, {8*QFS}, v{T}")
    a(f"v_lshrrev_b32 v{T+3}, 2, v{T+1}")
    a(f"v_mul_u32_u24 v{T+3}, {QFS}, v{T+3}")
    a(f"v_add_u32 v{V_QW}, v{V_QW}, v{T+3}")
    a(f"v_and_b32 v{T+3}, 3, v{T+1}")
    a(f"v_mul_u32_u24 v{T+3}, {QGS}, v{T+3}")
    a(f"v_add_u32 v{V_QW}, v{V_QW}, v{T+3}")
    a(f"v_lshl_add_u32 v{V_QW}, v{T+2}, 4, v{V_QW}")
    a(f"v_mul_u32_u24 v{V_QR}, {QGS}, v{T+2}")
    a(f"v_lshl_add_u32 v{V_QR}, v{T+1}, 4, v{V_QR}")
    a(f"v_and_b32 v{T}, 63, v0")
    a(f"v_lshlrev_b32 v{T+1}, 4, v{T}")
    for k in range(4):
        a(f"ds_write_b128 v{T+1}, v[{WK+4*k}:{WK+4*k+3}] offset:{LDS_WK+k*1024}")
    for r in range(64):
        a(f"v_accvgpr_write_b32 a{A_O+r}, 0")
    NY = 9 + NPT
    a(f"s_cmp_ge_u32 s{S_W}, 2")
    a("s_cbranch_scc1 L_B_comp0")
    a(f"s_waitcnt vmcnt({NY})")
    st()
    k_compute(a, P, X, SCA, WK, TT, S_PK)
    nA1 = v_raw_loads(a, P, Y, S_PT2, S_PW2) + v_scale_loads(a, P, YS, S_PT2)
    a("s_branch L_sc23")
    a.label("L_B_comp0")
    a(f"s_waitcnt vmcnt({NY})")
    st(again=True)
    v_compute(a, P, X, XS, TT, S_PT, S_PW)
    nB1 = k_raw_loads(a, P, Y, S_PK2) + k_scale_loads(a, P, S_PK2, YS)
    a.label("L_sc23")
    k_scale_loads(a, P, S_HK, SK); v_scale_loads(a, P, SV, S_HT)
    st(level=2)
    nmin = min(nA1, nB1)
    def rope_it(it):
        if it:
            a(f"v_add_f32 v{QPOS}, 4.0, v{QPOS}")
        o = rope_q(a, QD + 8 * it, TT, QPOS, WQ)
        a(f"ds_write_b128 v{V_QW}, v[{o}:{o+3}] offset:{it*64}")
        a(f"ds_write_b128 v{V_QW}, v[{o+4}:{o+7}] offset:{it*64 + 4*QFS}")
    a(f"s_waitcnt vmcnt({nmin + 6 + 4 + 1 + NPT})")
    for it in range(opt.rope_first):
        rope_it(it)
    st(level=2)
    a(f"s_waitcnt vmcnt({nmin + 6})")
    st(level=2)
    a(f"v_readfirstlane_b32 s{S_NONCE}, v{V_NON}")
    a(f"s_cmp_lg_u32 s{S_NONCE}, 0")
    a("s_cbranch_scc1 L_have_nonce")
    a(f"s_mov_b32 s{S_SPIN}, 0")
    a.label("L_nonce_spin")
    a(f"global_load_dword v{V_NON}, v{V_ZERO}, s[{S_DBG}:{S_DBG+1}] sc1")
    a("s_waitcnt vmcnt(0)")
    a(f"v_readfirstlane_b32 s{S_NONCE}, v{V_NON}")
    a(f"s_add_u32 s{S_SPIN}, s{S_SPIN}, 1")
    a(f"s_cmp_ge_u32 s{S_SPIN}, 0x8000")
    a("s_cbranch_scc1 L_have_nonce")
    a(f"s_cmp_eq_u32 s{S_NONCE}, 0")
    a("s_cbranch_scc1 L_nonce_spin")
    a.label("L_have_nonce")
    a("s_barrier")
    publish(a, 1, "L_pub1", 204)
    st()
    for it in range(opt.rope_first, 4):
        rope_it(it)
    a("s_waitcnt lgkmcnt(0)")
    a("s_barrier")
    for qb in range(4):
        for s in range(8):
            b = A_Q + (qb * 8 + s) * 4
            a(f"ds_read_b128 a[{b}:{b+3}], v{V_QR} offset:{(qb*8+s)*QFS}")
    P2 = RM(); P2.krr, P2.kst, P2.vst = 220, 221, 222
    a(f"v_mov_b32 v{P2.krr}, v{P.krr}")
    a(f"v_mov_b32 v{P2.kst}, v{P.kst}")
    a(f"v_mov_b32 v{P2.vst}, v{P.vst}")
    a("s_waitcnt lgkmcnt(0)")
    a(f"v_and_b32 v{T}, 63, v0")
    a(f"v_lshrrev_b32 v{T+1}, 6, v0")
    a(f"v_and_b32 v{V_FADDR}, 31, v0")
    a(f"s_lshl_b32 s{S_T0}, s{S_HEAD}, 5")
    a(f"v_add_u32 v{V_FADDR}, s{S_T0}, v{V_FADDR}")
    a(f"v_lshlrev_b32 v{V_FADDR}, 7, v{V_FADDR}")
    a(f"v_lshlrev_b32 v{T+2}, 4, v{T}")
    a(f"v_add_u32 v{T+3}, {LDS_P}, v{T+2}")
    for t in range(1, 4):
        a(f"v_add_u32 v{T+4}, {t}, v{T+1}")
        a(f"v_and_b32 v{T+4}, 3, v{T+4}")
        a(f"v_lshl_add_u32 v{V_PR+t-1}, v{T+4}, 12, v{T+3}")
    a(f"v_lshl_add_u32 v{V_PW}, v{T+1}, 12, v{T+3}")
    a(f"v_lshl_add_u32 v{V_OFF}, v{T+1}, 14, v{T+2}")
    for k in range(1, 4):
        a(f"v_add_u32 v{V_OFF+k}, {4096*k}, v{V_OFF}")
    for r in range(4):
        a(f"v_mov_b32 v{V_L+r}, 0")
    a(f"s_mov_b32 s{S_FMASK}, 0x222")
    if opt.ngroups == 3:
        a(f"s_mul_i32 s{S_T0}, s{S_J}, 43")
        a(f"s_lshr_b32 s{S_T0}, s{S_T0}, 7")
        a(f"s_mul_i32 s{S_T0}, s{S_T0}, 3")
        a(f"s_sub_u32 s{S_G}, s{S_J}, s{S_T0}")
    elif opt.ngroups == 2:
        a(f"s_and_b32 s{S_G}, s{S_J}, 1")
        a(f"s_lshl_b32 s{S_G}, s{S_G}, 1")
    else:
        a(f"s_mov_b32 s{S_G}, 0")
    a(f"s_lshl_b32 s{S_HMASK}, 0x3e, s{S_G}")
    a(f"s_or_b32 s{S_HMASK}, s{S_HMASK}, 0x444")
    set_need(a, 1)
    spin(a, "r0")
    st()
    a(f"s_lshl_b32 s{S_KOFF}, s{S_ROT}, 16")
    a(f"s_mov_b32 s{S_VOFF}, s{S_KOFF}")
    a(f"s_mov_b32 s{S_KUSE}, s{S_KOFF}")
    pro = [kload(0, f, S_KUSE) for f in range(16)]
    for it in pro:
        a(it.text)
    a(f"s_mul_i32 s{S_T1}, s{S_W}, 2560")
    a(f"s_add_u32 s{S_T1}, s{S_T1}, {LDS_SC}")
    a(f"v_lshlrev_b32 v{T+1}, 3, v{T}")
    a(f"v_add_u32 v{T+1}, s{S_T1}, v{T+1}")
    a(f"ds_write_b64 v{T+1}, v[{SK}:{SK+1}]")
    a(f"v_add_u32 v{T+2}, s{S_T1}, v{T+2}")
    a(f"ds_write_b128 v{T+2}, v[{SV}:{SV+3}] offset:512")
    a(f"ds_write_b128 v{T+2}, v[{SV+4}:{SV+7}] offset:1536")
    a(f"s_cmp_ge_u32 s{S_W}, 2")
    a("s_cbranch_scc1 L_B_r1")
    v_compute(a, P2, Y, YS, TT, S_PT2, S_PW2)
    a("s_branch L_rdone")
    a.label("L_B_r1")
    k_compute(a, P2, Y, YS, WK, TT, S_PK2)
    a.label("L_rdone")
    H = RM(); H.krr, H.kraw, H.kst, H.vraw, H.vst = 156, 158, 157, 158, 157
    a("s_waitcnt lgkmcnt(0)")
    st()
    pre = [I_salu(f"s_mov_b32 s{S_I}, -1")] + tile_off(S_KUSE, 2, S_T4)
    for (p_, m, post) in qk_mfmas(0, opt, NT):
        pre += p_ + [m] + post
    pf = []
    if opt.prefetch:
        pf += [I_valu(f"v_and_b32 v224, 63, v0"), I_valu(f"v_lshlrev_b32 v225, 7, v224"),
               I_valu(f"v_lshrrev_b32 v226, 1, v224"), I_valu(f"v_lshlrev_b32 v226, 10, v226"),
               I_valu(f"v_and_b32 v224, 1, v224"), I_valu(f"v_lshl_add_u32 v226, v224, 7, v226"),
               I_salu(f"s_lshl_b32 s{S_T0}, s{S_HK}, 10"),
               I_salu(f"s_lshl_b32 s{S_T1}, s{S_HT}, 15"), I_salu(f"s_lshl_b32 s{S_T2}, s{S_HW}, 8"),
               I_salu(f"s_add_u32 s{S_T1}, s{S_T1}, s{S_T2}")]
        for off in (0, 64)[:opt.prefetch]:
            pf.append(I_raw(f"buffer_load_dword v227, v225, s[{S_RAWK}:{S_RAWK+3}], s{S_T0} offen offset:{off}"))
            pf.append(I_raw(f"buffer_load_dword v228, v226, s[{S_RAWV}:{S_RAWV+3}], s{S_T1} offen offset:{off}"))
    pre += pf
    pre.append(I_raw("s_nop 7"))
    pre.append(I_salu(f"s_mov_b32 s{S_I}, 0"))
    endbar = [I_wlds("all"), I_raw("s_barrier")]
    blocks = [("pro", pro + [I_vm("", ("ST", k)) for k in range(4)]), ("pre", pre)]
    it0 = build_iter(0, opt) + [vload(0, f, S_VOFF) for f in range(9)] + [I_raw("s_waitcnt vmcnt(25)")] + endbar + [I_salu(f"s_mov_b32 s{S_I}, 1")]
    blocks.append(("it0", it0))
    stat = {}
    for i in range(1, 15):
        items = build_iter(i, opt) + [I_salu(f"s_add_u32 s{S_I}, s{S_I}, 1")] + endbar
        nm = "odd" if i % 2 else "even"
        blocks.append((nm, items))
        if nm not in stat: stat[nm] = items
        else: assert [x.text for x in stat[nm]] == [x.text for x in items], nm
    it15 = build_iter(15, opt)
    V_LW, V_LR, V_OUT = 231, 232, 233
    LRREG = V_LR
    red = [I_valu(f"v_and_b32 v224, 15, v0"), I_valu(f"v_lshrrev_b32 v225, 6, v0"), I_valu(f"v_bfe_u32 v226, v0, 4, 2"),
           I_valu(f"v_lshlrev_b32 v{V_LR}, 4, v224"), I_valu(f"v_add_u32 v{V_LR}, {LDS_L}, v{V_LR}"),
           I_valu(f"v_lshl_add_u32 v{V_LW}, v225, 2, v{V_LR}"), I_valu(f"v_lshlrev_b32 v{V_OUT}, 9, v224"),
           I_valu(f"v_lshl_add_u32 v{V_OUT}, v225, 7, v{V_OUT}"), I_valu(f"v_lshl_add_u32 v{V_OUT}, v226, 5, v{V_OUT}")]
    for qb in range(4): red.append(I_valu(f"v_mov_b32 v{T+qb}, v{V_L+qb}"))
    red.append(I_raw("s_nop 1"))
    for qb in range(4): red.append(I_valu(f"v_permlane32_swap_b32 v{T+qb}, v{V_L+qb}"))
    red.append(I_raw("s_nop 1"))
    for qb in range(4): red.append(I_valu(f"v_add_f32 v{V_L+qb}, v{V_L+qb}, v{T+qb}"))
    for qb in range(4): red.append(I_valu(f"v_mov_b32 v{T+qb}, v{V_L+qb}"))
    red.append(I_raw("s_nop 1"))
    for qb in range(4): red.append(I_valu(f"v_permlane16_swap_b32 v{T+qb}, v{V_L+qb}"))
    red.append(I_raw("s_nop 1"))
    for qb in range(4): red.append(I_valu(f"v_add_f32 v{V_L+qb}, v{V_L+qb}, v{T+qb}"))
    for qb in range(4): red.append(I_lds(f"ds_write_b32 v{V_LW}, v{V_L+qb} offset:{qb*256}", ("LW", qb)))
    it15 += red + endbar
    blocks.append(("it15", it15))
    it16 = build_last(opt, T, V_OUT)
    blocks.append(("it16", it16))
    waits = resolve_waits(blocks)
    emit_block(a, "pre", pre, waits)
    if opt.stamp == 5: st()
    emit_block(a, "it0", it0, waits)
    publish(a, 2, "L_pub2", 158)
    def hook_site(name):
        a(f"s_bitcmp1_b32 s{S_HMASK}, s{S_I}")
        a(f"s_cbranch_scc0 L_nohook_{name}")
        a(f"s_call_b64 s[{S_RET}:{S_RET+1}], L_hook")
        a.label(f"L_nohook_{name}")
    hook_site("it0")
    st()
    a.label("L_loop")
    base = st.n
    emit_block(a, "odd", stat["odd"], waits)
    if opt.stamp == 4: st.dyn(2, base - 4, 9)
    hook_site("odd")
    if opt.stamp == 3: st.dyn(1, base - 2, 15)
    if opt.stamp == 4: st.dyn(2, base - 3, 9)
    emit_block(a, "even", stat["even"], waits)
    if opt.stamp == 4: st.dyn(2, base - 4, 9)
    hook_site("even")
    if opt.stamp == 3:
        st.dyn(1, base - 2, 15); st.n = base + 14
    if opt.stamp == 4:
        st.dyn(2, base - 3, 9); st.n = base + 16
    a(f"s_cmp_lt_u32 s{S_I}, 15")
    a("s_cbranch_scc1 L_loop")
    if opt.stamp in (1, 2): st()
    emit_block(a, "it15", it15, waits)
    emit_block(a, "it16", it16, waits)
    if opt.stamp:
        hk = st.n
        if opt.stamp == 5: st.n += 5
        a("s_waitcnt vmcnt(0)")
        st(force=True)
        st.finish()
    a("s_endpgm")
    a.label("L_hook")
    a(f"s_and_b32 s{S_T0}, s{S_I}, 3")
    a(f"s_cmp_lg_u32 s{S_T0}, 2")
    a("s_cbranch_scc1 L_hook_d")
    a(f"s_lshr_b32 s{S_T0}, s{S_I}, 2")
    a(f"s_add_u32 s{S_T0}, s{S_T0}, 2")
    a(f"s_add_u32 s{S_NEED}, s{S_NONCE}, s{S_T0}")
    a(f"s_sub_u32 s{S_RANGE}, 4, s{S_T0}")
    nyoung = sum(1 for j in range(16) if 28 + 4 * j > opt.flag_gap) + sum(1 for j in range(9) if 92 + 4 * j > opt.flag_gap)
    a(f"s_waitcnt vmcnt({nyoung})")
    flag_check(a)
    a("s_nop 4")
    a(f"s_cbranch_vccz L_hook_d")
    spin(a, "hk")
    a.label("L_hook_d")
    a(f"s_sub_u32 s{S_T3}, s{S_I}, s{S_G}")
    a(f"s_cmp_eq_u32 s{S_T3}, 1"); a("s_cbranch_scc1 L_h_issue1")
    a(f"s_cmp_eq_u32 s{S_T3}, 2"); a("s_cbranch_scc1 L_h_comp1")
    a(f"s_cmp_eq_u32 s{S_T3}, 3"); a("s_cbranch_scc1 L_h_pub3")
    a(f"s_cmp_eq_u32 s{S_T3}, 4"); a("s_cbranch_scc1 L_h_comp2")
    a(f"s_cmp_eq_u32 s{S_T3}, 5"); a("s_cbranch_scc0 L_hook_ret")
    publish(a, 4, "L_pub4", 158)
    a("s_branch L_hook_ret")
    a.label("L_h_pub3")
    publish(a, 3, "L_pub3", 158)
    a(f"s_mov_b32 s{S_T4}, 1")
    a("s_branch L_h_issue")
    a.label("L_h_issue1")
    a(f"s_mov_b32 s{S_T4}, 0")
    a.label("L_h_issue")
    a(f"s_lshr_b32 s{S_T0}, s{S_W}, 1")
    a(f"s_xor_b32 s{S_T0}, s{S_T0}, s{S_T4}")
    a(f"s_cmp_eq_u32 s{S_T0}, 1"); a("s_cbranch_scc1 L_h_issueV")
    task_addr(a, H, 140, v=False)
    k_raw_loads(a, H, 224, S_HK)
    a("s_branch L_hook_ret")
    a.label("L_h_issueV")
    task_addr(a, H, 140, k=False)
    v_raw_loads(a, H, 224, S_HT, S_HW)
    a("s_branch L_hook_ret")
    a.label("L_h_comp2")
    a(f"s_mov_b32 s{S_T4}, 1")
    a("s_branch L_h_comp")
    a.label("L_h_comp1")
    a(f"s_mov_b32 s{S_T4}, 0")
    a.label("L_h_comp")
    a(f"v_and_b32 v142, 63, v0")
    a(f"s_mul_i32 s{S_T1}, s{S_W}, 2560")
    a(f"s_add_u32 s{S_T1}, s{S_T1}, {LDS_SC}")
    a(f"s_lshr_b32 s{S_T0}, s{S_W}, 1")
    a(f"s_xor_b32 s{S_T0}, s{S_T0}, s{S_T4}")
    a(f"s_cmp_eq_u32 s{S_T0}, 1"); a("s_cbranch_scc1 L_h_compV")
    a(f"v_lshlrev_b32 v143, 4, v142")
    for k in range(4):
        a(f"ds_read_b128 v[{112+4*k}:{115+4*k}], v143 offset:{LDS_WK+k*1024}")
    a(f"v_lshlrev_b32 v142, 3, v142")
    a(f"v_add_u32 v142, s{S_T1}, v142")
    a(f"ds_read_b64 v[128:129], v142")
    task_addr(a, H, 140, v=False)
    a("s_waitcnt lgkmcnt(0)")
    k_compute(a, H, 224, 128, 112, 130, S_HK)
    a("s_branch L_hook_ret")
    a.label("L_h_compV")
    a(f"v_lshlrev_b32 v143, 4, v142")
    a(f"v_add_u32 v143, s{S_T1}, v143")
    a(f"ds_read_b128 v[112:115], v143 offset:512")
    a(f"ds_read_b128 v[116:119], v143 offset:1536")
    task_addr(a, H, 140, k=False)
    a("s_waitcnt lgkmcnt(0)")
    v_compute(a, H, 224, 112, 120, S_HT, S_HW)
    a.label("L_hook_ret")
    a(f"s_setpc_b64 s[{S_RET}:{S_RET+1}]")
    a.label("L_done")
    a("s_endpgm")
    a.label("L_code_end")

def main():
    global OUTF
    ap = argparse.ArgumentParser()
    ap.add_argument("-o", default=f"cdna_kernels/{NAME}.s")
    ap.add_argument("--stamp", type=int, default=0)
    ap.add_argument("--wgrp", type=int, default=4)
    ap.add_argument("--kgrp", type=int, default=8)
    ap.add_argument("--spread", type=int, default=1)
    ap.add_argument("--cap", type=int, default=2)
    ap.add_argument("--pace", type=int, default=1)
    ap.add_argument("--read_spread", type=int, default=1)
    ap.add_argument("--sm_g0", type=int, default=0)
    ap.add_argument("--sm_g1", type=int, default=117)
    ap.add_argument("--ldflags", default="sc1")
    ap.add_argument("--outflags", default="nt")
    ap.add_argument("--empty", type=int, default=0)
    ap.add_argument("--codepf", type=int, default=1)
    ap.add_argument("--pretouch", type=int, default=1)
    ap.add_argument("--rope_first", type=int, default=1)
    ap.add_argument("--prefetch", type=int, default=0)
    ap.add_argument("--flag_gap", type=int, default=57)
    ap.add_argument("--ngroups", type=int, default=3)
    opt = ap.parse_args()
    OUTF = (" " + opt.outflags.replace("+", " ")) if opt.outflags else ""
    gen2.LDFLAGS = (" " + opt.ldflags.replace("+", " ")) if opt.ldflags else ""
    out = header()
    out += f"; @launch grid=(256,1,1) block=(256,1,1) lds={LDS_TOTAL}\n"
    out += '.amdgcn_target "amdgcn-amd-amdhsa--gfx950"\n.text\n'
    a = EA()
    gen_fused(a, opt)
    out += f".globl {KNAME}\n.p2align 8\n.type {KNAME},@function\n" + a.text()
    out += kd(KNAME, 512, 102, 256)
    open(opt.o, "w").write(out)

if __name__ == "__main__":
    main()
```

```python
import sys, os, argparse, math, struct
sys.path.insert(0, "dev")
from gen import f32bits, make_srd, kd, NAME, Item, I_valu, I_raw, I_salu, I_vm, I_lds, I_wvm, I_wlds, I_mfma, resolve_waits, emit_block
import gen2
from gen2 import (MF, V_OFF, V_PW, V_PR, V_L, V_S, V_PO, V_PF, V_V, A_O, A_Q, A_K, QFS, QGS,
                  S_KSRD, S_VSRD, S_QSRD, S_OSRD, S_KOFF, S_VOFF, S_I, S_ROT, S_C, S_W, S_MASK, S_KUSE,
                  kload, vload, softmax_stream, qk_mfmas, schedule, respread_loads, header)

KNAME = NAME + "_kernel"

class EA:
    def __init__(self): self.lines = []
    def __call__(self, s):
        for l in s.split("\n"):
            l = l.strip()
            if not l: continue
            self.lines.append(l if l.endswith(":") else "    " + l)
    def label(self, l): self.lines.append(l + ":")
    def text(self): return "\n".join(self.lines) + "\n"

LDS_Q = 0
LDS_L = 34816
LDS_SC = LDS_L + 1024
LDS_WK = LDS_SC + 4 * 2560
LDS_P = 51200
LDS_TOTAL = LDS_P + 32768
assert LDS_WK + 4096 <= LDS_P

S_STW = 36
S_NONCE = 39
S_PK, S_PT, S_PW = 40, 41, 42
S_PK2, S_PT2, S_PW2 = 43, 44, 45
S_HK, S_HT, S_HW = 46, 47, 48
S_FLG = 50
S_RANGE = 53
S_FMASK = 49
S_HMASK = 38
S_G = 68
S_RET = 70
S_RAWK, S_RAWV = 56, 60
S_KSC, S_KZ, S_VSC, S_VZ = 72, 76, 80, 84
S_DBG = 88
S_J, S_NEED = 90, 91
S_T0, S_T1, S_T2, S_T3, S_T4 = 92, 93, 94, 95, 96
S_SPIN, S_HEAD = 97, 99
V_FLAG, V_FADDR, V_STAMP = 13, 14, 15
STF = " sc1"

class RM: pass

class Stamp:
    def __init__(self, a, opt):
        self.a = a; self.on = opt.stamp; self.n = 0
    def _emit(self, idx_sgpr=None):
        a = self.a
        a("s_memtime s[54:55]")
        a("s_memrealtime s[100:101]")
        a("s_waitcnt lgkmcnt(0)")
        if idx_sgpr is None:
            a(f"v_writelane_b32 v{V_STAMP}, s54, {2*self.n}")
            a(f"v_writelane_b32 v{V_STAMP}, s100, {2*self.n+1}")
        else:
            a(f"s_mov_b32 m0, s{idx_sgpr}"); a("s_nop 1")
            a(f"v_writelane_b32 v{V_STAMP}, s54, m0")
            a(f"s_add_u32 m0, s{idx_sgpr}, 1"); a("s_nop 1")
            a(f"v_writelane_b32 v{V_STAMP}, s100, m0")
    def __call__(self, again=False, level=1, force=False):
        if not self.on: return
        if self.on == 9 and not force: return
        if level == 2 and self.on != 2: return
        if again: self.n -= 1
        self._emit()
        self.n += 1
    def dyn(self, mul, add, cap):
        a = self.a
        a(f"s_min_u32 s52, s{S_I}, {cap}")
        a(f"s_mul_i32 s52, s52, {2*mul}")
        a(f"s_add_u32 s52, s52, {2*add}")
        self._emit(52)
    def finish(self):
        if not self.on: return
        a = self.a
        a("s_waitcnt vmcnt(0)")
        a(f"s_lshl_b32 s46, s{S_J}, 3")
        a(f"s_add_u32 s46, s46, s{S_HEAD}")
        a(f"s_lshl_b32 s46, s46, 10")
        a(f"s_lshl_b32 s47, s{S_W}, 8")
        a("s_add_u32 s46, s46, s47")
        a("s_add_u32 s46, s46, 0x8000000")
        a(f"s_add_u32 s46, s{S_STW}, s46")
        a(f"s_addc_u32 s47, s{S_STW+1}, 0")
        a("v_and_b32 v16, 63, v0")
        a("v_lshlrev_b32 v16, 2, v16")
        a(f"global_store_dword v16, v{V_STAMP}, s[46:47]")
        a("s_waitcnt vmcnt(0)")

LOG2_10000_128 = math.log2(10000.0) / 128.0
LOG2_2PI = math.log2(2 * math.pi)

def vp(r): return f"v[{r}:{r+1}]"

def k_raw_loads(a, R, X, rowreg):
    a(f"s_lshl_b32 s{S_T0}, s{rowreg}, 10")
    for c in range(4):
        for hf in range(2):
            b = X + c * 8 + hf * 4
            a(f"buffer_load_dwordx4 v[{b}:{b+3}], v{R.kraw}, s[{S_RAWK}:{S_RAWK+3}], s{S_T0} offen offset:{c*256+hf*16}")
    return 8
def k_scale_loads(a, R, rowreg, dst):
    a(f"s_lshl_b32 s{S_T2}, s{rowreg}, 1")
    a(f"buffer_load_ushort v{dst}, v{R.ksc}, s[{S_KSC}:{S_KSC+3}], s{S_T2} offen")
    a(f"buffer_load_ushort v{dst+1}, v{R.ksc}, s[{S_KZ}:{S_KZ+3}], s{S_T2} offen")
    return 2
def v_raw_loads(a, R, X, treg, wreg):
    a(f"s_lshl_b32 s{S_T0}, s{treg}, 15")
    a(f"s_lshl_b32 s{S_T1}, s{wreg}, 8")
    a(f"s_add_u32 s{S_T0}, s{S_T0}, s{S_T1}")
    a(f"s_add_u32 s{S_T1}, s{S_T0}, 16384")
    for j in range(8):
        b = X + j * 4
        so = S_T0 if j < 4 else S_T1
        a(f"buffer_load_dwordx4 v[{b}:{b+3}], v{R.vraw}, s[{S_RAWV}:{S_RAWV+3}], s{so} offen offset:{(j&3)*1024}")
    return 8
def v_scale_loads(a, R, SC, treg):
    a(f"s_lshl_b32 s{S_T2}, s{treg}, 6")
    for g2 in range(2):
        a(f"buffer_load_dwordx2 v[{SC+2*g2}:{SC+1+2*g2}], v{R.vsc}, s[{S_VSC}:{S_VSC+3}], s{S_T2} offen offset:{g2*32}")
        a(f"buffer_load_dwordx2 v[{SC+4+2*g2}:{SC+5+2*g2}], v{R.vsc}, s[{S_VZ}:{S_VZ+3}], s{S_T2} offen offset:{g2*32}")
    return 4

def sincos8(a, pos, w, cs, sn):
    for k in range(4):
        a(f"v_pk_mul_f32 {vp(sn+2*k)}, {vp(w+2*k)}, {vp(pos)} op_sel_hi:[1,0]")
    for e in range(8):
        a(f"v_fract_f32 v{sn+e}, v{sn+e}")
    for e in range(8):
        a(f"v_cos_f32 v{cs+e}, v{sn+e}")
    for e in range(8):
        a(f"v_sin_f32 v{sn+e}, v{sn+e}")

def rope8(a, x1, x2, cs, sn, u, o1dst, o2dst):
    for k in range(4):
        a(f"v_pk_mul_f32 {vp(u+2*k)}, {vp(x2+2*k)}, {vp(sn+2*k)}")
    for k in range(4):
        a(f"v_pk_mul_f32 {vp(sn+2*k)}, {vp(x1+2*k)}, {vp(sn+2*k)}")
    for k in range(4):
        a(f"v_pk_fma_f32 {vp(u+2*k)}, {vp(x1+2*k)}, {vp(cs+2*k)}, {vp(u+2*k)} neg_lo:[0,0,1] neg_hi:[0,0,1]")
    for k in range(4):
        a(f"v_pk_fma_f32 {vp(sn+2*k)}, {vp(x2+2*k)}, {vp(cs+2*k)}, {vp(sn+2*k)}")
    for k in range(4):
        a(f"v_cvt_pk_bf16_f32 v{o1dst+k}, v{u+2*k}, v{u+2*k+1}")
    for k in range(4):
        a(f"v_cvt_pk_bf16_f32 v{o2dst+k}, v{sn+2*k}, v{sn+2*k+1}")

def k_compute(a, R, X, sc, WK, T, rowreg):
    assert sc % 2 == 0 and T % 2 == 0 and X % 4 == 0
    pos, cs, sn, u = T, T + 2, T + 10, T + 18
    a(f"v_lshlrev_b32 v{sc}, 16, v{sc}")
    a(f"v_lshlrev_b32 v{sc+1}, 16, v{sc+1}")
    a(f"v_cvt_f32_u32 v{pos}, v{R.krr}")
    a(f"v_cvt_f32_u32 v{pos+1}, s{rowreg}")
    a(f"v_mul_f32 v{sc+1}, v{sc+1}, v{sc}")
    a(f"v_add_f32 v{pos}, v{pos}, v{pos+1}")
    for k in range(32):
        a(f"v_cvt_f32_i32 v{X+k}, v{X+k}")
    sincos8(a, pos, WK, cs, sn)
    for k in range(16):
        a(f"v_pk_fma_f32 {vp(X+2*k)}, {vp(X+2*k)}, {vp(sc)}, {vp(sc)} op_sel:[0,0,1] op_sel_hi:[1,0,1] neg_lo:[0,0,1] neg_hi:[0,0,1]")
    rope8(a, X, X + 16, cs, sn, u, X, X + 16)
    sincos8(a, pos, WK + 8, cs, sn)
    a("s_nop 0")
    rope8(a, X + 8, X + 24, cs, sn, u, X + 8, X + 24)
    a(f"s_lshr_b32 s{S_T0}, s{rowreg}, 4")
    a(f"s_lshl_b32 s{S_T0}, s{S_T0}, 13")
    a(f"s_and_b32 s{S_T1}, s{rowreg}, 8")
    a(f"s_lshl_b32 s{S_T1}, s{S_T1}, 4")
    a(f"s_add_u32 s{S_T0}, s{S_T0}, s{S_T1}")
    a(f"s_add_u32 s{S_T1}, s{S_T0}, 4096")
    for c in range(4):
        b = X + c * 8
        so = S_T0 if c < 2 else S_T1
        a(f"buffer_store_dwordx4 v[{b}:{b+3}], v{R.kst}, s[{S_KSRD}:{S_KSRD+3}], s{so} offen offset:{(c&1)*2048}{STF}")

def v_compute(a, R, X, SC, T, treg, wreg):
    M = S_MASK
    SZ = T
    for j in range(8):
        src_s = SC + 2 * (j >> 2) + ((j & 3) >> 1)
        src_z = SC + 4 + 2 * (j >> 2) + ((j & 3) >> 1)
        if j & 1:
            a(f"v_and_b32 v{SZ+2*j}, s{M}, v{src_s}"); a(f"v_and_b32 v{SZ+2*j+1}, s{M}, v{src_z}")
        else:
            a(f"v_lshlrev_b32 v{SZ+2*j}, 16, v{src_s}"); a(f"v_lshlrev_b32 v{SZ+2*j+1}, 16, v{src_z}")
    for k in range(32):
        a(f"v_cvt_f32_i32 v{X+k}, v{X+k}")
    for j in range(8):
        a(f"v_mul_f32 v{SZ+2*j+1}, v{SZ+2*j+1}, v{SZ+2*j}")
    for j in range(8):
        for h in range(2):
            x = X + 4 * j + 2 * h
            a(f"v_pk_fma_f32 {vp(x)}, {vp(x)}, {vp(SZ+2*j)}, {vp(SZ+2*j)} op_sel:[0,0,1] op_sel_hi:[1,0,1] neg_lo:[0,0,1] neg_hi:[0,0,1]")
    O = T
    for db in range(4):
        for jj in range(4):
            a(f"v_cvt_pk_bf16_f32 v{O+db*4+jj}, v{X+(2*jj)*4+db}, v{X+(2*jj+1)*4+db}")
    a(f"s_lshr_b32 s{S_T0}, s{treg}, 2")
    a(f"s_lshl_b32 s{S_T0}, s{S_T0}, 16")
    a(f"s_lshl_b32 s{S_T1}, s{wreg}, 14")
    a(f"s_add_u32 s{S_T0}, s{S_T0}, s{S_T1}")
    a(f"s_sub_u32 s{S_T1}, s{treg}, s{wreg}")
    a(f"s_and_b32 s{S_T1}, s{S_T1}, 3")
    a(f"s_lshl_b32 s{S_T1}, s{S_T1}, 10")
    a(f"s_add_u32 s{S_T0}, s{S_T0}, s{S_T1}")
    for db in range(4):
        if db:
            a(f"s_add_u32 s{S_T0}, s{S_T0}, 4096")
        a(f"buffer_store_dwordx4 v[{O+4*db}:{O+4*db+3}], v{R.vst}, s[{S_VSRD}:{S_VSRD+3}], s{S_T0} offen{STF}")

def freq_consts(a, dst, n, dbase_v, offs):
    a(f"s_mov_b32 s{S_T0}, 0x{f32bits(-LOG2_10000_128):08x}")
    for k in range(n):
        a(f"v_mov_b32 v{dst+k}, 0x{f32bits(-LOG2_10000_128 * offs[k] - LOG2_2PI):08x}")
    for k in range(n):
        a(f"v_fma_f32 v{dst+k}, v{dbase_v}, s{S_T0}, v{dst+k}")
    for k in range(n):
        a(f"v_exp_f32 v{dst+k}, v{dst+k}")
    a("s_nop 0")

def rope_q(a, src, T, pos, wq):
    M = S_MASK
    q1, q2, cs, sn, u, out = T, T + 8, T + 16, T + 24, T + 32, T
    sincos8(a, pos, wq, cs, sn)
    for k in range(4):
        a(f"v_lshlrev_b32 v{q1+2*k}, 16, v{src+k}"); a(f"v_and_b32 v{q1+2*k+1}, s{M}, v{src+k}")
        a(f"v_lshlrev_b32 v{q2+2*k}, 16, v{src+4+k}"); a(f"v_and_b32 v{q2+2*k+1}, s{M}, v{src+4+k}")
    for k in range(4):
        a(f"v_pk_mul_f32 {vp(cs+2*k)}, {vp(cs+2*k)}, s[{S_C}:{S_C+1}] op_sel_hi:[1,0]")
    for k in range(4):
        a(f"v_pk_mul_f32 {vp(sn+2*k)}, {vp(sn+2*k)}, s[{S_C}:{S_C+1}] op_sel_hi:[1,0]")
    rope8(a, q1, q2, cs, sn, u, out, out + 4)
    return out

def task_params(a, rnd, pk, pt, pw):
    a(f"s_and_b32 s{S_T0}, s{S_W}, 1")
    a(f"s_lshl_b32 s{S_T1}, s{S_J}, 1")
    a(f"s_add_u32 s{S_T0}, s{S_T0}, s{S_T1}")
    if pk is not None:
        a(f"s_lshl_b32 s{pk}, s{S_T0}, 3")
        if isinstance(rnd, int): a(f"s_add_u32 s{pk}, s{pk}, {512*rnd}")
        else:
            a(f"s_lshl_b32 s{S_T1}, s{rnd[1]}, 9"); a(f"s_add_u32 s{pk}, s{pk}, s{S_T1}")
    if pt is not None:
        a(f"s_lshr_b32 s{pt}, s{S_T0}, 2")
        if isinstance(rnd, int): a(f"s_add_u32 s{pt}, s{pt}, {16*rnd}")
        else:
            a(f"s_lshl_b32 s{S_T1}, s{rnd[1]}, 4"); a(f"s_add_u32 s{pt}, s{pt}, s{S_T1}")
        a(f"s_and_b32 s{pw}, s{S_T0}, 3")

def task_addr(a, R, tmp, k=True, v=True):
    if k:
        a(f"v_and_b32 v{tmp}, 7, v0")
        a(f"v_bfe_u32 v{R.krr}, v0, 3, 3")
        a(f"v_lshlrev_b32 v{R.kraw}, 10, v{R.krr}")
        a(f"v_lshl_add_u32 v{R.kraw}, v{tmp}, 5, v{R.kraw}")
        a(f"v_lshrrev_b32 v{tmp+1}, 2, v{tmp}")
        a(f"v_lshlrev_b32 v{R.kst}, 10, v{tmp+1}")
        a(f"v_and_b32 v{tmp+1}, 3, v{tmp}")
        a(f"v_lshl_add_u32 v{R.kst}, v{tmp+1}, 8, v{R.kst}")
        a(f"v_lshl_add_u32 v{R.kst}, v{R.krr}, 4, v{R.kst}")
    if v:
        a(f"v_and_b32 v{tmp}, 15, v0")
        a(f"v_bfe_u32 v{tmp+1}, v0, 4, 2")
        a(f"v_lshlrev_b32 v{R.vraw}, 12, v{tmp+1}")
        a(f"v_lshl_add_u32 v{R.vraw}, v{tmp}, 4, v{R.vraw}")
        a(f"v_and_b32 v{R.vst}, 63, v0")
        a(f"v_lshlrev_b32 v{R.vst}, 4, v{R.vst}")

def publish(a, val, lbl, t):
    a(f"s_cmp_lg_u32 s{S_W}, 0")
    a(f"s_cbranch_scc1 {lbl}")
    a(f"s_mov_b64 exec, 1")
    a(f"s_add_u32 s{S_T1}, s{S_NONCE}, {val}")
    a(f"v_mov_b32 v{t}, s{S_T1}")
    a(f"s_lshl_b32 s{S_T0}, s{S_HEAD}, 5")
    a(f"s_add_u32 s{S_T0}, s{S_T0}, s{S_J}")
    a(f"s_lshl_b32 s{S_T0}, s{S_T0}, 7")
    a(f"v_mov_b32 v{t+1}, s{S_T0}")
    a(f"global_store_dword v{t+1}, v{t}, s[{S_FLG}:{S_FLG+1}] sc1")
    a(f"s_mov_b64 exec, -1")
    a.label(lbl)

def flag_load(a):
    a(f"global_load_dword v{V_FLAG}, v{V_FADDR}, s[{S_FLG}:{S_FLG+1}] sc1")
def flag_check(a):
    a(f"v_subrev_u32 v{V_FLAG}, s{S_NEED}, v{V_FLAG}")
    a(f"v_cmp_lt_u32 vcc, s{S_RANGE}, v{V_FLAG}")
def set_need(a, need):
    a(f"s_add_u32 s{S_NEED}, s{S_NONCE}, {need}")
    a(f"s_mov_b32 s{S_RANGE}, {4-need}")
def spin(a, name):
    a(f"s_mov_b32 s{S_SPIN}, 0")
    a.label(f"L_spin_{name}")
    flag_load(a)
    a("s_waitcnt vmcnt(0)")
    flag_check(a)
    a(f"s_add_u32 s{S_SPIN}, s{S_SPIN}, 1")
    a(f"s_cmp_lt_u32 s{S_SPIN}, 0x8000")
    a(f"s_cbranch_scc0 L_spin_{name}_done")
    a("s_nop 3")
    a(f"s_cbranch_vccnz L_spin_{name}")
    a.label(f"L_spin_{name}_done")

def tile_off(dst, tadd, tmp):
    return [I_salu(f"s_add_u32 s{dst}, s{S_I}, {tadd}"),
            I_salu(f"s_add_u32 s{tmp}, s{dst}, s{S_ROT}"),
            I_salu(f"s_and_b32 s{tmp}, s{tmp}, 3"),
            I_salu(f"s_and_b32 s{dst}, s{dst}, 12"),
            I_salu(f"s_or_b32 s{dst}, s{dst}, s{tmp}"),
            I_salu(f"s_lshl_b32 s{dst}, s{dst}, 16")]

def pv_item(t, db, qb, p):
    par = t & 1
    f = db * 4 + p
    o = A_O + (db * 4 + qb) * 4
    b = V_PO + 16 * par + qb * 4 if p == 0 else V_PF + (p - 1) * 16 + qb * 4
    return I_mfma(f"{MF} a[{o}:{o+3}], v[{V_V+4*f}:{V_V+4*f+3}], v[{b}:{b+3}], a[{o}:{o+3}]")

def p_reads(t):
    par = t & 1
    r = []
    for p in range(1, 4):
        for qb in range(4):
            dst = V_PF + (p - 1) * 16 + qb * 4
            r.append(I_lds(f"ds_read_b128 v[{dst}:{dst+3}], v{V_PR+p-1} offset:{par*16384+qb*1024}", ("PR", t, p, qb)))
    return r

def build_iter(i, opt, NT=16):
    has_qk = (i + 1) < NT
    has_sm = 0 <= i < NT
    has_pv = 1 <= i <= NT
    mf = []
    if has_qk:
        mf += qk_mfmas(i + 1, opt, NT)
    nqk = len(mf)
    if has_pv:
        t = i - 1
        for db in range(4):
            for qb in range(4):
                for p in range(4):
                    pre = []
                    if qb == 0 and p == 0:
                        pre.append(I_wvm(("V", t, db * 4 + 3)))
                    if db == 0 and qb == 0 and p == 1:
                        pre.append(I_wlds(("PR", t, 3, 3)))
                    post = []
                    if qb == 3 and t + 1 < NT:
                        post.append(vload(t + 1, db * 4 + p, S_VOFF))
                    mf.append([pre, pv_item(t, db, qb, p), post])
    respread_loads(mf, i, NT, opt)
    if i == 15:
        mf[0][2] = [vload(14, j, S_VOFF) for j in range(9, 16)] + mf[0][2]
    reads = p_reads(i - 1) if has_pv else []
    sm = softmax_stream(i, opt) if has_sm else []
    head = []
    full = len(mf) == 128
    if has_qk:
        head += tile_off(S_KOFF, 2, S_T4) + [I_salu(f"s_cmp_lt_u32 s{S_I}, {NT-2}"), I_salu(f"s_cselect_b32 s{S_KUSE}, s{S_KOFF}, 0x100000")]
    if has_pv:
        vup = tile_off(S_VOFF, 0, S_T3)
        if full:
            for k, x in enumerate(vup):
                mf[41 + k][2].append(x)
        else:
            head += vup
    if full and i % 2 == 1:
        txt = (f"s_bitcmp1_b32 s{S_FMASK}, s{S_I}\ns_cbranch_scc0 L_noflagld\n"
               f"global_load_dword v{V_FLAG}, v{V_FADDR}, s[{S_FLG}:{S_FLG+1}] sc1\nL_noflagld:")
        mf[opt.flag_gap][2].append(I_raw(txt))
    return schedule(mf, head, reads, sm, nqk, opt)

def build_it0_k1o(opt):
    mf = []
    S = V_S + 32
    for kb in range(2):
        for qb in range(4):
            for s in range(8):
                f = kb * 8 + s
                d = f"v[{S+(kb*4+qb)*4}:{S+(kb*4+qb)*4+3}]"
                c = "0" if s == 0 else d
                pre = [I_wvm(("K", 1, kb * 8 + 7))] if (qb == 0 and s == 0) else []
                mf.append([pre, I_mfma(f"{MF} {d}, a[{A_O+4*f}:{A_O+4*f+3}], a[{A_Q+(qb*8+s)*4}:{A_Q+(qb*8+s)*4+3}], {c}"), []])
    for k in range(32):
        mf[32 + k][2].append(I_valu(f"v_accvgpr_write_b32 a{A_O+k}, 0"))
    items = schedule(mf, [], [], softmax_stream(0, opt), 64, opt)
    items += [I_valu(f"v_accvgpr_write_b32 a{A_O+32+k}, 0") for k in range(32)]
    return items

def build_last(opt, T, V_OUT):
    t = 15
    mf = []
    for qb in range(4):
        for db in range(4):
            for p in range(4):
                pre = []
                if qb == 0 and p == 0:
                    pre.append(I_wvm(("V", t, db * 4 + 3)))
                if qb == 0 and db == 0 and p == 1:
                    pre.append(I_wlds(("PR", t, 3, 3)))
                mf.append([pre, pv_item(t, db, qb, p), []])
    def epi(qb):
        it = []
        inv = T + 4 * qb
        tb = 48 + (qb & 1) * 16
        for par in range(2):
            for k in range(par, 8, 2):
                r = k >> 1
                c = 2 * (k & 1)
                x = tb + 2 * k
                it.append(I_valu(f"v_accvgpr_read_b32 v{x}, a{A_O+((c)*4+qb)*4+r}"))
                it.append(I_valu(f"v_accvgpr_read_b32 v{x+1}, a{A_O+((c+1)*4+qb)*4+r}"))
        for k in range(8):
            x = tb + 2 * k
            it.append(I_valu(f"v_pk_mul_f32 {vp(x)}, {vp(x)}, {vp(inv)} op_sel_hi:[1,0]"))
        for half in range(2):
            o = 16 + (qb * 2 + half) * 4
            for kk in range(4):
                x = tb + 2 * (half * 4 + kk)
                it.append(I_valu(f"v_cvt_pk_bf16_f32 v{o+kk}, v{x}, v{x+1}"))
            so = "0" if qb == 0 else f"s{S_T0+qb-1}"
            it.append(I_vm(f"buffer_store_dwordx4 v[{o}:{o+3}], v{V_OUT}, s[{S_OSRD}:{S_OSRD+3}], {so} offen offset:{half*16}{OUTF}", ("O", qb, half)))
        return it
    linv = [I_wlds(("LR", 3))]
    for qb in range(4):
        b = T + 4 * qb
        linv += [I_valu(f"v_add_f32 v{b}, v{b}, v{b+1}"), I_valu(f"v_add_f32 v{b+2}, v{b+2}, v{b+3}")]
    for qb in range(4):
        b = T + 4 * qb
        linv.append(I_valu(f"v_add_f32 v{b}, v{b}, v{b+2}"))
    linv.append(I_valu(f"v_max3_f32 v{T+1}, v{T}, v{T+4}, v{T+8}"))
    linv.append(I_valu(f"v_min3_f32 v{T+2}, v{T}, v{T+4}, v{T+8}"))
    linv.append(I_valu(f"v_max_f32 v{T+1}, v{T+1}, v{T+12}"))
    linv.append(I_valu(f"v_min_f32 v{T+2}, v{T+2}, v{T+12}"))
    linv.append(I_valu(f"v_cmp_lt_f32 vcc, s{S_T3}, v{T+1}"))
    linv.append(I_valu(f"v_cmp_gt_f32 s[{S_RET}:{S_RET+1}], s{S_T4}, v{T+2}"))
    for qb in range(4):
        b = T + 4 * qb
        linv.append(I_valu(f"v_rcp_f32 v{b}, v{b}", 8))
    linv.append(I_raw(f"s_or_b64 vcc, vcc, s[{S_RET}:{S_RET+1}]\ns_cbranch_vccnz L_slow"))
    items = []
    lreads = [I_lds(f"ds_read_b128 v[{T+4*qb}:{T+4*qb+3}], v{LRREG} offset:{qb*256}", ("LR", qb)) for qb in range(4)]
    head = [I_salu(f"s_mov_b32 s{S_T0+k}, {8192*(k+1)}") for k in range(3)] + [I_salu(f"s_mov_b32 s{S_T3}, 0x5d800000"), I_salu(f"s_mov_b32 s{S_T4}, 0x21800000")] + p_reads(t) + lreads
    gaps = [[] for _ in range(64)]
    q = list(linv)
    g = 4
    while q:
        gaps[g] += q[:2]; q = q[2:]; g = min(g + 1, 15) if g < 15 else 15
    for qb in range(3):
        e = epi(qb)
        g0 = 16 * (qb + 1) + 3
        per = (len(e) + 12) // 13
        g = g0
        while e:
            gaps[g] += e[:per]; e = e[per:]; g = min(g + 1, 63)
    for k, (pre, m, post) in enumerate(mf):
        items += pre
        items.append(m)
        if k == 0:
            items += head
        items += gaps[k]
    items.append(I_raw("s_nop 7"))
    items += epi(3)
    return items

def gen_slow(a, opt, T, V_LW, V_LR, V_OUT):
    M, F, X_ = 48, 52, 56
    S = V_S
    a.label("L_slow")
    a("s_waitcnt vmcnt(0) lgkmcnt(0)")
    a("s_nop 15")
    a("s_barrier")
    for r in range(64): a(f"v_accvgpr_write_b32 a{A_O+r}, 0")
    for qb in range(4):
        a(f"v_mov_b32 v{V_L+qb}, 0")
        a(f"v_mov_b32 v{M+qb}, 0xff7fffff")
    a(f"s_mov_b32 s{S_I}, 0")
    a.label("L_slow_loop")
    a(f"s_lshl_b32 s{S_KUSE}, s{S_I}, 16")
    a(f"s_mov_b32 s{S_VOFF}, s{S_KUSE}")
    for f in range(16): a(kload(0, f, S_KUSE).text)
    for f in range(16): a(vload(0, f, S_VOFF).text)
    a("s_waitcnt vmcnt(16)")
    for kb in range(2):
        for qb in range(4):
            for sx in range(8):
                f = kb * 8 + sx
                d = f"v[{S+(kb*4+qb)*4}:{S+(kb*4+qb)*4+3}]"
                c = "0" if sx == 0 else d
                a(f"{MF} {d}, a[{A_K+4*f}:{A_K+4*f+3}], a[{A_Q+(qb*8+sx)*4}:{A_Q+(qb*8+sx)*4+3}], {c}")
    a("s_nop 15")
    for qb in range(4):
        x0, x1 = S + qb * 4, S + (4 + qb) * 4
        a(f"v_max3_f32 v{F+qb}, v{x0}, v{x0+1}, v{x0+2}")
        a(f"v_max3_f32 v{F+qb}, v{F+qb}, v{x0+3}, v{x1}")
        a(f"v_max3_f32 v{F+qb}, v{F+qb}, v{x1+1}, v{x1+2}")
        a(f"v_max_f32 v{F+qb}, v{F+qb}, v{x1+3}")
    for swap in ("v_permlane32_swap_b32", "v_permlane16_swap_b32"):
        for qb in range(4): a(f"v_mov_b32 v{X_+qb}, v{F+qb}")
        a("s_nop 1")
        for qb in range(4): a(f"{swap} v{X_+qb}, v{F+qb}")
        a("s_nop 1")
        for qb in range(4): a(f"v_max_f32 v{F+qb}, v{F+qb}, v{X_+qb}")
    for qb in range(4): a(f"ds_write_b32 v{V_LW}, v{F+qb} offset:{qb*256}")
    a("s_waitcnt lgkmcnt(0)")
    a("s_barrier")
    for qb in range(4): a(f"ds_read_b128 v[{X_+4*qb}:{X_+4*qb+3}], v{V_LR} offset:{qb*256}")
    a("s_waitcnt lgkmcnt(0)")
    for qb in range(4):
        b = X_ + 4 * qb
        a(f"v_max3_f32 v{b}, v{b}, v{b+1}, v{b+2}")
        a(f"v_max3_f32 v{b}, v{b}, v{b+3}, v{M+qb}")
        a(f"v_sub_f32 v{F+qb}, v{M+qb}, v{b}")
        a(f"v_mov_b32 v{M+qb}, v{b}")
    for qb in range(4): a(f"v_exp_f32 v{F+qb}, v{F+qb}")
    a("s_nop 0")
    for qb in range(4): a(f"v_mul_f32 v{V_L+qb}, v{V_L+qb}, v{F+qb}")
    for db in range(4):
        for qb in range(4):
            for r in range(4):
                o = A_O + (db * 4 + qb) * 4 + r
                a(f"v_accvgpr_read_b32 v{X_}, a{o}")
                a(f"v_mul_f32 v{X_}, v{X_}, v{F+qb}")
                a(f"v_accvgpr_write_b32 a{o}, v{X_}")
    for qb in range(4):
        for kb in range(2):
            for r in range(4):
                x = S + (kb * 4 + qb) * 4 + r
                a(f"v_sub_f32 v{x}, v{x}, v{M+qb}")
        for kb in range(2):
            for r in range(4):
                x = S + (kb * 4 + qb) * 4 + r
                a(f"v_exp_f32 v{x}, v{x}")
        a("s_nop 0")
        for kb in range(2):
            for r in range(4):
                x = S + (kb * 4 + qb) * 4 + r
                a(f"v_add_f32 v{V_L+qb}, v{V_L+qb}, v{x}")
        for kb in range(2):
            for h in range(2):
                x = S + (kb * 4 + qb) * 4 + 2 * h
                a(f"v_cvt_pk_bf16_f32 v{V_PO+qb*4+kb*2+h}, v{x}, v{x+1}")
        a(f"ds_write_b128 v{V_PW}, v[{V_PO+qb*4}:{V_PO+qb*4+3}] offset:{qb*1024}")
    a("s_waitcnt lgkmcnt(0)")
    a("s_barrier")
    for it in p_reads(0): a(it.text)
    a("s_waitcnt vmcnt(0) lgkmcnt(0)")
    for db in range(4):
        for qb in range(4):
            for p in range(4):
                a(pv_item(0, db, qb, p).text)
    a("s_nop 15")
    a("s_barrier")
    a(f"s_add_u32 s{S_I}, s{S_I}, 1")
    a(f"s_cmp_lt_u32 s{S_I}, 16")
    a("s_cbranch_scc1 L_slow_loop")
    for swap in ("v_permlane32_swap_b32", "v_permlane16_swap_b32"):
        for qb in range(4): a(f"v_mov_b32 v{X_+qb}, v{V_L+qb}")
        a("s_nop 1")
        for qb in range(4): a(f"{swap} v{X_+qb}, v{V_L+qb}")
        a("s_nop 1")
        for qb in range(4): a(f"v_add_f32 v{V_L+qb}, v{V_L+qb}, v{X_+qb}")
    for qb in range(4): a(f"ds_write_b32 v{V_LW}, v{V_L+qb} offset:{qb*256}")
    a("s_waitcnt lgkmcnt(0)")
    a("s_barrier")
    for qb in range(4): a(f"ds_read_b128 v[{T+4*qb}:{T+4*qb+3}], v{V_LR} offset:{qb*256}")
    a("s_waitcnt lgkmcnt(0)")
    for qb in range(4):
        b = T + 4 * qb
        a(f"v_add_f32 v{b}, v{b}, v{b+1}"); a(f"v_add_f32 v{b+2}, v{b+2}, v{b+3}")
        a(f"v_add_f32 v{b}, v{b}, v{b+2}")
        a(f"v_rcp_f32 v{b}, v{b}")
    a("s_nop 0")
    for qb in range(4):
        inv = T + 4 * qb
        a(f"s_mov_b32 s{S_T0}, {qb*8192}")
        for half in range(2):
            o = 16 + half * 4
            for kk in range(4):
                k = half * 4 + kk
                r = k >> 1
                c = 2 * (k & 1)
                a(f"v_accvgpr_read_b32 v{X_}, a{A_O+((c)*4+qb)*4+r}")
                a(f"v_accvgpr_read_b32 v{X_+1}, a{A_O+((c+1)*4+qb)*4+r}")
                a(f"v_mul_f32 v{X_}, v{X_}, v{inv}")
                a(f"v_mul_f32 v{X_+1}, v{X_+1}, v{inv}")
                a(f"v_cvt_pk_bf16_f32 v{o+kk}, v{X_}, v{X_+1}")
            a(f"buffer_store_dwordx4 v[{o}:{o+3}], v{V_OUT}, s[{S_OSRD}:{S_OSRD+3}], s{S_T0} offen offset:{half*16}")
            a("s_nop 1")
    a("s_endpgm")

def gen_fused(a, opt):
    global OUTF, LRREG
    NT = 16
    st = Stamp(a, opt)
    PP = RM(); PP.kraw, PP.krr, PP.kst, PP.vraw, PP.vst = 248, 249, 250, 251, 252
    PP.ksc, PP.vsc = 253, 254
    V_QW, V_QR, V_QOFF = 8, 9, 14
    X, Y, QD, TT = 16, 48, 96, 160
    Z = X
    WK, WQ = 200, 128
    SC0, SC1, SC2, SC3 = 216, 224, 232, 240
    QPOS, V_NON, V_ZERO, VJ = 136, 138, 139, 140
    K1V = 96
    T = 240
    a.label(KNAME)
    a("s_cmp_ge_u32 s2, 256" if not opt.empty else "s_cmp_ge_u32 s2, 0")
    a("s_cbranch_scc1 L_done")
    st(force=True)
    if opt.dbgspan:
        a("s_memrealtime s[72:73]")
        a("s_waitcnt lgkmcnt(0)")
        a("s_not_b32 s98, s72")
    a("s_load_dwordx16 s[40:55], s[0:1], 0")
    a("s_load_dwordx2 s[62:63], s[0:1], 88")
    a("s_load_dwordx4 s[64:67], s[0:1], 96")
    if opt.codepf:
        a("s_getpc_b64 s[4:5]")
        a.label("L_pc")
        a("v_lshlrev_b32 v30, 7, v0")
        a(f"v_min_u32 v30, L_code_end-L_pc-4, v30")
        a("global_load_dword v31, v30, s[4:5]")
    a(f"s_and_b32 s{S_HEAD}, s2, 7")
    a(f"s_lshr_b32 s{S_J}, s2, 3")
    a("v_lshrrev_b32 v1, 6, v0")
    a("v_and_b32 v2, 15, v0")
    a("v_bfe_u32 v3, v0, 4, 2")
    a(f"v_readfirstlane_b32 s{S_W}, v1")
    task_addr(a, PP, 4)
    a("v_lshl_add_u32 v4, v1, 4, v3")
    a(f"v_lshlrev_b32 v{V_QOFF}, 9, v4")
    a(f"v_lshl_add_u32 v{V_QOFF}, v2, 4, v{V_QOFF}")
    task_params(a, 0, 68, 69, 70)
    a(f"s_lshl_b32 s{S_T4}, s{S_HEAD}, 21")
    a("s_waitcnt lgkmcnt(0)")
    isB = lambda lbl: (a(f"s_cmp_ge_u32 s{S_W}, 2"), a(f"s_cbranch_scc1 {lbl}"))
    make_srd(a, S_RAWK, 42, S_T4, 0x200000)
    a(f"s_lshl_b32 s{S_T0}, s{S_HEAD}, 20")
    a(f"s_lshl_b32 s{S_T3}, s{S_J}, 15")
    a(f"s_add_u32 s{S_T2}, s{S_T0}, s{S_T3}")
    make_srd(a, S_OSRD, 62, S_T2, 32768)
    make_srd(a, S_RAWV, 48, S_T4, 0x200000)
    make_srd(a, S_QSRD, 40, S_T2, 32768)
    isB("L_B_i0")
    k_raw_loads(a, PP, X, 68)
    a(f"s_lshl_b32 s{S_T2}, s{S_HEAD}, 12")
    make_srd(a, S_KSC, 44, S_T2, 4096)
    make_srd(a, S_KZ, 46, S_T2, 4096)
    a(f"v_lshlrev_b32 v{PP.ksc}, 1, v{PP.krr}")
    k_scale_loads(a, PP, 68, SC0)
    a(f"s_lshl_b32 s{S_T2}, s{S_HEAD}, 12")
    make_srd(a, S_VSC, 50, S_T2, 4096)
    make_srd(a, S_VZ, 52, S_T2, 4096)
    a(f"v_lshlrev_b32 v{PP.vsc}, 3, v3")
    a("s_branch L_i0_done")
    a.label("L_B_i0")
    v_raw_loads(a, PP, X, 69, 70)
    a(f"s_lshl_b32 s{S_T2}, s{S_HEAD}, 12")
    make_srd(a, S_VSC, 50, S_T2, 4096)
    make_srd(a, S_VZ, 52, S_T2, 4096)
    a(f"v_lshlrev_b32 v{PP.vsc}, 3, v3")
    v_scale_loads(a, PP, SC0, 69)
    a(f"s_lshl_b32 s{S_T2}, s{S_HEAD}, 12")
    make_srd(a, S_KSC, 44, S_T2, 4096)
    make_srd(a, S_KZ, 46, S_T2, 4096)
    a(f"v_lshlrev_b32 v{PP.ksc}, 1, v{PP.krr}")
    a.label("L_i0_done")
    a("s_mov_b32 s41, 4096")
    for it in range(4):
        so = "0" if it < 2 else "s41"
        io = (it & 1) * 2048
        b = QD + 8 * it
        a(f"buffer_load_dwordx4 v[{b}:{b+3}], v{V_QOFF}, s[{S_QSRD}:{S_QSRD+3}], {so} offen offset:{io}")
        a(f"buffer_load_dwordx4 v[{b+4}:{b+7}], v{V_QOFF}, s[{S_QSRD}:{S_QSRD+3}], {so} offen offset:{io+256}")
    a(f"s_mov_b32 s{S_PK}, s68"); a(f"s_mov_b32 s{S_PT}, s69"); a(f"s_mov_b32 s{S_PW}, s70")
    task_params(a, 1, S_PK2, S_PT2, S_PW2)
    task_params(a, 2, 68, 69, 70)
    task_params(a, 3, 46, 47, 48)
    a(f"v_mov_b32 v{V_ZERO}, 0")
    isB("L_B_sc")
    v_scale_loads(a, PP, SC1, S_PT2); k_scale_loads(a, PP, 68, SC2); v_scale_loads(a, PP, SC3, 47)
    a("s_branch L_sc_done")
    a.label("L_B_sc")
    k_scale_loads(a, PP, S_PK2, SC1); v_scale_loads(a, PP, SC2, 69); k_scale_loads(a, PP, 46, SC3)
    a.label("L_sc_done")
    NSA, NSB = 10, 8
    a(f"s_mov_b32 s{S_DBG}, s64"); a(f"s_mov_b32 s{S_DBG+1}, s65")
    a(f"s_or_b32 s{S_T0}, s{S_HEAD}, s{S_J}")
    a(f"s_or_b32 s{S_T0}, s{S_T0}, s{S_W}")
    a(f"s_cmp_lg_u32 s{S_T0}, 0")
    a("s_cbranch_scc1 L_nononce")
    a("s_memrealtime s[100:101]")
    a("s_waitcnt lgkmcnt(0)")
    a("s_lshl_b32 s100, s100, 3")
    a("s_or_b32 s100, s100, 0x80000000")
    a("s_and_b32 s100, s100, 0xfffffff8")
    a(f"v_mov_b32 v{VJ}, s100")
    a("s_mov_b64 exec, 1")
    a(f"global_store_dword v{V_ZERO}, v{VJ}, s[{S_DBG}:{S_DBG+1}] sc1")
    a("s_mov_b64 exec, -1")
    a.label("L_nononce")
    a(f"global_load_dword v{V_NON}, v{V_ZERO}, s[{S_DBG}:{S_DBG+1}] sc1")
    def issue(kind_for_A, buf, pk, pt, pw, tag):
        isB(f"L_B_{tag}")
        (k_raw_loads(a, PP, buf, pk) if kind_for_A == "K" else v_raw_loads(a, PP, buf, pt, pw))
        a(f"s_branch L_{tag}_done")
        a.label(f"L_B_{tag}")
        (v_raw_loads(a, PP, buf, pt, pw) if kind_for_A == "K" else k_raw_loads(a, PP, buf, pk))
        a.label(f"L_{tag}_done")
    def comp(kind_for_A, buf, sc, pk, pt, pw, tag):
        isB(f"L_B_{tag}")
        (k_compute(a, PP, buf, sc, WK, TT, pk) if kind_for_A == "K" else v_compute(a, PP, buf, sc, TT, pt, pw))
        a(f"s_branch L_{tag}_done")
        a.label(f"L_B_{tag}")
        (v_compute(a, PP, buf, sc, TT, pt, pw) if kind_for_A == "K" else k_compute(a, PP, buf, sc, WK, TT, pk))
        a.label(f"L_{tag}_done")
    if opt.r1early:
        issue("V", Y, S_PK2, S_PT2, S_PW2, "i1")
    NR1 = 8 if opt.r1early else 0
    a(f"s_mov_b32 s{S_MASK}, 0xffff0000")
    a(f"s_mov_b32 s{S_C}, 0x{f32bits(math.log2(math.e)/16.0):08x}")
    a(f"s_and_b32 s{S_ROT}, s{S_J}, 3")
    a(f"s_lshl_b32 s{S_T0}, s{S_HEAD}, 20")
    make_srd(a, S_KSRD, 66, S_T0, 0x100000)
    a(f"s_add_u32 s{S_T1}, s{S_T0}, 0x800000")
    make_srd(a, S_VSRD, 66, S_T1, 0x100000)
    a(f"s_add_u32 s{S_FLG}, s66, 0x1000000")
    a(f"s_addc_u32 s{S_FLG+1}, s67, 0")
    if opt.stamp:
        a(f"s_mov_b32 s{S_STW}, s66"); a(f"s_mov_b32 s{S_STW+1}, s67")
    a(f"s_lshl_b32 s{S_T0}, s{S_J}, 6")
    a(f"v_add_u32 v{QPOS}, s{S_T0}, v4")
    a(f"v_cvt_f32_u32 v{QPOS}, v{QPOS}")
    a(f"v_and_b32 v{TT}, 7, v0"); a(f"v_lshlrev_b32 v{TT}, 3, v{TT}"); a(f"v_cvt_f32_u32 v{TT}, v{TT}")
    a(f"v_lshlrev_b32 v{TT+1}, 3, v2"); a(f"v_cvt_f32_u32 v{TT+1}, v{TT+1}")
    freq_consts(a, WK, 16, TT, [64 * (k >> 3) + (k & 7) for k in range(16)])
    freq_consts(a, WQ, 8, TT + 1, list(range(8)))
    a(f"v_mul_u32_u24 v{V_QW}, {8*QFS}, v1")
    a(f"v_lshrrev_b32 v{TT}, 2, v2")
    a(f"v_mul_u32_u24 v{TT}, {QFS}, v{TT}")
    a(f"v_add_u32 v{V_QW}, v{V_QW}, v{TT}")
    a(f"v_and_b32 v{TT}, 3, v2")
    a(f"v_mul_u32_u24 v{TT}, {QGS}, v{TT}")
    a(f"v_add_u32 v{V_QW}, v{V_QW}, v{TT}")
    a(f"v_lshl_add_u32 v{V_QW}, v3, 4, v{V_QW}")
    a(f"v_mul_u32_u24 v{V_QR}, {QGS}, v3")
    a(f"v_lshl_add_u32 v{V_QR}, v2, 4, v{V_QR}")
    for r in range(64):
        a(f"v_accvgpr_write_b32 a{A_O+r}, 0")
    a(f"s_waitcnt vmcnt({8 + NSB + 1 + NR1})")
    st()
    comp("K", X, SC0, S_PK, S_PT, S_PW, "c0")
    if not opt.r1early:
        issue("V", Y, S_PK2, S_PT2, S_PW2, "i1")
    issue("K", Z, 68, 69, 70, "i2")
    st(level=2)
    a(f"s_waitcnt vmcnt(20)")
    def rope_it(it):
        if it:
            a(f"v_add_f32 v{QPOS}, 4.0, v{QPOS}")
        o = rope_q(a, QD + 8 * it, TT, QPOS, WQ)
        a(f"ds_write_b128 v{V_QW}, v[{o}:{o+3}] offset:{it*64}")
        a(f"ds_write_b128 v{V_QW}, v[{o+4}:{o+7}] offset:{it*64 + 4*QFS}")
    for it in range(4):
        rope_it(it)
    st(level=2)
    a(f"s_waitcnt vmcnt({8 if opt.r1early else 16})")
    st(level=2)
    a(f"v_readfirstlane_b32 s{S_NONCE}, v{V_NON}")
    a(f"s_cmp_lg_u32 s{S_NONCE}, 0")
    a("s_cbranch_scc1 L_have_nonce")
    a(f"s_mov_b32 s{S_SPIN}, 0")
    a.label("L_nonce_spin")
    a(f"global_load_dword v{V_NON}, v{V_ZERO}, s[{S_DBG}:{S_DBG+1}] sc1")
    a("s_waitcnt vmcnt(0)")
    a(f"v_readfirstlane_b32 s{S_NONCE}, v{V_NON}")
    a(f"s_add_u32 s{S_SPIN}, s{S_SPIN}, 1")
    a(f"s_cmp_ge_u32 s{S_SPIN}, 0x8000")
    a("s_cbranch_scc1 L_have_nonce")
    a(f"s_cmp_eq_u32 s{S_NONCE}, 0")
    a("s_cbranch_scc1 L_nonce_spin")
    a.label("L_have_nonce")
    a("s_waitcnt lgkmcnt(0)")
    a("s_barrier")
    publish(a, 1, "L_pub1", VJ)
    st()
    for qb in range(4):
        for s in range(8):
            b = A_Q + (qb * 8 + s) * 4
            a(f"ds_read_b128 a[{b}:{b+3}], v{V_QR} offset:{(qb*8+s)*QFS}")
    a("s_waitcnt vmcnt(8)")
    comp("V", Y, SC1, S_PK2, S_PT2, S_PW2, "c1")
    a("s_waitcnt lgkmcnt(0)")
    a(f"v_and_b32 v{TT}, 63, v0")
    a(f"v_lshrrev_b32 v{TT+1}, 6, v0")
    a(f"v_and_b32 v{V_FADDR}, 31, v0")
    a(f"s_lshl_b32 s{S_T0}, s{S_HEAD}, 5")
    a(f"v_add_u32 v{V_FADDR}, s{S_T0}, v{V_FADDR}")
    a(f"v_lshlrev_b32 v{V_FADDR}, 7, v{V_FADDR}")
    flag_load(a)
    issue("V", Y, 46, 47, 48, "i3")
    a(f"v_lshlrev_b32 v{TT+2}, 4, v{TT}")
    a(f"v_add_u32 v{TT+3}, {LDS_P}, v{TT+2}")
    for t in range(1, 4):
        a(f"v_add_u32 v{TT+4}, {t}, v{TT+1}")
        a(f"v_and_b32 v{TT+4}, 3, v{TT+4}")
        a(f"v_lshl_add_u32 v{V_PR+t-1}, v{TT+4}, 12, v{TT+3}")
    a(f"v_lshl_add_u32 v{V_PW}, v{TT+1}, 12, v{TT+3}")
    a(f"v_lshl_add_u32 v{V_OFF}, v{TT+1}, 14, v{TT+2}")
    for k in range(1, 4):
        a(f"v_add_u32 v{V_OFF+k}, {4096*k}, v{V_OFF}")
    for r in range(4):
        a(f"v_mov_b32 v{V_L+r}, 0")
    a(f"s_mov_b32 s{S_FMASK}, {0x202 if opt.latepub else 0x2}")
    set_need(a, 1)
    a("s_waitcnt vmcnt(8)")
    flag_check(a)
    a("s_nop 4")
    a("s_cbranch_vccz L_chk_r0_ok")
    spin(a, "r0")
    a.label("L_chk_r0_ok")
    st()
    a(f"s_lshl_b32 s{S_KOFF}, s{S_ROT}, 16")
    a(f"s_mov_b32 s{S_VOFF}, s{S_KOFF}")
    a(f"s_mov_b32 s{S_KUSE}, s{S_KOFF}")
    pro = [kload(0, f, S_KUSE) for f in range(16)]
    if opt.k1o:
        a(f"s_add_u32 s{S_T0}, s{S_ROT}, 1")
        a(f"s_and_b32 s{S_T0}, s{S_T0}, 3")
        a(f"s_lshl_b32 s{S_T4}, s{S_T0}, 16")
        for f in range(16):
            pro.append(I_vm(f"buffer_load_dwordx4 v[{K1V+4*f}:{K1V+4*f+3}], v{V_OFF+(f>>2)}, s[{S_KSRD}:{S_KSRD+3}], s{S_T4} offen offset:{(f&3)*1024}{gen2.LDFLAGS}", ("K", 1, f)))
    for it in pro:
        a(it.text)
    comp("K", Z, SC2, 68, 69, 70, "c2")
    a(f"s_waitcnt vmcnt({20 + (16 if opt.k1o else 0)})")
    comp("V", Y, SC3, 46, 47, 48, "c3")
    st()
    endbar = [I_wlds("all"), I_raw("s_barrier")]
    mf = []
    for t in range(2):
        S = V_S + 32 * t
        for kb in range(2):
            for qb in range(4):
                for sx in range(8):
                    f = kb * 8 + sx
                    d = f"v[{S+(kb*4+qb)*4}:{S+(kb*4+qb)*4+3}]"
                    c = "0" if sx == 0 else d
                    pre_ = [I_wvm(("K", t, kb * 8 + 7))] if (qb == 0 and sx == 0) else []
                    A = f"a[{A_K+4*f}:{A_K+4*f+3}]" if t == 0 else f"v[{K1V+4*f}:{K1V+4*f+3}]"
                    mf.append([pre_, I_mfma(f"{MF} {d}, {A}, a[{A_Q+(qb*8+sx)*4}:{A_Q+(qb*8+sx)*4+3}], {c}"), []])
    for j in range(16):
        mf[28 + 4 * j if j < 8 else 64 + 4 * (j - 8)][2].append(kload(2, j, S_KUSE))
    for j in range(9):
        mf[92 + 4 * j][2].append(vload(0, j, S_VOFF))
    class O2: pass
    o2 = O2(); o2.__dict__.update(opt.__dict__); o2.sm_g0 = 68; o2.sm_g1 = 124; o2.pace = 0
    head0 = [I_salu(f"s_mov_b32 s{S_I}, 0")] + tile_off(S_KUSE, 2, S_T4)
    pre = schedule(mf, head0, [], softmax_stream(0, opt), 64, o2)
    it0 = [I_raw(f"s_waitcnt vmcnt({29 - 8 if opt.latepub else 25 - 8})") if False else I_raw(f"s_waitcnt vmcnt({29 if opt.latepub else 25})")] + endbar + [I_salu(f"s_mov_b32 s{S_I}, 1")]
    blocks = [("pro", pro + [I_vm("", ("ST", k)) for k in range(8)]), ("pre", pre), ("it0", it0)]
    stat = {}
    for i in range(1, 15):
        items = build_iter(i, opt) + [I_salu(f"s_add_u32 s{S_I}, s{S_I}, 1")] + endbar
        nm = "odd" if i % 2 else "even"
        blocks.append((nm, items))
        if nm not in stat: stat[nm] = items
        else: assert [x.text for x in stat[nm]] == [x.text for x in items], nm
    it15 = build_iter(15, opt)
    V_LW, V_LR, V_OUT = 231, 232, 233
    LRREG = V_LR
    red = [I_valu(f"v_and_b32 v224, 15, v0"), I_valu(f"v_lshrrev_b32 v225, 6, v0"), I_valu(f"v_bfe_u32 v226, v0, 4, 2"),
           I_valu(f"v_lshlrev_b32 v{V_LR}, 4, v224"), I_valu(f"v_add_u32 v{V_LR}, {LDS_L}, v{V_LR}"),
           I_valu(f"v_lshl_add_u32 v{V_LW}, v225, 2, v{V_LR}"), I_valu(f"v_lshlrev_b32 v{V_OUT}, 9, v224"),
           I_valu(f"v_lshl_add_u32 v{V_OUT}, v225, 7, v{V_OUT}"), I_valu(f"v_lshl_add_u32 v{V_OUT}, v226, 5, v{V_OUT}")]
    for qb in range(4): red.append(I_valu(f"v_mov_b32 v{T+qb}, v{V_L+qb}"))
    red.append(I_raw("s_nop 1"))
    for qb in range(4): red.append(I_valu(f"v_permlane32_swap_b32 v{T+qb}, v{V_L+qb}"))
    red.append(I_raw("s_nop 1"))
    for qb in range(4): red.append(I_valu(f"v_add_f32 v{V_L+qb}, v{V_L+qb}, v{T+qb}"))
    for qb in range(4): red.append(I_valu(f"v_mov_b32 v{T+qb}, v{V_L+qb}"))
    red.append(I_raw("s_nop 1"))
    for qb in range(4): red.append(I_valu(f"v_permlane16_swap_b32 v{T+qb}, v{V_L+qb}"))
    red.append(I_raw("s_nop 1"))
    for qb in range(4): red.append(I_valu(f"v_add_f32 v{V_L+qb}, v{V_L+qb}, v{T+qb}"))
    for qb in range(4): red.append(I_lds(f"ds_write_b32 v{V_LW}, v{V_L+qb} offset:{qb*256}", ("LW", qb)))
    it15 += red + endbar
    blocks.append(("it15", it15))
    it16 = build_last(opt, T, V_OUT)
    blocks.append(("it16", it16))
    waits = resolve_waits(blocks)
    emit_block(a, "pre", pre, waits)
    if opt.stamp == 5: st()
    emit_block(a, "it0", it0, waits)
    publish(a, 3 if opt.latepub else 4, "L_pub4", 158)
    def hook_site(name):
        if name == "odd":
            if opt.latepub:
                a(f"s_and_b32 s{S_T0}, s{S_I}, 7")
                a(f"s_cmp_eq_u32 s{S_T0}, 2")
            else:
                a(f"s_cmp_eq_u32 s{S_I}, 2")
            a(f"s_cbranch_scc1 L_hook")
            a.label("L_hook_ret")
    st()
    a.label("L_loop")
    base = st.n
    emit_block(a, "odd", stat["odd"], waits)
    if opt.stamp == 4: st.dyn(2, base - 4, 9)
    hook_site("odd")
    if opt.stamp == 3: st.dyn(1, base - 2, 15)
    if opt.stamp == 4: st.dyn(2, base - 3, 9)
    emit_block(a, "even", stat["even"], waits)
    if opt.stamp == 4: st.dyn(2, base - 4, 9)
    hook_site("even")
    if opt.stamp == 3:
        st.dyn(1, base - 2, 15); st.n = base + 14
    if opt.stamp == 4:
        st.dyn(2, base - 3, 9); st.n = base + 16
    a(f"s_cmp_lt_u32 s{S_I}, 15")
    a("s_cbranch_scc1 L_loop")
    if opt.stamp in (1, 2): st()
    emit_block(a, "it15", it15, waits)
    emit_block(a, "it16", it16, waits)
    if opt.stamp:
        a("s_waitcnt vmcnt(0)")
        st(force=True)
        st.finish()
    if opt.dbgspan:
        a("s_waitcnt vmcnt(0)")
        a("s_memrealtime s[72:73]")
        a("s_waitcnt lgkmcnt(0)")
        a("v_mov_b32 v16, 8"); a("v_mov_b32 v17, s98"); a("v_mov_b32 v18, 12"); a("v_mov_b32 v19, s72")
        a("s_mov_b64 exec, 1")
        a(f"global_atomic_umax v16, v17, s[{S_DBG}:{S_DBG+1}]")
        a(f"global_atomic_umax v18, v19, s[{S_DBG}:{S_DBG+1}]")
        a("s_waitcnt vmcnt(0)")
    a("s_endpgm")
    a.label("L_hook")
    if opt.latepub:
        a(f"s_cmp_eq_u32 s{S_I}, 2")
        a("s_cbranch_scc0 L_hook_c4")
        publish(a, 4, "L_pub4b", 158)
        set_need(a, 3)
        a("s_branch L_hook_chk")
        a.label("L_hook_c4")
        set_need(a, 4)
        a.label("L_hook_chk")
    else:
        set_need(a, 4)
    nyoung = sum(1 for j in range(16) if 28 + 4 * j > opt.flag_gap) + sum(1 for j in range(9) if 92 + 4 * j > opt.flag_gap)
    a(f"s_waitcnt vmcnt({nyoung})")
    flag_check(a)
    a("s_nop 4")
    a(f"s_cbranch_vccz L_hook_ret")
    spin(a, "hk")
    a("s_branch L_hook_ret")
    gen_slow(a, opt, T, V_LW, V_LR, V_OUT)
    a.label("L_done")
    a("s_endpgm")
    a.label("L_code_end")

def main():
    global OUTF
    ap = argparse.ArgumentParser()
    ap.add_argument("-o", default=f"cdna_kernels/{NAME}.s")
    ap.add_argument("--stamp", type=int, default=0)
    ap.add_argument("--wgrp", type=int, default=4)
    ap.add_argument("--kgrp", type=int, default=8)
    ap.add_argument("--spread", type=int, default=1)
    ap.add_argument("--cap", type=int, default=2)
    ap.add_argument("--pace", type=int, default=1)
    ap.add_argument("--read_spread", type=int, default=1)
    ap.add_argument("--sm_g0", type=int, default=0)
    ap.add_argument("--sm_g1", type=int, default=117)
    ap.add_argument("--ldflags", default="sc1")
    ap.add_argument("--outflags", default="nt")
    ap.add_argument("--empty", type=int, default=0)
    ap.add_argument("--dbgspan", type=int, default=0)
    ap.add_argument("--codepf", type=int, default=1)
    ap.add_argument("--r1early", type=int, default=1)
    ap.add_argument("--k1o", type=int, default=1)
    ap.add_argument("--latepub", type=int, default=1)
    ap.add_argument("--pretouch", type=int, default=1)
    ap.add_argument("--rope_first", type=int, default=1)
    ap.add_argument("--prefetch", type=int, default=0)
    ap.add_argument("--flag_gap", type=int, default=57)
    ap.add_argument("--ngroups", type=int, default=3)
    opt = ap.parse_args()
    OUTF = (" " + opt.outflags.replace("+", " ")) if opt.outflags else ""
    gen2.LDFLAGS = (" " + opt.ldflags.replace("+", " ")) if opt.ldflags else ""
    out = header()
    out += f"; @launch grid=(256,1,1) block=(256,1,1) lds={LDS_TOTAL}\n"
    out += '.amdgcn_target "amdgcn-amd-amdhsa--gfx950"\n.text\n'
    a = EA()
    gen_fused(a, opt)
    out += f".globl {KNAME}\n.p2align 8\n.type {KNAME},@function\n" + a.text()
    out += kd(KNAME, 512, 102, 256)
    open(opt.o, "w").write(out)

if __name__ == "__main__":
    main()
```

```python
import sys, os, argparse, math, struct
sys.path.insert(0, "dev")
from gen import f32bits, make_srd, kd, NAME, Item, I_valu, I_raw, I_salu, I_vm, I_lds, I_wvm, I_wlds, I_mfma, resolve_waits, emit_block
import gen2
from gen2 import (MF, V_OFF, V_PW, V_PR, V_L, V_S, V_PO, V_PF, V_V, A_O, A_Q, A_K, QFS, QGS,
                  S_KSRD, S_VSRD, S_QSRD, S_OSRD, S_KOFF, S_VOFF, S_I, S_ROT, S_C, S_W, S_MASK, S_KUSE,
                  kload, vload, softmax_stream, qk_mfmas, schedule, respread_loads, header)

KNAME = NAME + "_kernel"

class EA:
    def __init__(self): self.lines = []
    def __call__(self, s):
        for l in s.split("\n"):
            l = l.strip()
            if not l: continue
            self.lines.append(l if l.endswith(":") else "    " + l)
    def label(self, l): self.lines.append(l + ":")
    def text(self): return "\n".join(self.lines) + "\n"

LDS_Q = 0
LDS_L = 34816
LDS_SC = LDS_L + 1024
LDS_WK = LDS_SC + 4 * 2560
LDS_P = 51200
LDS_TOTAL = LDS_P + 32768
assert LDS_WK + 4096 <= LDS_P

S_STW = 36
S_NONCE = 39
S_PK, S_PT, S_PW = 40, 41, 42
S_PK2, S_PT2, S_PW2 = 43, 44, 45
S_HK, S_HT, S_HW = 46, 47, 48
S_FLG = 50
S_RANGE = 53
S_FMASK = 49
S_HMASK = 38
S_G = 68
S_RET = 70
S_RAWK, S_RAWV = 56, 60
S_KSC, S_KZ, S_VSC, S_VZ = 72, 76, 80, 84
S_DBG = 88
S_J, S_NEED = 90, 91
S_T0, S_T1, S_T2, S_T3, S_T4 = 92, 93, 94, 95, 96
S_SPIN, S_HEAD = 97, 99
V_FLAG, V_FADDR, V_STAMP = 13, 14, 15
STF = " sc1"

class RM: pass

class Stamp:
    def __init__(self, a, opt):
        self.a = a; self.on = opt.stamp; self.n = 0
    def _emit(self, idx_sgpr=None):
        a = self.a
        a("s_memtime s[54:55]")
        a("s_memrealtime s[100:101]")
        a("s_waitcnt lgkmcnt(0)")
        if idx_sgpr is None:
            a(f"v_writelane_b32 v{V_STAMP}, s54, {2*self.n}")
            a(f"v_writelane_b32 v{V_STAMP}, s100, {2*self.n+1}")
        else:
            a(f"s_mov_b32 m0, s{idx_sgpr}"); a("s_nop 1")
            a(f"v_writelane_b32 v{V_STAMP}, s54, m0")
            a(f"s_add_u32 m0, s{idx_sgpr}, 1"); a("s_nop 1")
            a(f"v_writelane_b32 v{V_STAMP}, s100, m0")
    def __call__(self, again=False, level=1, force=False):
        if not self.on: return
        if self.on == 9 and not force: return
        if level == 2 and self.on != 2: return
        if again: self.n -= 1
        self._emit()
        self.n += 1
    def dyn(self, mul, add, cap):
        a = self.a
        a(f"s_min_u32 s52, s{S_I}, {cap}")
        a(f"s_mul_i32 s52, s52, {2*mul}")
        a(f"s_add_u32 s52, s52, {2*add}")
        self._emit(52)
    def finish(self):
        if not self.on: return
        a = self.a
        a("s_waitcnt vmcnt(0)")
        a(f"s_lshl_b32 s46, s{S_J}, 3")
        a(f"s_add_u32 s46, s46, s{S_HEAD}")
        a(f"s_lshl_b32 s46, s46, 10")
        a(f"s_lshl_b32 s47, s{S_W}, 8")
        a("s_add_u32 s46, s46, s47")
        a("s_add_u32 s46, s46, 0x8000000")
        a(f"s_add_u32 s46, s{S_STW}, s46")
        a(f"s_addc_u32 s47, s{S_STW+1}, 0")
        a("v_and_b32 v16, 63, v0")
        a("v_lshlrev_b32 v16, 2, v16")
        a(f"global_store_dword v16, v{V_STAMP}, s[46:47]")
        a("s_waitcnt vmcnt(0)")

LOG2_10000_128 = math.log2(10000.0) / 128.0
LOG2_2PI = math.log2(2 * math.pi)

def vp(r): return f"v[{r}:{r+1}]"

def k_raw_loads(a, R, X, rowreg):
    a(f"s_lshl_b32 s{S_T0}, s{rowreg}, 10")
    for c in range(4):
        for hf in range(2):
            b = X + c * 8 + hf * 4
            a(f"buffer_load_dwordx4 v[{b}:{b+3}], v{R.kraw}, s[{S_RAWK}:{S_RAWK+3}], s{S_T0} offen offset:{c*256+hf*16}")
    return 8
def k_scale_loads(a, R, rowreg, dst):
    a(f"s_lshl_b32 s{S_T2}, s{rowreg}, 1")
    a(f"buffer_load_ushort v{dst}, v{R.ksc}, s[{S_KSC}:{S_KSC+3}], s{S_T2} offen")
    a(f"buffer_load_ushort v{dst+1}, v{R.ksc}, s[{S_KZ}:{S_KZ+3}], s{S_T2} offen")
    return 2
def v_raw_loads(a, R, X, treg, wreg):
    a(f"s_lshl_b32 s{S_T0}, s{treg}, 15")
    a(f"s_lshl_b32 s{S_T1}, s{wreg}, 8")
    a(f"s_add_u32 s{S_T0}, s{S_T0}, s{S_T1}")
    a(f"s_add_u32 s{S_T1}, s{S_T0}, 16384")
    for j in range(8):
        b = X + j * 4
        so = S_T0 if j < 4 else S_T1
        a(f"buffer_load_dwordx4 v[{b}:{b+3}], v{R.vraw}, s[{S_RAWV}:{S_RAWV+3}], s{so} offen offset:{(j&3)*1024}")
    return 8
def v_scale_loads(a, R, SC, treg):
    a(f"s_lshl_b32 s{S_T2}, s{treg}, 6")
    for g2 in range(2):
        a(f"buffer_load_dwordx2 v[{SC+2*g2}:{SC+1+2*g2}], v{R.vsc}, s[{S_VSC}:{S_VSC+3}], s{S_T2} offen offset:{g2*32}")
        a(f"buffer_load_dwordx2 v[{SC+4+2*g2}:{SC+5+2*g2}], v{R.vsc}, s[{S_VZ}:{S_VZ+3}], s{S_T2} offen offset:{g2*32}")
    return 4

def sincos8(a, pos, w, cs, sn):
    for k in range(4):
        a(f"v_pk_mul_f32 {vp(sn+2*k)}, {vp(w+2*k)}, {vp(pos)} op_sel_hi:[1,0]")
    for e in range(8):
        a(f"v_fract_f32 v{sn+e}, v{sn+e}")
    for e in range(8):
        a(f"v_cos_f32 v{cs+e}, v{sn+e}")
    for e in range(8):
        a(f"v_sin_f32 v{sn+e}, v{sn+e}")

def rope8(a, x1, x2, cs, sn, u, o1dst, o2dst):
    for k in range(4):
        a(f"v_pk_mul_f32 {vp(u+2*k)}, {vp(x2+2*k)}, {vp(sn+2*k)}")
    for k in range(4):
        a(f"v_pk_mul_f32 {vp(sn+2*k)}, {vp(x1+2*k)}, {vp(sn+2*k)}")
    for k in range(4):
        a(f"v_pk_fma_f32 {vp(u+2*k)}, {vp(x1+2*k)}, {vp(cs+2*k)}, {vp(u+2*k)} neg_lo:[0,0,1] neg_hi:[0,0,1]")
    for k in range(4):
        a(f"v_pk_fma_f32 {vp(sn+2*k)}, {vp(x2+2*k)}, {vp(cs+2*k)}, {vp(sn+2*k)}")
    for k in range(4):
        a(f"v_cvt_pk_bf16_f32 v{o1dst+k}, v{u+2*k}, v{u+2*k+1}")
    for k in range(4):
        a(f"v_cvt_pk_bf16_f32 v{o2dst+k}, v{sn+2*k}, v{sn+2*k+1}")

def k_compute(a, R, X, sc, WK, T, rowreg):
    assert sc % 2 == 0 and T % 2 == 0 and X % 4 == 0
    pos, cs, sn, u = T, T + 2, T + 10, T + 18
    a(f"v_lshlrev_b32 v{sc}, 16, v{sc}")
    a(f"v_lshlrev_b32 v{sc+1}, 16, v{sc+1}")
    a(f"v_cvt_f32_u32 v{pos}, v{R.krr}")
    a(f"v_cvt_f32_u32 v{pos+1}, s{rowreg}")
    a(f"v_mul_f32 v{sc+1}, v{sc+1}, v{sc}")
    a(f"v_add_f32 v{pos}, v{pos}, v{pos+1}")
    for k in range(32):
        a(f"v_cvt_f32_i32 v{X+k}, v{X+k}")
    sincos8(a, pos, WK, cs, sn)
    for k in range(16):
        a(f"v_pk_fma_f32 {vp(X+2*k)}, {vp(X+2*k)}, {vp(sc)}, {vp(sc)} op_sel:[0,0,1] op_sel_hi:[1,0,1] neg_lo:[0,0,1] neg_hi:[0,0,1]")
    rope8(a, X, X + 16, cs, sn, u, X, X + 16)
    sincos8(a, pos, WK + 8, cs, sn)
    a("s_nop 0")
    rope8(a, X + 8, X + 24, cs, sn, u, X + 8, X + 24)
    a(f"s_lshr_b32 s{S_T0}, s{rowreg}, 4")
    a(f"s_lshl_b32 s{S_T0}, s{S_T0}, 13")
    a(f"s_and_b32 s{S_T1}, s{rowreg}, 8")
    a(f"s_lshl_b32 s{S_T1}, s{S_T1}, 4")
    a(f"s_add_u32 s{S_T0}, s{S_T0}, s{S_T1}")
    a(f"s_add_u32 s{S_T1}, s{S_T0}, 4096")
    for c in range(4):
        b = X + c * 8
        so = S_T0 if c < 2 else S_T1
        a(f"buffer_store_dwordx4 v[{b}:{b+3}], v{R.kst}, s[{S_KSRD}:{S_KSRD+3}], s{so} offen offset:{(c&1)*2048}{STF}")

def v_compute(a, R, X, SC, T, treg, wreg):
    M = S_MASK
    SZ = T
    for j in range(8):
        src_s = SC + 2 * (j >> 2) + ((j & 3) >> 1)
        src_z = SC + 4 + 2 * (j >> 2) + ((j & 3) >> 1)
        if j & 1:
            a(f"v_and_b32 v{SZ+2*j}, s{M}, v{src_s}"); a(f"v_and_b32 v{SZ+2*j+1}, s{M}, v{src_z}")
        else:
            a(f"v_lshlrev_b32 v{SZ+2*j}, 16, v{src_s}"); a(f"v_lshlrev_b32 v{SZ+2*j+1}, 16, v{src_z}")
    for k in range(32):
        a(f"v_cvt_f32_i32 v{X+k}, v{X+k}")
    for j in range(8):
        a(f"v_mul_f32 v{SZ+2*j+1}, v{SZ+2*j+1}, v{SZ+2*j}")
    for j in range(8):
        for h in range(2):
            x = X + 4 * j + 2 * h
            a(f"v_pk_fma_f32 {vp(x)}, {vp(x)}, {vp(SZ+2*j)}, {vp(SZ+2*j)} op_sel:[0,0,1] op_sel_hi:[1,0,1] neg_lo:[0,0,1] neg_hi:[0,0,1]")
    O = T
    for db in range(4):
        for jj in range(4):
            a(f"v_cvt_pk_bf16_f32 v{O+db*4+jj}, v{X+(2*jj)*4+db}, v{X+(2*jj+1)*4+db}")
    a(f"s_lshr_b32 s{S_T0}, s{treg}, 2")
    a(f"s_lshl_b32 s{S_T0}, s{S_T0}, 16")
    a(f"s_lshl_b32 s{S_T1}, s{wreg}, 14")
    a(f"s_add_u32 s{S_T0}, s{S_T0}, s{S_T1}")
    a(f"s_sub_u32 s{S_T1}, s{treg}, s{wreg}")
    a(f"s_and_b32 s{S_T1}, s{S_T1}, 3")
    a(f"s_lshl_b32 s{S_T1}, s{S_T1}, 10")
    a(f"s_add_u32 s{S_T0}, s{S_T0}, s{S_T1}")
    for db in range(4):
        if db:
            a(f"s_add_u32 s{S_T0}, s{S_T0}, 4096")
        a(f"buffer_store_dwordx4 v[{O+4*db}:{O+4*db+3}], v{R.vst}, s[{S_VSRD}:{S_VSRD+3}], s{S_T0} offen{STF}")

def freq_consts(a, dst, n, dbase_v, offs):
    a(f"s_mov_b32 s{S_T0}, 0x{f32bits(-LOG2_10000_128):08x}")
    for k in range(n):
        a(f"v_mov_b32 v{dst+k}, 0x{f32bits(-LOG2_10000_128 * offs[k] - LOG2_2PI):08x}")
    for k in range(n):
        a(f"v_fma_f32 v{dst+k}, v{dbase_v}, s{S_T0}, v{dst+k}")
    for k in range(n):
        a(f"v_exp_f32 v{dst+k}, v{dst+k}")
    a("s_nop 0")

def rope_q(a, src, T, pos, wq):
    M = S_MASK
    q1, q2, cs, sn, u, out = T, T + 8, T + 16, T + 24, T + 32, T
    sincos8(a, pos, wq, cs, sn)
    for k in range(4):
        a(f"v_lshlrev_b32 v{q1+2*k}, 16, v{src+k}"); a(f"v_and_b32 v{q1+2*k+1}, s{M}, v{src+k}")
        a(f"v_lshlrev_b32 v{q2+2*k}, 16, v{src+4+k}"); a(f"v_and_b32 v{q2+2*k+1}, s{M}, v{src+4+k}")
    for k in range(4):
        a(f"v_pk_mul_f32 {vp(cs+2*k)}, {vp(cs+2*k)}, s[{S_C}:{S_C+1}] op_sel_hi:[1,0]")
    for k in range(4):
        a(f"v_pk_mul_f32 {vp(sn+2*k)}, {vp(sn+2*k)}, s[{S_C}:{S_C+1}] op_sel_hi:[1,0]")
    rope8(a, q1, q2, cs, sn, u, out, out + 4)
    return out

def task_params(a, rnd, pk, pt, pw):
    a(f"s_and_b32 s{S_T0}, s{S_W}, 1")
    a(f"s_lshl_b32 s{S_T1}, s{S_J}, 1")
    a(f"s_add_u32 s{S_T0}, s{S_T0}, s{S_T1}")
    if pk is not None:
        a(f"s_lshl_b32 s{pk}, s{S_T0}, 3")
        if isinstance(rnd, int): a(f"s_add_u32 s{pk}, s{pk}, {512*rnd}")
        else:
            a(f"s_lshl_b32 s{S_T1}, s{rnd[1]}, 9"); a(f"s_add_u32 s{pk}, s{pk}, s{S_T1}")
    if pt is not None:
        a(f"s_lshr_b32 s{pt}, s{S_T0}, 2")
        if isinstance(rnd, int): a(f"s_add_u32 s{pt}, s{pt}, {16*rnd}")
        else:
            a(f"s_lshl_b32 s{S_T1}, s{rnd[1]}, 4"); a(f"s_add_u32 s{pt}, s{pt}, s{S_T1}")
        a(f"s_and_b32 s{pw}, s{S_T0}, 3")

def task_addr(a, R, tmp, k=True, v=True):
    if k:
        a(f"v_and_b32 v{tmp}, 7, v0")
        a(f"v_bfe_u32 v{R.krr}, v0, 3, 3")
        a(f"v_lshlrev_b32 v{R.kraw}, 10, v{R.krr}")
        a(f"v_lshl_add_u32 v{R.kraw}, v{tmp}, 5, v{R.kraw}")
        a(f"v_lshrrev_b32 v{tmp+1}, 2, v{tmp}")
        a(f"v_lshlrev_b32 v{R.kst}, 10, v{tmp+1}")
        a(f"v_and_b32 v{tmp+1}, 3, v{tmp}")
        a(f"v_lshl_add_u32 v{R.kst}, v{tmp+1}, 8, v{R.kst}")
        a(f"v_lshl_add_u32 v{R.kst}, v{R.krr}, 4, v{R.kst}")
    if v:
        a(f"v_and_b32 v{tmp}, 15, v0")
        a(f"v_bfe_u32 v{tmp+1}, v0, 4, 2")
        a(f"v_lshlrev_b32 v{R.vraw}, 12, v{tmp+1}")
        a(f"v_lshl_add_u32 v{R.vraw}, v{tmp}, 4, v{R.vraw}")
        a(f"v_and_b32 v{R.vst}, 63, v0")
        a(f"v_lshlrev_b32 v{R.vst}, 4, v{R.vst}")

def publish(a, val, lbl, t):
    a(f"s_cmp_lg_u32 s{S_W}, 0")
    a(f"s_cbranch_scc1 {lbl}")
    a(f"s_mov_b64 exec, 1")
    a(f"s_add_u32 s{S_T1}, s{S_NONCE}, {val}")
    a(f"v_mov_b32 v{t}, s{S_T1}")
    a(f"s_lshl_b32 s{S_T0}, s{S_HEAD}, 5")
    a(f"s_add_u32 s{S_T0}, s{S_T0}, s{S_J}")
    a(f"s_lshl_b32 s{S_T0}, s{S_T0}, 7")
    a(f"v_mov_b32 v{t+1}, s{S_T0}")
    a(f"global_store_dword v{t+1}, v{t}, s[{S_FLG}:{S_FLG+1}] sc1")
    a(f"s_mov_b64 exec, -1")
    a.label(lbl)

def flag_load(a):
    a(f"global_load_dword v{V_FLAG}, v{V_FADDR}, s[{S_FLG}:{S_FLG+1}] sc1")
def flag_check(a):
    a(f"v_subrev_u32 v{V_FLAG}, s{S_NEED}, v{V_FLAG}")
    a(f"v_cmp_lt_u32 vcc, s{S_RANGE}, v{V_FLAG}")
def set_need(a, need):
    a(f"s_add_u32 s{S_NEED}, s{S_NONCE}, {need}")
    a(f"s_mov_b32 s{S_RANGE}, {4-need}")
def spin(a, name):
    a(f"s_mov_b32 s{S_SPIN}, 0")
    a.label(f"L_spin_{name}")
    flag_load(a)
    a("s_waitcnt vmcnt(0)")
    flag_check(a)
    a(f"s_add_u32 s{S_SPIN}, s{S_SPIN}, 1")
    a(f"s_cmp_lt_u32 s{S_SPIN}, 0x8000")
    a(f"s_cbranch_scc0 L_spin_{name}_done")
    a("s_nop 3")
    a(f"s_cbranch_vccnz L_spin_{name}")
    a.label(f"L_spin_{name}_done")

def tile_off(dst, tadd, tmp):
    return [I_salu(f"s_add_u32 s{dst}, s{S_I}, {tadd}"),
            I_salu(f"s_add_u32 s{tmp}, s{dst}, s{S_ROT}"),
            I_salu(f"s_and_b32 s{tmp}, s{tmp}, 3"),
            I_salu(f"s_and_b32 s{dst}, s{dst}, 12"),
            I_salu(f"s_or_b32 s{dst}, s{dst}, s{tmp}"),
            I_salu(f"s_lshl_b32 s{dst}, s{dst}, 16")]

def pv_item(t, db, qb, p):
    par = t & 1
    f = db * 4 + p
    o = A_O + (db * 4 + qb) * 4
    b = V_PO + 16 * par + qb * 4 if p == 0 else V_PF + (p - 1) * 16 + qb * 4
    return I_mfma(f"{MF} a[{o}:{o+3}], v[{V_V+4*f}:{V_V+4*f+3}], v[{b}:{b+3}], a[{o}:{o+3}]")

def p_reads(t):
    par = t & 1
    r = []
    for p in range(1, 4):
        for qb in range(4):
            dst = V_PF + (p - 1) * 16 + qb * 4
            r.append(I_lds(f"ds_read_b128 v[{dst}:{dst+3}], v{V_PR+p-1} offset:{par*16384+qb*1024}", ("PR", t, p, qb)))
    return r

def build_iter(i, opt, NT=16):
    has_qk = (i + 1) < NT
    has_sm = 0 <= i < NT
    has_pv = 1 <= i <= NT
    mf = []
    if has_qk:
        mf += qk_mfmas(i + 1, opt, NT)
    nqk = len(mf)
    if has_pv:
        t = i - 1
        for db in range(4):
            for qb in range(4):
                for p in range(4):
                    pre = []
                    if qb == 0 and p == 0:
                        pre.append(I_wvm(("V", t, db * 4 + 3)))
                    if db == 0 and qb == 0 and p == 1:
                        pre.append(I_wlds(("PR", t, 3, 3)))
                    post = []
                    if qb == 3 and t + 1 < NT:
                        post.append(vload(t + 1, db * 4 + p, S_VOFF))
                    mf.append([pre, pv_item(t, db, qb, p), post])
    respread_loads(mf, i, NT, opt)
    if i == 15:
        mf[0][2] = [vload(14, j, S_VOFF) for j in range(9, 16)] + mf[0][2]
    reads = p_reads(i - 1) if has_pv else []
    sm = softmax_stream(i, opt) if has_sm else []
    head = []
    full = len(mf) == 128
    if has_qk:
        head += tile_off(S_KOFF, 2, S_T4) + [I_salu(f"s_cmp_lt_u32 s{S_I}, {NT-2}"), I_salu(f"s_cselect_b32 s{S_KUSE}, s{S_KOFF}, 0x100000")]
    if has_pv:
        vup = tile_off(S_VOFF, 0, S_T3)
        if full:
            for k, x in enumerate(vup):
                mf[41 + k][2].append(x)
        else:
            head += vup
    if full and i % 2 == 1:
        txt = (f"s_bitcmp1_b32 s{S_FMASK}, s{S_I}\ns_cbranch_scc0 L_noflagld\n"
               f"global_load_dword v{V_FLAG}, v{V_FADDR}, s[{S_FLG}:{S_FLG+1}] sc1\nL_noflagld:")
        mf[opt.flag_gap][2].append(I_raw(txt))
    return schedule(mf, head, reads, sm, nqk, opt)

def build_it0_k1o(opt):
    mf = []
    S = V_S + 32
    for kb in range(2):
        for qb in range(4):
            for s in range(8):
                f = kb * 8 + s
                d = f"v[{S+(kb*4+qb)*4}:{S+(kb*4+qb)*4+3}]"
                c = "0" if s == 0 else d
                pre = [I_wvm(("K", 1, kb * 8 + 7))] if (qb == 0 and s == 0) else []
                mf.append([pre, I_mfma(f"{MF} {d}, a[{A_O+4*f}:{A_O+4*f+3}], a[{A_Q+(qb*8+s)*4}:{A_Q+(qb*8+s)*4+3}], {c}"), []])
    for k in range(32):
        mf[32 + k][2].append(I_valu(f"v_accvgpr_write_b32 a{A_O+k}, 0"))
    items = schedule(mf, [], [], softmax_stream(0, opt), 64, opt)
    items += [I_valu(f"v_accvgpr_write_b32 a{A_O+32+k}, 0") for k in range(32)]
    return items

def build_last(opt, T, V_OUT):
    t = 15
    mf = []
    for qb in range(4):
        for db in range(4):
            for p in range(4):
                pre = []
                if qb == 0 and p == 0:
                    pre.append(I_wvm(("V", t, db * 4 + 3)))
                if qb == 0 and db == 0 and p == 1:
                    pre.append(I_wlds(("PR", t, 3, 3)))
                mf.append([pre, pv_item(t, db, qb, p), []])
    def epi(qb):
        it = []
        inv = T + 4 * qb
        tb = 48 + (qb & 1) * 16
        for par in range(2):
            for k in range(par, 8, 2):
                r = k >> 1
                c = 2 * (k & 1)
                x = tb + 2 * k
                it.append(I_valu(f"v_accvgpr_read_b32 v{x}, a{A_O+((c)*4+qb)*4+r}"))
                it.append(I_valu(f"v_accvgpr_read_b32 v{x+1}, a{A_O+((c+1)*4+qb)*4+r}"))
        for k in range(8):
            x = tb + 2 * k
            it.append(I_valu(f"v_pk_mul_f32 {vp(x)}, {vp(x)}, {vp(inv)} op_sel_hi:[1,0]"))
        for half in range(2):
            o = 16 + (qb * 2 + half) * 4
            for kk in range(4):
                x = tb + 2 * (half * 4 + kk)
                it.append(I_valu(f"v_cvt_pk_bf16_f32 v{o+kk}, v{x}, v{x+1}"))
        oA, oB = 16 + qb * 8, 16 + qb * 8 + 4
        so = "0" if qb == 0 else f"s{S_T0+qb-1}"
        if opt.wide_out:
            it.append(I_raw("s_nop 1"))
            for kk in range(4):
                it.append(I_valu(f"v_permlane16_swap_b32 v{oA+kk}, v{oB+kk}"))
            it.append(I_raw("s_nop 1"))
            for kk in range(4):
                it.append(I_valu(f"v_permlane32_swap_b32 v{oA+kk}, v{oB+kk}"))
            it.append(I_raw("s_nop 0"))
            it.append(I_vm(f"buffer_store_dwordx4 v[{oA}:{oA+3}], v{V_OUT}, s[{S_OSRD}:{S_OSRD+3}], {so} offen{OUTF}", ("O", qb, 0)))
            it.append(I_vm(f"buffer_store_dwordx4 v[{oB}:{oB+3}], v{V_OUT}, s[{S_OSRD}:{S_OSRD+3}], {so} offen offset:64{OUTF}", ("O", qb, 1)))
        else:
            it.append(I_vm(f"buffer_store_dwordx4 v[{oA}:{oA+3}], v{V_OUT}, s[{S_OSRD}:{S_OSRD+3}], {so} offen offset:0{OUTF}", ("O", qb, 0)))
            it.append(I_vm(f"buffer_store_dwordx4 v[{oB}:{oB+3}], v{V_OUT}, s[{S_OSRD}:{S_OSRD+3}], {so} offen offset:16{OUTF}", ("O", qb, 1)))
        return it
    linv = [I_wlds(("LR", 3))]
    for qb in range(4):
        b = T + 4 * qb
        linv += [I_valu(f"v_add_f32 v{b}, v{b}, v{b+1}"), I_valu(f"v_add_f32 v{b+2}, v{b+2}, v{b+3}")]
    for qb in range(4):
        b = T + 4 * qb
        linv.append(I_valu(f"v_add_f32 v{b}, v{b}, v{b+2}"))
    linv.append(I_valu(f"v_max3_f32 v{T+1}, v{T}, v{T+4}, v{T+8}"))
    linv.append(I_valu(f"v_min3_f32 v{T+2}, v{T}, v{T+4}, v{T+8}"))
    linv.append(I_valu(f"v_max_f32 v{T+1}, v{T+1}, v{T+12}"))
    linv.append(I_valu(f"v_min_f32 v{T+2}, v{T+2}, v{T+12}"))
    linv.append(I_valu(f"v_cmp_lt_f32 vcc, s{S_T3}, v{T+1}"))
    linv.append(I_valu(f"v_cmp_gt_f32 s[{S_RET}:{S_RET+1}], s{S_T4}, v{T+2}"))
    for qb in range(4):
        b = T + 4 * qb
        linv.append(I_valu(f"v_rcp_f32 v{b}, v{b}", 8))
    linv.append(I_raw(f"s_or_b64 vcc, vcc, s[{S_RET}:{S_RET+1}]\ns_cbranch_vccnz L_slow"))
    items = []
    lreads = [I_lds(f"ds_read_b128 v[{T+4*qb}:{T+4*qb+3}], v{LRREG} offset:{qb*256}", ("LR", qb)) for qb in range(4)]
    head = [I_salu(f"s_mov_b32 s{S_T0+k}, {8192*(k+1)}") for k in range(3)] + [I_salu(f"s_mov_b32 s{S_T3}, 0x5d800000"), I_salu(f"s_mov_b32 s{S_T4}, 0x21800000")] + p_reads(t) + lreads
    gaps = [[] for _ in range(64)]
    q = list(linv)
    g = 4
    while q:
        gaps[g] += q[:2]; q = q[2:]; g = min(g + 1, 15) if g < 15 else 15
    for qb in range(3):
        e = epi(qb)
        g0 = 16 * (qb + 1) + 3
        per = (len(e) + 12) // 13
        g = g0
        while e:
            gaps[g] += e[:per]; e = e[per:]; g = min(g + 1, 63)
    for k, (pre, m, post) in enumerate(mf):
        items += pre
        items.append(m)
        if k == 0:
            items += head
        items += gaps[k]
    items.append(I_raw("s_nop 7"))
    items += epi(3)
    return items

def gen_slow(a, opt, T, V_LW, V_LR, V_OUT):
    M, F, X_ = 48, 52, 56
    S = V_S
    a.label("L_slow")
    a("s_waitcnt vmcnt(0) lgkmcnt(0)")
    a("s_nop 15")
    a("s_barrier")
    for r in range(64): a(f"v_accvgpr_write_b32 a{A_O+r}, 0")
    for qb in range(4):
        a(f"v_mov_b32 v{V_L+qb}, 0")
        a(f"v_mov_b32 v{M+qb}, 0xff7fffff")
    a(f"s_mov_b32 s{S_I}, 0")
    a.label("L_slow_loop")
    a(f"s_lshl_b32 s{S_KUSE}, s{S_I}, 16")
    a(f"s_mov_b32 s{S_VOFF}, s{S_KUSE}")
    for f in range(16): a(kload(0, f, S_KUSE).text)
    for f in range(16): a(vload(0, f, S_VOFF).text)
    a("s_waitcnt vmcnt(16)")
    for kb in range(2):
        for qb in range(4):
            for sx in range(8):
                f = kb * 8 + sx
                d = f"v[{S+(kb*4+qb)*4}:{S+(kb*4+qb)*4+3}]"
                c = "0" if sx == 0 else d
                a(f"{MF} {d}, a[{A_K+4*f}:{A_K+4*f+3}], a[{A_Q+(qb*8+sx)*4}:{A_Q+(qb*8+sx)*4+3}], {c}")
    a("s_nop 15")
    for qb in range(4):
        x0, x1 = S + qb * 4, S + (4 + qb) * 4
        a(f"v_max3_f32 v{F+qb}, v{x0}, v{x0+1}, v{x0+2}")
        a(f"v_max3_f32 v{F+qb}, v{F+qb}, v{x0+3}, v{x1}")
        a(f"v_max3_f32 v{F+qb}, v{F+qb}, v{x1+1}, v{x1+2}")
        a(f"v_max_f32 v{F+qb}, v{F+qb}, v{x1+3}")
    for swap in ("v_permlane32_swap_b32", "v_permlane16_swap_b32"):
        for qb in range(4): a(f"v_mov_b32 v{X_+qb}, v{F+qb}")
        a("s_nop 1")
        for qb in range(4): a(f"{swap} v{X_+qb}, v{F+qb}")
        a("s_nop 1")
        for qb in range(4): a(f"v_max_f32 v{F+qb}, v{F+qb}, v{X_+qb}")
    for qb in range(4): a(f"ds_write_b32 v{V_LW}, v{F+qb} offset:{qb*256}")
    a("s_waitcnt lgkmcnt(0)")
    a("s_barrier")
    for qb in range(4): a(f"ds_read_b128 v[{X_+4*qb}:{X_+4*qb+3}], v{V_LR} offset:{qb*256}")
    a("s_waitcnt lgkmcnt(0)")
    for qb in range(4):
        b = X_ + 4 * qb
        a(f"v_max3_f32 v{b}, v{b}, v{b+1}, v{b+2}")
        a(f"v_max3_f32 v{b}, v{b}, v{b+3}, v{M+qb}")
        a(f"v_sub_f32 v{F+qb}, v{M+qb}, v{b}")
        a(f"v_mov_b32 v{M+qb}, v{b}")
    for qb in range(4): a(f"v_exp_f32 v{F+qb}, v{F+qb}")
    a("s_nop 0")
    for qb in range(4): a(f"v_mul_f32 v{V_L+qb}, v{V_L+qb}, v{F+qb}")
    for db in range(4):
        for qb in range(4):
            for r in range(4):
                o = A_O + (db * 4 + qb) * 4 + r
                a(f"v_accvgpr_read_b32 v{X_}, a{o}")
                a(f"v_mul_f32 v{X_}, v{X_}, v{F+qb}")
                a(f"v_accvgpr_write_b32 a{o}, v{X_}")
    for qb in range(4):
        for kb in range(2):
            for r in range(4):
                x = S + (kb * 4 + qb) * 4 + r
                a(f"v_sub_f32 v{x}, v{x}, v{M+qb}")
        for kb in range(2):
            for r in range(4):
                x = S + (kb * 4 + qb) * 4 + r
                a(f"v_exp_f32 v{x}, v{x}")
        a("s_nop 0")
        for kb in range(2):
            for r in range(4):
                x = S + (kb * 4 + qb) * 4 + r
                a(f"v_add_f32 v{V_L+qb}, v{V_L+qb}, v{x}")
        for kb in range(2):
            for h in range(2):
                x = S + (kb * 4 + qb) * 4 + 2 * h
                a(f"v_cvt_pk_bf16_f32 v{V_PO+qb*4+kb*2+h}, v{x}, v{x+1}")
        a(f"ds_write_b128 v{V_PW}, v[{V_PO+qb*4}:{V_PO+qb*4+3}] offset:{qb*1024}")
    a("s_waitcnt lgkmcnt(0)")
    a("s_barrier")
    for it in p_reads(0): a(it.text)
    a("s_waitcnt vmcnt(0) lgkmcnt(0)")
    for db in range(4):
        for qb in range(4):
            for p in range(4):
                a(pv_item(0, db, qb, p).text)
    a("s_nop 15")
    a("s_barrier")
    a(f"s_add_u32 s{S_I}, s{S_I}, 1")
    a(f"s_cmp_lt_u32 s{S_I}, 16")
    a("s_cbranch_scc1 L_slow_loop")
    for swap in ("v_permlane32_swap_b32", "v_permlane16_swap_b32"):
        for qb in range(4): a(f"v_mov_b32 v{X_+qb}, v{V_L+qb}")
        a("s_nop 1")
        for qb in range(4): a(f"{swap} v{X_+qb}, v{V_L+qb}")
        a("s_nop 1")
        for qb in range(4): a(f"v_add_f32 v{V_L+qb}, v{V_L+qb}, v{X_+qb}")
    for qb in range(4): a(f"ds_write_b32 v{V_LW}, v{V_L+qb} offset:{qb*256}")
    a("s_waitcnt lgkmcnt(0)")
    a("s_barrier")
    for qb in range(4): a(f"ds_read_b128 v[{T+4*qb}:{T+4*qb+3}], v{V_LR} offset:{qb*256}")
    a("s_waitcnt lgkmcnt(0)")
    for qb in range(4):
        b = T + 4 * qb
        a(f"v_add_f32 v{b}, v{b}, v{b+1}"); a(f"v_add_f32 v{b+2}, v{b+2}, v{b+3}")
        a(f"v_add_f32 v{b}, v{b}, v{b+2}")
        a(f"v_rcp_f32 v{b}, v{b}")
    a("s_nop 0")
    for qb in range(4):
        inv = T + 4 * qb
        a(f"s_mov_b32 s{S_T0}, {qb*8192}")
        for half in range(2):
            o = 16 + half * 4
            for kk in range(4):
                k = half * 4 + kk
                r = k >> 1
                c = 2 * (k & 1)
                a(f"v_accvgpr_read_b32 v{X_}, a{A_O+((c)*4+qb)*4+r}")
                a(f"v_accvgpr_read_b32 v{X_+1}, a{A_O+((c+1)*4+qb)*4+r}")
                a(f"v_mul_f32 v{X_}, v{X_}, v{inv}")
                a(f"v_mul_f32 v{X_+1}, v{X_+1}, v{inv}")
                a(f"v_cvt_pk_bf16_f32 v{o+kk}, v{X_}, v{X_+1}")
            a(f"buffer_store_dwordx4 v[{o}:{o+3}], v{V_OUT}, s[{S_OSRD}:{S_OSRD+3}], s{S_T0} offen offset:{half*16}")
            a("s_nop 1")
    a("s_endpgm")

def gen_fused(a, opt):
    global OUTF, LRREG
    NT = 16
    st = Stamp(a, opt)
    PP = RM(); PP.kraw, PP.krr, PP.kst, PP.vraw, PP.vst = 248, 249, 250, 251, 252
    PP.ksc, PP.vsc = 253, 254
    V_QW, V_QR, V_QOFF = 8, 9, 14
    X, Y, QD, TT = 16, 48, 96, 160
    Z = X
    WK, WQ = 200, 128
    SC0, SC1, SC2, SC3 = 216, 224, 232, 240
    QPOS, V_NON, V_ZERO, VJ = 136, 138, 139, 140
    K1V = 96
    T = 240
    a.label(KNAME)
    a("s_cmp_ge_u32 s2, 256" if not opt.empty else "s_cmp_ge_u32 s2, 0")
    a("s_cbranch_scc1 L_done")
    st(force=True)
    if opt.dbgspan:
        a("s_memrealtime s[72:73]")
        a("s_waitcnt lgkmcnt(0)")
        a("s_not_b32 s98, s72")
    a("s_load_dwordx16 s[40:55], s[0:1], 0")
    a("s_load_dwordx2 s[62:63], s[0:1], 88")
    a("s_load_dwordx4 s[64:67], s[0:1], 96")
    if opt.codepf:
        a("s_getpc_b64 s[4:5]")
        a.label("L_pc")
        a("v_lshlrev_b32 v30, 7, v0")
        a(f"v_min_u32 v30, L_code_end-L_pc-4, v30")
        a("global_load_dword v31, v30, s[4:5]")
    a(f"s_and_b32 s{S_HEAD}, s2, 7")
    a(f"s_lshr_b32 s{S_J}, s2, 3")
    a("v_lshrrev_b32 v1, 6, v0")
    a("v_and_b32 v2, 15, v0")
    a("v_bfe_u32 v3, v0, 4, 2")
    a(f"v_readfirstlane_b32 s{S_W}, v1")
    task_addr(a, PP, 4)
    a("v_lshl_add_u32 v4, v1, 4, v3")
    a(f"v_lshlrev_b32 v{V_QOFF}, 9, v4")
    a(f"v_lshl_add_u32 v{V_QOFF}, v2, 4, v{V_QOFF}")
    task_params(a, 0, 68, 69, 70)
    a(f"s_lshl_b32 s{S_T4}, s{S_HEAD}, 21")
    a("s_waitcnt lgkmcnt(0)")
    isB = lambda lbl: (a(f"s_cmp_ge_u32 s{S_W}, 2"), a(f"s_cbranch_scc1 {lbl}"))
    make_srd(a, S_RAWK, 42, S_T4, 0x200000)
    a(f"s_lshl_b32 s{S_T0}, s{S_HEAD}, 20")
    a(f"s_lshl_b32 s{S_T3}, s{S_J}, 15")
    a(f"s_add_u32 s{S_T2}, s{S_T0}, s{S_T3}")
    make_srd(a, S_OSRD, 62, S_T2, 32768)
    make_srd(a, S_RAWV, 48, S_T4, 0x200000)
    make_srd(a, S_QSRD, 40, S_T2, 32768)
    isB("L_B_i0")
    k_raw_loads(a, PP, X, 68)
    a(f"s_lshl_b32 s{S_T2}, s{S_HEAD}, 12")
    make_srd(a, S_KSC, 44, S_T2, 4096)
    make_srd(a, S_KZ, 46, S_T2, 4096)
    a(f"v_lshlrev_b32 v{PP.ksc}, 1, v{PP.krr}")
    k_scale_loads(a, PP, 68, SC0)
    a(f"s_lshl_b32 s{S_T2}, s{S_HEAD}, 12")
    make_srd(a, S_VSC, 50, S_T2, 4096)
    make_srd(a, S_VZ, 52, S_T2, 4096)
    a(f"v_lshlrev_b32 v{PP.vsc}, 3, v3")
    a("s_branch L_i0_done")
    a.label("L_B_i0")
    v_raw_loads(a, PP, X, 69, 70)
    a(f"s_lshl_b32 s{S_T2}, s{S_HEAD}, 12")
    make_srd(a, S_VSC, 50, S_T2, 4096)
    make_srd(a, S_VZ, 52, S_T2, 4096)
    a(f"v_lshlrev_b32 v{PP.vsc}, 3, v3")
    v_scale_loads(a, PP, SC0, 69)
    a(f"s_lshl_b32 s{S_T2}, s{S_HEAD}, 12")
    make_srd(a, S_KSC, 44, S_T2, 4096)
    make_srd(a, S_KZ, 46, S_T2, 4096)
    a(f"v_lshlrev_b32 v{PP.ksc}, 1, v{PP.krr}")
    a.label("L_i0_done")
    a("s_mov_b32 s41, 4096")
    for it in range(4):
        so = "0" if it < 2 else "s41"
        io = (it & 1) * 2048
        b = QD + 8 * it
        a(f"buffer_load_dwordx4 v[{b}:{b+3}], v{V_QOFF}, s[{S_QSRD}:{S_QSRD+3}], {so} offen offset:{io}")
        a(f"buffer_load_dwordx4 v[{b+4}:{b+7}], v{V_QOFF}, s[{S_QSRD}:{S_QSRD+3}], {so} offen offset:{io+256}")
    a(f"s_mov_b32 s{S_PK}, s68"); a(f"s_mov_b32 s{S_PT}, s69"); a(f"s_mov_b32 s{S_PW}, s70")
    task_params(a, 1, S_PK2, S_PT2, S_PW2)
    task_params(a, 2, 68, 69, 70)
    task_params(a, 3, 46, 47, 48)
    a(f"v_mov_b32 v{V_ZERO}, 0")
    isB("L_B_sc")
    v_scale_loads(a, PP, SC1, S_PT2); k_scale_loads(a, PP, 68, SC2); v_scale_loads(a, PP, SC3, 47)
    a("s_branch L_sc_done")
    a.label("L_B_sc")
    k_scale_loads(a, PP, S_PK2, SC1); v_scale_loads(a, PP, SC2, 69); k_scale_loads(a, PP, 46, SC3)
    a.label("L_sc_done")
    NSA, NSB = 10, 8
    a(f"s_mov_b32 s{S_DBG}, s64"); a(f"s_mov_b32 s{S_DBG+1}, s65")
    a(f"s_or_b32 s{S_T0}, s{S_HEAD}, s{S_J}")
    a(f"s_or_b32 s{S_T0}, s{S_T0}, s{S_W}")
    a(f"s_cmp_lg_u32 s{S_T0}, 0")
    a("s_cbranch_scc1 L_nononce")
    a("s_memrealtime s[100:101]")
    a("s_waitcnt lgkmcnt(0)")
    a("s_lshl_b32 s100, s100, 3")
    a("s_or_b32 s100, s100, 0x80000000")
    a("s_and_b32 s100, s100, 0xfffffff8")
    a(f"v_mov_b32 v{VJ}, s100")
    a("s_mov_b64 exec, 1")
    a(f"global_store_dword v{V_ZERO}, v{VJ}, s[{S_DBG}:{S_DBG+1}] sc1")
    a("s_mov_b64 exec, -1")
    a.label("L_nononce")
    a(f"global_load_dword v{V_NON}, v{V_ZERO}, s[{S_DBG}:{S_DBG+1}] sc1")
    def issue(kind_for_A, buf, pk, pt, pw, tag):
        isB(f"L_B_{tag}")
        (k_raw_loads(a, PP, buf, pk) if kind_for_A == "K" else v_raw_loads(a, PP, buf, pt, pw))
        a(f"s_branch L_{tag}_done")
        a.label(f"L_B_{tag}")
        (v_raw_loads(a, PP, buf, pt, pw) if kind_for_A == "K" else k_raw_loads(a, PP, buf, pk))
        a.label(f"L_{tag}_done")
    def comp(kind_for_A, buf, sc, pk, pt, pw, tag):
        isB(f"L_B_{tag}")
        (k_compute(a, PP, buf, sc, WK, TT, pk) if kind_for_A == "K" else v_compute(a, PP, buf, sc, TT, pt, pw))
        a(f"s_branch L_{tag}_done")
        a.label(f"L_B_{tag}")
        (v_compute(a, PP, buf, sc, TT, pt, pw) if kind_for_A == "K" else k_compute(a, PP, buf, sc, WK, TT, pk))
        a.label(f"L_{tag}_done")
    if opt.r1early:
        issue("V", Y, S_PK2, S_PT2, S_PW2, "i1")
    NR1 = 8 if opt.r1early else 0
    a(f"s_mov_b32 s{S_MASK}, 0xffff0000")
    a(f"s_mov_b32 s{S_C}, 0x{f32bits(math.log2(math.e)/16.0):08x}")
    a(f"s_and_b32 s{S_ROT}, s{S_J}, 3")
    a(f"s_lshl_b32 s{S_T0}, s{S_HEAD}, 20")
    make_srd(a, S_KSRD, 66, S_T0, 0x100000)
    a(f"s_add_u32 s{S_T1}, s{S_T0}, 0x800000")
    make_srd(a, S_VSRD, 66, S_T1, 0x100000)
    a(f"s_add_u32 s{S_FLG}, s66, 0x1000000")
    a(f"s_addc_u32 s{S_FLG+1}, s67, 0")
    if opt.stamp:
        a(f"s_mov_b32 s{S_STW}, s66"); a(f"s_mov_b32 s{S_STW+1}, s67")
    a(f"s_lshl_b32 s{S_T0}, s{S_J}, 6")
    a(f"v_add_u32 v{QPOS}, s{S_T0}, v4")
    a(f"v_cvt_f32_u32 v{QPOS}, v{QPOS}")
    a(f"v_and_b32 v{TT}, 7, v0"); a(f"v_lshlrev_b32 v{TT}, 3, v{TT}"); a(f"v_cvt_f32_u32 v{TT}, v{TT}")
    a(f"v_lshlrev_b32 v{TT+1}, 3, v2"); a(f"v_cvt_f32_u32 v{TT+1}, v{TT+1}")
    freq_consts(a, WK, 16, TT, [64 * (k >> 3) + (k & 7) for k in range(16)])
    freq_consts(a, WQ, 8, TT + 1, list(range(8)))
    a(f"v_mul_u32_u24 v{V_QW}, {8*QFS}, v1")
    a(f"v_lshrrev_b32 v{TT}, 2, v2")
    a(f"v_mul_u32_u24 v{TT}, {QFS}, v{TT}")
    a(f"v_add_u32 v{V_QW}, v{V_QW}, v{TT}")
    a(f"v_and_b32 v{TT}, 3, v2")
    a(f"v_mul_u32_u24 v{TT}, {QGS}, v{TT}")
    a(f"v_add_u32 v{V_QW}, v{V_QW}, v{TT}")
    a(f"v_lshl_add_u32 v{V_QW}, v3, 4, v{V_QW}")
    a(f"v_mul_u32_u24 v{V_QR}, {QGS}, v3")
    a(f"v_lshl_add_u32 v{V_QR}, v2, 4, v{V_QR}")
    for r in range(64):
        a(f"v_accvgpr_write_b32 a{A_O+r}, 0")
    a(f"s_waitcnt vmcnt({8 + NSB + 1 + NR1})")
    st()
    comp("K", X, SC0, S_PK, S_PT, S_PW, "c0")
    if not opt.r1early:
        issue("V", Y, S_PK2, S_PT2, S_PW2, "i1")
    issue("K", Z, 68, 69, 70, "i2")
    st(level=2)
    a(f"s_waitcnt vmcnt(20)")
    def rope_it(it):
        if it:
            a(f"v_add_f32 v{QPOS}, 4.0, v{QPOS}")
        o = rope_q(a, QD + 8 * it, TT, QPOS, WQ)
        a(f"ds_write_b128 v{V_QW}, v[{o}:{o+3}] offset:{it*64}")
        a(f"ds_write_b128 v{V_QW}, v[{o+4}:{o+7}] offset:{it*64 + 4*QFS}")
    for it in range(4):
        rope_it(it)
    st(level=2)
    a(f"s_waitcnt vmcnt({8 if opt.r1early else 16})")
    st(level=2)
    a(f"v_readfirstlane_b32 s{S_NONCE}, v{V_NON}")
    a(f"s_cmp_lg_u32 s{S_NONCE}, 0")
    a("s_cbranch_scc1 L_have_nonce")
    a(f"s_mov_b32 s{S_SPIN}, 0")
    a.label("L_nonce_spin")
    a(f"global_load_dword v{V_NON}, v{V_ZERO}, s[{S_DBG}:{S_DBG+1}] sc1")
    a("s_waitcnt vmcnt(0)")
    a(f"v_readfirstlane_b32 s{S_NONCE}, v{V_NON}")
    a(f"s_add_u32 s{S_SPIN}, s{S_SPIN}, 1")
    a(f"s_cmp_ge_u32 s{S_SPIN}, 0x8000")
    a("s_cbranch_scc1 L_have_nonce")
    a(f"s_cmp_eq_u32 s{S_NONCE}, 0")
    a("s_cbranch_scc1 L_nonce_spin")
    a.label("L_have_nonce")
    a("s_waitcnt lgkmcnt(0)")
    a("s_barrier")
    publish(a, 1, "L_pub1", VJ)
    st()
    for qb in range(4):
        for s in range(8):
            b = A_Q + (qb * 8 + s) * 4
            a(f"ds_read_b128 a[{b}:{b+3}], v{V_QR} offset:{(qb*8+s)*QFS}")
    a("s_waitcnt vmcnt(8)")
    comp("V", Y, SC1, S_PK2, S_PT2, S_PW2, "c1")
    a("s_waitcnt lgkmcnt(0)")
    a(f"v_and_b32 v{TT}, 63, v0")
    a(f"v_lshrrev_b32 v{TT+1}, 6, v0")
    a(f"v_and_b32 v{V_FADDR}, 31, v0")
    a(f"s_lshl_b32 s{S_T0}, s{S_HEAD}, 5")
    a(f"v_add_u32 v{V_FADDR}, s{S_T0}, v{V_FADDR}")
    a(f"v_lshlrev_b32 v{V_FADDR}, 7, v{V_FADDR}")
    flag_load(a)
    issue("V", Y, 46, 47, 48, "i3")
    a(f"v_lshlrev_b32 v{TT+2}, 4, v{TT}")
    a(f"v_add_u32 v{TT+3}, {LDS_P}, v{TT+2}")
    for t in range(1, 4):
        a(f"v_add_u32 v{TT+4}, {t}, v{TT+1}")
        a(f"v_and_b32 v{TT+4}, 3, v{TT+4}")
        a(f"v_lshl_add_u32 v{V_PR+t-1}, v{TT+4}, 12, v{TT+3}")
    a(f"v_lshl_add_u32 v{V_PW}, v{TT+1}, 12, v{TT+3}")
    a(f"v_lshl_add_u32 v{V_OFF}, v{TT+1}, 14, v{TT+2}")
    for k in range(1, 4):
        a(f"v_add_u32 v{V_OFF+k}, {4096*k}, v{V_OFF}")
    for r in range(4):
        a(f"v_mov_b32 v{V_L+r}, 0")
    a(f"s_mov_b32 s{S_FMASK}, {0x202 if opt.latepub else 0x2}")
    set_need(a, 1)
    a("s_waitcnt vmcnt(8)")
    flag_check(a)
    a("s_nop 4")
    a("s_cbranch_vccz L_chk_r0_ok")
    spin(a, "r0")
    a.label("L_chk_r0_ok")
    st()
    a(f"s_lshl_b32 s{S_KOFF}, s{S_ROT}, 16")
    a(f"s_mov_b32 s{S_VOFF}, s{S_KOFF}")
    a(f"s_mov_b32 s{S_KUSE}, s{S_KOFF}")
    pro = [kload(0, f, S_KUSE) for f in range(16)]
    if opt.k1o:
        a(f"s_add_u32 s{S_T0}, s{S_ROT}, 1")
        a(f"s_and_b32 s{S_T0}, s{S_T0}, 3")
        a(f"s_lshl_b32 s{S_T4}, s{S_T0}, 16")
        for f in range(16):
            pro.append(I_vm(f"buffer_load_dwordx4 v[{K1V+4*f}:{K1V+4*f+3}], v{V_OFF+(f>>2)}, s[{S_KSRD}:{S_KSRD+3}], s{S_T4} offen offset:{(f&3)*1024}{gen2.LDFLAGS}", ("K", 1, f)))
    for it in pro:
        a(it.text)
    comp("K", Z, SC2, 68, 69, 70, "c2")
    a(f"s_waitcnt vmcnt({20 + (16 if opt.k1o else 0)})")
    comp("V", Y, SC3, 46, 47, 48, "c3")
    st()
    endbar = [I_wlds("all"), I_raw("s_barrier")]
    mf = []
    for t in range(2):
        S = V_S + 32 * t
        for kb in range(2):
            for qb in range(4):
                for sx in range(8):
                    f = kb * 8 + sx
                    d = f"v[{S+(kb*4+qb)*4}:{S+(kb*4+qb)*4+3}]"
                    c = "0" if sx == 0 else d
                    pre_ = [I_wvm(("K", t, kb * 8 + 7))] if (qb == 0 and sx == 0) else []
                    A = f"a[{A_K+4*f}:{A_K+4*f+3}]" if t == 0 else f"v[{K1V+4*f}:{K1V+4*f+3}]"
                    mf.append([pre_, I_mfma(f"{MF} {d}, {A}, a[{A_Q+(qb*8+sx)*4}:{A_Q+(qb*8+sx)*4+3}], {c}"), []])
    for j in range(16):
        mf[28 + 4 * j if j < 8 else 64 + 4 * (j - 8)][2].append(kload(2, j, S_KUSE))
    for j in range(9):
        mf[92 + 4 * j][2].append(vload(0, j, S_VOFF))
    class O2: pass
    o2 = O2(); o2.__dict__.update(opt.__dict__); o2.sm_g0 = 68; o2.sm_g1 = 124; o2.pace = 0
    head0 = [I_salu(f"s_mov_b32 s{S_I}, 0")] + tile_off(S_KUSE, 2, S_T4)
    pre = schedule(mf, head0, [], softmax_stream(0, opt), 64, o2)
    it0 = [I_raw(f"s_waitcnt vmcnt({29 - 8 if opt.latepub else 25 - 8})") if False else I_raw(f"s_waitcnt vmcnt({29 if opt.latepub else 25})")] + endbar + [I_salu(f"s_mov_b32 s{S_I}, 1")]
    blocks = [("pro", pro + [I_vm("", ("ST", k)) for k in range(8)]), ("pre", pre), ("it0", it0)]
    stat = {}
    for i in range(1, 15):
        items = build_iter(i, opt) + [I_salu(f"s_add_u32 s{S_I}, s{S_I}, 1")] + endbar
        nm = "odd" if i % 2 else "even"
        blocks.append((nm, items))
        if nm not in stat: stat[nm] = items
        else: assert [x.text for x in stat[nm]] == [x.text for x in items], nm
    it15 = build_iter(15, opt)
    V_LW, V_LR, V_OUT = 231, 232, 233
    LRREG = V_LR
    red = [I_valu(f"v_and_b32 v224, 15, v0"), I_valu(f"v_lshrrev_b32 v225, 6, v0"), I_valu(f"v_bfe_u32 v226, v0, 4, 2"),
           I_valu(f"v_lshlrev_b32 v{V_LR}, 4, v224"), I_valu(f"v_add_u32 v{V_LR}, {LDS_L}, v{V_LR}"),
           I_valu(f"v_lshl_add_u32 v{V_LW}, v225, 2, v{V_LR}"), I_valu(f"v_lshlrev_b32 v{V_OUT}, 9, v224"),
           I_valu(f"v_lshl_add_u32 v{V_OUT}, v225, 7, v{V_OUT}"),
           I_valu(f"v_lshl_add_u32 v{V_OUT+1}, v226, 5, v{V_OUT}"),
           I_valu(f"v_lshl_add_u32 v{V_OUT}, v226, {4 if opt.wide_out else 5}, v{V_OUT}")]
    for qb in range(4): red.append(I_valu(f"v_mov_b32 v{T+qb}, v{V_L+qb}"))
    red.append(I_raw("s_nop 1"))
    for qb in range(4): red.append(I_valu(f"v_permlane32_swap_b32 v{T+qb}, v{V_L+qb}"))
    red.append(I_raw("s_nop 1"))
    for qb in range(4): red.append(I_valu(f"v_add_f32 v{V_L+qb}, v{V_L+qb}, v{T+qb}"))
    for qb in range(4): red.append(I_valu(f"v_mov_b32 v{T+qb}, v{V_L+qb}"))
    red.append(I_raw("s_nop 1"))
    for qb in range(4): red.append(I_valu(f"v_permlane16_swap_b32 v{T+qb}, v{V_L+qb}"))
    red.append(I_raw("s_nop 1"))
    for qb in range(4): red.append(I_valu(f"v_add_f32 v{V_L+qb}, v{V_L+qb}, v{T+qb}"))
    for qb in range(4): red.append(I_lds(f"ds_write_b32 v{V_LW}, v{V_L+qb} offset:{qb*256}", ("LW", qb)))
    it15 += red + endbar
    blocks.append(("it15", it15))
    it16 = build_last(opt, T, V_OUT)
    blocks.append(("it16", it16))
    waits = resolve_waits(blocks)
    emit_block(a, "pre", pre, waits)
    if opt.stamp == 5: st()
    emit_block(a, "it0", it0, waits)
    publish(a, 3 if opt.latepub else 4, "L_pub4", 158)
    def hook_site(name):
        if name == "odd":
            if opt.latepub:
                a(f"s_and_b32 s{S_T0}, s{S_I}, 7")
                a(f"s_cmp_eq_u32 s{S_T0}, 2")
            else:
                a(f"s_cmp_eq_u32 s{S_I}, 2")
            a(f"s_cbranch_scc1 L_hook")
            a.label("L_hook_ret")
    st()
    a.label("L_loop")
    base = st.n
    emit_block(a, "odd", stat["odd"], waits)
    if opt.stamp == 4: st.dyn(2, base - 4, 9)
    hook_site("odd")
    if opt.stamp == 3: st.dyn(1, base - 2, 15)
    if opt.stamp == 4: st.dyn(2, base - 3, 9)
    emit_block(a, "even", stat["even"], waits)
    if opt.stamp == 4: st.dyn(2, base - 4, 9)
    hook_site("even")
    if opt.stamp == 3:
        st.dyn(1, base - 2, 15); st.n = base + 14
    if opt.stamp == 4:
        st.dyn(2, base - 3, 9); st.n = base + 16
    a(f"s_cmp_lt_u32 s{S_I}, 15")
    a("s_cbranch_scc1 L_loop")
    if opt.stamp in (1, 2): st()
    emit_block(a, "it15", it15, waits)
    emit_block(a, "it16", it16, waits)
    if opt.stamp:
        a("s_waitcnt vmcnt(0)")
        st(force=True)
        st.finish()
    if opt.dbgspan:
        a("s_waitcnt vmcnt(0)")
        a("s_memrealtime s[72:73]")
        a("s_waitcnt lgkmcnt(0)")
        a("v_mov_b32 v16, 8"); a("v_mov_b32 v17, s98"); a("v_mov_b32 v18, 12"); a("v_mov_b32 v19, s72")
        a("s_mov_b64 exec, 1")
        a(f"global_atomic_umax v16, v17, s[{S_DBG}:{S_DBG+1}]")
        a(f"global_atomic_umax v18, v19, s[{S_DBG}:{S_DBG+1}]")
        a("s_waitcnt vmcnt(0)")
    a("s_endpgm")
    a.label("L_hook")
    if opt.latepub:
        a(f"s_cmp_eq_u32 s{S_I}, 2")
        a("s_cbranch_scc0 L_hook_c4")
        publish(a, 4, "L_pub4b", 158)
        set_need(a, 3)
        a("s_branch L_hook_chk")
        a.label("L_hook_c4")
        set_need(a, 4)
        a.label("L_hook_chk")
    else:
        set_need(a, 4)
    nyoung = sum(1 for j in range(16) if 28 + 4 * j > opt.flag_gap) + sum(1 for j in range(9) if 92 + 4 * j > opt.flag_gap)
    a(f"s_waitcnt vmcnt({nyoung})")
    flag_check(a)
    a("s_nop 4")
    a(f"s_cbranch_vccz L_hook_ret")
    spin(a, "hk")
    a("s_branch L_hook_ret")
    gen_slow(a, opt, T, V_LW, V_LR, V_OUT + 1)
    a.label("L_done")
    a("s_endpgm")
    a.label("L_code_end")

def main():
    global OUTF
    ap = argparse.ArgumentParser()
    ap.add_argument("-o", default=f"cdna_kernels/{NAME}.s")
    ap.add_argument("--stamp", type=int, default=0)
    ap.add_argument("--wgrp", type=int, default=4)
    ap.add_argument("--kgrp", type=int, default=8)
    ap.add_argument("--spread", type=int, default=1)
    ap.add_argument("--cap", type=int, default=2)
    ap.add_argument("--pace", type=int, default=1)
    ap.add_argument("--read_spread", type=int, default=1)
    ap.add_argument("--sm_g0", type=int, default=0)
    ap.add_argument("--sm_g1", type=int, default=117)
    ap.add_argument("--ldflags", default="sc1")
    ap.add_argument("--outflags", default="nt")
    ap.add_argument("--empty", type=int, default=0)
    ap.add_argument("--dbgspan", type=int, default=0)
    ap.add_argument("--codepf", type=int, default=1)
    ap.add_argument("--r1early", type=int, default=1)
    ap.add_argument("--k1o", type=int, default=1)
    ap.add_argument("--wide_out", type=int, default=1)
    ap.add_argument("--latepub", type=int, default=1)
    ap.add_argument("--pretouch", type=int, default=1)
    ap.add_argument("--rope_first", type=int, default=1)
    ap.add_argument("--prefetch", type=int, default=0)
    ap.add_argument("--flag_gap", type=int, default=57)
    ap.add_argument("--ngroups", type=int, default=3)
    opt = ap.parse_args()
    OUTF = (" " + opt.outflags.replace("+", " ")) if opt.outflags else ""
    gen2.LDFLAGS = (" " + opt.ldflags.replace("+", " ")) if opt.ldflags else ""
    out = header()
    out += f"; @launch grid=(256,1,1) block=(256,1,1) lds={LDS_TOTAL}\n"
    out += '.amdgcn_target "amdgcn-amd-amdhsa--gfx950"\n.text\n'
    a = EA()
    gen_fused(a, opt)
    out += f".globl {KNAME}\n.p2align 8\n.type {KNAME},@function\n" + a.text()
    out += kd(KNAME, 512, 102, 256)
    open(opt.o, "w").write(out)

if __name__ == "__main__":
    main()
```

```python
import sys, os, argparse, math, struct
sys.path.insert(0, "dev")
from gen import f32bits, make_srd, kd, NAME, Item, I_valu, I_raw, I_salu, I_vm, I_lds, I_wvm, I_wlds, I_mfma, resolve_waits, emit_block
import gen2
from gen2 import (MF, V_OFF, V_PW, V_PR, V_L, V_S, V_PO, V_PF, V_V, A_O, A_Q, A_K, QFS, QGS,
                  S_KSRD, S_VSRD, S_QSRD, S_OSRD, S_KOFF, S_VOFF, S_I, S_ROT, S_C, S_W, S_MASK, S_KUSE,
                  kload, vload, softmax_stream, qk_mfmas, schedule, respread_loads, header)

KNAME = NAME + "_kernel"

class EA:
    def __init__(self): self.lines = []
    def __call__(self, s):
        for l in s.split("\n"):
            l = l.strip()
            if not l: continue
            self.lines.append(l if l.endswith(":") else "    " + l)
    def label(self, l): self.lines.append(l + ":")
    def text(self): return "\n".join(self.lines) + "\n"

LDS_Q = 0
LDS_L = 34816
LDS_SC = LDS_L + 1024
LDS_WK = LDS_SC + 4 * 2560
LDS_P = 51200
LDS_TOTAL = LDS_P + 32768
assert LDS_WK + 4096 <= LDS_P

S_STW = 36
S_NONCE = 39
S_PK, S_PT, S_PW = 40, 41, 42
S_PK2, S_PT2, S_PW2 = 43, 44, 45
S_HK, S_HT, S_HW = 46, 47, 48
S_FLG = 50
S_RANGE = 53
S_FMASK = 49
S_HMASK = 38
S_G = 68
S_RET = 70
S_RAWK, S_RAWV = 56, 60
S_KSC, S_KZ, S_VSC, S_VZ = 72, 76, 80, 84
S_DBG = 88
S_J, S_NEED = 90, 91
S_T0, S_T1, S_T2, S_T3, S_T4 = 92, 93, 94, 95, 96
S_SPIN, S_HEAD = 97, 99
V_FLAG, V_FADDR, V_STAMP = 13, 14, 15
STF = " sc1"

class RM: pass

class Stamp:
    def __init__(self, a, opt):
        self.a = a; self.on = opt.stamp; self.n = 0
    def _emit(self, idx_sgpr=None):
        a = self.a
        a("s_memtime s[54:55]")
        a("s_memrealtime s[100:101]")
        a("s_waitcnt lgkmcnt(0)")
        if idx_sgpr is None:
            a(f"v_writelane_b32 v{V_STAMP}, s54, {2*self.n}")
            a(f"v_writelane_b32 v{V_STAMP}, s100, {2*self.n+1}")
        else:
            a(f"s_mov_b32 m0, s{idx_sgpr}"); a("s_nop 1")
            a(f"v_writelane_b32 v{V_STAMP}, s54, m0")
            a(f"s_add_u32 m0, s{idx_sgpr}, 1"); a("s_nop 1")
            a(f"v_writelane_b32 v{V_STAMP}, s100, m0")
    def __call__(self, again=False, level=1, force=False):
        if not self.on: return
        if self.on == 9 and not force: return
        if level == 2 and self.on != 2: return
        if again: self.n -= 1
        self._emit()
        self.n += 1
    def dyn(self, mul, add, cap):
        a = self.a
        a(f"s_min_u32 s52, s{S_I}, {cap}")
        a(f"s_mul_i32 s52, s52, {2*mul}")
        a(f"s_add_u32 s52, s52, {2*add}")
        self._emit(52)
    def finish(self):
        if not self.on: return
        a = self.a
        a("s_waitcnt vmcnt(0)")
        a(f"s_lshl_b32 s46, s{S_J}, 3")
        a(f"s_add_u32 s46, s46, s{S_HEAD}")
        a(f"s_lshl_b32 s46, s46, 10")
        a(f"s_lshl_b32 s47, s{S_W}, 8")
        a("s_add_u32 s46, s46, s47")
        a("s_add_u32 s46, s46, 0x8000000")
        a(f"s_add_u32 s46, s{S_STW}, s46")
        a(f"s_addc_u32 s47, s{S_STW+1}, 0")
        a("v_and_b32 v16, 63, v0")
        a("v_lshlrev_b32 v16, 2, v16")
        a(f"global_store_dword v16, v{V_STAMP}, s[46:47]")
        a("s_waitcnt vmcnt(0)")

LOG2_10000_128 = math.log2(10000.0) / 128.0
LOG2_2PI = math.log2(2 * math.pi)

def vp(r): return f"v[{r}:{r+1}]"

def k_raw_loads(a, R, X, rowreg):
    a(f"s_lshl_b32 s{S_T0}, s{rowreg}, 10")
    for c in range(4):
        for hf in range(2):
            b = X + c * 8 + hf * 4
            a(f"buffer_load_dwordx4 v[{b}:{b+3}], v{R.kraw}, s[{S_RAWK}:{S_RAWK+3}], s{S_T0} offen offset:{c*256+hf*16}")
    return 8
def k_scale_loads(a, R, rowreg, dst):
    a(f"s_lshl_b32 s{S_T2}, s{rowreg}, 1")
    a(f"buffer_load_ushort v{dst}, v{R.ksc}, s[{S_KSC}:{S_KSC+3}], s{S_T2} offen")
    a(f"buffer_load_ushort v{dst+1}, v{R.ksc}, s[{S_KZ}:{S_KZ+3}], s{S_T2} offen")
    return 2
def v_raw_loads(a, R, X, treg, wreg):
    a(f"s_lshl_b32 s{S_T0}, s{treg}, 15")
    a(f"s_lshl_b32 s{S_T1}, s{wreg}, 8")
    a(f"s_add_u32 s{S_T0}, s{S_T0}, s{S_T1}")
    a(f"s_add_u32 s{S_T1}, s{S_T0}, 16384")
    for j in range(8):
        b = X + j * 4
        so = S_T0 if j < 4 else S_T1
        a(f"buffer_load_dwordx4 v[{b}:{b+3}], v{R.vraw}, s[{S_RAWV}:{S_RAWV+3}], s{so} offen offset:{(j&3)*1024}")
    return 8
def v_scale_loads(a, R, SC, treg):
    a(f"s_lshl_b32 s{S_T2}, s{treg}, 6")
    for g2 in range(2):
        a(f"buffer_load_dwordx2 v[{SC+2*g2}:{SC+1+2*g2}], v{R.vsc}, s[{S_VSC}:{S_VSC+3}], s{S_T2} offen offset:{g2*32}")
        a(f"buffer_load_dwordx2 v[{SC+4+2*g2}:{SC+5+2*g2}], v{R.vsc}, s[{S_VZ}:{S_VZ+3}], s{S_T2} offen offset:{g2*32}")
    return 4

def sincos8(a, pos, w, cs, sn):
    for k in range(4):
        a(f"v_pk_mul_f32 {vp(sn+2*k)}, {vp(w+2*k)}, {vp(pos)} op_sel_hi:[1,0]")
    for e in range(8):
        a(f"v_fract_f32 v{sn+e}, v{sn+e}")
    for e in range(8):
        a(f"v_cos_f32 v{cs+e}, v{sn+e}")
    for e in range(8):
        a(f"v_sin_f32 v{sn+e}, v{sn+e}")

def rope8(a, x1, x2, cs, sn, u, o1dst, o2dst):
    for k in range(4):
        a(f"v_pk_mul_f32 {vp(u+2*k)}, {vp(x2+2*k)}, {vp(sn+2*k)}")
    for k in range(4):
        a(f"v_pk_mul_f32 {vp(sn+2*k)}, {vp(x1+2*k)}, {vp(sn+2*k)}")
    for k in range(4):
        a(f"v_pk_fma_f32 {vp(u+2*k)}, {vp(x1+2*k)}, {vp(cs+2*k)}, {vp(u+2*k)} neg_lo:[0,0,1] neg_hi:[0,0,1]")
    for k in range(4):
        a(f"v_pk_fma_f32 {vp(sn+2*k)}, {vp(x2+2*k)}, {vp(cs+2*k)}, {vp(sn+2*k)}")
    for k in range(4):
        a(f"v_cvt_pk_bf16_f32 v{o1dst+k}, v{u+2*k}, v{u+2*k+1}")
    for k in range(4):
        a(f"v_cvt_pk_bf16_f32 v{o2dst+k}, v{sn+2*k}, v{sn+2*k+1}")

def k_compute(a, R, X, sc, WK, T, rowreg):
    assert sc % 2 == 0 and T % 2 == 0 and X % 4 == 0
    pos, cs, sn, u = T, T + 2, T + 10, T + 18
    a(f"v_lshlrev_b32 v{sc}, 16, v{sc}")
    a(f"v_lshlrev_b32 v{sc+1}, 16, v{sc+1}")
    a(f"v_cvt_f32_u32 v{pos}, v{R.krr}")
    a(f"v_cvt_f32_u32 v{pos+1}, s{rowreg}")
    a(f"v_mul_f32 v{sc+1}, v{sc+1}, v{sc}")
    a(f"v_add_f32 v{pos}, v{pos}, v{pos+1}")
    for k in range(32):
        a(f"v_cvt_f32_i32 v{X+k}, v{X+k}")
    sincos8(a, pos, WK, cs, sn)
    for k in range(16):
        a(f"v_pk_fma_f32 {vp(X+2*k)}, {vp(X+2*k)}, {vp(sc)}, {vp(sc)} op_sel:[0,0,1] op_sel_hi:[1,0,1] neg_lo:[0,0,1] neg_hi:[0,0,1]")
    rope8(a, X, X + 16, cs, sn, u, X, X + 16)
    sincos8(a, pos, WK + 8, cs, sn)
    a("s_nop 0")
    rope8(a, X + 8, X + 24, cs, sn, u, X + 8, X + 24)
    a(f"s_lshr_b32 s{S_T0}, s{rowreg}, 4")
    a(f"s_lshl_b32 s{S_T0}, s{S_T0}, 13")
    a(f"s_and_b32 s{S_T1}, s{rowreg}, 8")
    a(f"s_lshl_b32 s{S_T1}, s{S_T1}, 4")
    a(f"s_add_u32 s{S_T0}, s{S_T0}, s{S_T1}")
    a(f"s_add_u32 s{S_T1}, s{S_T0}, 4096")
    for c in range(4):
        b = X + c * 8
        so = S_T0 if c < 2 else S_T1
        a(f"buffer_store_dwordx4 v[{b}:{b+3}], v{R.kst}, s[{S_KSRD}:{S_KSRD+3}], s{so} offen offset:{(c&1)*2048}{STF}")

def v_compute(a, R, X, SC, T, treg, wreg):
    M = S_MASK
    SZ = T
    for j in range(8):
        src_s = SC + 2 * (j >> 2) + ((j & 3) >> 1)
        src_z = SC + 4 + 2 * (j >> 2) + ((j & 3) >> 1)
        if j & 1:
            a(f"v_and_b32 v{SZ+2*j}, s{M}, v{src_s}"); a(f"v_and_b32 v{SZ+2*j+1}, s{M}, v{src_z}")
        else:
            a(f"v_lshlrev_b32 v{SZ+2*j}, 16, v{src_s}"); a(f"v_lshlrev_b32 v{SZ+2*j+1}, 16, v{src_z}")
    for k in range(32):
        a(f"v_cvt_f32_i32 v{X+k}, v{X+k}")
    for j in range(8):
        a(f"v_mul_f32 v{SZ+2*j+1}, v{SZ+2*j+1}, v{SZ+2*j}")
    for j in range(8):
        for h in range(2):
            x = X + 4 * j + 2 * h
            a(f"v_pk_fma_f32 {vp(x)}, {vp(x)}, {vp(SZ+2*j)}, {vp(SZ+2*j)} op_sel:[0,0,1] op_sel_hi:[1,0,1] neg_lo:[0,0,1] neg_hi:[0,0,1]")
    O = T
    for db in range(4):
        for jj in range(4):
            a(f"v_cvt_pk_bf16_f32 v{O+db*4+jj}, v{X+(2*jj)*4+db}, v{X+(2*jj+1)*4+db}")
    a(f"s_lshr_b32 s{S_T0}, s{treg}, 2")
    a(f"s_lshl_b32 s{S_T0}, s{S_T0}, 16")
    a(f"s_lshl_b32 s{S_T1}, s{wreg}, 14")
    a(f"s_add_u32 s{S_T0}, s{S_T0}, s{S_T1}")
    a(f"s_sub_u32 s{S_T1}, s{treg}, s{wreg}")
    a(f"s_and_b32 s{S_T1}, s{S_T1}, 3")
    a(f"s_lshl_b32 s{S_T1}, s{S_T1}, 10")
    a(f"s_add_u32 s{S_T0}, s{S_T0}, s{S_T1}")
    for db in range(4):
        if db:
            a(f"s_add_u32 s{S_T0}, s{S_T0}, 4096")
        a(f"buffer_store_dwordx4 v[{O+4*db}:{O+4*db+3}], v{R.vst}, s[{S_VSRD}:{S_VSRD+3}], s{S_T0} offen{STF}")

def freq_consts(a, dst, n, dbase_v, offs):
    a(f"s_mov_b32 s{S_T0}, 0x{f32bits(-LOG2_10000_128):08x}")
    for k in range(n):
        a(f"v_mov_b32 v{dst+k}, 0x{f32bits(-LOG2_10000_128 * offs[k] - LOG2_2PI):08x}")
    for k in range(n):
        a(f"v_fma_f32 v{dst+k}, v{dbase_v}, s{S_T0}, v{dst+k}")
    for k in range(n):
        a(f"v_exp_f32 v{dst+k}, v{dst+k}")
    a("s_nop 0")

def rope_q(a, src, T, pos, wq):
    M = S_MASK
    q1, q2, cs, sn, u, out = T, T + 8, T + 16, T + 24, T + 32, T
    sincos8(a, pos, wq, cs, sn)
    for k in range(4):
        a(f"v_lshlrev_b32 v{q1+2*k}, 16, v{src+k}"); a(f"v_and_b32 v{q1+2*k+1}, s{M}, v{src+k}")
        a(f"v_lshlrev_b32 v{q2+2*k}, 16, v{src+4+k}"); a(f"v_and_b32 v{q2+2*k+1}, s{M}, v{src+4+k}")
    for k in range(4):
        a(f"v_pk_mul_f32 {vp(cs+2*k)}, {vp(cs+2*k)}, s[{S_C}:{S_C+1}] op_sel_hi:[1,0]")
    for k in range(4):
        a(f"v_pk_mul_f32 {vp(sn+2*k)}, {vp(sn+2*k)}, s[{S_C}:{S_C+1}] op_sel_hi:[1,0]")
    rope8(a, q1, q2, cs, sn, u, out, out + 4)
    return out

def task_params(a, rnd, pk, pt, pw):
    a(f"s_and_b32 s{S_T0}, s{S_W}, 1")
    a(f"s_lshl_b32 s{S_T1}, s{S_J}, 1")
    a(f"s_add_u32 s{S_T0}, s{S_T0}, s{S_T1}")
    if pk is not None:
        a(f"s_lshl_b32 s{pk}, s{S_T0}, 3")
        if isinstance(rnd, int): a(f"s_add_u32 s{pk}, s{pk}, {512*rnd}")
        else:
            a(f"s_lshl_b32 s{S_T1}, s{rnd[1]}, 9"); a(f"s_add_u32 s{pk}, s{pk}, s{S_T1}")
    if pt is not None:
        a(f"s_lshr_b32 s{pt}, s{S_T0}, 2")
        if isinstance(rnd, int): a(f"s_add_u32 s{pt}, s{pt}, {16*rnd}")
        else:
            a(f"s_lshl_b32 s{S_T1}, s{rnd[1]}, 4"); a(f"s_add_u32 s{pt}, s{pt}, s{S_T1}")
        a(f"s_and_b32 s{pw}, s{S_T0}, 3")

def task_addr(a, R, tmp, k=True, v=True):
    if k:
        a(f"v_and_b32 v{tmp}, 7, v0")
        a(f"v_bfe_u32 v{R.krr}, v0, 3, 3")
        a(f"v_lshlrev_b32 v{R.kraw}, 10, v{R.krr}")
        a(f"v_lshl_add_u32 v{R.kraw}, v{tmp}, 5, v{R.kraw}")
        a(f"v_lshrrev_b32 v{tmp+1}, 2, v{tmp}")
        a(f"v_lshlrev_b32 v{R.kst}, 10, v{tmp+1}")
        a(f"v_and_b32 v{tmp+1}, 3, v{tmp}")
        a(f"v_lshl_add_u32 v{R.kst}, v{tmp+1}, 8, v{R.kst}")
        a(f"v_lshl_add_u32 v{R.kst}, v{R.krr}, 4, v{R.kst}")
    if v:
        a(f"v_and_b32 v{tmp}, 15, v0")
        a(f"v_bfe_u32 v{tmp+1}, v0, 4, 2")
        a(f"v_lshlrev_b32 v{R.vraw}, 12, v{tmp+1}")
        a(f"v_lshl_add_u32 v{R.vraw}, v{tmp}, 4, v{R.vraw}")
        a(f"v_and_b32 v{R.vst}, 63, v0")
        a(f"v_lshlrev_b32 v{R.vst}, 4, v{R.vst}")

def publish(a, val, lbl, t):
    a(f"s_cmp_lg_u32 s{S_W}, 0")
    a(f"s_cbranch_scc1 {lbl}")
    a(f"s_mov_b64 exec, 1")
    a(f"s_add_u32 s{S_T1}, s{S_NONCE}, {val}")
    a(f"v_mov_b32 v{t}, s{S_T1}")
    a(f"s_lshl_b32 s{S_T0}, s{S_HEAD}, 5")
    a(f"s_add_u32 s{S_T0}, s{S_T0}, s{S_J}")
    a(f"s_lshl_b32 s{S_T0}, s{S_T0}, 7")
    a(f"v_mov_b32 v{t+1}, s{S_T0}")
    a(f"global_store_dword v{t+1}, v{t}, s[{S_FLG}:{S_FLG+1}] sc1")
    a(f"s_mov_b64 exec, -1")
    a.label(lbl)

def flag_load(a):
    a(f"global_load_dword v{V_FLAG}, v{V_FADDR}, s[{S_FLG}:{S_FLG+1}] sc1")
def flag_check(a):
    a(f"v_subrev_u32 v{V_FLAG}, s{S_NEED}, v{V_FLAG}")
    a(f"v_cmp_lt_u32 vcc, s{S_RANGE}, v{V_FLAG}")
def set_need(a, need):
    a(f"s_add_u32 s{S_NEED}, s{S_NONCE}, {need}")
    a(f"s_mov_b32 s{S_RANGE}, {4-need}")
def spin(a, name):
    a(f"s_mov_b32 s{S_SPIN}, 0")
    a.label(f"L_spin_{name}")
    flag_load(a)
    a("s_waitcnt vmcnt(0)")
    flag_check(a)
    a(f"s_add_u32 s{S_SPIN}, s{S_SPIN}, 1")
    a(f"s_cmp_lt_u32 s{S_SPIN}, 0x8000")
    a(f"s_cbranch_scc0 L_spin_{name}_done")
    a("s_nop 3")
    a(f"s_cbranch_vccnz L_spin_{name}")
    a.label(f"L_spin_{name}_done")

def tile_off(dst, tadd, tmp):
    return [I_salu(f"s_add_u32 s{dst}, s{S_I}, {tadd}"),
            I_salu(f"s_add_u32 s{tmp}, s{dst}, s{S_ROT}"),
            I_salu(f"s_and_b32 s{tmp}, s{tmp}, 3"),
            I_salu(f"s_and_b32 s{dst}, s{dst}, 12"),
            I_salu(f"s_or_b32 s{dst}, s{dst}, s{tmp}"),
            I_salu(f"s_lshl_b32 s{dst}, s{dst}, 16")]

def pv_item(t, db, qb, p):
    par = t & 1
    f = db * 4 + p
    o = A_O + (db * 4 + qb) * 4
    b = V_PO + 16 * par + qb * 4 if p == 0 else V_PF + (p - 1) * 16 + qb * 4
    return I_mfma(f"{MF} a[{o}:{o+3}], v[{V_V+4*f}:{V_V+4*f+3}], v[{b}:{b+3}], a[{o}:{o+3}]")

def p_reads(t):
    par = t & 1
    r = []
    for p in range(1, 4):
        for qb in range(4):
            dst = V_PF + (p - 1) * 16 + qb * 4
            r.append(I_lds(f"ds_read_b128 v[{dst}:{dst+3}], v{V_PR+p-1} offset:{par*16384+qb*1024}", ("PR", t, p, qb)))
    return r

def build_iter(i, opt, NT=16):
    has_qk = (i + 1) < NT
    has_sm = 0 <= i < NT
    has_pv = 1 <= i <= NT
    mf = []
    if has_qk:
        mf += qk_mfmas(i + 1, opt, NT)
    nqk = len(mf)
    if has_pv:
        t = i - 1
        for db in range(4):
            for qb in range(4):
                for p in range(4):
                    pre = []
                    if qb == 0 and p == 0:
                        pre.append(I_wvm(("V", t, db * 4 + 3)))
                    if db == 0 and qb == 0 and p == 1:
                        pre.append(I_wlds(("PR", t, 3, 3)))
                    post = []
                    if qb == 3 and t + 1 < NT:
                        post.append(vload(t + 1, db * 4 + p, S_VOFF))
                    mf.append([pre, pv_item(t, db, qb, p), post])
    respread_loads(mf, i, NT, opt)
    if i == 15:
        mf[0][2] = [vload(14, j, S_VOFF) for j in range(9, 16)] + mf[0][2]
    reads = p_reads(i - 1) if has_pv else []
    sm = softmax_stream(i, opt) if has_sm else []
    head = []
    full = len(mf) == 128
    if has_qk:
        head += tile_off(S_KOFF, 2, S_T4) + [I_salu(f"s_cmp_lt_u32 s{S_I}, {NT-2}"), I_salu(f"s_cselect_b32 s{S_KUSE}, s{S_KOFF}, 0x100000")]
    if has_pv:
        vup = tile_off(S_VOFF, 0, S_T3)
        if full:
            for k, x in enumerate(vup):
                mf[41 + k][2].append(x)
        else:
            head += vup
    if full and i % 2 == 1:
        txt = (f"s_bitcmp1_b32 s{S_FMASK}, s{S_I}\ns_cbranch_scc0 L_noflagld\n"
               f"global_load_dword v{V_FLAG}, v{V_FADDR}, s[{S_FLG}:{S_FLG+1}] sc1\nL_noflagld:")
        mf[opt.flag_gap][2].append(I_raw(txt))
    return schedule(mf, head, reads, sm, nqk, opt)

def build_it0_k1o(opt):
    mf = []
    S = V_S + 32
    for kb in range(2):
        for qb in range(4):
            for s in range(8):
                f = kb * 8 + s
                d = f"v[{S+(kb*4+qb)*4}:{S+(kb*4+qb)*4+3}]"
                c = "0" if s == 0 else d
                pre = [I_wvm(("K", 1, kb * 8 + 7))] if (qb == 0 and s == 0) else []
                mf.append([pre, I_mfma(f"{MF} {d}, a[{A_O+4*f}:{A_O+4*f+3}], a[{A_Q+(qb*8+s)*4}:{A_Q+(qb*8+s)*4+3}], {c}"), []])
    for k in range(32):
        mf[32 + k][2].append(I_valu(f"v_accvgpr_write_b32 a{A_O+k}, 0"))
    items = schedule(mf, [], [], softmax_stream(0, opt), 64, opt)
    items += [I_valu(f"v_accvgpr_write_b32 a{A_O+32+k}, 0") for k in range(32)]
    return items

def build_last(opt, T, V_OUT):
    t = 15
    mf = []
    for qb in range(4):
        for db in range(4):
            for p in range(4):
                pre = []
                if qb == 0 and p == 0:
                    pre.append(I_wvm(("V", t, db * 4 + 3)))
                if qb == 0 and db == 0 and p == 1:
                    pre.append(I_wlds(("PR", t, 3, 3)))
                mf.append([pre, pv_item(t, db, qb, p), []])
    def epi(qb):
        it = []
        inv = T + 4 * qb
        tb = 48 + (qb & 1) * 16
        for par in range(2):
            for k in range(par, 8, 2):
                r = k >> 1
                c = 2 * (k & 1)
                x = tb + 2 * k
                it.append(I_valu(f"v_accvgpr_read_b32 v{x}, a{A_O+((c)*4+qb)*4+r}"))
                it.append(I_valu(f"v_accvgpr_read_b32 v{x+1}, a{A_O+((c+1)*4+qb)*4+r}"))
        for k in range(8):
            x = tb + 2 * k
            it.append(I_valu(f"v_pk_mul_f32 {vp(x)}, {vp(x)}, {vp(inv)} op_sel_hi:[1,0]"))
        for half in range(2):
            o = 16 + (qb * 2 + half) * 4
            for kk in range(4):
                x = tb + 2 * (half * 4 + kk)
                it.append(I_valu(f"v_cvt_pk_bf16_f32 v{o+kk}, v{x}, v{x+1}"))
        oA, oB = 16 + qb * 8, 16 + qb * 8 + 4
        so = "0" if qb == 0 else f"s{S_T0+qb-1}"
        if opt.wide_out:
            it.append(I_raw("s_nop 1"))
            for kk in range(4):
                it.append(I_valu(f"v_permlane16_swap_b32 v{oA+kk}, v{oB+kk}"))
            it.append(I_raw("s_nop 1"))
            for kk in range(4):
                it.append(I_valu(f"v_permlane32_swap_b32 v{oA+kk}, v{oB+kk}"))
            it.append(I_raw("s_nop 0"))
            it.append(I_vm(f"buffer_store_dwordx4 v[{oA}:{oA+3}], v{V_OUT}, s[{S_OSRD}:{S_OSRD+3}], {so} offen{OUTF}", ("O", qb, 0)))
            it.append(I_vm(f"buffer_store_dwordx4 v[{oB}:{oB+3}], v{V_OUT}, s[{S_OSRD}:{S_OSRD+3}], {so} offen offset:64{OUTF}", ("O", qb, 1)))
        else:
            it.append(I_vm(f"buffer_store_dwordx4 v[{oA}:{oA+3}], v{V_OUT}, s[{S_OSRD}:{S_OSRD+3}], {so} offen offset:0{OUTF}", ("O", qb, 0)))
            it.append(I_vm(f"buffer_store_dwordx4 v[{oB}:{oB+3}], v{V_OUT}, s[{S_OSRD}:{S_OSRD+3}], {so} offen offset:16{OUTF}", ("O", qb, 1)))
        return it
    linv = [I_wlds(("LR", 3))]
    for qb in range(4):
        b = T + 4 * qb
        linv += [I_valu(f"v_add_f32 v{b}, v{b}, v{b+1}"), I_valu(f"v_add_f32 v{b+2}, v{b+2}, v{b+3}")]
    for qb in range(4):
        b = T + 4 * qb
        linv.append(I_valu(f"v_add_f32 v{b}, v{b}, v{b+2}"))
    linv.append(I_valu(f"v_max3_f32 v{T+1}, v{T}, v{T+4}, v{T+8}"))
    linv.append(I_valu(f"v_min3_f32 v{T+2}, v{T}, v{T+4}, v{T+8}"))
    linv.append(I_valu(f"v_max_f32 v{T+1}, v{T+1}, v{T+12}"))
    linv.append(I_valu(f"v_min_f32 v{T+2}, v{T+2}, v{T+12}"))
    linv.append(I_valu(f"v_cmp_lt_f32 vcc, s{S_T3}, v{T+1}"))
    linv.append(I_valu(f"v_cmp_gt_f32 s[{S_RET}:{S_RET+1}], s{S_T4}, v{T+2}"))
    for qb in range(4):
        b = T + 4 * qb
        linv.append(I_valu(f"v_rcp_f32 v{b}, v{b}", 8))
    linv.append(I_raw(f"s_or_b64 vcc, vcc, s[{S_RET}:{S_RET+1}]\ns_cbranch_vccnz L_slow"))
    items = []
    lreads = [I_lds(f"ds_read_b128 v[{T+4*qb}:{T+4*qb+3}], v{LRREG} offset:{qb*256}", ("LR", qb)) for qb in range(4)]
    head = [I_salu(f"s_mov_b32 s{S_T0+k}, {8192*(k+1)}") for k in range(3)] + [I_salu(f"s_mov_b32 s{S_T3}, 0x5d800000"), I_salu(f"s_mov_b32 s{S_T4}, 0x21800000")] + p_reads(t) + lreads
    gaps = [[] for _ in range(64)]
    q = list(linv)
    g = 4
    while q:
        gaps[g] += q[:2]; q = q[2:]; g = min(g + 1, 15) if g < 15 else 15
    for qb in range(3):
        e = epi(qb)
        g0 = 16 * (qb + 1) + 3
        per = (len(e) + 12) // 13
        g = g0
        while e:
            gaps[g] += e[:per]; e = e[per:]; g = min(g + 1, 63)
    for k, (pre, m, post) in enumerate(mf):
        items += pre
        items.append(m)
        if k == 0:
            items += head
        items += gaps[k]
    items.append(I_raw("s_nop 7"))
    items += epi(3)
    return items

def gen_slow(a, opt, T, V_LW, V_LR, V_OUT):
    M, F, X_ = 48, 52, 56
    S = V_S
    a.label("L_slow")
    a("s_waitcnt vmcnt(0) lgkmcnt(0)")
    a("s_nop 15")
    a("s_barrier")
    for r in range(64): a(f"v_accvgpr_write_b32 a{A_O+r}, 0")
    for qb in range(4):
        a(f"v_mov_b32 v{V_L+qb}, 0")
        a(f"v_mov_b32 v{M+qb}, 0xff7fffff")
    a(f"s_mov_b32 s{S_I}, 0")
    a.label("L_slow_loop")
    a(f"s_lshl_b32 s{S_KUSE}, s{S_I}, 16")
    a(f"s_mov_b32 s{S_VOFF}, s{S_KUSE}")
    for f in range(16): a(kload(0, f, S_KUSE).text)
    for f in range(16): a(vload(0, f, S_VOFF).text)
    a("s_waitcnt vmcnt(16)")
    for kb in range(2):
        for qb in range(4):
            for sx in range(8):
                f = kb * 8 + sx
                d = f"v[{S+(kb*4+qb)*4}:{S+(kb*4+qb)*4+3}]"
                c = "0" if sx == 0 else d
                a(f"{MF} {d}, a[{A_K+4*f}:{A_K+4*f+3}], a[{A_Q+(qb*8+sx)*4}:{A_Q+(qb*8+sx)*4+3}], {c}")
    a("s_nop 15")
    for qb in range(4):
        x0, x1 = S + qb * 4, S + (4 + qb) * 4
        a(f"v_max3_f32 v{F+qb}, v{x0}, v{x0+1}, v{x0+2}")
        a(f"v_max3_f32 v{F+qb}, v{F+qb}, v{x0+3}, v{x1}")
        a(f"v_max3_f32 v{F+qb}, v{F+qb}, v{x1+1}, v{x1+2}")
        a(f"v_max_f32 v{F+qb}, v{F+qb}, v{x1+3}")
    for swap in ("v_permlane32_swap_b32", "v_permlane16_swap_b32"):
        for qb in range(4): a(f"v_mov_b32 v{X_+qb}, v{F+qb}")
        a("s_nop 1")
        for qb in range(4): a(f"{swap} v{X_+qb}, v{F+qb}")
        a("s_nop 1")
        for qb in range(4): a(f"v_max_f32 v{F+qb}, v{F+qb}, v{X_+qb}")
    for qb in range(4): a(f"ds_write_b32 v{V_LW}, v{F+qb} offset:{qb*256}")
    a("s_waitcnt lgkmcnt(0)")
    a("s_barrier")
    for qb in range(4): a(f"ds_read_b128 v[{X_+4*qb}:{X_+4*qb+3}], v{V_LR} offset:{qb*256}")
    a("s_waitcnt lgkmcnt(0)")
    for qb in range(4):
        b = X_ + 4 * qb
        a(f"v_max3_f32 v{b}, v{b}, v{b+1}, v{b+2}")
        a(f"v_max3_f32 v{b}, v{b}, v{b+3}, v{M+qb}")
        a(f"v_sub_f32 v{F+qb}, v{M+qb}, v{b}")
        a(f"v_mov_b32 v{M+qb}, v{b}")
    for qb in range(4): a(f"v_exp_f32 v{F+qb}, v{F+qb}")
    a("s_nop 0")
    for qb in range(4): a(f"v_mul_f32 v{V_L+qb}, v{V_L+qb}, v{F+qb}")
    for db in range(4):
        for qb in range(4):
            for r in range(4):
                o = A_O + (db * 4 + qb) * 4 + r
                a(f"v_accvgpr_read_b32 v{X_}, a{o}")
                a(f"v_mul_f32 v{X_}, v{X_}, v{F+qb}")
                a(f"v_accvgpr_write_b32 a{o}, v{X_}")
    for qb in range(4):
        for kb in range(2):
            for r in range(4):
                x = S + (kb * 4 + qb) * 4 + r
                a(f"v_sub_f32 v{x}, v{x}, v{M+qb}")
        for kb in range(2):
            for r in range(4):
                x = S + (kb * 4 + qb) * 4 + r
                a(f"v_exp_f32 v{x}, v{x}")
        a("s_nop 0")
        for kb in range(2):
            for r in range(4):
                x = S + (kb * 4 + qb) * 4 + r
                a(f"v_add_f32 v{V_L+qb}, v{V_L+qb}, v{x}")
        for kb in range(2):
            for h in range(2):
                x = S + (kb * 4 + qb) * 4 + 2 * h
                a(f"v_cvt_pk_bf16_f32 v{V_PO+qb*4+kb*2+h}, v{x}, v{x+1}")
        a(f"ds_write_b128 v{V_PW}, v[{V_PO+qb*4}:{V_PO+qb*4+3}] offset:{qb*1024}")
    a("s_waitcnt lgkmcnt(0)")
    a("s_barrier")
    for it in p_reads(0): a(it.text)
    a("s_waitcnt vmcnt(0) lgkmcnt(0)")
    for db in range(4):
        for qb in range(4):
            for p in range(4):
                a(pv_item(0, db, qb, p).text)
    a("s_nop 15")
    a("s_barrier")
    a(f"s_add_u32 s{S_I}, s{S_I}, 1")
    a(f"s_cmp_lt_u32 s{S_I}, 16")
    a("s_cbranch_scc1 L_slow_loop")
    for swap in ("v_permlane32_swap_b32", "v_permlane16_swap_b32"):
        for qb in range(4): a(f"v_mov_b32 v{X_+qb}, v{V_L+qb}")
        a("s_nop 1")
        for qb in range(4): a(f"{swap} v{X_+qb}, v{V_L+qb}")
        a("s_nop 1")
        for qb in range(4): a(f"v_add_f32 v{V_L+qb}, v{V_L+qb}, v{X_+qb}")
    for qb in range(4): a(f"ds_write_b32 v{V_LW}, v{V_L+qb} offset:{qb*256}")
    a("s_waitcnt lgkmcnt(0)")
    a("s_barrier")
    for qb in range(4): a(f"ds_read_b128 v[{T+4*qb}:{T+4*qb+3}], v{V_LR} offset:{qb*256}")
    a("s_waitcnt lgkmcnt(0)")
    for qb in range(4):
        b = T + 4 * qb
        a(f"v_add_f32 v{b}, v{b}, v{b+1}"); a(f"v_add_f32 v{b+2}, v{b+2}, v{b+3}")
        a(f"v_add_f32 v{b}, v{b}, v{b+2}")
        a(f"v_rcp_f32 v{b}, v{b}")
    a("s_nop 0")
    for qb in range(4):
        inv = T + 4 * qb
        a(f"s_mov_b32 s{S_T0}, {qb*8192}")
        for half in range(2):
            o = 16 + half * 4
            for kk in range(4):
                k = half * 4 + kk
                r = k >> 1
                c = 2 * (k & 1)
                a(f"v_accvgpr_read_b32 v{X_}, a{A_O+((c)*4+qb)*4+r}")
                a(f"v_accvgpr_read_b32 v{X_+1}, a{A_O+((c+1)*4+qb)*4+r}")
                a(f"v_mul_f32 v{X_}, v{X_}, v{inv}")
                a(f"v_mul_f32 v{X_+1}, v{X_+1}, v{inv}")
                a(f"v_cvt_pk_bf16_f32 v{o+kk}, v{X_}, v{X_+1}")
            a(f"buffer_store_dwordx4 v[{o}:{o+3}], v{V_OUT}, s[{S_OSRD}:{S_OSRD+3}], s{S_T0} offen offset:{half*16}")
            a("s_nop 1")
    a("s_endpgm")

def gen_fused(a, opt):
    global OUTF, LRREG
    NT = 16
    st = Stamp(a, opt)
    PP = RM(); PP.kraw, PP.krr, PP.kst, PP.vraw, PP.vst = 248, 249, 250, 251, 252
    PP.ksc, PP.vsc = 253, 254
    V_QW, V_QR, V_QOFF = 8, 9, 14
    X, Y, QD, TT = 16, 48, 96, 160
    Z = X
    WK, WQ = 200, 128
    SC0, SC1, SC2, SC3 = 216, 224, 232, 240
    QPOS, V_NON, V_ZERO, VJ = 136, 138, 139, 140
    K1V = 96
    T = 240
    a.label(KNAME)
    a("s_cmp_ge_u32 s2, 256" if not opt.empty else "s_cmp_ge_u32 s2, 0")
    a("s_cbranch_scc1 L_done")
    st(force=True)
    if opt.dbgspan:
        a("s_memrealtime s[72:73]")
        a("s_waitcnt lgkmcnt(0)")
        a("s_not_b32 s98, s72")
    a("s_load_dwordx16 s[40:55], s[0:1], 0")
    a("s_load_dwordx2 s[62:63], s[0:1], 88")
    a("s_load_dwordx4 s[64:67], s[0:1], 96")
    if opt.codepf:
        a("s_getpc_b64 s[4:5]")
        a.label("L_pc")
        a("v_lshlrev_b32 v30, 7, v0")
        a(f"v_min_u32 v30, L_code_end-L_pc-4, v30")
        a("global_load_dword v31, v30, s[4:5]")
    a(f"s_and_b32 s{S_HEAD}, s2, 7")
    a(f"s_lshr_b32 s{S_J}, s2, 3")
    a("v_lshrrev_b32 v1, 6, v0")
    a("v_and_b32 v2, 15, v0")
    a("v_bfe_u32 v3, v0, 4, 2")
    a(f"v_readfirstlane_b32 s{S_W}, v1")
    task_addr(a, PP, 4)
    a("v_lshl_add_u32 v4, v1, 4, v3")
    a(f"v_lshlrev_b32 v{V_QOFF}, 9, v4")
    a(f"v_lshl_add_u32 v{V_QOFF}, v2, 4, v{V_QOFF}")
    task_params(a, 0, 68, 69, 70)
    a(f"s_lshl_b32 s{S_T4}, s{S_HEAD}, 21")
    a("s_waitcnt lgkmcnt(0)")
    isB = lambda lbl: (a(f"s_cmp_ge_u32 s{S_W}, 2"), a(f"s_cbranch_scc1 {lbl}"))
    make_srd(a, S_RAWK, 42, S_T4, 0x200000)
    a(f"s_lshl_b32 s{S_T0}, s{S_HEAD}, 20")
    a(f"s_lshl_b32 s{S_T3}, s{S_J}, 15")
    a(f"s_add_u32 s{S_T2}, s{S_T0}, s{S_T3}")
    make_srd(a, S_OSRD, 62, S_T2, 32768)
    make_srd(a, S_RAWV, 48, S_T4, 0x200000)
    make_srd(a, S_QSRD, 40, S_T2, 32768)
    isB("L_B_i0")
    k_raw_loads(a, PP, X, 68)
    a(f"s_lshl_b32 s{S_T2}, s{S_HEAD}, 12")
    make_srd(a, S_KSC, 44, S_T2, 4096)
    make_srd(a, S_KZ, 46, S_T2, 4096)
    a(f"v_lshlrev_b32 v{PP.ksc}, 1, v{PP.krr}")
    k_scale_loads(a, PP, 68, SC0)
    a(f"s_lshl_b32 s{S_T2}, s{S_HEAD}, 12")
    make_srd(a, S_VSC, 50, S_T2, 4096)
    make_srd(a, S_VZ, 52, S_T2, 4096)
    a(f"v_lshlrev_b32 v{PP.vsc}, 3, v3")
    a("s_branch L_i0_done")
    a.label("L_B_i0")
    v_raw_loads(a, PP, X, 69, 70)
    a(f"s_lshl_b32 s{S_T2}, s{S_HEAD}, 12")
    make_srd(a, S_VSC, 50, S_T2, 4096)
    make_srd(a, S_VZ, 52, S_T2, 4096)
    a(f"v_lshlrev_b32 v{PP.vsc}, 3, v3")
    v_scale_loads(a, PP, SC0, 69)
    a(f"s_lshl_b32 s{S_T2}, s{S_HEAD}, 12")
    make_srd(a, S_KSC, 44, S_T2, 4096)
    make_srd(a, S_KZ, 46, S_T2, 4096)
    a(f"v_lshlrev_b32 v{PP.ksc}, 1, v{PP.krr}")
    a.label("L_i0_done")
    a("s_mov_b32 s41, 4096")
    for it in range(4):
        so = "0" if it < 2 else "s41"
        io = (it & 1) * 2048
        b = QD + 8 * it
        a(f"buffer_load_dwordx4 v[{b}:{b+3}], v{V_QOFF}, s[{S_QSRD}:{S_QSRD+3}], {so} offen offset:{io}")
        a(f"buffer_load_dwordx4 v[{b+4}:{b+7}], v{V_QOFF}, s[{S_QSRD}:{S_QSRD+3}], {so} offen offset:{io+256}")
    a(f"s_mov_b32 s{S_PK}, s68"); a(f"s_mov_b32 s{S_PT}, s69"); a(f"s_mov_b32 s{S_PW}, s70")
    task_params(a, 1, S_PK2, S_PT2, S_PW2)
    task_params(a, 2, 68, 69, 70)
    task_params(a, 3, 46, 47, 48)
    a(f"v_mov_b32 v{V_ZERO}, 0")
    isB("L_B_sc")
    v_scale_loads(a, PP, SC1, S_PT2); k_scale_loads(a, PP, 68, SC2); v_scale_loads(a, PP, SC3, 47)
    a("s_branch L_sc_done")
    a.label("L_B_sc")
    k_scale_loads(a, PP, S_PK2, SC1); v_scale_loads(a, PP, SC2, 69); k_scale_loads(a, PP, 46, SC3)
    a.label("L_sc_done")
    NSA, NSB = 10, 8
    a(f"s_mov_b32 s{S_DBG}, s64"); a(f"s_mov_b32 s{S_DBG+1}, s65")
    a(f"s_or_b32 s{S_T0}, s{S_HEAD}, s{S_J}")
    a(f"s_or_b32 s{S_T0}, s{S_T0}, s{S_W}")
    a(f"s_cmp_lg_u32 s{S_T0}, 0")
    a("s_cbranch_scc1 L_nononce")
    a("s_memrealtime s[100:101]")
    a("s_waitcnt lgkmcnt(0)")
    a("s_lshl_b32 s100, s100, 3")
    a("s_or_b32 s100, s100, 0x80000000")
    a("s_and_b32 s100, s100, 0xfffffff8")
    a(f"v_mov_b32 v{VJ}, s100")
    a("s_mov_b64 exec, 1")
    a(f"global_store_dword v{V_ZERO}, v{VJ}, s[{S_DBG}:{S_DBG+1}] sc1")
    a("s_mov_b64 exec, -1")
    a.label("L_nononce")
    a(f"global_load_dword v{V_NON}, v{V_ZERO}, s[{S_DBG}:{S_DBG+1}] sc1")
    def issue(kind_for_A, buf, pk, pt, pw, tag):
        isB(f"L_B_{tag}")
        (k_raw_loads(a, PP, buf, pk) if kind_for_A == "K" else v_raw_loads(a, PP, buf, pt, pw))
        a(f"s_branch L_{tag}_done")
        a.label(f"L_B_{tag}")
        (v_raw_loads(a, PP, buf, pt, pw) if kind_for_A == "K" else k_raw_loads(a, PP, buf, pk))
        a.label(f"L_{tag}_done")
    def comp(kind_for_A, buf, sc, pk, pt, pw, tag):
        isB(f"L_B_{tag}")
        (k_compute(a, PP, buf, sc, WK, TT, pk) if kind_for_A == "K" else v_compute(a, PP, buf, sc, TT, pt, pw))
        a(f"s_branch L_{tag}_done")
        a.label(f"L_B_{tag}")
        (v_compute(a, PP, buf, sc, TT, pt, pw) if kind_for_A == "K" else k_compute(a, PP, buf, sc, WK, TT, pk))
        a.label(f"L_{tag}_done")
    if opt.r1early:
        issue("V", Y, S_PK2, S_PT2, S_PW2, "i1")
    NR1 = 8 if opt.r1early else 0
    a(f"s_mov_b32 s{S_MASK}, 0xffff0000")
    a(f"s_mov_b32 s{S_C}, 0x{f32bits(math.log2(math.e)/16.0):08x}")
    a(f"s_and_b32 s{S_ROT}, s{S_J}, 3")
    a(f"s_lshl_b32 s{S_T0}, s{S_HEAD}, 20")
    make_srd(a, S_KSRD, 66, S_T0, 0x100000)
    a(f"s_add_u32 s{S_T1}, s{S_T0}, 0x800000")
    make_srd(a, S_VSRD, 66, S_T1, 0x100000)
    a(f"s_add_u32 s{S_FLG}, s66, 0x1000000")
    a(f"s_addc_u32 s{S_FLG+1}, s67, 0")
    if opt.stamp:
        a(f"s_mov_b32 s{S_STW}, s66"); a(f"s_mov_b32 s{S_STW+1}, s67")
    a(f"s_lshl_b32 s{S_T0}, s{S_J}, 6")
    a(f"v_add_u32 v{QPOS}, s{S_T0}, v4")
    a(f"v_cvt_f32_u32 v{QPOS}, v{QPOS}")
    a(f"v_and_b32 v{TT}, 7, v0"); a(f"v_lshlrev_b32 v{TT}, 3, v{TT}"); a(f"v_cvt_f32_u32 v{TT}, v{TT}")
    a(f"v_lshlrev_b32 v{TT+1}, 3, v2"); a(f"v_cvt_f32_u32 v{TT+1}, v{TT+1}")
    freq_consts(a, WK, 16, TT, [64 * (k >> 3) + (k & 7) for k in range(16)])
    freq_consts(a, WQ, 8, TT + 1, list(range(8)))
    a(f"v_mul_u32_u24 v{V_QW}, {8*QFS}, v1")
    a(f"v_lshrrev_b32 v{TT}, 2, v2")
    a(f"v_mul_u32_u24 v{TT}, {QFS}, v{TT}")
    a(f"v_add_u32 v{V_QW}, v{V_QW}, v{TT}")
    a(f"v_and_b32 v{TT}, 3, v2")
    a(f"v_mul_u32_u24 v{TT}, {QGS}, v{TT}")
    a(f"v_add_u32 v{V_QW}, v{V_QW}, v{TT}")
    a(f"v_lshl_add_u32 v{V_QW}, v3, 4, v{V_QW}")
    a(f"v_mul_u32_u24 v{V_QR}, {QGS}, v3")
    a(f"v_lshl_add_u32 v{V_QR}, v2, 4, v{V_QR}")
    for r in range(64):
        a(f"v_accvgpr_write_b32 a{A_O+r}, 0")
    a(f"s_waitcnt vmcnt({8 + NSB + 1 + NR1})")
    st()
    comp("K", X, SC0, S_PK, S_PT, S_PW, "c0")
    if not opt.r1early:
        issue("V", Y, S_PK2, S_PT2, S_PW2, "i1")
    issue("K", Z, 68, 69, 70, "i2")
    st(level=2)
    a(f"s_waitcnt vmcnt(20)")
    def rope_it(it):
        if it:
            a(f"v_add_f32 v{QPOS}, 4.0, v{QPOS}")
        o = rope_q(a, QD + 8 * it, TT, QPOS, WQ)
        a(f"ds_write_b128 v{V_QW}, v[{o}:{o+3}] offset:{it*64}")
        a(f"ds_write_b128 v{V_QW}, v[{o+4}:{o+7}] offset:{it*64 + 4*QFS}")
    for it in range(opt.rope_first):
        rope_it(it)
    st(level=2)
    a(f"s_waitcnt vmcnt({8 if opt.r1early else 16})")
    st(level=2)
    a(f"v_readfirstlane_b32 s{S_NONCE}, v{V_NON}")
    a(f"s_cmp_lg_u32 s{S_NONCE}, 0")
    a("s_cbranch_scc1 L_have_nonce")
    a(f"s_mov_b32 s{S_SPIN}, 0")
    a.label("L_nonce_spin")
    a(f"global_load_dword v{V_NON}, v{V_ZERO}, s[{S_DBG}:{S_DBG+1}] sc1")
    a("s_waitcnt vmcnt(0)")
    a(f"v_readfirstlane_b32 s{S_NONCE}, v{V_NON}")
    a(f"s_add_u32 s{S_SPIN}, s{S_SPIN}, 1")
    a(f"s_cmp_ge_u32 s{S_SPIN}, 0x8000")
    a("s_cbranch_scc1 L_have_nonce")
    a(f"s_cmp_eq_u32 s{S_NONCE}, 0")
    a("s_cbranch_scc1 L_nonce_spin")
    a.label("L_have_nonce")
    a("s_waitcnt lgkmcnt(0)")
    a("s_barrier")
    publish(a, 1, "L_pub1", VJ)
    st()
    if opt.rope_first < 4:
        for it in range(opt.rope_first, 4):
            rope_it(it)
        a("s_waitcnt lgkmcnt(0)")
        a("s_barrier")
    for qb in range(4):
        for s in range(8):
            b = A_Q + (qb * 8 + s) * 4
            a(f"ds_read_b128 a[{b}:{b+3}], v{V_QR} offset:{(qb*8+s)*QFS}")
    a("s_waitcnt vmcnt(8)")
    comp("V", Y, SC1, S_PK2, S_PT2, S_PW2, "c1")
    a("s_waitcnt lgkmcnt(0)")
    a(f"v_and_b32 v{TT}, 63, v0")
    a(f"v_lshrrev_b32 v{TT+1}, 6, v0")
    a(f"v_and_b32 v{V_FADDR}, 31, v0")
    a(f"s_lshl_b32 s{S_T0}, s{S_HEAD}, 5")
    a(f"v_add_u32 v{V_FADDR}, s{S_T0}, v{V_FADDR}")
    a(f"v_lshlrev_b32 v{V_FADDR}, 7, v{V_FADDR}")
    flag_load(a)
    issue("V", Y, 46, 47, 48, "i3")
    a(f"v_lshlrev_b32 v{TT+2}, 4, v{TT}")
    a(f"v_add_u32 v{TT+3}, {LDS_P}, v{TT+2}")
    for t in range(1, 4):
        a(f"v_add_u32 v{TT+4}, {t}, v{TT+1}")
        a(f"v_and_b32 v{TT+4}, 3, v{TT+4}")
        a(f"v_lshl_add_u32 v{V_PR+t-1}, v{TT+4}, 12, v{TT+3}")
    a(f"v_lshl_add_u32 v{V_PW}, v{TT+1}, 12, v{TT+3}")
    a(f"v_lshl_add_u32 v{V_OFF}, v{TT+1}, 14, v{TT+2}")
    for k in range(1, 4):
        a(f"v_add_u32 v{V_OFF+k}, {4096*k}, v{V_OFF}")
    for r in range(4):
        a(f"v_mov_b32 v{V_L+r}, 0")
    a(f"s_mov_b32 s{S_FMASK}, {0x202 if opt.latepub else 0x2}")
    set_need(a, 1)
    a("s_waitcnt vmcnt(8)")
    flag_check(a)
    a("s_nop 4")
    a("s_cbranch_vccz L_chk_r0_ok")
    spin(a, "r0")
    a.label("L_chk_r0_ok")
    st()
    a(f"s_lshl_b32 s{S_KOFF}, s{S_ROT}, 16")
    a(f"s_mov_b32 s{S_VOFF}, s{S_KOFF}")
    a(f"s_mov_b32 s{S_KUSE}, s{S_KOFF}")
    pro = [kload(0, f, S_KUSE) for f in range(16)]
    if opt.k1o:
        a(f"s_add_u32 s{S_T0}, s{S_ROT}, 1")
        a(f"s_and_b32 s{S_T0}, s{S_T0}, 3")
        a(f"s_lshl_b32 s{S_T4}, s{S_T0}, 16")
        for f in range(16):
            pro.append(I_vm(f"buffer_load_dwordx4 v[{K1V+4*f}:{K1V+4*f+3}], v{V_OFF+(f>>2)}, s[{S_KSRD}:{S_KSRD+3}], s{S_T4} offen offset:{(f&3)*1024}{gen2.LDFLAGS}", ("K", 1, f)))
    for it in pro:
        a(it.text)
    comp("K", Z, SC2, 68, 69, 70, "c2")
    a(f"s_waitcnt vmcnt({20 + (16 if opt.k1o else 0)})")
    comp("V", Y, SC3, 46, 47, 48, "c3")
    st()
    endbar = [I_wlds("all"), I_raw("s_barrier")]
    mf = []
    for t in range(2):
        S = V_S + 32 * t
        for kb in range(2):
            for qb in range(4):
                for sx in range(8):
                    f = kb * 8 + sx
                    d = f"v[{S+(kb*4+qb)*4}:{S+(kb*4+qb)*4+3}]"
                    c = "0" if sx == 0 else d
                    pre_ = [I_wvm(("K", t, kb * 8 + 7))] if (qb == 0 and sx == 0) else []
                    A = f"a[{A_K+4*f}:{A_K+4*f+3}]" if t == 0 else f"v[{K1V+4*f}:{K1V+4*f+3}]"
                    mf.append([pre_, I_mfma(f"{MF} {d}, {A}, a[{A_Q+(qb*8+sx)*4}:{A_Q+(qb*8+sx)*4+3}], {c}"), []])
    for j in range(16):
        mf[28 + 4 * j if j < 8 else 64 + 4 * (j - 8)][2].append(kload(2, j, S_KUSE))
    for j in range(9):
        mf[92 + 4 * j][2].append(vload(0, j, S_VOFF))
    class O2: pass
    o2 = O2(); o2.__dict__.update(opt.__dict__); o2.sm_g0 = 68; o2.sm_g1 = 124; o2.pace = 0
    head0 = [I_salu(f"s_mov_b32 s{S_I}, 0")] + tile_off(S_KUSE, 2, S_T4)
    pre = schedule(mf, head0, [], softmax_stream(0, opt), 64, o2)
    it0 = [I_raw(f"s_waitcnt vmcnt({29 - 8 if opt.latepub else 25 - 8})") if False else I_raw(f"s_waitcnt vmcnt({29 if opt.latepub else 25})")] + endbar + [I_salu(f"s_mov_b32 s{S_I}, 1")]
    blocks = [("pro", pro + [I_vm("", ("ST", k)) for k in range(8)]), ("pre", pre), ("it0", it0)]
    stat = {}
    for i in range(1, 15):
        items = build_iter(i, opt) + [I_salu(f"s_add_u32 s{S_I}, s{S_I}, 1")] + endbar
        nm = "odd" if i % 2 else "even"
        blocks.append((nm, items))
        if nm not in stat: stat[nm] = items
        else: assert [x.text for x in stat[nm]] == [x.text for x in items], nm
    it15 = build_iter(15, opt)
    V_LW, V_LR, V_OUT = 231, 232, 233
    LRREG = V_LR
    red = [I_valu(f"v_and_b32 v224, 15, v0"), I_valu(f"v_lshrrev_b32 v225, 6, v0"), I_valu(f"v_bfe_u32 v226, v0, 4, 2"),
           I_valu(f"v_lshlrev_b32 v{V_LR}, 4, v224"), I_valu(f"v_add_u32 v{V_LR}, {LDS_L}, v{V_LR}"),
           I_valu(f"v_lshl_add_u32 v{V_LW}, v225, 2, v{V_LR}"), I_valu(f"v_lshlrev_b32 v{V_OUT}, 9, v224"),
           I_valu(f"v_lshl_add_u32 v{V_OUT}, v225, 7, v{V_OUT}"),
           I_valu(f"v_lshl_add_u32 v{V_OUT+1}, v226, 5, v{V_OUT}"),
           I_valu(f"v_lshl_add_u32 v{V_OUT}, v226, {4 if opt.wide_out else 5}, v{V_OUT}")]
    for qb in range(4): red.append(I_valu(f"v_mov_b32 v{T+qb}, v{V_L+qb}"))
    red.append(I_raw("s_nop 1"))
    for qb in range(4): red.append(I_valu(f"v_permlane32_swap_b32 v{T+qb}, v{V_L+qb}"))
    red.append(I_raw("s_nop 1"))
    for qb in range(4): red.append(I_valu(f"v_add_f32 v{V_L+qb}, v{V_L+qb}, v{T+qb}"))
    for qb in range(4): red.append(I_valu(f"v_mov_b32 v{T+qb}, v{V_L+qb}"))
    red.append(I_raw("s_nop 1"))
    for qb in range(4): red.append(I_valu(f"v_permlane16_swap_b32 v{T+qb}, v{V_L+qb}"))
    red.append(I_raw("s_nop 1"))
    for qb in range(4): red.append(I_valu(f"v_add_f32 v{V_L+qb}, v{V_L+qb}, v{T+qb}"))
    for qb in range(4): red.append(I_lds(f"ds_write_b32 v{V_LW}, v{V_L+qb} offset:{qb*256}", ("LW", qb)))
    it15 += red + endbar
    blocks.append(("it15", it15))
    it16 = build_last(opt, T, V_OUT)
    blocks.append(("it16", it16))
    waits = resolve_waits(blocks)
    emit_block(a, "pre", pre, waits)
    if opt.stamp == 5: st()
    emit_block(a, "it0", it0, waits)
    publish(a, 3 if opt.latepub else 4, "L_pub4", 158)
    def hook_site(name):
        if name == "odd":
            if opt.latepub:
                a(f"s_and_b32 s{S_T0}, s{S_I}, 7")
                a(f"s_cmp_eq_u32 s{S_T0}, 2")
            else:
                a(f"s_cmp_eq_u32 s{S_I}, 2")
            a(f"s_cbranch_scc1 L_hook")
            a.label("L_hook_ret")
    st()
    a.label("L_loop")
    base = st.n
    emit_block(a, "odd", stat["odd"], waits)
    if opt.stamp == 4: st.dyn(2, base - 4, 9)
    hook_site("odd")
    if opt.stamp == 3: st.dyn(1, base - 2, 15)
    if opt.stamp == 4: st.dyn(2, base - 3, 9)
    emit_block(a, "even", stat["even"], waits)
    if opt.stamp == 4: st.dyn(2, base - 4, 9)
    hook_site("even")
    if opt.stamp == 3:
        st.dyn(1, base - 2, 15); st.n = base + 14
    if opt.stamp == 4:
        st.dyn(2, base - 3, 9); st.n = base + 16
    a(f"s_cmp_lt_u32 s{S_I}, 15")
    a("s_cbranch_scc1 L_loop")
    if opt.stamp in (1, 2): st()
    emit_block(a, "it15", it15, waits)
    emit_block(a, "it16", it16, waits)
    if opt.stamp:
        a("s_waitcnt vmcnt(0)")
        st(force=True)
        st.finish()
    if opt.dbgspan:
        a("s_waitcnt vmcnt(0)")
        a("s_memrealtime s[72:73]")
        a("s_waitcnt lgkmcnt(0)")
        a("v_mov_b32 v16, 8"); a("v_mov_b32 v17, s98"); a("v_mov_b32 v18, 12"); a("v_mov_b32 v19, s72")
        a("s_mov_b64 exec, 1")
        a(f"global_atomic_umax v16, v17, s[{S_DBG}:{S_DBG+1}]")
        a(f"global_atomic_umax v18, v19, s[{S_DBG}:{S_DBG+1}]")
        a("s_waitcnt vmcnt(0)")
    a("s_endpgm")
    a.label("L_hook")
    if opt.latepub:
        a(f"s_cmp_eq_u32 s{S_I}, 2")
        a("s_cbranch_scc0 L_hook_c4")
        publish(a, 4, "L_pub4b", 158)
        set_need(a, 3)
        a("s_branch L_hook_chk")
        a.label("L_hook_c4")
        set_need(a, 4)
        a.label("L_hook_chk")
    else:
        set_need(a, 4)
    nyoung = sum(1 for j in range(16) if 28 + 4 * j > opt.flag_gap) + sum(1 for j in range(9) if 92 + 4 * j > opt.flag_gap)
    a(f"s_waitcnt vmcnt({nyoung})")
    flag_check(a)
    a("s_nop 4")
    a(f"s_cbranch_vccz L_hook_ret")
    spin(a, "hk")
    a("s_branch L_hook_ret")
    gen_slow(a, opt, T, V_LW, V_LR, V_OUT + 1)
    a.label("L_done")
    a("s_endpgm")
    a.label("L_code_end")

def main():
    global OUTF
    ap = argparse.ArgumentParser()
    ap.add_argument("-o", default=f"cdna_kernels/{NAME}.s")
    ap.add_argument("--stamp", type=int, default=0)
    ap.add_argument("--wgrp", type=int, default=4)
    ap.add_argument("--kgrp", type=int, default=8)
    ap.add_argument("--spread", type=int, default=1)
    ap.add_argument("--cap", type=int, default=2)
    ap.add_argument("--pace", type=int, default=1)
    ap.add_argument("--read_spread", type=int, default=1)
    ap.add_argument("--sm_g0", type=int, default=0)
    ap.add_argument("--sm_g1", type=int, default=117)
    ap.add_argument("--ldflags", default="sc1")
    ap.add_argument("--outflags", default="sc1")
    ap.add_argument("--empty", type=int, default=0)
    ap.add_argument("--dbgspan", type=int, default=0)
    ap.add_argument("--codepf", type=int, default=1)
    ap.add_argument("--r1early", type=int, default=1)
    ap.add_argument("--k1o", type=int, default=1)
    ap.add_argument("--wide_out", type=int, default=1)
    ap.add_argument("--latepub", type=int, default=1)
    ap.add_argument("--pretouch", type=int, default=1)
    ap.add_argument("--rope_first", type=int, default=4)
    ap.add_argument("--prefetch", type=int, default=0)
    ap.add_argument("--flag_gap", type=int, default=57)
    ap.add_argument("--ngroups", type=int, default=3)
    opt = ap.parse_args()
    OUTF = (" " + opt.outflags.replace("+", " ")) if opt.outflags else ""
    gen2.LDFLAGS = (" " + opt.ldflags.replace("+", " ")) if opt.ldflags else ""
    out = header()
    out += f"; @launch grid=(256,1,1) block=(256,1,1) lds={LDS_TOTAL}\n"
    out += '.amdgcn_target "amdgcn-amd-amdhsa--gfx950"\n.text\n'
    a = EA()
    gen_fused(a, opt)
    out += f".globl {KNAME}\n.p2align 8\n.type {KNAME},@function\n" + a.text()
    out += kd(KNAME, 512, 102, 256)
    open(opt.o, "w").write(out)

if __name__ == "__main__":
    main()
```

```python
import sys, os, argparse, math, struct
sys.path.insert(0, "dev")
from gen import f32bits, make_srd, kd, NAME, Item, I_valu, I_raw, I_salu, I_vm, I_lds, I_wvm, I_wlds, I_mfma, resolve_waits, emit_block
import gen2
from gen2 import (MF, V_OFF, V_PW, V_PR, V_L, V_S, V_PO, V_PF, V_V, A_O, A_Q, A_K, QFS, QGS,
                  S_KSRD, S_VSRD, S_QSRD, S_OSRD, S_KOFF, S_VOFF, S_I, S_ROT, S_C, S_W, S_MASK, S_KUSE,
                  kload, vload, softmax_stream, qk_mfmas, schedule, respread_loads, header)

KNAME = NAME + "_kernel"

class EA:
    def __init__(self): self.lines = []
    def __call__(self, s):
        for l in s.split("\n"):
            l = l.strip()
            if not l: continue
            self.lines.append(l if l.endswith(":") else "    " + l)
    def label(self, l): self.lines.append(l + ":")
    def text(self): return "\n".join(self.lines) + "\n"

LDS_Q = 0
LDS_L = 34816
LDS_SC = LDS_L + 1024
LDS_WK = LDS_SC + 4 * 2560
LDS_P = 51200
LDS_TOTAL = LDS_P + 32768
assert LDS_WK + 4096 <= LDS_P

S_STW = 36
S_NONCE = 39
S_PK, S_PT, S_PW = 40, 41, 42
S_PK2, S_PT2, S_PW2 = 43, 44, 45
S_HK, S_HT, S_HW = 46, 47, 48
S_FLG = 50
S_RANGE = 53
S_FMASK = 49
S_HMASK = 38
S_G = 68
S_RET = 70
S_RAWK, S_RAWV = 56, 60
S_KSC, S_KZ, S_VSC, S_VZ = 72, 76, 80, 84
S_DBG = 88
S_J, S_NEED = 90, 91
S_T0, S_T1, S_T2, S_T3, S_T4 = 92, 93, 94, 95, 96
S_SPIN, S_HEAD = 97, 99
V_FLAG, V_FADDR, V_STAMP = 13, 14, 15
STF = " sc1"

class RM: pass

class Stamp:
    def __init__(self, a, opt):
        self.a = a; self.on = opt.stamp; self.n = 0
    def _emit(self, idx_sgpr=None):
        a = self.a
        a("s_memtime s[54:55]")
        a("s_memrealtime s[100:101]")
        a("s_waitcnt lgkmcnt(0)")
        if idx_sgpr is None:
            a(f"v_writelane_b32 v{V_STAMP}, s54, {2*self.n}")
            a(f"v_writelane_b32 v{V_STAMP}, s100, {2*self.n+1}")
        else:
            a(f"s_mov_b32 m0, s{idx_sgpr}"); a("s_nop 1")
            a(f"v_writelane_b32 v{V_STAMP}, s54, m0")
            a(f"s_add_u32 m0, s{idx_sgpr}, 1"); a("s_nop 1")
            a(f"v_writelane_b32 v{V_STAMP}, s100, m0")
    def __call__(self, again=False, level=1, force=False):
        if not self.on: return
        if self.on == 9 and not force: return
        if level == 2 and self.on != 2: return
        if again: self.n -= 1
        self._emit()
        self.n += 1
    def dyn(self, mul, add, cap):
        a = self.a
        a(f"s_min_u32 s52, s{S_I}, {cap}")
        a(f"s_mul_i32 s52, s52, {2*mul}")
        a(f"s_add_u32 s52, s52, {2*add}")
        self._emit(52)
    def finish(self):
        if not self.on: return
        a = self.a
        a("s_waitcnt vmcnt(0)")
        a(f"s_lshl_b32 s46, s{S_J}, 3")
        a(f"s_add_u32 s46, s46, s{S_HEAD}")
        a(f"s_lshl_b32 s46, s46, 10")
        a(f"s_lshl_b32 s47, s{S_W}, 8")
        a("s_add_u32 s46, s46, s47")
        a("s_add_u32 s46, s46, 0x8000000")
        a(f"s_add_u32 s46, s{S_STW}, s46")
        a(f"s_addc_u32 s47, s{S_STW+1}, 0")
        a("v_and_b32 v16, 63, v0")
        a("v_lshlrev_b32 v16, 2, v16")
        a(f"global_store_dword v16, v{V_STAMP}, s[46:47]")
        a("s_waitcnt vmcnt(0)")

LOG2_10000_128 = math.log2(10000.0) / 128.0
LOG2_2PI = math.log2(2 * math.pi)

def vp(r): return f"v[{r}:{r+1}]"

def k_raw_loads(a, R, X, rowreg):
    a(f"s_lshl_b32 s{S_T0}, s{rowreg}, 10")
    for c in range(4):
        for hf in range(2):
            b = X + c * 8 + hf * 4
            a(f"buffer_load_dwordx4 v[{b}:{b+3}], v{R.kraw}, s[{S_RAWK}:{S_RAWK+3}], s{S_T0} offen offset:{c*256+hf*16}")
    return 8
def k_scale_loads(a, R, rowreg, dst):
    a(f"s_lshl_b32 s{S_T2}, s{rowreg}, 1")
    a(f"buffer_load_ushort v{dst}, v{R.ksc}, s[{S_KSC}:{S_KSC+3}], s{S_T2} offen")
    a(f"buffer_load_ushort v{dst+1}, v{R.ksc}, s[{S_KZ}:{S_KZ+3}], s{S_T2} offen")
    return 2
def v_raw_loads(a, R, X, treg, wreg):
    a(f"s_lshl_b32 s{S_T0}, s{treg}, 15")
    a(f"s_lshl_b32 s{S_T1}, s{wreg}, 8")
    a(f"s_add_u32 s{S_T0}, s{S_T0}, s{S_T1}")
    a(f"s_add_u32 s{S_T1}, s{S_T0}, 16384")
    for j in range(8):
        b = X + j * 4
        so = S_T0 if j < 4 else S_T1
        a(f"buffer_load_dwordx4 v[{b}:{b+3}], v{R.vraw}, s[{S_RAWV}:{S_RAWV+3}], s{so} offen offset:{(j&3)*1024}")
    return 8
def v_scale_loads(a, R, SC, treg):
    a(f"s_lshl_b32 s{S_T2}, s{treg}, 6")
    for g2 in range(2):
        a(f"buffer_load_dwordx2 v[{SC+2*g2}:{SC+1+2*g2}], v{R.vsc}, s[{S_VSC}:{S_VSC+3}], s{S_T2} offen offset:{g2*32}")
        a(f"buffer_load_dwordx2 v[{SC+4+2*g2}:{SC+5+2*g2}], v{R.vsc}, s[{S_VZ}:{S_VZ+3}], s{S_T2} offen offset:{g2*32}")
    return 4

def sincos8(a, pos, w, cs, sn):
    for k in range(4):
        a(f"v_pk_mul_f32 {vp(sn+2*k)}, {vp(w+2*k)}, {vp(pos)} op_sel_hi:[1,0]")
    for e in range(8):
        a(f"v_fract_f32 v{sn+e}, v{sn+e}")
    for e in range(8):
        a(f"v_cos_f32 v{cs+e}, v{sn+e}")
    for e in range(8):
        a(f"v_sin_f32 v{sn+e}, v{sn+e}")

def rope8(a, x1, x2, cs, sn, u, o1dst, o2dst):
    for k in range(4):
        a(f"v_pk_mul_f32 {vp(u+2*k)}, {vp(x2+2*k)}, {vp(sn+2*k)}")
    for k in range(4):
        a(f"v_pk_mul_f32 {vp(sn+2*k)}, {vp(x1+2*k)}, {vp(sn+2*k)}")
    for k in range(4):
        a(f"v_pk_fma_f32 {vp(u+2*k)}, {vp(x1+2*k)}, {vp(cs+2*k)}, {vp(u+2*k)} neg_lo:[0,0,1] neg_hi:[0,0,1]")
    for k in range(4):
        a(f"v_pk_fma_f32 {vp(sn+2*k)}, {vp(x2+2*k)}, {vp(cs+2*k)}, {vp(sn+2*k)}")
    for k in range(4):
        a(f"v_cvt_pk_bf16_f32 v{o1dst+k}, v{u+2*k}, v{u+2*k+1}")
    for k in range(4):
        a(f"v_cvt_pk_bf16_f32 v{o2dst+k}, v{sn+2*k}, v{sn+2*k+1}")

def k_compute(a, R, X, sc, WK, T, rowreg):
    assert sc % 2 == 0 and T % 2 == 0 and X % 4 == 0
    pos, cs, sn, u = T, T + 2, T + 10, T + 18
    a(f"v_lshlrev_b32 v{sc}, 16, v{sc}")
    a(f"v_lshlrev_b32 v{sc+1}, 16, v{sc+1}")
    a(f"v_cvt_f32_u32 v{pos}, v{R.krr}")
    a(f"v_cvt_f32_u32 v{pos+1}, s{rowreg}")
    a(f"v_mul_f32 v{sc+1}, v{sc+1}, v{sc}")
    a(f"v_add_f32 v{pos}, v{pos}, v{pos+1}")
    for k in range(32):
        a(f"v_cvt_f32_i32 v{X+k}, v{X+k}")
    sincos8(a, pos, WK, cs, sn)
    for k in range(16):
        a(f"v_pk_fma_f32 {vp(X+2*k)}, {vp(X+2*k)}, {vp(sc)}, {vp(sc)} op_sel:[0,0,1] op_sel_hi:[1,0,1] neg_lo:[0,0,1] neg_hi:[0,0,1]")
    rope8(a, X, X + 16, cs, sn, u, X, X + 16)
    sincos8(a, pos, WK + 8, cs, sn)
    a("s_nop 0")
    rope8(a, X + 8, X + 24, cs, sn, u, X + 8, X + 24)
    a(f"s_lshr_b32 s{S_T0}, s{rowreg}, 4")
    a(f"s_lshl_b32 s{S_T0}, s{S_T0}, 13")
    a(f"s_and_b32 s{S_T1}, s{rowreg}, 8")
    a(f"s_lshl_b32 s{S_T1}, s{S_T1}, 4")
    a(f"s_add_u32 s{S_T0}, s{S_T0}, s{S_T1}")
    a(f"s_add_u32 s{S_T1}, s{S_T0}, 4096")
    for c in range(4):
        b = X + c * 8
        so = S_T0 if c < 2 else S_T1
        a(f"buffer_store_dwordx4 v[{b}:{b+3}], v{R.kst}, s[{S_KSRD}:{S_KSRD+3}], s{so} offen offset:{(c&1)*2048}{STF}")

def v_compute(a, R, X, SC, T, treg, wreg):
    M = S_MASK
    SZ = T
    for j in range(8):
        src_s = SC + 2 * (j >> 2) + ((j & 3) >> 1)
        src_z = SC + 4 + 2 * (j >> 2) + ((j & 3) >> 1)
        if j & 1:
            a(f"v_and_b32 v{SZ+2*j}, s{M}, v{src_s}"); a(f"v_and_b32 v{SZ+2*j+1}, s{M}, v{src_z}")
        else:
            a(f"v_lshlrev_b32 v{SZ+2*j}, 16, v{src_s}"); a(f"v_lshlrev_b32 v{SZ+2*j+1}, 16, v{src_z}")
    for k in range(32):
        a(f"v_cvt_f32_i32 v{X+k}, v{X+k}")
    for j in range(8):
        a(f"v_mul_f32 v{SZ+2*j+1}, v{SZ+2*j+1}, v{SZ+2*j}")
    for j in range(8):
        for h in range(2):
            x = X + 4 * j + 2 * h
            a(f"v_pk_fma_f32 {vp(x)}, {vp(x)}, {vp(SZ+2*j)}, {vp(SZ+2*j)} op_sel:[0,0,1] op_sel_hi:[1,0,1] neg_lo:[0,0,1] neg_hi:[0,0,1]")
    O = T
    for db in range(4):
        for jj in range(4):
            a(f"v_cvt_pk_bf16_f32 v{O+db*4+jj}, v{X+(2*jj)*4+db}, v{X+(2*jj+1)*4+db}")
    a(f"s_lshr_b32 s{S_T0}, s{treg}, 2")
    a(f"s_lshl_b32 s{S_T0}, s{S_T0}, 16")
    a(f"s_lshl_b32 s{S_T1}, s{wreg}, 14")
    a(f"s_add_u32 s{S_T0}, s{S_T0}, s{S_T1}")
    a(f"s_sub_u32 s{S_T1}, s{treg}, s{wreg}")
    a(f"s_and_b32 s{S_T1}, s{S_T1}, 3")
    a(f"s_lshl_b32 s{S_T1}, s{S_T1}, 10")
    a(f"s_add_u32 s{S_T0}, s{S_T0}, s{S_T1}")
    for db in range(4):
        if db:
            a(f"s_add_u32 s{S_T0}, s{S_T0}, 4096")
        a(f"buffer_store_dwordx4 v[{O+4*db}:{O+4*db+3}], v{R.vst}, s[{S_VSRD}:{S_VSRD+3}], s{S_T0} offen{STF}")

def freq_consts(a, dst, n, dbase_v, offs):
    a(f"s_mov_b32 s{S_T0}, 0x{f32bits(-LOG2_10000_128):08x}")
    for k in range(n):
        a(f"v_mov_b32 v{dst+k}, 0x{f32bits(-LOG2_10000_128 * offs[k] - LOG2_2PI):08x}")
    for k in range(n):
        a(f"v_fma_f32 v{dst+k}, v{dbase_v}, s{S_T0}, v{dst+k}")
    for k in range(n):
        a(f"v_exp_f32 v{dst+k}, v{dst+k}")
    a("s_nop 0")

def rope_q(a, src, T, pos, wq):
    M = S_MASK
    q1, q2, cs, sn, u, out = T, T + 8, T + 16, T + 24, T + 32, T
    sincos8(a, pos, wq, cs, sn)
    for k in range(4):
        a(f"v_lshlrev_b32 v{q1+2*k}, 16, v{src+k}"); a(f"v_and_b32 v{q1+2*k+1}, s{M}, v{src+k}")
        a(f"v_lshlrev_b32 v{q2+2*k}, 16, v{src+4+k}"); a(f"v_and_b32 v{q2+2*k+1}, s{M}, v{src+4+k}")
    for k in range(4):
        a(f"v_pk_mul_f32 {vp(cs+2*k)}, {vp(cs+2*k)}, s[{S_C}:{S_C+1}] op_sel_hi:[1,0]")
    for k in range(4):
        a(f"v_pk_mul_f32 {vp(sn+2*k)}, {vp(sn+2*k)}, s[{S_C}:{S_C+1}] op_sel_hi:[1,0]")
    rope8(a, q1, q2, cs, sn, u, out, out + 4)
    return out

def task_params(a, rnd, pk, pt, pw):
    a(f"s_and_b32 s{S_T0}, s{S_W}, 1")
    a(f"s_lshl_b32 s{S_T1}, s{S_J}, 1")
    a(f"s_add_u32 s{S_T0}, s{S_T0}, s{S_T1}")
    if pk is not None:
        a(f"s_lshl_b32 s{pk}, s{S_T0}, 3")
        if isinstance(rnd, int): a(f"s_add_u32 s{pk}, s{pk}, {512*rnd}")
        else:
            a(f"s_lshl_b32 s{S_T1}, s{rnd[1]}, 9"); a(f"s_add_u32 s{pk}, s{pk}, s{S_T1}")
    if pt is not None:
        a(f"s_lshr_b32 s{pt}, s{S_T0}, 2")
        if isinstance(rnd, int): a(f"s_add_u32 s{pt}, s{pt}, {16*rnd}")
        else:
            a(f"s_lshl_b32 s{S_T1}, s{rnd[1]}, 4"); a(f"s_add_u32 s{pt}, s{pt}, s{S_T1}")
        a(f"s_and_b32 s{pw}, s{S_T0}, 3")

def task_addr(a, R, tmp, k=True, v=True):
    if k:
        a(f"v_and_b32 v{tmp}, 7, v0")
        a(f"v_bfe_u32 v{R.krr}, v0, 3, 3")
        a(f"v_lshlrev_b32 v{R.kraw}, 10, v{R.krr}")
        a(f"v_lshl_add_u32 v{R.kraw}, v{tmp}, 5, v{R.kraw}")
        a(f"v_lshrrev_b32 v{tmp+1}, 2, v{tmp}")
        a(f"v_lshlrev_b32 v{R.kst}, 10, v{tmp+1}")
        a(f"v_and_b32 v{tmp+1}, 3, v{tmp}")
        a(f"v_lshl_add_u32 v{R.kst}, v{tmp+1}, 8, v{R.kst}")
        a(f"v_lshl_add_u32 v{R.kst}, v{R.krr}, 4, v{R.kst}")
    if v:
        a(f"v_and_b32 v{tmp}, 15, v0")
        a(f"v_bfe_u32 v{tmp+1}, v0, 4, 2")
        a(f"v_lshlrev_b32 v{R.vraw}, 12, v{tmp+1}")
        a(f"v_lshl_add_u32 v{R.vraw}, v{tmp}, 4, v{R.vraw}")
        a(f"v_and_b32 v{R.vst}, 63, v0")
        a(f"v_lshlrev_b32 v{R.vst}, 4, v{R.vst}")

def publish(a, val, lbl, t):
    a(f"s_cmp_lg_u32 s{S_W}, 0")
    a(f"s_cbranch_scc1 {lbl}")
    a(f"s_mov_b64 exec, 1")
    a(f"s_add_u32 s{S_T1}, s{S_NONCE}, {val}")
    a(f"v_mov_b32 v{t}, s{S_T1}")
    a(f"s_lshl_b32 s{S_T0}, s{S_HEAD}, 5")
    a(f"s_add_u32 s{S_T0}, s{S_T0}, s{S_J}")
    a(f"s_lshl_b32 s{S_T0}, s{S_T0}, 7")
    a(f"v_mov_b32 v{t+1}, s{S_T0}")
    a(f"global_store_dword v{t+1}, v{t}, s[{S_FLG}:{S_FLG+1}] sc1")
    a(f"s_mov_b64 exec, -1")
    a.label(lbl)

def flag_load(a):
    a(f"global_load_dword v{V_FLAG}, v{V_FADDR}, s[{S_FLG}:{S_FLG+1}] sc1")
def flag_check(a):
    a(f"v_subrev_u32 v{V_FLAG}, s{S_NEED}, v{V_FLAG}")
    a(f"v_cmp_lt_u32 vcc, s{S_RANGE}, v{V_FLAG}")
def set_need(a, need):
    a(f"s_add_u32 s{S_NEED}, s{S_NONCE}, {need}")
    a(f"s_mov_b32 s{S_RANGE}, {4-need}")
def spin(a, name):
    a(f"s_mov_b32 s{S_SPIN}, 0")
    a.label(f"L_spin_{name}")
    flag_load(a)
    a("s_waitcnt vmcnt(0)")
    flag_check(a)
    a(f"s_add_u32 s{S_SPIN}, s{S_SPIN}, 1")
    a(f"s_cmp_lt_u32 s{S_SPIN}, 0x8000")
    a(f"s_cbranch_scc0 L_spin_{name}_done")
    a("s_nop 3")
    a(f"s_cbranch_vccnz L_spin_{name}")
    a.label(f"L_spin_{name}_done")

def tile_off(dst, tadd, tmp):
    return [I_salu(f"s_add_u32 s{dst}, s{S_I}, {tadd}"),
            I_salu(f"s_add_u32 s{tmp}, s{dst}, s{S_ROT}"),
            I_salu(f"s_and_b32 s{tmp}, s{tmp}, 3"),
            I_salu(f"s_and_b32 s{dst}, s{dst}, 12"),
            I_salu(f"s_or_b32 s{dst}, s{dst}, s{tmp}"),
            I_salu(f"s_lshl_b32 s{dst}, s{dst}, 16")]

def pv_item(t, db, qb, p):
    par = t & 1
    f = db * 4 + p
    o = A_O + (db * 4 + qb) * 4
    b = V_PO + 16 * par + qb * 4 if p == 0 else V_PF + (p - 1) * 16 + qb * 4
    return I_mfma(f"{MF} a[{o}:{o+3}], v[{V_V+4*f}:{V_V+4*f+3}], v[{b}:{b+3}], a[{o}:{o+3}]")

def p_reads(t):
    par = t & 1
    r = []
    for p in range(1, 4):
        for qb in range(4):
            dst = V_PF + (p - 1) * 16 + qb * 4
            r.append(I_lds(f"ds_read_b128 v[{dst}:{dst+3}], v{V_PR+p-1} offset:{par*16384+qb*1024}", ("PR", t, p, qb)))
    return r

def build_iter(i, opt, NT=16):
    has_qk = (i + 1) < NT
    has_sm = 0 <= i < NT
    has_pv = 1 <= i <= NT
    mf = []
    if has_qk:
        mf += qk_mfmas(i + 1, opt, NT)
    nqk = len(mf)
    if has_pv:
        t = i - 1
        for db in range(4):
            for qb in range(4):
                for p in range(4):
                    pre = []
                    if qb == 0 and p == 0:
                        pre.append(I_wvm(("V", t, db * 4 + 3)))
                    if db == 0 and qb == 0 and p == 1:
                        pre.append(I_wlds(("PR", t, 3, 3)))
                    post = []
                    if qb == 3 and t + 1 < NT:
                        post.append(vload(t + 1, db * 4 + p, S_VOFF))
                    mf.append([pre, pv_item(t, db, qb, p), post])
    respread_loads(mf, i, NT, opt)
    if i == 15:
        mf[0][2] = [vload(14, j, S_VOFF) for j in range(9, 16)] + mf[0][2]
    reads = p_reads(i - 1) if has_pv else []
    sm = softmax_stream(i, opt) if has_sm else []
    head = []
    full = len(mf) == 128
    if has_qk:
        head += tile_off(S_KOFF, 2, S_T4) + [I_salu(f"s_cmp_lt_u32 s{S_I}, {NT-2}"), I_salu(f"s_cselect_b32 s{S_KUSE}, s{S_KOFF}, 0x100000")]
    if has_pv:
        vup = tile_off(S_VOFF, 0, S_T3)
        if full:
            for k, x in enumerate(vup):
                mf[41 + k][2].append(x)
        else:
            head += vup
    if full and i % 2 == 1:
        txt = (f"s_bitcmp1_b32 s{S_FMASK}, s{S_I}\ns_cbranch_scc0 L_noflagld\n"
               f"global_load_dword v{V_FLAG}, v{V_FADDR}, s[{S_FLG}:{S_FLG+1}] sc1\nL_noflagld:")
        mf[opt.flag_gap][2].append(I_raw(txt))
    return schedule(mf, head, reads, sm, nqk, opt)

def build_it0_k1o(opt):
    mf = []
    S = V_S + 32
    for kb in range(2):
        for qb in range(4):
            for s in range(8):
                f = kb * 8 + s
                d = f"v[{S+(kb*4+qb)*4}:{S+(kb*4+qb)*4+3}]"
                c = "0" if s == 0 else d
                pre = [I_wvm(("K", 1, kb * 8 + 7))] if (qb == 0 and s == 0) else []
                mf.append([pre, I_mfma(f"{MF} {d}, a[{A_O+4*f}:{A_O+4*f+3}], a[{A_Q+(qb*8+s)*4}:{A_Q+(qb*8+s)*4+3}], {c}"), []])
    for k in range(32):
        mf[32 + k][2].append(I_valu(f"v_accvgpr_write_b32 a{A_O+k}, 0"))
    items = schedule(mf, [], [], softmax_stream(0, opt), 64, opt)
    items += [I_valu(f"v_accvgpr_write_b32 a{A_O+32+k}, 0") for k in range(32)]
    return items

def build_last(opt, T, V_OUT):
    t = 15
    mf = []
    for qb in range(4):
        for db in range(4):
            for p in range(4):
                pre = []
                if qb == 0 and p == 0:
                    pre.append(I_wvm(("V", t, db * 4 + 3)))
                if qb == 0 and db == 0 and p == 1:
                    pre.append(I_wlds(("PR", t, 3, 3)))
                mf.append([pre, pv_item(t, db, qb, p), []])
    def epi(qb):
        it = []
        inv = T + 4 * qb
        tb = 48 + (qb & 1) * 16
        for par in range(2):
            for k in range(par, 8, 2):
                r = k >> 1
                c = 2 * (k & 1)
                x = tb + 2 * k
                it.append(I_valu(f"v_accvgpr_read_b32 v{x}, a{A_O+((c)*4+qb)*4+r}"))
                it.append(I_valu(f"v_accvgpr_read_b32 v{x+1}, a{A_O+((c+1)*4+qb)*4+r}"))
        for k in range(8):
            x = tb + 2 * k
            it.append(I_valu(f"v_pk_mul_f32 {vp(x)}, {vp(x)}, {vp(inv)} op_sel_hi:[1,0]"))
        for half in range(2):
            o = 16 + (qb * 2 + half) * 4
            for kk in range(4):
                x = tb + 2 * (half * 4 + kk)
                it.append(I_valu(f"v_cvt_pk_bf16_f32 v{o+kk}, v{x}, v{x+1}"))
        oA, oB = 16 + qb * 8, 16 + qb * 8 + 4
        so = "0" if qb == 0 else f"s{S_T0+qb-1}"
        if opt.wide_out:
            it.append(I_raw("s_nop 1"))
            for kk in range(4):
                it.append(I_valu(f"v_permlane16_swap_b32 v{oA+kk}, v{oB+kk}"))
            it.append(I_raw("s_nop 1"))
            for kk in range(4):
                it.append(I_valu(f"v_permlane32_swap_b32 v{oA+kk}, v{oB+kk}"))
            it.append(I_raw("s_nop 0"))
            it.append(I_vm(f"buffer_store_dwordx4 v[{oA}:{oA+3}], v{V_OUT}, s[{S_OSRD}:{S_OSRD+3}], {so} offen{OUTF}", ("O", qb, 0)))
            it.append(I_vm(f"buffer_store_dwordx4 v[{oB}:{oB+3}], v{V_OUT}, s[{S_OSRD}:{S_OSRD+3}], {so} offen offset:64{OUTF}", ("O", qb, 1)))
        else:
            it.append(I_vm(f"buffer_store_dwordx4 v[{oA}:{oA+3}], v{V_OUT}, s[{S_OSRD}:{S_OSRD+3}], {so} offen offset:0{OUTF}", ("O", qb, 0)))
            it.append(I_vm(f"buffer_store_dwordx4 v[{oB}:{oB+3}], v{V_OUT}, s[{S_OSRD}:{S_OSRD+3}], {so} offen offset:16{OUTF}", ("O", qb, 1)))
        return it
    linv = [I_wlds(("LR", 3))]
    for qb in range(4):
        b = T + 4 * qb
        linv += [I_valu(f"v_add_f32 v{b}, v{b}, v{b+1}"), I_valu(f"v_add_f32 v{b+2}, v{b+2}, v{b+3}")]
    for qb in range(4):
        b = T + 4 * qb
        linv.append(I_valu(f"v_add_f32 v{b}, v{b}, v{b+2}"))
    linv.append(I_valu(f"v_max3_f32 v{T+1}, v{T}, v{T+4}, v{T+8}"))
    linv.append(I_valu(f"v_min3_f32 v{T+2}, v{T}, v{T+4}, v{T+8}"))
    linv.append(I_valu(f"v_max_f32 v{T+1}, v{T+1}, v{T+12}"))
    linv.append(I_valu(f"v_min_f32 v{T+2}, v{T+2}, v{T+12}"))
    linv.append(I_valu(f"v_cmp_lt_f32 vcc, s{S_T3}, v{T+1}"))
    linv.append(I_valu(f"v_cmp_gt_f32 s[{S_RET}:{S_RET+1}], s{S_T4}, v{T+2}"))
    for qb in range(4):
        b = T + 4 * qb
        linv.append(I_valu(f"v_rcp_f32 v{b}, v{b}", 8))
    linv.append(I_raw(f"s_or_b64 vcc, vcc, s[{S_RET}:{S_RET+1}]\ns_cbranch_vccnz L_slow"))
    items = []
    lreads = [I_lds(f"ds_read_b128 v[{T+4*qb}:{T+4*qb+3}], v{LRREG} offset:{qb*256}", ("LR", qb)) for qb in range(4)]
    head = [I_salu(f"s_mov_b32 s{S_T0+k}, {8192*(k+1)}") for k in range(3)] + [I_salu(f"s_mov_b32 s{S_T3}, 0x5d800000"), I_salu(f"s_mov_b32 s{S_T4}, 0x21800000")] + p_reads(t) + lreads
    gaps = [[] for _ in range(64)]
    q = list(linv)
    g = 4
    while q:
        gaps[g] += q[:2]; q = q[2:]; g = min(g + 1, 15) if g < 15 else 15
    for qb in range(3):
        e = epi(qb)
        g0 = 16 * (qb + 1) + 3
        per = (len(e) + 12) // 13
        g = g0
        while e:
            gaps[g] += e[:per]; e = e[per:]; g = min(g + 1, 63)
    for k, (pre, m, post) in enumerate(mf):
        items += pre
        items.append(m)
        if k == 0:
            items += head
        items += gaps[k]
    items.append(I_raw("s_nop 7"))
    items += epi(3)
    return items

def gen_slow(a, opt, T, V_LW, V_LR, V_OUT):
    M, F, X_ = 48, 52, 56
    S = V_S
    a.label("L_slow")
    a("s_waitcnt vmcnt(0) lgkmcnt(0)")
    a("s_nop 15")
    a("s_barrier")
    for r in range(64): a(f"v_accvgpr_write_b32 a{A_O+r}, 0")
    for qb in range(4):
        a(f"v_mov_b32 v{V_L+qb}, 0")
        a(f"v_mov_b32 v{M+qb}, 0xff7fffff")
    a(f"s_mov_b32 s{S_I}, 0")
    a.label("L_slow_loop")
    a(f"s_lshl_b32 s{S_KUSE}, s{S_I}, 16")
    a(f"s_mov_b32 s{S_VOFF}, s{S_KUSE}")
    for f in range(16): a(kload(0, f, S_KUSE).text)
    for f in range(16): a(vload(0, f, S_VOFF).text)
    a("s_waitcnt vmcnt(16)")
    for kb in range(2):
        for qb in range(4):
            for sx in range(8):
                f = kb * 8 + sx
                d = f"v[{S+(kb*4+qb)*4}:{S+(kb*4+qb)*4+3}]"
                c = "0" if sx == 0 else d
                a(f"{MF} {d}, a[{A_K+4*f}:{A_K+4*f+3}], a[{A_Q+(qb*8+sx)*4}:{A_Q+(qb*8+sx)*4+3}], {c}")
    a("s_nop 15")
    for qb in range(4):
        x0, x1 = S + qb * 4, S + (4 + qb) * 4
        a(f"v_max3_f32 v{F+qb}, v{x0}, v{x0+1}, v{x0+2}")
        a(f"v_max3_f32 v{F+qb}, v{F+qb}, v{x0+3}, v{x1}")
        a(f"v_max3_f32 v{F+qb}, v{F+qb}, v{x1+1}, v{x1+2}")
        a(f"v_max_f32 v{F+qb}, v{F+qb}, v{x1+3}")
    for swap in ("v_permlane32_swap_b32", "v_permlane16_swap_b32"):
        for qb in range(4): a(f"v_mov_b32 v{X_+qb}, v{F+qb}")
        a("s_nop 1")
        for qb in range(4): a(f"{swap} v{X_+qb}, v{F+qb}")
        a("s_nop 1")
        for qb in range(4): a(f"v_max_f32 v{F+qb}, v{F+qb}, v{X_+qb}")
    for qb in range(4): a(f"ds_write_b32 v{V_LW}, v{F+qb} offset:{qb*256}")
    a("s_waitcnt lgkmcnt(0)")
    a("s_barrier")
    for qb in range(4): a(f"ds_read_b128 v[{X_+4*qb}:{X_+4*qb+3}], v{V_LR} offset:{qb*256}")
    a("s_waitcnt lgkmcnt(0)")
    for qb in range(4):
        b = X_ + 4 * qb
        a(f"v_max3_f32 v{b}, v{b}, v{b+1}, v{b+2}")
        a(f"v_max3_f32 v{b}, v{b}, v{b+3}, v{M+qb}")
        a(f"v_sub_f32 v{F+qb}, v{M+qb}, v{b}")
        a(f"v_mov_b32 v{M+qb}, v{b}")
    for qb in range(4): a(f"v_exp_f32 v{F+qb}, v{F+qb}")
    a("s_nop 0")
    for qb in range(4): a(f"v_mul_f32 v{V_L+qb}, v{V_L+qb}, v{F+qb}")
    for db in range(4):
        for qb in range(4):
            for r in range(4):
                o = A_O + (db * 4 + qb) * 4 + r
                a(f"v_accvgpr_read_b32 v{X_}, a{o}")
                a(f"v_mul_f32 v{X_}, v{X_}, v{F+qb}")
                a(f"v_accvgpr_write_b32 a{o}, v{X_}")
    for qb in range(4):
        for kb in range(2):
            for r in range(4):
                x = S + (kb * 4 + qb) * 4 + r
                a(f"v_sub_f32 v{x}, v{x}, v{M+qb}")
        for kb in range(2):
            for r in range(4):
                x = S + (kb * 4 + qb) * 4 + r
                a(f"v_exp_f32 v{x}, v{x}")
        a("s_nop 0")
        for kb in range(2):
            for r in range(4):
                x = S + (kb * 4 + qb) * 4 + r
                a(f"v_add_f32 v{V_L+qb}, v{V_L+qb}, v{x}")
        for kb in range(2):
            for h in range(2):
                x = S + (kb * 4 + qb) * 4 + 2 * h
                a(f"v_cvt_pk_bf16_f32 v{V_PO+qb*4+kb*2+h}, v{x}, v{x+1}")
        a(f"ds_write_b128 v{V_PW}, v[{V_PO+qb*4}:{V_PO+qb*4+3}] offset:{qb*1024}")
    a("s_waitcnt lgkmcnt(0)")
    a("s_barrier")
    for it in p_reads(0): a(it.text)
    a("s_waitcnt vmcnt(0) lgkmcnt(0)")
    for db in range(4):
        for qb in range(4):
            for p in range(4):
                a(pv_item(0, db, qb, p).text)
    a("s_nop 15")
    a("s_barrier")
    a(f"s_add_u32 s{S_I}, s{S_I}, 1")
    a(f"s_cmp_lt_u32 s{S_I}, 16")
    a("s_cbranch_scc1 L_slow_loop")
    for swap in ("v_permlane32_swap_b32", "v_permlane16_swap_b32"):
        for qb in range(4): a(f"v_mov_b32 v{X_+qb}, v{V_L+qb}")
        a("s_nop 1")
        for qb in range(4): a(f"{swap} v{X_+qb}, v{V_L+qb}")
        a("s_nop 1")
        for qb in range(4): a(f"v_add_f32 v{V_L+qb}, v{V_L+qb}, v{X_+qb}")
    for qb in range(4): a(f"ds_write_b32 v{V_LW}, v{V_L+qb} offset:{qb*256}")
    a("s_waitcnt lgkmcnt(0)")
    a("s_barrier")
    for qb in range(4): a(f"ds_read_b128 v[{T+4*qb}:{T+4*qb+3}], v{V_LR} offset:{qb*256}")
    a("s_waitcnt lgkmcnt(0)")
    for qb in range(4):
        b = T + 4 * qb
        a(f"v_add_f32 v{b}, v{b}, v{b+1}"); a(f"v_add_f32 v{b+2}, v{b+2}, v{b+3}")
        a(f"v_add_f32 v{b}, v{b}, v{b+2}")
        a(f"v_rcp_f32 v{b}, v{b}")
    a("s_nop 0")
    for qb in range(4):
        inv = T + 4 * qb
        a(f"s_mov_b32 s{S_T0}, {qb*8192}")
        for half in range(2):
            o = 16 + half * 4
            for kk in range(4):
                k = half * 4 + kk
                r = k >> 1
                c = 2 * (k & 1)
                a(f"v_accvgpr_read_b32 v{X_}, a{A_O+((c)*4+qb)*4+r}")
                a(f"v_accvgpr_read_b32 v{X_+1}, a{A_O+((c+1)*4+qb)*4+r}")
                a(f"v_mul_f32 v{X_}, v{X_}, v{inv}")
                a(f"v_mul_f32 v{X_+1}, v{X_+1}, v{inv}")
                a(f"v_cvt_pk_bf16_f32 v{o+kk}, v{X_}, v{X_+1}")
            a(f"buffer_store_dwordx4 v[{o}:{o+3}], v{V_OUT}, s[{S_OSRD}:{S_OSRD+3}], s{S_T0} offen offset:{half*16}")
            a("s_nop 1")
    a("s_endpgm")

def gen_fused(a, opt):
    global OUTF, LRREG
    NT = 16
    st = Stamp(a, opt)
    PP = RM(); PP.kraw, PP.krr, PP.kst, PP.vraw, PP.vst = 248, 249, 250, 251, 252
    PP.ksc, PP.vsc = 253, 254
    V_QW, V_QR, V_QOFF = 8, 9, 14
    X, Y, QD, TT = 16, 48, 96, 160
    Z = X
    WK, WQ = 200, 128
    SC0, SC1, SC2, SC3 = 216, 224, 232, 240
    QPOS, V_NON, V_ZERO, VJ = 136, 138, 139, 140
    K1V = 96
    T = 240
    a.label(KNAME)
    a("s_cmp_ge_u32 s2, 256" if not opt.empty else "s_cmp_ge_u32 s2, 0")
    a("s_cbranch_scc1 L_done")
    st(force=True)
    if opt.dbgspan:
        a("s_memrealtime s[72:73]")
        a("s_waitcnt lgkmcnt(0)")
        a("s_not_b32 s98, s72")
    a("s_load_dwordx16 s[40:55], s[0:1], 0")
    a("s_load_dwordx2 s[62:63], s[0:1], 88")
    a("s_load_dwordx4 s[64:67], s[0:1], 96")
    if opt.codepf:
        a("s_getpc_b64 s[4:5]")
        a.label("L_pc")
        a("v_lshlrev_b32 v30, 7, v0")
        a(f"v_min_u32 v30, L_code_end-L_pc-4, v30")
        a("global_load_dword v31, v30, s[4:5]")
    a(f"s_and_b32 s{S_HEAD}, s2, 7")
    a(f"s_lshr_b32 s{S_J}, s2, 3")
    a("v_lshrrev_b32 v1, 6, v0")
    a("v_and_b32 v2, 15, v0")
    a("v_bfe_u32 v3, v0, 4, 2")
    a(f"v_readfirstlane_b32 s{S_W}, v1")
    task_addr(a, PP, 4)
    a("v_lshl_add_u32 v4, v1, 4, v3")
    a(f"v_lshlrev_b32 v{V_QOFF}, 9, v4")
    a(f"v_lshl_add_u32 v{V_QOFF}, v2, 4, v{V_QOFF}")
    task_params(a, 0, 68, 69, 70)
    a(f"s_lshl_b32 s{S_T4}, s{S_HEAD}, 21")
    a("s_waitcnt lgkmcnt(0)")
    isB = lambda lbl: (a(f"s_cmp_ge_u32 s{S_W}, 2"), a(f"s_cbranch_scc1 {lbl}"))
    make_srd(a, S_RAWK, 42, S_T4, 0x200000)
    a(f"s_lshl_b32 s{S_T0}, s{S_HEAD}, 20")
    a(f"s_lshl_b32 s{S_T3}, s{S_J}, 15")
    a(f"s_add_u32 s{S_T2}, s{S_T0}, s{S_T3}")
    make_srd(a, S_OSRD, 62, S_T2, 32768)
    make_srd(a, S_RAWV, 48, S_T4, 0x200000)
    make_srd(a, S_QSRD, 40, S_T2, 32768)
    isB("L_B_i0")
    k_raw_loads(a, PP, X, 68)
    a(f"s_lshl_b32 s{S_T2}, s{S_HEAD}, 12")
    make_srd(a, S_KSC, 44, S_T2, 4096)
    make_srd(a, S_KZ, 46, S_T2, 4096)
    a(f"v_lshlrev_b32 v{PP.ksc}, 1, v{PP.krr}")
    k_scale_loads(a, PP, 68, SC0)
    a(f"s_lshl_b32 s{S_T2}, s{S_HEAD}, 12")
    make_srd(a, S_VSC, 50, S_T2, 4096)
    make_srd(a, S_VZ, 52, S_T2, 4096)
    a(f"v_lshlrev_b32 v{PP.vsc}, 3, v3")
    a("s_branch L_i0_done")
    a.label("L_B_i0")
    v_raw_loads(a, PP, X, 69, 70)
    a(f"s_lshl_b32 s{S_T2}, s{S_HEAD}, 12")
    make_srd(a, S_VSC, 50, S_T2, 4096)
    make_srd(a, S_VZ, 52, S_T2, 4096)
    a(f"v_lshlrev_b32 v{PP.vsc}, 3, v3")
    v_scale_loads(a, PP, SC0, 69)
    a(f"s_lshl_b32 s{S_T2}, s{S_HEAD}, 12")
    make_srd(a, S_KSC, 44, S_T2, 4096)
    make_srd(a, S_KZ, 46, S_T2, 4096)
    a(f"v_lshlrev_b32 v{PP.ksc}, 1, v{PP.krr}")
    a.label("L_i0_done")
    a("s_mov_b32 s41, 4096")
    for it in range(4):
        so = "0" if it < 2 else "s41"
        io = (it & 1) * 2048
        b = QD + 8 * it
        a(f"buffer_load_dwordx4 v[{b}:{b+3}], v{V_QOFF}, s[{S_QSRD}:{S_QSRD+3}], {so} offen offset:{io}")
        a(f"buffer_load_dwordx4 v[{b+4}:{b+7}], v{V_QOFF}, s[{S_QSRD}:{S_QSRD+3}], {so} offen offset:{io+256}")
    a(f"s_mov_b32 s{S_PK}, s68"); a(f"s_mov_b32 s{S_PT}, s69"); a(f"s_mov_b32 s{S_PW}, s70")
    task_params(a, 1, S_PK2, S_PT2, S_PW2)
    task_params(a, 2, 68, 69, 70)
    task_params(a, 3, 46, 47, 48)
    a(f"v_mov_b32 v{V_ZERO}, 0")
    isB("L_B_sc")
    v_scale_loads(a, PP, SC1, S_PT2); k_scale_loads(a, PP, 68, SC2); v_scale_loads(a, PP, SC3, 47)
    a("s_branch L_sc_done")
    a.label("L_B_sc")
    k_scale_loads(a, PP, S_PK2, SC1); v_scale_loads(a, PP, SC2, 69); k_scale_loads(a, PP, 46, SC3)
    a.label("L_sc_done")
    NSA, NSB = 10, 8
    a(f"s_mov_b32 s{S_DBG}, s64"); a(f"s_mov_b32 s{S_DBG+1}, s65")
    a(f"s_or_b32 s{S_T0}, s{S_HEAD}, s{S_J}")
    a(f"s_or_b32 s{S_T0}, s{S_T0}, s{S_W}")
    a(f"s_cmp_lg_u32 s{S_T0}, 0")
    a("s_cbranch_scc1 L_nononce")
    a("s_memrealtime s[100:101]")
    a("s_waitcnt lgkmcnt(0)")
    a("s_lshl_b32 s100, s100, 3")
    a("s_or_b32 s100, s100, 0x80000000")
    a("s_and_b32 s100, s100, 0xfffffff8")
    a(f"v_mov_b32 v{VJ}, s100")
    a("s_mov_b64 exec, 1")
    a(f"global_store_dword v{V_ZERO}, v{VJ}, s[{S_DBG}:{S_DBG+1}] sc1")
    a("s_mov_b64 exec, -1")
    a.label("L_nononce")
    a(f"global_load_dword v{V_NON}, v{V_ZERO}, s[{S_DBG}:{S_DBG+1}] sc1")
    def issue(kind_for_A, buf, pk, pt, pw, tag):
        isB(f"L_B_{tag}")
        (k_raw_loads(a, PP, buf, pk) if kind_for_A == "K" else v_raw_loads(a, PP, buf, pt, pw))
        a(f"s_branch L_{tag}_done")
        a.label(f"L_B_{tag}")
        (v_raw_loads(a, PP, buf, pt, pw) if kind_for_A == "K" else k_raw_loads(a, PP, buf, pk))
        a.label(f"L_{tag}_done")
    def comp(kind_for_A, buf, sc, pk, pt, pw, tag):
        isB(f"L_B_{tag}")
        (k_compute(a, PP, buf, sc, WK, TT, pk) if kind_for_A == "K" else v_compute(a, PP, buf, sc, TT, pt, pw))
        a(f"s_branch L_{tag}_done")
        a.label(f"L_B_{tag}")
        (v_compute(a, PP, buf, sc, TT, pt, pw) if kind_for_A == "K" else k_compute(a, PP, buf, sc, WK, TT, pk))
        a.label(f"L_{tag}_done")
    if opt.r1early:
        issue("V", Y, S_PK2, S_PT2, S_PW2, "i1")
    NR1 = 8 if opt.r1early else 0
    a(f"s_mov_b32 s{S_MASK}, 0xffff0000")
    a(f"s_mov_b32 s{S_C}, 0x{f32bits(math.log2(math.e)/16.0):08x}")
    a(f"s_and_b32 s{S_ROT}, s{S_J}, 3")
    a(f"s_lshl_b32 s{S_T0}, s{S_HEAD}, 20")
    make_srd(a, S_KSRD, 66, S_T0, 0x100000)
    a(f"s_add_u32 s{S_T1}, s{S_T0}, 0x800000")
    make_srd(a, S_VSRD, 66, S_T1, 0x100000)
    a(f"s_add_u32 s{S_FLG}, s66, 0x1000000")
    a(f"s_addc_u32 s{S_FLG+1}, s67, 0")
    if opt.stamp:
        a(f"s_mov_b32 s{S_STW}, s66"); a(f"s_mov_b32 s{S_STW+1}, s67")
    a(f"s_lshl_b32 s{S_T0}, s{S_J}, 6")
    a(f"v_add_u32 v{QPOS}, s{S_T0}, v4")
    a(f"v_cvt_f32_u32 v{QPOS}, v{QPOS}")
    a(f"v_and_b32 v{TT}, 7, v0"); a(f"v_lshlrev_b32 v{TT}, 3, v{TT}"); a(f"v_cvt_f32_u32 v{TT}, v{TT}")
    a(f"v_lshlrev_b32 v{TT+1}, 3, v2"); a(f"v_cvt_f32_u32 v{TT+1}, v{TT+1}")
    freq_consts(a, WK, 16, TT, [64 * (k >> 3) + (k & 7) for k in range(16)])
    freq_consts(a, WQ, 8, TT + 1, list(range(8)))
    a(f"v_mul_u32_u24 v{V_QW}, {8*QFS}, v1")
    a(f"v_lshrrev_b32 v{TT}, 2, v2")
    a(f"v_mul_u32_u24 v{TT}, {QFS}, v{TT}")
    a(f"v_add_u32 v{V_QW}, v{V_QW}, v{TT}")
    a(f"v_and_b32 v{TT}, 3, v2")
    a(f"v_mul_u32_u24 v{TT}, {QGS}, v{TT}")
    a(f"v_add_u32 v{V_QW}, v{V_QW}, v{TT}")
    a(f"v_lshl_add_u32 v{V_QW}, v3, 4, v{V_QW}")
    a(f"v_mul_u32_u24 v{V_QR}, {QGS}, v3")
    a(f"v_lshl_add_u32 v{V_QR}, v2, 4, v{V_QR}")
    for r in range(64):
        a(f"v_accvgpr_write_b32 a{A_O+r}, 0")
    a(f"s_waitcnt vmcnt({8 + NSB + 1 + NR1})")
    st()
    comp("K", X, SC0, S_PK, S_PT, S_PW, "c0")
    if not opt.r1early:
        issue("V", Y, S_PK2, S_PT2, S_PW2, "i1")
    issue("K", Z, 68, 69, 70, "i2")
    st(level=2)
    a(f"s_waitcnt vmcnt(20)")
    def rope_it(it):
        if it:
            a(f"v_add_f32 v{QPOS}, 4.0, v{QPOS}")
        o = rope_q(a, QD + 8 * it, TT, QPOS, WQ)
        a(f"ds_write_b128 v{V_QW}, v[{o}:{o+3}] offset:{it*64}")
        a(f"ds_write_b128 v{V_QW}, v[{o+4}:{o+7}] offset:{it*64 + 4*QFS}")
    for it in range(opt.rope_first):
        rope_it(it)
    st(level=2)
    a(f"s_waitcnt vmcnt({8 if opt.r1early else 16})")
    st(level=2)
    a(f"v_readfirstlane_b32 s{S_NONCE}, v{V_NON}")
    a(f"s_cmp_lg_u32 s{S_NONCE}, 0")
    a("s_cbranch_scc1 L_have_nonce")
    a(f"s_mov_b32 s{S_SPIN}, 0")
    a.label("L_nonce_spin")
    a(f"global_load_dword v{V_NON}, v{V_ZERO}, s[{S_DBG}:{S_DBG+1}] sc1")
    a("s_waitcnt vmcnt(0)")
    a(f"v_readfirstlane_b32 s{S_NONCE}, v{V_NON}")
    a(f"s_add_u32 s{S_SPIN}, s{S_SPIN}, 1")
    a(f"s_cmp_ge_u32 s{S_SPIN}, 0x8000")
    a("s_cbranch_scc1 L_have_nonce")
    a(f"s_cmp_eq_u32 s{S_NONCE}, 0")
    a("s_cbranch_scc1 L_nonce_spin")
    a.label("L_have_nonce")
    a("s_waitcnt lgkmcnt(0)")
    a("s_barrier")
    publish(a, 1, "L_pub1", VJ)
    st()
    if opt.rope_first < 4:
        for it in range(opt.rope_first, 4):
            rope_it(it)
        a("s_waitcnt lgkmcnt(0)")
        a("s_barrier")
    for qb in range(4):
        for s in range(8):
            b = A_Q + (qb * 8 + s) * 4
            a(f"ds_read_b128 a[{b}:{b+3}], v{V_QR} offset:{(qb*8+s)*QFS}")
    a("s_waitcnt vmcnt(8)")
    comp("V", Y, SC1, S_PK2, S_PT2, S_PW2, "c1")
    a("s_waitcnt lgkmcnt(0)")
    a(f"v_and_b32 v{TT}, 63, v0")
    a(f"v_lshrrev_b32 v{TT+1}, 6, v0")
    a(f"v_and_b32 v{V_FADDR}, 31, v0")
    a(f"s_lshl_b32 s{S_T0}, s{S_HEAD}, 5")
    a(f"v_add_u32 v{V_FADDR}, s{S_T0}, v{V_FADDR}")
    a(f"v_lshlrev_b32 v{V_FADDR}, 7, v{V_FADDR}")
    flag_load(a)
    issue("V", Y, 46, 47, 48, "i3")
    a(f"v_lshlrev_b32 v{TT+2}, 4, v{TT}")
    a(f"v_add_u32 v{TT+3}, {LDS_P}, v{TT+2}")
    for t in range(1, 4):
        a(f"v_add_u32 v{TT+4}, {t}, v{TT+1}")
        a(f"v_and_b32 v{TT+4}, 3, v{TT+4}")
        a(f"v_lshl_add_u32 v{V_PR+t-1}, v{TT+4}, 12, v{TT+3}")
    a(f"v_lshl_add_u32 v{V_PW}, v{TT+1}, 12, v{TT+3}")
    a(f"v_lshl_add_u32 v{V_OFF}, v{TT+1}, 14, v{TT+2}")
    for k in range(1, 4):
        a(f"v_add_u32 v{V_OFF+k}, {4096*k}, v{V_OFF}")
    for r in range(4):
        a(f"v_mov_b32 v{V_L+r}, 0")
    a(f"s_mov_b32 s{S_FMASK}, {0x202 if opt.latepub else 0x2}")
    set_need(a, 1)
    a("s_waitcnt vmcnt(8)")
    flag_check(a)
    a("s_nop 4")
    a("s_cbranch_vccz L_chk_r0_ok")
    spin(a, "r0")
    a.label("L_chk_r0_ok")
    st()
    a(f"s_lshl_b32 s{S_KOFF}, s{S_ROT}, 16")
    a(f"s_mov_b32 s{S_VOFF}, s{S_KOFF}")
    a(f"s_mov_b32 s{S_KUSE}, s{S_KOFF}")
    pro = [kload(0, f, S_KUSE) for f in range(16)]
    if opt.k1o:
        a(f"s_add_u32 s{S_T0}, s{S_ROT}, 1")
        a(f"s_and_b32 s{S_T0}, s{S_T0}, 3")
        a(f"s_lshl_b32 s{S_T4}, s{S_T0}, 16")
        for f in range(16):
            pro.append(I_vm(f"buffer_load_dwordx4 v[{K1V+4*f}:{K1V+4*f+3}], v{V_OFF+(f>>2)}, s[{S_KSRD}:{S_KSRD+3}], s{S_T4} offen offset:{(f&3)*1024}{gen2.LDFLAGS}", ("K", 1, f)))
    for it in pro:
        a(it.text)
    comp("K", Z, SC2, 68, 69, 70, "c2")
    a(f"s_waitcnt vmcnt({20 + (16 if opt.k1o else 0)})")
    comp("V", Y, SC3, 46, 47, 48, "c3")
    st()
    endbar = [I_wlds("all"), I_raw("s_barrier")]
    mf = []
    for t in range(2):
        S = V_S + 32 * t
        for kb in range(2):
            for qb in range(4):
                for sx in range(8):
                    f = kb * 8 + sx
                    d = f"v[{S+(kb*4+qb)*4}:{S+(kb*4+qb)*4+3}]"
                    c = "0" if sx == 0 else d
                    pre_ = [I_wvm(("K", t, kb * 8 + 7))] if (qb == 0 and sx == 0) else []
                    A = f"a[{A_K+4*f}:{A_K+4*f+3}]" if t == 0 else f"v[{K1V+4*f}:{K1V+4*f+3}]"
                    mf.append([pre_, I_mfma(f"{MF} {d}, {A}, a[{A_Q+(qb*8+sx)*4}:{A_Q+(qb*8+sx)*4+3}], {c}"), []])
    for j in range(16):
        mf[28 + 4 * j if j < 8 else 64 + 4 * (j - 8)][2].append(kload(2, j, S_KUSE))
    for j in range(9):
        mf[92 + 4 * j][2].append(vload(0, j, S_VOFF))
    class O2: pass
    o2 = O2(); o2.__dict__.update(opt.__dict__); o2.sm_g0 = 68; o2.sm_g1 = 124; o2.pace = 0
    head0 = [I_salu(f"s_mov_b32 s{S_I}, 0")] + tile_off(S_KUSE, 2, S_T4)
    pre = schedule(mf, head0, [], softmax_stream(0, opt), 64, o2)
    it0 = [I_raw(f"s_waitcnt vmcnt({29 - 8 if opt.latepub else 25 - 8})") if False else I_raw(f"s_waitcnt vmcnt({29 if opt.latepub else 25})")] + endbar + [I_salu(f"s_mov_b32 s{S_I}, 1")]
    blocks = [("pro", pro + [I_vm("", ("ST", k)) for k in range(8)]), ("pre", pre), ("it0", it0)]
    stat = {}
    for i in range(1, 15):
        items = build_iter(i, opt) + [I_salu(f"s_add_u32 s{S_I}, s{S_I}, 1")] + endbar
        nm = "odd" if i % 2 else "even"
        blocks.append((nm, items))
        if nm not in stat: stat[nm] = items
        else: assert [x.text for x in stat[nm]] == [x.text for x in items], nm
    it15 = build_iter(15, opt)
    V_LW, V_LR, V_OUT = 231, 232, 233
    LRREG = V_LR
    red = [I_valu(f"v_and_b32 v224, 15, v0"), I_valu(f"v_lshrrev_b32 v225, 6, v0"), I_valu(f"v_bfe_u32 v226, v0, 4, 2"),
           I_valu(f"v_lshlrev_b32 v{V_LR}, 4, v224"), I_valu(f"v_add_u32 v{V_LR}, {LDS_L}, v{V_LR}"),
           I_valu(f"v_lshl_add_u32 v{V_LW}, v225, 2, v{V_LR}"), I_valu(f"v_lshlrev_b32 v{V_OUT}, 9, v224"),
           I_valu(f"v_lshl_add_u32 v{V_OUT}, v225, 7, v{V_OUT}"),
           I_valu(f"v_lshl_add_u32 v{V_OUT+1}, v226, 5, v{V_OUT}"),
           I_valu(f"v_lshl_add_u32 v{V_OUT}, v226, {4 if opt.wide_out else 5}, v{V_OUT}")]
    for qb in range(4): red.append(I_valu(f"v_mov_b32 v{T+qb}, v{V_L+qb}"))
    red.append(I_raw("s_nop 1"))
    for qb in range(4): red.append(I_valu(f"v_permlane32_swap_b32 v{T+qb}, v{V_L+qb}"))
    red.append(I_raw("s_nop 1"))
    for qb in range(4): red.append(I_valu(f"v_add_f32 v{V_L+qb}, v{V_L+qb}, v{T+qb}"))
    for qb in range(4): red.append(I_valu(f"v_mov_b32 v{T+qb}, v{V_L+qb}"))
    red.append(I_raw("s_nop 1"))
    for qb in range(4): red.append(I_valu(f"v_permlane16_swap_b32 v{T+qb}, v{V_L+qb}"))
    red.append(I_raw("s_nop 1"))
    for qb in range(4): red.append(I_valu(f"v_add_f32 v{V_L+qb}, v{V_L+qb}, v{T+qb}"))
    for qb in range(4): red.append(I_lds(f"ds_write_b32 v{V_LW}, v{V_L+qb} offset:{qb*256}", ("LW", qb)))
    it15 += red + endbar
    blocks.append(("it15", it15))
    it16 = build_last(opt, T, V_OUT)
    blocks.append(("it16", it16))
    waits = resolve_waits(blocks)
    emit_block(a, "pre", pre, waits)
    if opt.stamp == 5: st()
    emit_block(a, "it0", it0, waits)
    publish(a, 3 if opt.latepub else 4, "L_pub4", 158)
    def hook_site(name):
        if name == "odd":
            if opt.latepub:
                a(f"s_and_b32 s{S_T0}, s{S_I}, 7")
                a(f"s_cmp_eq_u32 s{S_T0}, 2")
            else:
                a(f"s_cmp_eq_u32 s{S_I}, 2")
            a(f"s_cbranch_scc1 L_hook")
            a.label("L_hook_ret")
    st()
    a.label("L_loop")
    base = st.n
    emit_block(a, "odd", stat["odd"], waits)
    if opt.stamp == 4: st.dyn(2, base - 4, 9)
    hook_site("odd")
    if opt.stamp == 3: st.dyn(1, base - 2, 15)
    if opt.stamp == 4: st.dyn(2, base - 3, 9)
    emit_block(a, "even", stat["even"], waits)
    if opt.stamp == 4: st.dyn(2, base - 4, 9)
    hook_site("even")
    if opt.stamp == 3:
        st.dyn(1, base - 2, 15); st.n = base + 14
    if opt.stamp == 4:
        st.dyn(2, base - 3, 9); st.n = base + 16
    a(f"s_cmp_lt_u32 s{S_I}, 15")
    a("s_cbranch_scc1 L_loop")
    if opt.stamp in (1, 2): st()
    emit_block(a, "it15", it15, waits)
    emit_block(a, "it16", it16, waits)
    if opt.stamp:
        a("s_waitcnt vmcnt(0)")
        st(force=True)
        st.finish()
    if opt.dbgspan:
        a("s_waitcnt vmcnt(0)")
        a("s_memrealtime s[72:73]")
        a("s_waitcnt lgkmcnt(0)")
        a("v_mov_b32 v16, 8"); a("v_mov_b32 v17, s98"); a("v_mov_b32 v18, 12"); a("v_mov_b32 v19, s72")
        a("s_mov_b64 exec, 1")
        a(f"global_atomic_umax v16, v17, s[{S_DBG}:{S_DBG+1}]")
        a(f"global_atomic_umax v18, v19, s[{S_DBG}:{S_DBG+1}]")
        a("s_waitcnt vmcnt(0)")
    a("s_endpgm")
    a.label("L_hook")
    if opt.latepub:
        a(f"s_cmp_eq_u32 s{S_I}, 2")
        a("s_cbranch_scc0 L_hook_c4")
        publish(a, 4, "L_pub4b", 158)
        set_need(a, 3)
        a("s_branch L_hook_chk")
        a.label("L_hook_c4")
        set_need(a, 4)
        a.label("L_hook_chk")
    else:
        set_need(a, 4)
    nyoung = sum(1 for j in range(16) if 28 + 4 * j > opt.flag_gap) + sum(1 for j in range(9) if 92 + 4 * j > opt.flag_gap)
    a(f"s_waitcnt vmcnt({nyoung})")
    flag_check(a)
    a("s_nop 4")
    a(f"s_cbranch_vccz L_hook_ret")
    spin(a, "hk")
    a("s_branch L_hook_ret")
    gen_slow(a, opt, T, V_LW, V_LR, V_OUT + 1)
    a.label("L_done")
    a("s_endpgm")
    a.label("L_code_end")

DOC = """;
"""

def main():
    global OUTF
    ap = argparse.ArgumentParser()
    ap.add_argument("-o", default=f"cdna_kernels/{NAME}.s")
    ap.add_argument("--stamp", type=int, default=0)
    ap.add_argument("--wgrp", type=int, default=4)
    ap.add_argument("--kgrp", type=int, default=8)
    ap.add_argument("--spread", type=int, default=1)
    ap.add_argument("--cap", type=int, default=2)
    ap.add_argument("--pace", type=int, default=1)
    ap.add_argument("--read_spread", type=int, default=1)
    ap.add_argument("--sm_g0", type=int, default=0)
    ap.add_argument("--sm_g1", type=int, default=117)
    ap.add_argument("--ldflags", default="sc1")
    ap.add_argument("--outflags", default="sc1")
    ap.add_argument("--empty", type=int, default=0)
    ap.add_argument("--dbgspan", type=int, default=0)
    ap.add_argument("--codepf", type=int, default=1)
    ap.add_argument("--r1early", type=int, default=1)
    ap.add_argument("--k1o", type=int, default=1)
    ap.add_argument("--wide_out", type=int, default=1)
    ap.add_argument("--latepub", type=int, default=1)
    ap.add_argument("--pretouch", type=int, default=1)
    ap.add_argument("--rope_first", type=int, default=4)
    ap.add_argument("--prefetch", type=int, default=0)
    ap.add_argument("--flag_gap", type=int, default=57)
    ap.add_argument("--ngroups", type=int, default=3)
    opt = ap.parse_args()
    OUTF = (" " + opt.outflags.replace("+", " ")) if opt.outflags else ""
    gen2.LDFLAGS = (" " + opt.ldflags.replace("+", " ")) if opt.ldflags else ""
    out = header()
    out += f"; @launch grid=(256,1,1) block=(256,1,1) lds={LDS_TOTAL}\n"
    out += DOC
    out += '.amdgcn_target "amdgcn-amd-amdhsa--gfx950"\n.text\n'
    a = EA()
    gen_fused(a, opt)
    out += f".globl {KNAME}\n.p2align 8\n.type {KNAME},@function\n" + a.text()
    out += kd(KNAME, 512, 102, 256)
    open(opt.o, "w").write(out)

if __name__ == "__main__":
    main()
```

```python
import sys, os, argparse, math, struct
sys.path.insert(0, "dev")
from gen import f32bits, make_srd, kd, NAME, Item, I_valu, I_raw, I_salu, I_vm, I_lds, I_wvm, I_wlds, I_mfma, resolve_waits, emit_block
import gen2
from gen2 import (MF, V_OFF, V_PW, V_PR, V_L, V_S, V_PO, V_PF, V_V, A_O, A_Q, A_K, QFS, QGS,
                  S_KSRD, S_VSRD, S_QSRD, S_OSRD, S_KOFF, S_VOFF, S_I, S_ROT, S_C, S_W, S_MASK, S_KUSE,
                  kload, vload, softmax_stream, qk_mfmas, schedule, respread_loads, header)

KNAME = NAME + "_kernel"

class EA:
    def __init__(self): self.lines = []
    def __call__(self, s):
        for l in s.split("\n"):
            l = l.strip()
            if not l: continue
            self.lines.append(l if l.endswith(":") else "    " + l)
    def label(self, l): self.lines.append(l + ":")
    def text(self): return "\n".join(self.lines) + "\n"

LDS_Q = 0
LDS_L = 34816
LDS_SC = LDS_L + 1024
LDS_WK = LDS_SC + 4 * 2560
LDS_P = 51200
LDS_TOTAL = LDS_P + 32768
assert LDS_WK + 4096 <= LDS_P

S_STW = 36
S_NONCE = 39
S_PK, S_PT, S_PW = 40, 41, 42
S_PK2, S_PT2, S_PW2 = 43, 44, 45
S_HK, S_HT, S_HW = 46, 47, 48
S_FLG = 50
S_RANGE = 53
S_FMASK = 49
S_HMASK = 38
S_G = 68
S_RET = 70
S_RAWK, S_RAWV = 56, 60
S_KSC, S_KZ, S_VSC, S_VZ = 72, 76, 80, 84
S_DBG = 88
S_J, S_NEED = 90, 91
S_T0, S_T1, S_T2, S_T3, S_T4 = 92, 93, 94, 95, 96
S_SPIN, S_HEAD = 97, 99
V_FLAG, V_FADDR, V_STAMP = 13, 14, 15
STF = " sc1"

class RM: pass

class Stamp:
    def __init__(self, a, opt):
        self.a = a; self.on = opt.stamp; self.n = 0
    def _emit(self, idx_sgpr=None):
        a = self.a
        a("s_memtime s[54:55]")
        a("s_memrealtime s[100:101]")
        a("s_waitcnt lgkmcnt(0)")
        if idx_sgpr is None:
            a(f"v_writelane_b32 v{V_STAMP}, s54, {2*self.n}")
            a(f"v_writelane_b32 v{V_STAMP}, s100, {2*self.n+1}")
        else:
            a(f"s_mov_b32 m0, s{idx_sgpr}"); a("s_nop 1")
            a(f"v_writelane_b32 v{V_STAMP}, s54, m0")
            a(f"s_add_u32 m0, s{idx_sgpr}, 1"); a("s_nop 1")
            a(f"v_writelane_b32 v{V_STAMP}, s100, m0")
    def __call__(self, again=False, level=1, force=False):
        if not self.on: return
        if self.on == 9 and not force: return
        if level == 2 and self.on != 2: return
        if again: self.n -= 1
        self._emit()
        self.n += 1
    def dyn(self, mul, add, cap):
        a = self.a
        a(f"s_min_u32 s52, s{S_I}, {cap}")
        a(f"s_mul_i32 s52, s52, {2*mul}")
        a(f"s_add_u32 s52, s52, {2*add}")
        self._emit(52)
    def finish(self):
        if not self.on: return
        a = self.a
        a("s_waitcnt vmcnt(0)")
        a(f"s_lshl_b32 s46, s{S_J}, 3")
        a(f"s_add_u32 s46, s46, s{S_HEAD}")
        a(f"s_lshl_b32 s46, s46, 10")
        a(f"s_lshl_b32 s47, s{S_W}, 8")
        a("s_add_u32 s46, s46, s47")
        a("s_add_u32 s46, s46, 0x8000000")
        a(f"s_add_u32 s46, s{S_STW}, s46")
        a(f"s_addc_u32 s47, s{S_STW+1}, 0")
        a("v_and_b32 v16, 63, v0")
        a("v_lshlrev_b32 v16, 2, v16")
        a(f"global_store_dword v16, v{V_STAMP}, s[46:47]")
        a("s_waitcnt vmcnt(0)")

LOG2_10000_128 = math.log2(10000.0) / 128.0
LOG2_2PI = math.log2(2 * math.pi)

def vp(r): return f"v[{r}:{r+1}]"

def k_raw_loads(a, R, X, rowreg, rf="v"):
    a(f"s_lshl_b32 s{S_T0}, s{rowreg}, 10")
    for c in range(4):
        for hf in range(2):
            b = X + c * 8 + hf * 4
            a(f"buffer_load_dwordx4 {rf}[{b}:{b+3}], v{R.kraw}, s[{S_RAWK}:{S_RAWK+3}], s{S_T0} offen offset:{c*256+hf*16}{RAWF}")
    return 8
def k_scale_loads(a, R, rowreg, dst):
    a(f"s_lshl_b32 s{S_T2}, s{rowreg}, 1")
    a(f"buffer_load_ushort v{dst}, v{R.ksc}, s[{S_KSC}:{S_KSC+3}], s{S_T2} offen")
    a(f"buffer_load_ushort v{dst+1}, v{R.ksc}, s[{S_KZ}:{S_KZ+3}], s{S_T2} offen")
    return 2
def v_raw_loads(a, R, X, treg, wreg, rf="v"):
    a(f"s_lshl_b32 s{S_T0}, s{treg}, 15")
    a(f"s_lshl_b32 s{S_T1}, s{wreg}, 8")
    a(f"s_add_u32 s{S_T0}, s{S_T0}, s{S_T1}")
    a(f"s_add_u32 s{S_T1}, s{S_T0}, 16384")
    for j in range(8):
        b = X + j * 4
        so = S_T0 if j < 4 else S_T1
        a(f"buffer_load_dwordx4 {rf}[{b}:{b+3}], v{R.vraw}, s[{S_RAWV}:{S_RAWV+3}], s{so} offen offset:{(j&3)*1024}{RAWF}")
    return 8
def v_scale_loads(a, R, SC, treg):
    a(f"s_lshl_b32 s{S_T2}, s{treg}, 6")
    for g2 in range(2):
        a(f"buffer_load_dwordx2 v[{SC+2*g2}:{SC+1+2*g2}], v{R.vsc}, s[{S_VSC}:{S_VSC+3}], s{S_T2} offen offset:{g2*32}")
        a(f"buffer_load_dwordx2 v[{SC+4+2*g2}:{SC+5+2*g2}], v{R.vsc}, s[{S_VZ}:{S_VZ+3}], s{S_T2} offen offset:{g2*32}")
    return 4

def sincos8(a, pos, w, cs, sn):
    for k in range(4):
        a(f"v_pk_mul_f32 {vp(sn+2*k)}, {vp(w+2*k)}, {vp(pos)} op_sel_hi:[1,0]")
    for e in range(8):
        a(f"v_fract_f32 v{sn+e}, v{sn+e}")
    for e in range(8):
        a(f"v_cos_f32 v{cs+e}, v{sn+e}")
    for e in range(8):
        a(f"v_sin_f32 v{sn+e}, v{sn+e}")

def rope8(a, x1, x2, cs, sn, u, o1dst, o2dst):
    for k in range(4):
        a(f"v_pk_mul_f32 {vp(u+2*k)}, {vp(x2+2*k)}, {vp(sn+2*k)}")
    for k in range(4):
        a(f"v_pk_mul_f32 {vp(sn+2*k)}, {vp(x1+2*k)}, {vp(sn+2*k)}")
    for k in range(4):
        a(f"v_pk_fma_f32 {vp(u+2*k)}, {vp(x1+2*k)}, {vp(cs+2*k)}, {vp(u+2*k)} neg_lo:[0,0,1] neg_hi:[0,0,1]")
    for k in range(4):
        a(f"v_pk_fma_f32 {vp(sn+2*k)}, {vp(x2+2*k)}, {vp(cs+2*k)}, {vp(sn+2*k)}")
    for k in range(4):
        a(f"v_cvt_pk_bf16_f32 v{o1dst+k}, v{u+2*k}, v{u+2*k+1}")
    for k in range(4):
        a(f"v_cvt_pk_bf16_f32 v{o2dst+k}, v{sn+2*k}, v{sn+2*k+1}")

def k_compute(a, R, X, sc, WK, T, rowreg, pre_store=None):
    assert sc % 2 == 0 and T % 2 == 0 and X % 4 == 0
    pos, cs, sn, u = T, T + 2, T + 10, T + 18
    a(f"v_lshlrev_b32 v{sc}, 16, v{sc}")
    a(f"v_lshlrev_b32 v{sc+1}, 16, v{sc+1}")
    a(f"v_cvt_f32_u32 v{pos}, v{R.krr}")
    a(f"v_cvt_f32_u32 v{pos+1}, s{rowreg}")
    a(f"v_mul_f32 v{sc+1}, v{sc+1}, v{sc}")
    a(f"v_add_f32 v{pos}, v{pos}, v{pos+1}")
    for k in range(32):
        a(f"v_cvt_f32_i32 v{X+k}, v{X+k}")
    sincos8(a, pos, WK, cs, sn)
    for k in range(16):
        a(f"v_pk_fma_f32 {vp(X+2*k)}, {vp(X+2*k)}, {vp(sc)}, {vp(sc)} op_sel:[0,0,1] op_sel_hi:[1,0,1] neg_lo:[0,0,1] neg_hi:[0,0,1]")
    rope8(a, X, X + 16, cs, sn, u, X, X + 16)
    sincos8(a, pos, WK + 8, cs, sn)
    a("s_nop 0")
    rope8(a, X + 8, X + 24, cs, sn, u, X + 8, X + 24)
    a(f"s_lshr_b32 s{S_T0}, s{rowreg}, 4")
    a(f"s_lshl_b32 s{S_T0}, s{S_T0}, 13")
    a(f"s_and_b32 s{S_T1}, s{rowreg}, 8")
    a(f"s_lshl_b32 s{S_T1}, s{S_T1}, 4")
    a(f"s_add_u32 s{S_T0}, s{S_T0}, s{S_T1}")
    a(f"s_add_u32 s{S_T1}, s{S_T0}, 4096")
    if pre_store: pre_store()
    for c in range(4):
        b = X + c * 8
        so = S_T0 if c < 2 else S_T1
        a(f"buffer_store_dwordx4 v[{b}:{b+3}], v{R.kst}, s[{S_KSRD}:{S_KSRD+3}], s{so} offen offset:{(c&1)*2048}{STF}")

def v_compute(a, R, X, SC, T, treg, wreg, pre_store=None):
    M = S_MASK
    SZ = T
    for j in range(8):
        src_s = SC + 2 * (j >> 2) + ((j & 3) >> 1)
        src_z = SC + 4 + 2 * (j >> 2) + ((j & 3) >> 1)
        if j & 1:
            a(f"v_and_b32 v{SZ+2*j}, s{M}, v{src_s}"); a(f"v_and_b32 v{SZ+2*j+1}, s{M}, v{src_z}")
        else:
            a(f"v_lshlrev_b32 v{SZ+2*j}, 16, v{src_s}"); a(f"v_lshlrev_b32 v{SZ+2*j+1}, 16, v{src_z}")
    for k in range(32):
        a(f"v_cvt_f32_i32 v{X+k}, v{X+k}")
    for j in range(8):
        a(f"v_mul_f32 v{SZ+2*j+1}, v{SZ+2*j+1}, v{SZ+2*j}")
    for j in range(8):
        for h in range(2):
            x = X + 4 * j + 2 * h
            a(f"v_pk_fma_f32 {vp(x)}, {vp(x)}, {vp(SZ+2*j)}, {vp(SZ+2*j)} op_sel:[0,0,1] op_sel_hi:[1,0,1] neg_lo:[0,0,1] neg_hi:[0,0,1]")
    O = T
    for db in range(4):
        for jj in range(4):
            a(f"v_cvt_pk_bf16_f32 v{O+db*4+jj}, v{X+(2*jj)*4+db}, v{X+(2*jj+1)*4+db}")
    a(f"s_lshr_b32 s{S_T0}, s{treg}, 2")
    a(f"s_lshl_b32 s{S_T0}, s{S_T0}, 16")
    a(f"s_lshl_b32 s{S_T1}, s{wreg}, 14")
    a(f"s_add_u32 s{S_T0}, s{S_T0}, s{S_T1}")
    a(f"s_sub_u32 s{S_T1}, s{treg}, s{wreg}")
    a(f"s_and_b32 s{S_T1}, s{S_T1}, 3")
    a(f"s_lshl_b32 s{S_T1}, s{S_T1}, 10")
    a(f"s_add_u32 s{S_T0}, s{S_T0}, s{S_T1}")
    if pre_store: pre_store()
    for db in range(4):
        if db:
            a(f"s_add_u32 s{S_T0}, s{S_T0}, 4096")
        a(f"buffer_store_dwordx4 v[{O+4*db}:{O+4*db+3}], v{R.vst}, s[{S_VSRD}:{S_VSRD+3}], s{S_T0} offen{STF}")

def freq_consts(a, dst, n, dbase_v, offs):
    a(f"s_mov_b32 s{S_T0}, 0x{f32bits(-LOG2_10000_128):08x}")
    for k in range(n):
        a(f"v_mov_b32 v{dst+k}, 0x{f32bits(-LOG2_10000_128 * offs[k] - LOG2_2PI):08x}")
    for k in range(n):
        a(f"v_fma_f32 v{dst+k}, v{dbase_v}, s{S_T0}, v{dst+k}")
    for k in range(n):
        a(f"v_exp_f32 v{dst+k}, v{dst+k}")
    a("s_nop 0")

def rope_q(a, src, T, pos, wq):
    M = S_MASK
    q1, q2, cs, sn, u, out = T, T + 8, T + 16, T + 24, T + 32, T
    sincos8(a, pos, wq, cs, sn)
    for k in range(4):
        a(f"v_lshlrev_b32 v{q1+2*k}, 16, v{src+k}"); a(f"v_and_b32 v{q1+2*k+1}, s{M}, v{src+k}")
        a(f"v_lshlrev_b32 v{q2+2*k}, 16, v{src+4+k}"); a(f"v_and_b32 v{q2+2*k+1}, s{M}, v{src+4+k}")
    for k in range(4):
        a(f"v_pk_mul_f32 {vp(cs+2*k)}, {vp(cs+2*k)}, s[{S_C}:{S_C+1}] op_sel_hi:[1,0]")
    for k in range(4):
        a(f"v_pk_mul_f32 {vp(sn+2*k)}, {vp(sn+2*k)}, s[{S_C}:{S_C+1}] op_sel_hi:[1,0]")
    rope8(a, q1, q2, cs, sn, u, out, out + 4)
    return out

def task_params(a, rnd, pk, pt, pw):
    a(f"s_and_b32 s{S_T0}, s{S_W}, 1")
    a(f"s_lshl_b32 s{S_T1}, s{S_J}, 1")
    a(f"s_add_u32 s{S_T0}, s{S_T0}, s{S_T1}")
    if pk is not None:
        a(f"s_lshl_b32 s{pk}, s{S_T0}, 3")
        if isinstance(rnd, int): a(f"s_add_u32 s{pk}, s{pk}, {512*rnd}")
        else:
            a(f"s_lshl_b32 s{S_T1}, s{rnd[1]}, 9"); a(f"s_add_u32 s{pk}, s{pk}, s{S_T1}")
    if pt is not None:
        a(f"s_lshr_b32 s{pt}, s{S_T0}, 2")
        if isinstance(rnd, int): a(f"s_add_u32 s{pt}, s{pt}, {16*rnd}")
        else:
            a(f"s_lshl_b32 s{S_T1}, s{rnd[1]}, 4"); a(f"s_add_u32 s{pt}, s{pt}, s{S_T1}")
        a(f"s_and_b32 s{pw}, s{S_T0}, 3")

def task_addr(a, R, tmp, k=True, v=True):
    if k:
        a(f"v_and_b32 v{tmp}, 7, v0")
        a(f"v_bfe_u32 v{R.krr}, v0, 3, 3")
        a(f"v_lshlrev_b32 v{R.kraw}, 10, v{R.krr}")
        a(f"v_lshl_add_u32 v{R.kraw}, v{tmp}, 5, v{R.kraw}")
        a(f"v_lshrrev_b32 v{tmp+1}, 2, v{tmp}")
        a(f"v_lshlrev_b32 v{R.kst}, 10, v{tmp+1}")
        a(f"v_and_b32 v{tmp+1}, 3, v{tmp}")
        a(f"v_lshl_add_u32 v{R.kst}, v{tmp+1}, 8, v{R.kst}")
        a(f"v_lshl_add_u32 v{R.kst}, v{R.krr}, 4, v{R.kst}")
    if v:
        a(f"v_and_b32 v{tmp}, 15, v0")
        a(f"v_bfe_u32 v{tmp+1}, v0, 4, 2")
        a(f"v_lshlrev_b32 v{R.vraw}, 12, v{tmp+1}")
        a(f"v_lshl_add_u32 v{R.vraw}, v{tmp}, 4, v{R.vraw}")
        a(f"v_and_b32 v{R.vst}, 63, v0")
        a(f"v_lshlrev_b32 v{R.vst}, 4, v{R.vst}")

def publish(a, val, lbl, t):
    a(f"s_cmp_lg_u32 s{S_W}, 0")
    a(f"s_cbranch_scc1 {lbl}")
    a(f"s_mov_b64 exec, 1")
    a(f"s_add_u32 s{S_T1}, s{S_NONCE}, {val}")
    a(f"v_mov_b32 v{t}, s{S_T1}")
    a(f"s_lshl_b32 s{S_T0}, s{S_HEAD}, 5")
    a(f"s_add_u32 s{S_T0}, s{S_T0}, s{S_J}")
    a(f"s_lshl_b32 s{S_T0}, s{S_T0}, 7")
    a(f"v_mov_b32 v{t+1}, s{S_T0}")
    a(f"global_store_dword v{t+1}, v{t}, s[{S_FLG}:{S_FLG+1}] sc1")
    a(f"s_mov_b64 exec, -1")
    a.label(lbl)

def flag_load(a):
    a(f"global_load_dword v{V_FLAG}, v{V_FADDR}, s[{S_FLG}:{S_FLG+1}] sc1")
def flag_check(a):
    a(f"v_subrev_u32 v{V_FLAG}, s{S_NEED}, v{V_FLAG}")
    a(f"v_cmp_lt_u32 vcc, s{S_RANGE}, v{V_FLAG}")
def set_need(a, need):
    a(f"s_add_u32 s{S_NEED}, s{S_NONCE}, {need}")
    a(f"s_mov_b32 s{S_RANGE}, {4-need}")
def spin(a, name):
    a(f"s_mov_b32 s{S_SPIN}, 0")
    a.label(f"L_spin_{name}")
    flag_load(a)
    a("s_waitcnt vmcnt(0)")
    flag_check(a)
    a(f"s_add_u32 s{S_SPIN}, s{S_SPIN}, 1")
    a(f"s_cmp_lt_u32 s{S_SPIN}, 0x8000")
    a(f"s_cbranch_scc0 L_spin_{name}_done")
    a("s_nop 3")
    a(f"s_cbranch_vccnz L_spin_{name}")
    a.label(f"L_spin_{name}_done")

def tile_off(dst, tadd, tmp):
    return [I_salu(f"s_add_u32 s{dst}, s{S_I}, {tadd}"),
            I_salu(f"s_add_u32 s{tmp}, s{dst}, s{S_ROT}"),
            I_salu(f"s_and_b32 s{tmp}, s{tmp}, 3"),
            I_salu(f"s_and_b32 s{dst}, s{dst}, 12"),
            I_salu(f"s_or_b32 s{dst}, s{dst}, s{tmp}"),
            I_salu(f"s_lshl_b32 s{dst}, s{dst}, 16")]

def pv_item(t, db, qb, p):
    par = t & 1
    f = db * 4 + p
    o = A_O + (db * 4 + qb) * 4
    b = V_PO + 16 * par + qb * 4 if p == 0 else V_PF + (p - 1) * 16 + qb * 4
    return I_mfma(f"{MF} a[{o}:{o+3}], v[{V_V+4*f}:{V_V+4*f+3}], v[{b}:{b+3}], a[{o}:{o+3}]")

def p_reads(t):
    par = t & 1
    r = []
    for p in range(1, 4):
        for qb in range(4):
            dst = V_PF + (p - 1) * 16 + qb * 4
            r.append(I_lds(f"ds_read_b128 v[{dst}:{dst+3}], v{V_PR+p-1} offset:{par*16384+qb*1024}", ("PR", t, p, qb)))
    return r

def build_iter(i, opt, NT=16):
    has_qk = (i + 1) < NT
    has_sm = 0 <= i < NT
    has_pv = 1 <= i <= NT
    mf = []
    if has_qk:
        mf += qk_mfmas(i + 1, opt, NT)
    nqk = len(mf)
    if has_pv:
        t = i - 1
        for db in range(4):
            for qb in range(4):
                for p in range(4):
                    pre = []
                    if qb == 0 and p == 0:
                        pre.append(I_wvm(("V", t, db * 4 + 3)))
                    if db == 0 and qb == 0 and p == 1:
                        pre.append(I_wlds(("PR", t, 3, 3)))
                    post = []
                    if qb == 3 and t + 1 < NT:
                        post.append(vload(t + 1, db * 4 + p, S_VOFF))
                    mf.append([pre, pv_item(t, db, qb, p), post])
    respread_loads(mf, i, NT, opt)
    if i == 15:
        mf[0][2] = [vload(14, j, S_VOFF) for j in range(9, 16)] + mf[0][2]
    reads = p_reads(i - 1) if has_pv else []
    sm = softmax_stream(i, opt) if has_sm else []
    head = []
    full = len(mf) == 128
    if has_qk:
        head += tile_off(S_KOFF, 2, S_T4) + [I_salu(f"s_cmp_lt_u32 s{S_I}, {NT-2}"), I_salu(f"s_cselect_b32 s{S_KUSE}, s{S_KOFF}, 0x100000")]
    if has_pv:
        vup = tile_off(S_VOFF, 0, S_T3)
        if full:
            for k, x in enumerate(vup):
                mf[41 + k][2].append(x)
        else:
            head += vup
    if full and i % 2 == 1:
        txt = (f"s_bitcmp1_b32 s{S_FMASK}, s{S_I}\ns_cbranch_scc0 L_noflagld\n"
               f"global_load_dword v{V_FLAG}, v{V_FADDR}, s[{S_FLG}:{S_FLG+1}] sc1\nL_noflagld:")
        mf[opt.flag_gap][2].append(I_raw(txt))
    return schedule(mf, head, reads, sm, nqk, opt)

def build_it0_k1o(opt):
    mf = []
    S = V_S + 32
    for kb in range(2):
        for qb in range(4):
            for s in range(8):
                f = kb * 8 + s
                d = f"v[{S+(kb*4+qb)*4}:{S+(kb*4+qb)*4+3}]"
                c = "0" if s == 0 else d
                pre = [I_wvm(("K", 1, kb * 8 + 7))] if (qb == 0 and s == 0) else []
                mf.append([pre, I_mfma(f"{MF} {d}, a[{A_O+4*f}:{A_O+4*f+3}], a[{A_Q+(qb*8+s)*4}:{A_Q+(qb*8+s)*4+3}], {c}"), []])
    for k in range(32):
        mf[32 + k][2].append(I_valu(f"v_accvgpr_write_b32 a{A_O+k}, 0"))
    items = schedule(mf, [], [], softmax_stream(0, opt), 64, opt)
    items += [I_valu(f"v_accvgpr_write_b32 a{A_O+32+k}, 0") for k in range(32)]
    return items

def build_last(opt, T, V_OUT):
    t = 15
    mf = []
    for qb in range(4):
        for db in range(4):
            for p in range(4):
                pre = []
                if qb == 0 and p == 0:
                    pre.append(I_wvm(("V", t, db * 4 + 3)))
                if qb == 0 and db == 0 and p == 1:
                    pre.append(I_wlds(("PR", t, 3, 3)))
                mf.append([pre, pv_item(t, db, qb, p), []])
    def epi(qb):
        it = []
        inv = T + 4 * qb
        tb = 48 + (qb & 1) * 16
        for par in range(2):
            for k in range(par, 8, 2):
                r = k >> 1
                c = 2 * (k & 1)
                x = tb + 2 * k
                it.append(I_valu(f"v_accvgpr_read_b32 v{x}, a{A_O+((c)*4+qb)*4+r}"))
                it.append(I_valu(f"v_accvgpr_read_b32 v{x+1}, a{A_O+((c+1)*4+qb)*4+r}"))
        for k in range(8):
            x = tb + 2 * k
            it.append(I_valu(f"v_pk_mul_f32 {vp(x)}, {vp(x)}, {vp(inv)} op_sel_hi:[1,0]"))
        for half in range(2):
            o = 16 + (qb * 2 + half) * 4
            for kk in range(4):
                x = tb + 2 * (half * 4 + kk)
                it.append(I_valu(f"v_cvt_pk_bf16_f32 v{o+kk}, v{x}, v{x+1}"))
        oA, oB = 16 + qb * 8, 16 + qb * 8 + 4
        so = "0" if qb == 0 else f"s{S_T0+qb-1}"
        if opt.wide_out:
            it.append(I_raw("s_nop 1"))
            for kk in range(4):
                it.append(I_valu(f"v_permlane16_swap_b32 v{oA+kk}, v{oB+kk}"))
            it.append(I_raw("s_nop 1"))
            for kk in range(4):
                it.append(I_valu(f"v_permlane32_swap_b32 v{oA+kk}, v{oB+kk}"))
            it.append(I_raw("s_nop 0"))
            it.append(I_vm(f"buffer_store_dwordx4 v[{oA}:{oA+3}], v{V_OUT}, s[{S_OSRD}:{S_OSRD+3}], {so} offen{OUTF}", ("O", qb, 0)))
            it.append(I_vm(f"buffer_store_dwordx4 v[{oB}:{oB+3}], v{V_OUT}, s[{S_OSRD}:{S_OSRD+3}], {so} offen offset:64{OUTF}", ("O", qb, 1)))
        else:
            it.append(I_vm(f"buffer_store_dwordx4 v[{oA}:{oA+3}], v{V_OUT}, s[{S_OSRD}:{S_OSRD+3}], {so} offen offset:0{OUTF}", ("O", qb, 0)))
            it.append(I_vm(f"buffer_store_dwordx4 v[{oB}:{oB+3}], v{V_OUT}, s[{S_OSRD}:{S_OSRD+3}], {so} offen offset:16{OUTF}", ("O", qb, 1)))
        return it
    linv = [I_wlds(("LR", 3))]
    for qb in range(4):
        b = T + 4 * qb
        linv += [I_valu(f"v_add_f32 v{b}, v{b}, v{b+1}"), I_valu(f"v_add_f32 v{b+2}, v{b+2}, v{b+3}")]
    for qb in range(4):
        b = T + 4 * qb
        linv.append(I_valu(f"v_add_f32 v{b}, v{b}, v{b+2}"))
    linv.append(I_valu(f"v_max3_f32 v{T+1}, v{T}, v{T+4}, v{T+8}"))
    linv.append(I_valu(f"v_min3_f32 v{T+2}, v{T}, v{T+4}, v{T+8}"))
    linv.append(I_valu(f"v_max_f32 v{T+1}, v{T+1}, v{T+12}"))
    linv.append(I_valu(f"v_min_f32 v{T+2}, v{T+2}, v{T+12}"))
    linv.append(I_valu(f"v_cmp_lt_f32 vcc, s{S_T3}, v{T+1}"))
    linv.append(I_valu(f"v_cmp_gt_f32 s[{S_RET}:{S_RET+1}], s{S_T4}, v{T+2}"))
    for qb in range(4):
        b = T + 4 * qb
        linv.append(I_valu(f"v_rcp_f32 v{b}, v{b}", 8))
    linv.append(I_raw(f"s_or_b64 vcc, vcc, s[{S_RET}:{S_RET+1}]\ns_cbranch_vccnz L_slow"))
    items = []
    lreads = [I_lds(f"ds_read_b128 v[{T+4*qb}:{T+4*qb+3}], v{LRREG} offset:{qb*256}", ("LR", qb)) for qb in range(4)]
    head = [I_salu(f"s_mov_b32 s{S_T0+k}, {8192*(k+1)}") for k in range(3)] + [I_salu(f"s_mov_b32 s{S_T3}, 0x5d800000"), I_salu(f"s_mov_b32 s{S_T4}, 0x21800000")] + p_reads(t) + lreads
    gaps = [[] for _ in range(64)]
    q = list(linv)
    g = 4
    while q:
        gaps[g] += q[:2]; q = q[2:]; g = min(g + 1, 15) if g < 15 else 15
    for qb in range(3):
        e = epi(qb)
        g0 = 16 * (qb + 1) + 3
        per = (len(e) + 12) // 13
        g = g0
        while e:
            gaps[g] += e[:per]; e = e[per:]; g = min(g + 1, 63)
    for k, (pre, m, post) in enumerate(mf):
        items += pre
        items.append(m)
        if k == 0:
            items += head
        items += gaps[k]
    items.append(I_raw("s_nop 7"))
    items += epi(3)
    return items

def gen_slow(a, opt, T, V_LW, V_LR, V_OUT):
    M, F, X_ = 48, 52, 56
    S = V_S
    a.label("L_slow")
    a("s_waitcnt vmcnt(0) lgkmcnt(0)")
    a("s_nop 15")
    a("s_barrier")
    for r in range(64): a(f"v_accvgpr_write_b32 a{A_O+r}, 0")
    for qb in range(4):
        a(f"v_mov_b32 v{V_L+qb}, 0")
        a(f"v_mov_b32 v{M+qb}, 0xff7fffff")
    a(f"s_mov_b32 s{S_I}, 0")
    a.label("L_slow_loop")
    a(f"s_lshl_b32 s{S_KUSE}, s{S_I}, 16")
    a(f"s_mov_b32 s{S_VOFF}, s{S_KUSE}")
    for f in range(16): a(kload(0, f, S_KUSE).text)
    for f in range(16): a(vload(0, f, S_VOFF).text)
    a("s_waitcnt vmcnt(16)")
    for kb in range(2):
        for qb in range(4):
            for sx in range(8):
                f = kb * 8 + sx
                d = f"v[{S+(kb*4+qb)*4}:{S+(kb*4+qb)*4+3}]"
                c = "0" if sx == 0 else d
                a(f"{MF} {d}, a[{A_K+4*f}:{A_K+4*f+3}], a[{A_Q+(qb*8+sx)*4}:{A_Q+(qb*8+sx)*4+3}], {c}")
    a("s_nop 15")
    for qb in range(4):
        x0, x1 = S + qb * 4, S + (4 + qb) * 4
        a(f"v_max3_f32 v{F+qb}, v{x0}, v{x0+1}, v{x0+2}")
        a(f"v_max3_f32 v{F+qb}, v{F+qb}, v{x0+3}, v{x1}")
        a(f"v_max3_f32 v{F+qb}, v{F+qb}, v{x1+1}, v{x1+2}")
        a(f"v_max_f32 v{F+qb}, v{F+qb}, v{x1+3}")
    for swap in ("v_permlane32_swap_b32", "v_permlane16_swap_b32"):
        for qb in range(4): a(f"v_mov_b32 v{X_+qb}, v{F+qb}")
        a("s_nop 1")
        for qb in range(4): a(f"{swap} v{X_+qb}, v{F+qb}")
        a("s_nop 1")
        for qb in range(4): a(f"v_max_f32 v{F+qb}, v{F+qb}, v{X_+qb}")
    for qb in range(4): a(f"ds_write_b32 v{V_LW}, v{F+qb} offset:{qb*256}")
    a("s_waitcnt lgkmcnt(0)")
    a("s_barrier")
    for qb in range(4): a(f"ds_read_b128 v[{X_+4*qb}:{X_+4*qb+3}], v{V_LR} offset:{qb*256}")
    a("s_waitcnt lgkmcnt(0)")
    for qb in range(4):
        b = X_ + 4 * qb
        a(f"v_max3_f32 v{b}, v{b}, v{b+1}, v{b+2}")
        a(f"v_max3_f32 v{b}, v{b}, v{b+3}, v{M+qb}")
        a(f"v_sub_f32 v{F+qb}, v{M+qb}, v{b}")
        a(f"v_mov_b32 v{M+qb}, v{b}")
    for qb in range(4): a(f"v_exp_f32 v{F+qb}, v{F+qb}")
    a("s_nop 0")
    for qb in range(4): a(f"v_mul_f32 v{V_L+qb}, v{V_L+qb}, v{F+qb}")
    for db in range(4):
        for qb in range(4):
            for r in range(4):
                o = A_O + (db * 4 + qb) * 4 + r
                a(f"v_accvgpr_read_b32 v{X_}, a{o}")
                a(f"v_mul_f32 v{X_}, v{X_}, v{F+qb}")
                a(f"v_accvgpr_write_b32 a{o}, v{X_}")
    for qb in range(4):
        for kb in range(2):
            for r in range(4):
                x = S + (kb * 4 + qb) * 4 + r
                a(f"v_sub_f32 v{x}, v{x}, v{M+qb}")
        for kb in range(2):
            for r in range(4):
                x = S + (kb * 4 + qb) * 4 + r
                a(f"v_exp_f32 v{x}, v{x}")
        a("s_nop 0")
        for kb in range(2):
            for r in range(4):
                x = S + (kb * 4 + qb) * 4 + r
                a(f"v_add_f32 v{V_L+qb}, v{V_L+qb}, v{x}")
        for kb in range(2):
            for h in range(2):
                x = S + (kb * 4 + qb) * 4 + 2 * h
                a(f"v_cvt_pk_bf16_f32 v{V_PO+qb*4+kb*2+h}, v{x}, v{x+1}")
        a(f"ds_write_b128 v{V_PW}, v[{V_PO+qb*4}:{V_PO+qb*4+3}] offset:{qb*1024}")
    a("s_waitcnt lgkmcnt(0)")
    a("s_barrier")
    for it in p_reads(0): a(it.text)
    a("s_waitcnt vmcnt(0) lgkmcnt(0)")
    for db in range(4):
        for qb in range(4):
            for p in range(4):
                a(pv_item(0, db, qb, p).text)
    a("s_nop 15")
    a("s_barrier")
    a(f"s_add_u32 s{S_I}, s{S_I}, 1")
    a(f"s_cmp_lt_u32 s{S_I}, 16")
    a("s_cbranch_scc1 L_slow_loop")
    for swap in ("v_permlane32_swap_b32", "v_permlane16_swap_b32"):
        for qb in range(4): a(f"v_mov_b32 v{X_+qb}, v{V_L+qb}")
        a("s_nop 1")
        for qb in range(4): a(f"{swap} v{X_+qb}, v{V_L+qb}")
        a("s_nop 1")
        for qb in range(4): a(f"v_add_f32 v{V_L+qb}, v{V_L+qb}, v{X_+qb}")
    for qb in range(4): a(f"ds_write_b32 v{V_LW}, v{V_L+qb} offset:{qb*256}")
    a("s_waitcnt lgkmcnt(0)")
    a("s_barrier")
    for qb in range(4): a(f"ds_read_b128 v[{T+4*qb}:{T+4*qb+3}], v{V_LR} offset:{qb*256}")
    a("s_waitcnt lgkmcnt(0)")
    for qb in range(4):
        b = T + 4 * qb
        a(f"v_add_f32 v{b}, v{b}, v{b+1}"); a(f"v_add_f32 v{b+2}, v{b+2}, v{b+3}")
        a(f"v_add_f32 v{b}, v{b}, v{b+2}")
        a(f"v_rcp_f32 v{b}, v{b}")
    a("s_nop 0")
    for qb in range(4):
        inv = T + 4 * qb
        a(f"s_mov_b32 s{S_T0}, {qb*8192}")
        for half in range(2):
            o = 16 + half * 4
            for kk in range(4):
                k = half * 4 + kk
                r = k >> 1
                c = 2 * (k & 1)
                a(f"v_accvgpr_read_b32 v{X_}, a{A_O+((c)*4+qb)*4+r}")
                a(f"v_accvgpr_read_b32 v{X_+1}, a{A_O+((c+1)*4+qb)*4+r}")
                a(f"v_mul_f32 v{X_}, v{X_}, v{inv}")
                a(f"v_mul_f32 v{X_+1}, v{X_+1}, v{inv}")
                a(f"v_cvt_pk_bf16_f32 v{o+kk}, v{X_}, v{X_+1}")
            a(f"buffer_store_dwordx4 v[{o}:{o+3}], v{V_OUT}, s[{S_OSRD}:{S_OSRD+3}], s{S_T0} offen offset:{half*16}")
            a("s_nop 1")
    a("s_endpgm")

def gen_fused(a, opt):
    global OUTF, LRREG
    NT = 16
    st = Stamp(a, opt)
    PP = RM(); PP.kraw, PP.krr, PP.kst, PP.vraw, PP.vst = 248, 249, 250, 251, 252
    PP.ksc, PP.vsc = 253, 254
    V_QW, V_QR, V_QOFF = 8, 9, 14
    X, Y, QD, TT = 16, 48, 96, 160
    Z = X
    WK, WQ = 200, 128
    SC0, SC1, SC2, SC3 = 216, 224, 232, 240
    QPOS, V_NON, V_ZERO, VJ = 136, 138, 139, 140
    K1V = 96
    T = 240
    a.label(KNAME)
    a("s_cmp_ge_u32 s2, 256" if not opt.empty else "s_cmp_ge_u32 s2, 0")
    a("s_cbranch_scc1 L_done")
    st(force=True)
    if opt.dbgspan:
        a("s_memrealtime s[72:73]")
        a("s_waitcnt lgkmcnt(0)")
        a("s_not_b32 s98, s72")
    a("s_load_dwordx16 s[40:55], s[0:1], 0")
    a("s_load_dwordx2 s[62:63], s[0:1], 88")
    a("s_load_dwordx4 s[64:67], s[0:1], 96")
    if opt.codepf:
        a("s_getpc_b64 s[4:5]")
        a.label("L_pc")
        a("v_lshlrev_b32 v30, 7, v0")
        a(f"v_min_u32 v30, L_code_end-L_pc-4, v30")
        a("global_load_dword v31, v30, s[4:5]")
    a(f"s_and_b32 s{S_HEAD}, s2, 7")
    a(f"s_lshr_b32 s{S_J}, s2, 3")
    a("v_lshrrev_b32 v1, 6, v0")
    a("v_and_b32 v2, 15, v0")
    a("v_bfe_u32 v3, v0, 4, 2")
    a(f"v_readfirstlane_b32 s{S_W}, v1")
    task_addr(a, PP, 4)
    a("v_lshl_add_u32 v4, v1, 4, v3")
    a(f"v_lshlrev_b32 v{V_QOFF}, 9, v4")
    a(f"v_lshl_add_u32 v{V_QOFF}, v2, 4, v{V_QOFF}")
    task_params(a, 0, 68, 69, 70)
    a(f"s_lshl_b32 s{S_T4}, s{S_HEAD}, 21")
    a("s_waitcnt lgkmcnt(0)")
    isB = lambda lbl: (a(f"s_cmp_ge_u32 s{S_W}, 2"), a(f"s_cbranch_scc1 {lbl}"))
    make_srd(a, S_RAWK, 42, S_T4, 0x200000)
    a(f"s_lshl_b32 s{S_T0}, s{S_HEAD}, 20")
    a(f"s_lshl_b32 s{S_T3}, s{S_J}, 15")
    a(f"s_add_u32 s{S_T2}, s{S_T0}, s{S_T3}")
    make_srd(a, S_OSRD, 62, S_T2, 32768)
    make_srd(a, S_RAWV, 48, S_T4, 0x200000)
    make_srd(a, S_QSRD, 40, S_T2, 32768)
    isB("L_B_i0")
    k_raw_loads(a, PP, X, 68)
    a(f"s_lshl_b32 s{S_T2}, s{S_HEAD}, 12")
    make_srd(a, S_KSC, 44, S_T2, 4096)
    make_srd(a, S_KZ, 46, S_T2, 4096)
    a(f"v_lshlrev_b32 v{PP.ksc}, 1, v{PP.krr}")
    k_scale_loads(a, PP, 68, SC0)
    a(f"s_lshl_b32 s{S_T2}, s{S_HEAD}, 12")
    make_srd(a, S_VSC, 50, S_T2, 4096)
    make_srd(a, S_VZ, 52, S_T2, 4096)
    a(f"v_lshlrev_b32 v{PP.vsc}, 3, v3")
    a("s_branch L_i0_done")
    a.label("L_B_i0")
    v_raw_loads(a, PP, X, 69, 70)
    a(f"s_lshl_b32 s{S_T2}, s{S_HEAD}, 12")
    make_srd(a, S_VSC, 50, S_T2, 4096)
    make_srd(a, S_VZ, 52, S_T2, 4096)
    a(f"v_lshlrev_b32 v{PP.vsc}, 3, v3")
    v_scale_loads(a, PP, SC0, 69)
    a(f"s_lshl_b32 s{S_T2}, s{S_HEAD}, 12")
    make_srd(a, S_KSC, 44, S_T2, 4096)
    make_srd(a, S_KZ, 46, S_T2, 4096)
    a(f"v_lshlrev_b32 v{PP.ksc}, 1, v{PP.krr}")
    a.label("L_i0_done")
    a("s_mov_b32 s41, 4096")
    for it in range(4):
        so = "0" if it < 2 else "s41"
        io = (it & 1) * 2048
        b = QD + 8 * it
        a(f"buffer_load_dwordx4 v[{b}:{b+3}], v{V_QOFF}, s[{S_QSRD}:{S_QSRD+3}], {so} offen offset:{io}{QF}")
        a(f"buffer_load_dwordx4 v[{b+4}:{b+7}], v{V_QOFF}, s[{S_QSRD}:{S_QSRD+3}], {so} offen offset:{io+256}{QF}")
    a(f"s_mov_b32 s{S_PK}, s68"); a(f"s_mov_b32 s{S_PT}, s69"); a(f"s_mov_b32 s{S_PW}, s70")
    task_params(a, 1, S_PK2, S_PT2, S_PW2)
    task_params(a, 2, 68, 69, 70)
    task_params(a, 3, 46, 47, 48)
    a(f"v_mov_b32 v{V_ZERO}, 0")
    isB("L_B_sc")
    v_scale_loads(a, PP, SC1, S_PT2); k_scale_loads(a, PP, 68, SC2); v_scale_loads(a, PP, SC3, 47)
    a("s_branch L_sc_done")
    a.label("L_B_sc")
    k_scale_loads(a, PP, S_PK2, SC1); v_scale_loads(a, PP, SC2, 69); k_scale_loads(a, PP, 46, SC3)
    a.label("L_sc_done")
    NSA, NSB = 10, 8
    a(f"s_mov_b32 s{S_DBG}, s64"); a(f"s_mov_b32 s{S_DBG+1}, s65")
    a(f"s_or_b32 s{S_T0}, s{S_HEAD}, s{S_J}")
    a(f"s_or_b32 s{S_T0}, s{S_T0}, s{S_W}")
    a(f"s_cmp_lg_u32 s{S_T0}, 0")
    a("s_cbranch_scc1 L_nononce")
    a("s_memrealtime s[100:101]")
    a("s_waitcnt lgkmcnt(0)")
    a("s_lshl_b32 s100, s100, 3")
    a("s_or_b32 s100, s100, 0x80000000")
    a("s_and_b32 s100, s100, 0xfffffff8")
    a(f"v_mov_b32 v{VJ}, s100")
    a("s_mov_b64 exec, 1")
    a(f"global_store_dword v{V_ZERO}, v{VJ}, s[{S_DBG}:{S_DBG+1}] sc1")
    a("s_mov_b64 exec, -1")
    a.label("L_nononce")
    a(f"global_load_dword v{V_NON}, v{V_ZERO}, s[{S_DBG}:{S_DBG+1}] sc1")
    def issue(kind_for_A, buf, pk, pt, pw, tag, rf="v"):
        isB(f"L_B_{tag}")
        (k_raw_loads(a, PP, buf, pk, rf) if kind_for_A == "K" else v_raw_loads(a, PP, buf, pt, pw, rf))
        a(f"s_branch L_{tag}_done")
        a.label(f"L_B_{tag}")
        (v_raw_loads(a, PP, buf, pt, pw, rf) if kind_for_A == "K" else k_raw_loads(a, PP, buf, pk, rf))
        a.label(f"L_{tag}_done")
    def comp(kind_for_A, buf, sc, pk, pt, pw, tag, ps=None):
        isB(f"L_B_{tag}")
        (k_compute(a, PP, buf, sc, WK, TT, pk, ps) if kind_for_A == "K" else v_compute(a, PP, buf, sc, TT, pt, pw, ps))
        a(f"s_branch L_{tag}_done")
        a.label(f"L_B_{tag}")
        (v_compute(a, PP, buf, sc, TT, pt, pw, ps) if kind_for_A == "K" else k_compute(a, PP, buf, sc, WK, TT, pk, ps))
        a.label(f"L_{tag}_done")
    if opt.r1early:
        issue("V", Y, S_PK2, S_PT2, S_PW2, "i1")
    NR1 = 8 if opt.r1early else 0
    a(f"s_mov_b32 s{S_MASK}, 0xffff0000")
    a(f"s_mov_b32 s{S_C}, 0x{f32bits(math.log2(math.e)/16.0):08x}")
    a(f"s_and_b32 s{S_ROT}, s{S_J}, 3")
    a(f"s_lshl_b32 s{S_T0}, s{S_HEAD}, 20")
    make_srd(a, S_KSRD, 66, S_T0, 0x100000)
    a(f"s_add_u32 s{S_T1}, s{S_T0}, 0x800000")
    make_srd(a, S_VSRD, 66, S_T1, 0x100000)
    a(f"s_add_u32 s{S_FLG}, s66, 0x1000000")
    a(f"s_addc_u32 s{S_FLG+1}, s67, 0")
    if opt.stamp:
        a(f"s_mov_b32 s{S_STW}, s66"); a(f"s_mov_b32 s{S_STW+1}, s67")
    a(f"s_lshl_b32 s{S_T0}, s{S_J}, 6")
    a(f"v_add_u32 v{QPOS}, s{S_T0}, v4")
    a(f"v_cvt_f32_u32 v{QPOS}, v{QPOS}")
    a(f"v_and_b32 v{TT}, 7, v0"); a(f"v_lshlrev_b32 v{TT}, 3, v{TT}"); a(f"v_cvt_f32_u32 v{TT}, v{TT}")
    a(f"v_lshlrev_b32 v{TT+1}, 3, v2"); a(f"v_cvt_f32_u32 v{TT+1}, v{TT+1}")
    freq_consts(a, WK, 16, TT, [64 * (k >> 3) + (k & 7) for k in range(16)])
    freq_consts(a, WQ, 8, TT + 1, list(range(8)))
    a(f"v_mul_u32_u24 v{V_QW}, {8*QFS}, v1")
    a(f"v_lshrrev_b32 v{TT}, 2, v2")
    a(f"v_mul_u32_u24 v{TT}, {QFS}, v{TT}")
    a(f"v_add_u32 v{V_QW}, v{V_QW}, v{TT}")
    a(f"v_and_b32 v{TT}, 3, v2")
    a(f"v_mul_u32_u24 v{TT}, {QGS}, v{TT}")
    a(f"v_add_u32 v{V_QW}, v{V_QW}, v{TT}")
    a(f"v_lshl_add_u32 v{V_QW}, v3, 4, v{V_QW}")
    a(f"v_mul_u32_u24 v{V_QR}, {QGS}, v3")
    a(f"v_lshl_add_u32 v{V_QR}, v2, 4, v{V_QR}")
    for r in range(32 if opt.r3early else 0, 64):
        a(f"v_accvgpr_write_b32 a{A_O+r}, 0")
    a(f"s_waitcnt vmcnt({8 + NSB + 1 + NR1})")
    st()
    comp("K", X, SC0, S_PK, S_PT, S_PW, "c0")
    if not opt.r1early:
        issue("V", Y, S_PK2, S_PT2, S_PW2, "i1")
    issue("K", Z, 68, 69, 70, "i2")
    st(level=2)
    a(f"s_waitcnt vmcnt(20)")
    if opt.r3early:
        issue("V", 0, 46, 47, 48, "i3", rf="a")
    def rope_it(it):
        if it:
            a(f"v_add_f32 v{QPOS}, 4.0, v{QPOS}")
        o = rope_q(a, QD + 8 * it, TT, QPOS, WQ)
        a(f"ds_write_b128 v{V_QW}, v[{o}:{o+3}] offset:{it*64}")
        a(f"ds_write_b128 v{V_QW}, v[{o+4}:{o+7}] offset:{it*64 + 4*QFS}")
    for it in range(4):
        rope_it(it)
    st(level=2)
    a(f"s_waitcnt vmcnt({(8 if opt.r1early else 16) + (8 if opt.r3early else 0)})")
    st(level=2)
    a(f"v_readfirstlane_b32 s{S_NONCE}, v{V_NON}")
    a(f"s_cmp_lg_u32 s{S_NONCE}, 0")
    a("s_cbranch_scc1 L_have_nonce")
    a(f"s_mov_b32 s{S_SPIN}, 0")
    a.label("L_nonce_spin")
    a(f"global_load_dword v{V_NON}, v{V_ZERO}, s[{S_DBG}:{S_DBG+1}] sc1")
    a("s_waitcnt vmcnt(0)")
    a(f"v_readfirstlane_b32 s{S_NONCE}, v{V_NON}")
    a(f"s_add_u32 s{S_SPIN}, s{S_SPIN}, 1")
    a(f"s_cmp_ge_u32 s{S_SPIN}, 0x8000")
    a("s_cbranch_scc1 L_have_nonce")
    a(f"s_cmp_eq_u32 s{S_NONCE}, 0")
    a("s_cbranch_scc1 L_nonce_spin")
    a.label("L_have_nonce")
    a("s_waitcnt lgkmcnt(0)")
    a("s_barrier")
    publish(a, 1, "L_pub1", VJ)
    st()
    for qb in range(4):
        for s in range(8):
            b = A_Q + (qb * 8 + s) * 4
            a(f"ds_read_b128 a[{b}:{b+3}], v{V_QR} offset:{(qb*8+s)*QFS}")
    a(f"s_waitcnt vmcnt({16 if opt.r3early else 8})")
    if opt.flagfirst:
        a(f"v_and_b32 v{V_FADDR}, 31, v0")
        a(f"s_lshl_b32 s{S_T2}, s{S_HEAD}, 5")
        a(f"v_add_u32 v{V_FADDR}, s{S_T2}, v{V_FADDR}")
        a(f"v_lshlrev_b32 v{V_FADDR}, 7, v{V_FADDR}")
    comp("V", Y, SC1, S_PK2, S_PT2, S_PW2, "c1", (lambda: flag_load(a)) if opt.flagfirst else None)
    a("s_waitcnt lgkmcnt(0)")
    a(f"v_and_b32 v{TT}, 63, v0")
    a(f"v_lshrrev_b32 v{TT+1}, 6, v0")
    a(f"v_and_b32 v{V_FADDR}, 31, v0")
    a(f"s_lshl_b32 s{S_T0}, s{S_HEAD}, 5")
    a(f"v_add_u32 v{V_FADDR}, s{S_T0}, v{V_FADDR}")
    a(f"v_lshlrev_b32 v{V_FADDR}, 7, v{V_FADDR}")
    if not opt.flagfirst:
        flag_load(a)
    if not opt.r3early:
        issue("V", Y, 46, 47, 48, "i3")
    a(f"v_lshlrev_b32 v{TT+2}, 4, v{TT}")
    a(f"v_add_u32 v{TT+3}, {LDS_P}, v{TT+2}")
    for t in range(1, 4):
        a(f"v_add_u32 v{TT+4}, {t}, v{TT+1}")
        a(f"v_and_b32 v{TT+4}, 3, v{TT+4}")
        a(f"v_lshl_add_u32 v{V_PR+t-1}, v{TT+4}, 12, v{TT+3}")
    a(f"v_lshl_add_u32 v{V_PW}, v{TT+1}, 12, v{TT+3}")
    a(f"v_lshl_add_u32 v{V_OFF}, v{TT+1}, 14, v{TT+2}")
    for k in range(1, 4):
        a(f"v_add_u32 v{V_OFF+k}, {4096*k}, v{V_OFF}")
    for r in range(4):
        a(f"v_mov_b32 v{V_L+r}, 0")
    a(f"s_mov_b32 s{S_FMASK}, {0x202 if opt.latepub else 0x2}")
    set_need(a, 1)
    a(f"s_waitcnt vmcnt({(0 if opt.r3early else 8) + (4 if opt.flagfirst else 0)})")
    flag_check(a)
    a("s_nop 4")
    a("s_cbranch_vccz L_chk_r0_ok")
    spin(a, "r0")
    a.label("L_chk_r0_ok")
    st()
    a(f"s_lshl_b32 s{S_KOFF}, s{S_ROT}, 16")
    a(f"s_mov_b32 s{S_VOFF}, s{S_KOFF}")
    a(f"s_mov_b32 s{S_KUSE}, s{S_KOFF}")
    pro = [kload(0, f, S_KUSE) for f in range(16)]
    if opt.k1o:
        a(f"s_add_u32 s{S_T0}, s{S_ROT}, 1")
        a(f"s_and_b32 s{S_T0}, s{S_T0}, 3")
        a(f"s_lshl_b32 s{S_T4}, s{S_T0}, 16")
        for f in range(16):
            pro.append(I_vm(f"buffer_load_dwordx4 v[{K1V+4*f}:{K1V+4*f+3}], v{V_OFF+(f>>2)}, s[{S_KSRD}:{S_KSRD+3}], s{S_T4} offen offset:{(f&3)*1024}{gen2.LDFLAGS}", ("K", 1, f)))
    for it in pro:
        a(it.text)
    comp("K", Z, SC2, 68, 69, 70, "c2")
    if opt.r3early:
        for r in range(32):
            a(f"v_accvgpr_read_b32 v{Y+r}, a{r}")
    else:
        a(f"s_waitcnt vmcnt({20 + (16 if opt.k1o else 0)})")
    comp("V", Y, SC3, 46, 47, 48, "c3")
    st()
    endbar = [I_wlds("all"), I_raw("s_barrier")]
    mf = []
    for t in range(2):
        S = V_S + 32 * t
        for kb in range(2):
            for qb in range(4):
                for sx in range(8):
                    f = kb * 8 + sx
                    d = f"v[{S+(kb*4+qb)*4}:{S+(kb*4+qb)*4+3}]"
                    c = "0" if sx == 0 else d
                    pre_ = [I_wvm(("K", t, kb * 8 + 7))] if (qb == 0 and sx == 0) else []
                    A = f"a[{A_K+4*f}:{A_K+4*f+3}]" if t == 0 else f"v[{K1V+4*f}:{K1V+4*f+3}]"
                    mf.append([pre_, I_mfma(f"{MF} {d}, {A}, a[{A_Q+(qb*8+sx)*4}:{A_Q+(qb*8+sx)*4+3}], {c}"), []])
    for j in range(16):
        mf[28 + 4 * j if j < 8 else 64 + 4 * (j - 8)][2].append(kload(2, j, S_KUSE))
    for j in range(9):
        mf[92 + 4 * j][2].append(vload(0, j, S_VOFF))
    if opt.r3early:
        for r in range(32):
            mf[r][2].append(I_valu(f"v_accvgpr_write_b32 a{r}, 0"))
    class O2: pass
    o2 = O2(); o2.__dict__.update(opt.__dict__); o2.sm_g0 = 68; o2.sm_g1 = 124; o2.pace = 0
    head0 = [I_salu(f"s_mov_b32 s{S_I}, 0")] + tile_off(S_KUSE, 2, S_T4)
    pre = schedule(mf, head0, [], softmax_stream(0, opt), 64, o2)
    it0 = [I_raw(f"s_waitcnt vmcnt({29 - 8 if opt.latepub else 25 - 8})") if False else I_raw(f"s_waitcnt vmcnt({29 if opt.latepub else 25})")] + endbar + [I_salu(f"s_mov_b32 s{S_I}, 1")]
    blocks = [("pro", pro + [I_vm("", ("ST", k)) for k in range(8)]), ("pre", pre), ("it0", it0)]
    stat = {}
    for i in range(1, 15):
        items = build_iter(i, opt) + [I_salu(f"s_add_u32 s{S_I}, s{S_I}, 1")] + endbar
        nm = "odd" if i % 2 else "even"
        blocks.append((nm, items))
        if nm not in stat: stat[nm] = items
        else: assert [x.text for x in stat[nm]] == [x.text for x in items], nm
    it15 = build_iter(15, opt)
    V_LW, V_LR, V_OUT = 231, 232, 233
    LRREG = V_LR
    red = [I_valu(f"v_and_b32 v224, 15, v0"), I_valu(f"v_lshrrev_b32 v225, 6, v0"), I_valu(f"v_bfe_u32 v226, v0, 4, 2"),
           I_valu(f"v_lshlrev_b32 v{V_LR}, 4, v224"), I_valu(f"v_add_u32 v{V_LR}, {LDS_L}, v{V_LR}"),
           I_valu(f"v_lshl_add_u32 v{V_LW}, v225, 2, v{V_LR}"), I_valu(f"v_lshlrev_b32 v{V_OUT}, 9, v224"),
           I_valu(f"v_lshl_add_u32 v{V_OUT}, v225, 7, v{V_OUT}"),
           I_valu(f"v_lshl_add_u32 v{V_OUT+1}, v226, 5, v{V_OUT}"),
           I_valu(f"v_lshl_add_u32 v{V_OUT}, v226, {4 if opt.wide_out else 5}, v{V_OUT}")]
    for qb in range(4): red.append(I_valu(f"v_mov_b32 v{T+qb}, v{V_L+qb}"))
    red.append(I_raw("s_nop 1"))
    for qb in range(4): red.append(I_valu(f"v_permlane32_swap_b32 v{T+qb}, v{V_L+qb}"))
    red.append(I_raw("s_nop 1"))
    for qb in range(4): red.append(I_valu(f"v_add_f32 v{V_L+qb}, v{V_L+qb}, v{T+qb}"))
    for qb in range(4): red.append(I_valu(f"v_mov_b32 v{T+qb}, v{V_L+qb}"))
    red.append(I_raw("s_nop 1"))
    for qb in range(4): red.append(I_valu(f"v_permlane16_swap_b32 v{T+qb}, v{V_L+qb}"))
    red.append(I_raw("s_nop 1"))
    for qb in range(4): red.append(I_valu(f"v_add_f32 v{V_L+qb}, v{V_L+qb}, v{T+qb}"))
    for qb in range(4): red.append(I_lds(f"ds_write_b32 v{V_LW}, v{V_L+qb} offset:{qb*256}", ("LW", qb)))
    it15 += red + endbar
    blocks.append(("it15", it15))
    it16 = build_last(opt, T, V_OUT)
    blocks.append(("it16", it16))
    waits = resolve_waits(blocks)
    emit_block(a, "pre", pre, waits)
    if opt.stamp == 5: st()
    emit_block(a, "it0", it0, waits)
    publish(a, 3 if opt.latepub else 4, "L_pub4", 158)
    def hook_site(name):
        if name == "odd":
            if opt.latepub:
                a(f"s_and_b32 s{S_T0}, s{S_I}, 7")
                a(f"s_cmp_eq_u32 s{S_T0}, 2")
            else:
                a(f"s_cmp_eq_u32 s{S_I}, 2")
            a(f"s_cbranch_scc1 L_hook")
            a.label("L_hook_ret")
    st()
    a.label("L_loop")
    base = st.n
    emit_block(a, "odd", stat["odd"], waits)
    if opt.stamp == 4: st.dyn(2, base - 4, 9)
    hook_site("odd")
    if opt.stamp == 3: st.dyn(1, base - 2, 15)
    if opt.stamp == 4: st.dyn(2, base - 3, 9)
    emit_block(a, "even", stat["even"], waits)
    if opt.stamp == 4: st.dyn(2, base - 4, 9)
    hook_site("even")
    if opt.stamp == 3:
        st.dyn(1, base - 2, 15); st.n = base + 14
    if opt.stamp == 4:
        st.dyn(2, base - 3, 9); st.n = base + 16
    a(f"s_cmp_lt_u32 s{S_I}, 15")
    a("s_cbranch_scc1 L_loop")
    if opt.stamp in (1, 2): st()
    emit_block(a, "it15", it15, waits)
    emit_block(a, "it16", it16, waits)
    if opt.stamp:
        a("s_waitcnt vmcnt(0)")
        st(force=True)
        st.finish()
    if opt.dbgspan:
        a("s_waitcnt vmcnt(0)")
        a("s_memrealtime s[72:73]")
        a("s_waitcnt lgkmcnt(0)")
        a("v_mov_b32 v16, 8"); a("v_mov_b32 v17, s98"); a("v_mov_b32 v18, 12"); a("v_mov_b32 v19, s72")
        a("s_mov_b64 exec, 1")
        a(f"global_atomic_umax v16, v17, s[{S_DBG}:{S_DBG+1}]")
        a(f"global_atomic_umax v18, v19, s[{S_DBG}:{S_DBG+1}]")
        a("s_waitcnt vmcnt(0)")
    a("s_endpgm")
    a.label("L_hook")
    if opt.latepub:
        a(f"s_cmp_eq_u32 s{S_I}, 2")
        a("s_cbranch_scc0 L_hook_c4")
        publish(a, 4, "L_pub4b", 158)
        set_need(a, 3)
        a("s_branch L_hook_chk")
        a.label("L_hook_c4")
        set_need(a, 4)
        a.label("L_hook_chk")
    else:
        set_need(a, 4)
    nyoung = sum(1 for j in range(16) if 28 + 4 * j > opt.flag_gap) + sum(1 for j in range(9) if 92 + 4 * j > opt.flag_gap)
    a(f"s_waitcnt vmcnt({nyoung})")
    flag_check(a)
    a("s_nop 4")
    a(f"s_cbranch_vccz L_hook_ret")
    spin(a, "hk")
    a("s_branch L_hook_ret")
    gen_slow(a, opt, T, V_LW, V_LR, V_OUT + 1)
    a.label("L_done")
    a("s_endpgm")
    a.label("L_code_end")

RAWF = ""; QF = ""
def main():
    global OUTF, RAWF, QF
    ap = argparse.ArgumentParser()
    ap.add_argument("-o", default=f"cdna_kernels/{NAME}.s")
    ap.add_argument("--stamp", type=int, default=0)
    ap.add_argument("--wgrp", type=int, default=4)
    ap.add_argument("--kgrp", type=int, default=8)
    ap.add_argument("--spread", type=int, default=1)
    ap.add_argument("--cap", type=int, default=2)
    ap.add_argument("--pace", type=int, default=1)
    ap.add_argument("--read_spread", type=int, default=1)
    ap.add_argument("--sm_g0", type=int, default=0)
    ap.add_argument("--sm_g1", type=int, default=117)
    ap.add_argument("--ldflags", default="sc1")
    ap.add_argument("--outflags", default="sc1")
    ap.add_argument("--empty", type=int, default=0)
    ap.add_argument("--dbgspan", type=int, default=0)
    ap.add_argument("--codepf", type=int, default=1)
    ap.add_argument("--r1early", type=int, default=1)
    ap.add_argument("--k1o", type=int, default=1)
    ap.add_argument("--flagfirst", type=int, default=0)
    ap.add_argument("--rawflags", default="")
    ap.add_argument("--qflags", default="")
    ap.add_argument("--r3early", type=int, default=1)
    ap.add_argument("--wide_out", type=int, default=1)
    ap.add_argument("--latepub", type=int, default=1)
    ap.add_argument("--pretouch", type=int, default=1)
    ap.add_argument("--rope_first", type=int, default=1)
    ap.add_argument("--prefetch", type=int, default=0)
    ap.add_argument("--flag_gap", type=int, default=57)
    ap.add_argument("--ngroups", type=int, default=3)
    opt = ap.parse_args()
    RAWF = (" " + opt.rawflags.replace("+", " ")) if opt.rawflags else ""
    QF = (" " + opt.qflags.replace("+", " ")) if opt.qflags else ""
    OUTF = (" " + opt.outflags.replace("+", " ")) if opt.outflags else ""
    gen2.LDFLAGS = (" " + opt.ldflags.replace("+", " ")) if opt.ldflags else ""
    out = header()
    out += f"; @launch grid=(256,1,1) block=(256,1,1) lds={LDS_TOTAL}\n"
    out += '.amdgcn_target "amdgcn-amd-amdhsa--gfx950"\n.text\n'
    a = EA()
    gen_fused(a, opt)
    out += f".globl {KNAME}\n.p2align 8\n.type {KNAME},@function\n" + a.text()
    out += kd(KNAME, 512, 102, 256)
    open(opt.o, "w").write(out)

if __name__ == "__main__":
    main()
```

```python
import sys, os, argparse, math, struct
sys.path.insert(0, "dev")
from gen import f32bits, make_srd, kd, NAME, Item, I_valu, I_raw, I_salu, I_vm, I_lds, I_wvm, I_wlds, I_mfma, resolve_waits, emit_block
import gen2
from gen2 import (MF, V_OFF, V_PW, V_PR, V_L, V_S, V_PO, V_PF, V_V, A_O, A_Q, A_K, QFS, QGS,
                  S_KSRD, S_VSRD, S_QSRD, S_OSRD, S_KOFF, S_VOFF, S_I, S_ROT, S_C, S_W, S_MASK, S_KUSE,
                  kload, vload, softmax_stream, qk_mfmas, schedule, respread_loads, header)

KNAME = NAME + "_kernel"

class EA:
    def __init__(self): self.lines = []
    def __call__(self, s):
        for l in s.split("\n"):
            l = l.strip()
            if not l: continue
            self.lines.append(l if l.endswith(":") else "    " + l)
    def label(self, l): self.lines.append(l + ":")
    def text(self): return "\n".join(self.lines) + "\n"

LDS_Q = 0
LDS_L = 34816
LDS_SC = LDS_L + 1024
LDS_WK = LDS_SC + 4 * 2560
LDS_P = 51200
LDS_TOTAL = LDS_P + 32768
assert LDS_WK + 4096 <= LDS_P

S_STW = 36
S_NONCE = 39
S_PK, S_PT, S_PW = 40, 41, 42
S_PK2, S_PT2, S_PW2 = 43, 44, 45
S_HK, S_HT, S_HW = 46, 47, 48
S_FLG = 50
S_RANGE = 53
S_FMASK = 49
S_HMASK = 38
S_G = 64
S_RET = 66
S_RAWK, S_RAWV = 56, 60
S_KSC, S_KZ, S_VSC, S_VZ = 72, 76, 80, 84
S_DBG = 88
S_J, S_NEED = 90, 91
S_T0, S_T1, S_T2, S_T3, S_T4 = 92, 93, 94, 95, 96
S_SPIN, S_HEAD = 97, 99
V_FLAG, V_FADDR, V_STAMP = 13, 14, 15
STF = " sc1"

class RM: pass

class Stamp:
    def __init__(self, a, opt):
        self.a = a; self.on = opt.stamp; self.n = 0
    def _emit(self, idx_sgpr=None):
        a = self.a
        a("s_memtime s[54:55]")
        a("s_memrealtime s[100:101]")
        a("s_waitcnt lgkmcnt(0)")
        if idx_sgpr is None:
            a(f"v_writelane_b32 v{V_STAMP}, s54, {2*self.n}")
            a(f"v_writelane_b32 v{V_STAMP}, s100, {2*self.n+1}")
        else:
            a(f"s_mov_b32 m0, s{idx_sgpr}"); a("s_nop 1")
            a(f"v_writelane_b32 v{V_STAMP}, s54, m0")
            a(f"s_add_u32 m0, s{idx_sgpr}, 1"); a("s_nop 1")
            a(f"v_writelane_b32 v{V_STAMP}, s100, m0")
    def __call__(self, again=False, level=1, force=False):
        if not self.on: return
        if self.on == 9 and not force: return
        if level == 2 and self.on != 2: return
        if again: self.n -= 1
        self._emit()
        self.n += 1
    def dyn(self, mul, add, cap):
        a = self.a
        a(f"s_min_u32 s52, s{S_I}, {cap}")
        a(f"s_mul_i32 s52, s52, {2*mul}")
        a(f"s_add_u32 s52, s52, {2*add}")
        self._emit(52)
    def finish(self):
        if not self.on: return
        a = self.a
        a("s_waitcnt vmcnt(0)")
        a(f"s_lshl_b32 s46, s{S_J}, 3")
        a(f"s_add_u32 s46, s46, s{S_HEAD}")
        a(f"s_lshl_b32 s46, s46, 10")
        a(f"s_lshl_b32 s47, s{S_W}, 8")
        a("s_add_u32 s46, s46, s47")
        a("s_add_u32 s46, s46, 0x8000000")
        a(f"s_add_u32 s46, s{S_STW}, s46")
        a(f"s_addc_u32 s47, s{S_STW+1}, 0")
        a("v_and_b32 v16, 63, v0")
        a("v_lshlrev_b32 v16, 2, v16")
        a(f"global_store_dword v16, v{V_STAMP}, s[46:47]")
        a("s_waitcnt vmcnt(0)")

LOG2_10000_128 = math.log2(10000.0) / 128.0
LOG2_2PI = math.log2(2 * math.pi)

def vp(r): return f"v[{r}:{r+1}]"

def k_raw_loads(a, R, X, rowreg):
    a(f"s_lshl_b32 s{S_T0}, s{rowreg}, 10")
    for c in range(4):
        for hf in range(2):
            b = X + c * 8 + hf * 4
            a(f"buffer_load_dwordx4 v[{b}:{b+3}], v{R.kraw}, s[{S_RAWK}:{S_RAWK+3}], s{S_T0} offen offset:{c*256+hf*16}")
    return 8
def k_scale_loads(a, R, rowreg, dst):
    a(f"s_lshl_b32 s{S_T2}, s{rowreg}, 1")
    a(f"buffer_load_ushort v{dst}, v{R.ksc}, s[{S_KSC}:{S_KSC+3}], s{S_T2} offen")
    a(f"buffer_load_ushort v{dst+1}, v{R.ksc}, s[{S_KZ}:{S_KZ+3}], s{S_T2} offen")
    return 2
def v_raw_loads(a, R, X, treg, wreg):
    a(f"s_lshl_b32 s{S_T0}, s{treg}, 15")
    a(f"s_lshl_b32 s{S_T1}, s{wreg}, 8")
    a(f"s_add_u32 s{S_T0}, s{S_T0}, s{S_T1}")
    a(f"s_add_u32 s{S_T1}, s{S_T0}, 16384")
    for j in range(8):
        b = X + j * 4
        so = S_T0 if j < 4 else S_T1
        a(f"buffer_load_dwordx4 v[{b}:{b+3}], v{R.vraw}, s[{S_RAWV}:{S_RAWV+3}], s{so} offen offset:{(j&3)*1024}")
    return 8
def v_scale_loads(a, R, SC, treg):
    a(f"s_lshl_b32 s{S_T2}, s{treg}, 6")
    for g2 in range(2):
        a(f"buffer_load_dwordx2 v[{SC+2*g2}:{SC+1+2*g2}], v{R.vsc}, s[{S_VSC}:{S_VSC+3}], s{S_T2} offen offset:{g2*32}")
        a(f"buffer_load_dwordx2 v[{SC+4+2*g2}:{SC+5+2*g2}], v{R.vsc}, s[{S_VZ}:{S_VZ+3}], s{S_T2} offen offset:{g2*32}")
    return 4

def sincos8(a, pos, w, cs, sn):
    for k in range(4):
        a(f"v_pk_mul_f32 {vp(sn+2*k)}, {vp(w+2*k)}, {vp(pos)} op_sel_hi:[1,0]")
    for e in range(8):
        a(f"v_fract_f32 v{sn+e}, v{sn+e}")
    for e in range(8):
        a(f"v_cos_f32 v{cs+e}, v{sn+e}")
    for e in range(8):
        a(f"v_sin_f32 v{sn+e}, v{sn+e}")

def rope8(a, x1, x2, cs, sn, u, o1dst, o2dst):
    for k in range(4):
        a(f"v_pk_mul_f32 {vp(u+2*k)}, {vp(x2+2*k)}, {vp(sn+2*k)}")
    for k in range(4):
        a(f"v_pk_mul_f32 {vp(sn+2*k)}, {vp(x1+2*k)}, {vp(sn+2*k)}")
    for k in range(4):
        a(f"v_pk_fma_f32 {vp(u+2*k)}, {vp(x1+2*k)}, {vp(cs+2*k)}, {vp(u+2*k)} neg_lo:[0,0,1] neg_hi:[0,0,1]")
    for k in range(4):
        a(f"v_pk_fma_f32 {vp(sn+2*k)}, {vp(x2+2*k)}, {vp(cs+2*k)}, {vp(sn+2*k)}")
    for k in range(4):
        a(f"v_cvt_pk_bf16_f32 v{o1dst+k}, v{u+2*k}, v{u+2*k+1}")
    for k in range(4):
        a(f"v_cvt_pk_bf16_f32 v{o2dst+k}, v{sn+2*k}, v{sn+2*k+1}")

def k_compute(a, R, X, sc, WK, T, rowreg):
    assert sc % 2 == 0 and T % 2 == 0 and X % 4 == 0
    pos, cs, sn, u = T, T + 2, T + 10, T + 18
    a(f"v_lshlrev_b32 v{sc}, 16, v{sc}")
    a(f"v_lshlrev_b32 v{sc+1}, 16, v{sc+1}")
    a(f"v_cvt_f32_u32 v{pos}, v{R.krr}")
    a(f"v_cvt_f32_u32 v{pos+1}, s{rowreg}")
    a(f"v_mul_f32 v{sc+1}, v{sc+1}, v{sc}")
    a(f"v_add_f32 v{pos}, v{pos}, v{pos+1}")
    for k in range(32):
        a(f"v_cvt_f32_i32 v{X+k}, v{X+k}")
    sincos8(a, pos, WK, cs, sn)
    for k in range(16):
        a(f"v_pk_fma_f32 {vp(X+2*k)}, {vp(X+2*k)}, {vp(sc)}, {vp(sc)} op_sel:[0,0,1] op_sel_hi:[1,0,1] neg_lo:[0,0,1] neg_hi:[0,0,1]")
    rope8(a, X, X + 16, cs, sn, u, X, X + 16)
    sincos8(a, pos, WK + 8, cs, sn)
    a("s_nop 0")
    rope8(a, X + 8, X + 24, cs, sn, u, X + 8, X + 24)
    a(f"s_lshr_b32 s{S_T0}, s{rowreg}, 4")
    a(f"s_lshl_b32 s{S_T0}, s{S_T0}, 13")
    a(f"s_and_b32 s{S_T1}, s{rowreg}, 8")
    a(f"s_lshl_b32 s{S_T1}, s{S_T1}, 4")
    a(f"s_add_u32 s{S_T0}, s{S_T0}, s{S_T1}")
    a(f"s_add_u32 s{S_T1}, s{S_T0}, 4096")
    for c in range(4):
        b = X + c * 8
        so = S_T0 if c < 2 else S_T1
        a(f"buffer_store_dwordx4 v[{b}:{b+3}], v{R.kst}, s[{S_KSRD}:{S_KSRD+3}], s{so} offen offset:{(c&1)*2048}{STF}")

def v_compute(a, R, X, SC, T, treg, wreg):
    M = S_MASK
    SZ = T
    for j in range(8):
        src_s = SC + 2 * (j >> 2) + ((j & 3) >> 1)
        src_z = SC + 4 + 2 * (j >> 2) + ((j & 3) >> 1)
        if j & 1:
            a(f"v_and_b32 v{SZ+2*j}, s{M}, v{src_s}"); a(f"v_and_b32 v{SZ+2*j+1}, s{M}, v{src_z}")
        else:
            a(f"v_lshlrev_b32 v{SZ+2*j}, 16, v{src_s}"); a(f"v_lshlrev_b32 v{SZ+2*j+1}, 16, v{src_z}")
    for k in range(32):
        a(f"v_cvt_f32_i32 v{X+k}, v{X+k}")
    for j in range(8):
        a(f"v_mul_f32 v{SZ+2*j+1}, v{SZ+2*j+1}, v{SZ+2*j}")
    for j in range(8):
        for h in range(2):
            x = X + 4 * j + 2 * h
            a(f"v_pk_fma_f32 {vp(x)}, {vp(x)}, {vp(SZ+2*j)}, {vp(SZ+2*j)} op_sel:[0,0,1] op_sel_hi:[1,0,1] neg_lo:[0,0,1] neg_hi:[0,0,1]")
    O = T
    for db in range(4):
        for jj in range(4):
            a(f"v_cvt_pk_bf16_f32 v{O+db*4+jj}, v{X+(2*jj)*4+db}, v{X+(2*jj+1)*4+db}")
    a(f"s_lshr_b32 s{S_T0}, s{treg}, 2")
    a(f"s_lshl_b32 s{S_T0}, s{S_T0}, 16")
    a(f"s_lshl_b32 s{S_T1}, s{wreg}, 14")
    a(f"s_add_u32 s{S_T0}, s{S_T0}, s{S_T1}")
    a(f"s_sub_u32 s{S_T1}, s{treg}, s{wreg}")
    a(f"s_and_b32 s{S_T1}, s{S_T1}, 3")
    a(f"s_lshl_b32 s{S_T1}, s{S_T1}, 10")
    a(f"s_add_u32 s{S_T0}, s{S_T0}, s{S_T1}")
    for db in range(4):
        if db:
            a(f"s_add_u32 s{S_T0}, s{S_T0}, 4096")
        a(f"buffer_store_dwordx4 v[{O+4*db}:{O+4*db+3}], v{R.vst}, s[{S_VSRD}:{S_VSRD+3}], s{S_T0} offen{STF}")

def freq_consts(a, dst, n, dbase_v, offs):
    a(f"s_mov_b32 s{S_T0}, 0x{f32bits(-LOG2_10000_128):08x}")
    for k in range(n):
        a(f"v_mov_b32 v{dst+k}, 0x{f32bits(-LOG2_10000_128 * offs[k] - LOG2_2PI):08x}")
    for k in range(n):
        a(f"v_fma_f32 v{dst+k}, v{dbase_v}, s{S_T0}, v{dst+k}")
    for k in range(n):
        a(f"v_exp_f32 v{dst+k}, v{dst+k}")
    a("s_nop 0")

def rope_q(a, src, T, pos, wq):
    M = S_MASK
    q1, q2, cs, sn, u, out = T, T + 8, T + 16, T + 24, T + 32, T
    sincos8(a, pos, wq, cs, sn)
    for k in range(4):
        a(f"v_lshlrev_b32 v{q1+2*k}, 16, v{src+k}"); a(f"v_and_b32 v{q1+2*k+1}, s{M}, v{src+k}")
        a(f"v_lshlrev_b32 v{q2+2*k}, 16, v{src+4+k}"); a(f"v_and_b32 v{q2+2*k+1}, s{M}, v{src+4+k}")
    for k in range(4):
        a(f"v_pk_mul_f32 {vp(cs+2*k)}, {vp(cs+2*k)}, s[{S_C}:{S_C+1}] op_sel_hi:[1,0]")
    for k in range(4):
        a(f"v_pk_mul_f32 {vp(sn+2*k)}, {vp(sn+2*k)}, s[{S_C}:{S_C+1}] op_sel_hi:[1,0]")
    rope8(a, q1, q2, cs, sn, u, out, out + 4)
    return out

def task_params(a, rnd, pk, pt, pw):
    a(f"s_and_b32 s{S_T0}, s{S_W}, 1")
    a(f"s_lshl_b32 s{S_T1}, s{S_J}, 1")
    a(f"s_add_u32 s{S_T0}, s{S_T0}, s{S_T1}")
    if pk is not None:
        a(f"s_lshl_b32 s{pk}, s{S_T0}, 3")
        if isinstance(rnd, int): a(f"s_add_u32 s{pk}, s{pk}, {512*rnd}")
        else:
            a(f"s_lshl_b32 s{S_T1}, s{rnd[1]}, 9"); a(f"s_add_u32 s{pk}, s{pk}, s{S_T1}")
    if pt is not None:
        a(f"s_lshr_b32 s{pt}, s{S_T0}, 2")
        if isinstance(rnd, int): a(f"s_add_u32 s{pt}, s{pt}, {16*rnd}")
        else:
            a(f"s_lshl_b32 s{S_T1}, s{rnd[1]}, 4"); a(f"s_add_u32 s{pt}, s{pt}, s{S_T1}")
        a(f"s_and_b32 s{pw}, s{S_T0}, 3")

def task_addr(a, R, tmp, k=True, v=True):
    if k:
        a(f"v_and_b32 v{tmp}, 7, v0")
        a(f"v_bfe_u32 v{R.krr}, v0, 3, 3")
        a(f"v_lshlrev_b32 v{R.kraw}, 10, v{R.krr}")
        a(f"v_lshl_add_u32 v{R.kraw}, v{tmp}, 5, v{R.kraw}")
        a(f"v_lshrrev_b32 v{tmp+1}, 2, v{tmp}")
        a(f"v_lshlrev_b32 v{R.kst}, 10, v{tmp+1}")
        a(f"v_and_b32 v{tmp+1}, 3, v{tmp}")
        a(f"v_lshl_add_u32 v{R.kst}, v{tmp+1}, 8, v{R.kst}")
        a(f"v_lshl_add_u32 v{R.kst}, v{R.krr}, 4, v{R.kst}")
    if v:
        a(f"v_and_b32 v{tmp}, 15, v0")
        a(f"v_bfe_u32 v{tmp+1}, v0, 4, 2")
        a(f"v_lshlrev_b32 v{R.vraw}, 12, v{tmp+1}")
        a(f"v_lshl_add_u32 v{R.vraw}, v{tmp}, 4, v{R.vraw}")
        a(f"v_and_b32 v{R.vst}, 63, v0")
        a(f"v_lshlrev_b32 v{R.vst}, 4, v{R.vst}")

def publish(a, val, lbl, t):
    a(f"s_cmp_lg_u32 s{S_W}, 0")
    a(f"s_cbranch_scc1 {lbl}")
    a(f"s_mov_b64 exec, 1")
    a(f"s_add_u32 s{S_T1}, s{S_NONCE}, {val}")
    a(f"v_mov_b32 v{t}, s{S_T1}")
    a(f"s_lshl_b32 s{S_T0}, s{S_HEAD}, 5")
    a(f"s_add_u32 s{S_T0}, s{S_T0}, s{S_J}")
    a(f"s_lshl_b32 s{S_T0}, s{S_T0}, 7")
    a(f"v_mov_b32 v{t+1}, s{S_T0}")
    a(f"global_store_dword v{t+1}, v{t}, s[{S_FLG}:{S_FLG+1}] sc1")
    a(f"s_mov_b64 exec, -1")
    a.label(lbl)

def flag_load(a):
    a(f"global_load_dword v{V_FLAG}, v{V_FADDR}, s[{S_FLG}:{S_FLG+1}] sc1")
def flag_check(a):
    a(f"v_subrev_u32 v{V_FLAG}, s{S_NEED}, v{V_FLAG}")
    a(f"v_cmp_lt_u32 vcc, s{S_RANGE}, v{V_FLAG}")
def set_need(a, need):
    a(f"s_add_u32 s{S_NEED}, s{S_NONCE}, {need}")
    a(f"s_mov_b32 s{S_RANGE}, {4-need}")
def spin(a, name):
    a(f"s_mov_b32 s{S_SPIN}, 0")
    a.label(f"L_spin_{name}")
    flag_load(a)
    a("s_waitcnt vmcnt(0)")
    flag_check(a)
    a(f"s_add_u32 s{S_SPIN}, s{S_SPIN}, 1")
    a(f"s_cmp_lt_u32 s{S_SPIN}, 0x8000")
    a(f"s_cbranch_scc0 L_spin_{name}_done")
    a("s_nop 3")
    a(f"s_cbranch_vccnz L_spin_{name}")
    a.label(f"L_spin_{name}_done")

def tile_off(dst, tadd, tmp):
    return [I_salu(f"s_add_u32 s{dst}, s{S_I}, {tadd}"),
            I_salu(f"s_add_u32 s{tmp}, s{dst}, s{S_ROT}"),
            I_salu(f"s_and_b32 s{tmp}, s{tmp}, 3"),
            I_salu(f"s_and_b32 s{dst}, s{dst}, 12"),
            I_salu(f"s_or_b32 s{dst}, s{dst}, s{tmp}"),
            I_salu(f"s_lshl_b32 s{dst}, s{dst}, 16")]

def pv_item(t, db, qb, p):
    par = t & 1
    f = db * 4 + p
    o = A_O + (db * 4 + qb) * 4
    b = V_PO + 16 * par + qb * 4 if p == 0 else V_PF + (p - 1) * 16 + qb * 4
    return I_mfma(f"{MF} a[{o}:{o+3}], v[{V_V+4*f}:{V_V+4*f+3}], v[{b}:{b+3}], a[{o}:{o+3}]")

def p_reads(t):
    par = t & 1
    r = []
    for p in range(1, 4):
        for qb in range(4):
            dst = V_PF + (p - 1) * 16 + qb * 4
            r.append(I_lds(f"ds_read_b128 v[{dst}:{dst+3}], v{V_PR+p-1} offset:{par*16384+qb*1024}", ("PR", t, p, qb)))
    return r

def build_iter(i, opt, NT=16):
    has_qk = (i + 1) < NT
    has_sm = 0 <= i < NT
    has_pv = 1 <= i <= NT
    mf = []
    if has_qk:
        mf += qk_mfmas(i + 1, opt, NT)
    nqk = len(mf)
    if has_pv:
        t = i - 1
        for db in range(4):
            for qb in range(4):
                for p in range(4):
                    pre = []
                    if qb == 0 and p == 0:
                        pre.append(I_wvm(("V", t, db * 4 + 3)))
                    if db == 0 and qb == 0 and p == 1:
                        pre.append(I_wlds(("PR", t, 3, 3)))
                    post = []
                    if qb == 3 and t + 1 < NT:
                        post.append(vload(t + 1, db * 4 + p, S_VOFF))
                    mf.append([pre, pv_item(t, db, qb, p), post])
    respread_loads(mf, i, NT, opt)
    if i == 15:
        mf[0][2] = [vload(14, j, S_VOFF) for j in range(9, 16)] + mf[0][2]
    reads = p_reads(i - 1) if has_pv else []
    sm = softmax_stream(i, opt) if has_sm else []
    head = []
    full = len(mf) == 128
    if has_qk:
        head += tile_off(S_KOFF, 2, S_T4) + [I_salu(f"s_cmp_lt_u32 s{S_I}, {NT-2}"), I_salu(f"s_cselect_b32 s{S_KUSE}, s{S_KOFF}, 0x100000")]
    if has_pv:
        vup = tile_off(S_VOFF, 0, S_T3)
        if full:
            for k, x in enumerate(vup):
                mf[41 + k][2].append(x)
        else:
            head += vup
    if full and i % 2 == 1:
        txt = (f"s_bitcmp1_b32 s{S_FMASK}, s{S_I}\ns_cbranch_scc0 L_noflagld\n"
               f"global_load_dword v{V_FLAG}, v{V_FADDR}, s[{S_FLG}:{S_FLG+1}] sc1\nL_noflagld:")
        mf[opt.flag_gap][2].append(I_raw(txt))
    return schedule(mf, head, reads, sm, nqk, opt)

def build_it0_k1o(opt):
    mf = []
    S = V_S + 32
    for kb in range(2):
        for qb in range(4):
            for s in range(8):
                f = kb * 8 + s
                d = f"v[{S+(kb*4+qb)*4}:{S+(kb*4+qb)*4+3}]"
                c = "0" if s == 0 else d
                pre = [I_wvm(("K", 1, kb * 8 + 7))] if (qb == 0 and s == 0) else []
                mf.append([pre, I_mfma(f"{MF} {d}, a[{A_O+4*f}:{A_O+4*f+3}], a[{A_Q+(qb*8+s)*4}:{A_Q+(qb*8+s)*4+3}], {c}"), []])
    for k in range(32):
        mf[32 + k][2].append(I_valu(f"v_accvgpr_write_b32 a{A_O+k}, 0"))
    items = schedule(mf, [], [], softmax_stream(0, opt), 64, opt)
    items += [I_valu(f"v_accvgpr_write_b32 a{A_O+32+k}, 0") for k in range(32)]
    return items

def build_last(opt, T, V_OUT):
    t = 15
    mf = []
    for qb in range(4):
        for db in range(4):
            for p in range(4):
                pre = []
                if qb == 0 and p == 0:
                    pre.append(I_wvm(("V", t, db * 4 + 3)))
                if qb == 0 and db == 0 and p == 1:
                    pre.append(I_wlds(("PR", t, 3, 3)))
                mf.append([pre, pv_item(t, db, qb, p), []])
    def epi(qb):
        it = []
        inv = T + 4 * qb
        tb = 48 + (qb & 1) * 16
        for par in range(2):
            for k in range(par, 8, 2):
                r = k >> 1
                c = 2 * (k & 1)
                x = tb + 2 * k
                it.append(I_valu(f"v_accvgpr_read_b32 v{x}, a{A_O+((c)*4+qb)*4+r}"))
                it.append(I_valu(f"v_accvgpr_read_b32 v{x+1}, a{A_O+((c+1)*4+qb)*4+r}"))
        for k in range(8):
            x = tb + 2 * k
            it.append(I_valu(f"v_pk_mul_f32 {vp(x)}, {vp(x)}, {vp(inv)} op_sel_hi:[1,0]"))
        for half in range(2):
            o = 16 + (qb * 2 + half) * 4
            for kk in range(4):
                x = tb + 2 * (half * 4 + kk)
                it.append(I_valu(f"v_cvt_pk_bf16_f32 v{o+kk}, v{x}, v{x+1}"))
        oA, oB = 16 + qb * 8, 16 + qb * 8 + 4
        so = "0" if qb == 0 else f"s{S_T0+qb-1}"
        if opt.wide_out:
            it.append(I_raw("s_nop 1"))
            for kk in range(4):
                it.append(I_valu(f"v_permlane16_swap_b32 v{oA+kk}, v{oB+kk}"))
            it.append(I_raw("s_nop 1"))
            for kk in range(4):
                it.append(I_valu(f"v_permlane32_swap_b32 v{oA+kk}, v{oB+kk}"))
            it.append(I_raw("s_nop 0"))
            it.append(I_vm(f"buffer_store_dwordx4 v[{oA}:{oA+3}], v{V_OUT}, s[{S_OSRD}:{S_OSRD+3}], {so} offen{OUTF}", ("O", qb, 0)))
            it.append(I_vm(f"buffer_store_dwordx4 v[{oB}:{oB+3}], v{V_OUT}, s[{S_OSRD}:{S_OSRD+3}], {so} offen offset:64{OUTF}", ("O", qb, 1)))
        else:
            it.append(I_vm(f"buffer_store_dwordx4 v[{oA}:{oA+3}], v{V_OUT}, s[{S_OSRD}:{S_OSRD+3}], {so} offen offset:0{OUTF}", ("O", qb, 0)))
            it.append(I_vm(f"buffer_store_dwordx4 v[{oB}:{oB+3}], v{V_OUT}, s[{S_OSRD}:{S_OSRD+3}], {so} offen offset:16{OUTF}", ("O", qb, 1)))
        return it
    linv = [I_wlds(("LR", 3))]
    for qb in range(4):
        b = T + 4 * qb
        linv += [I_valu(f"v_add_f32 v{b}, v{b}, v{b+1}"), I_valu(f"v_add_f32 v{b+2}, v{b+2}, v{b+3}")]
    for qb in range(4):
        b = T + 4 * qb
        linv.append(I_valu(f"v_add_f32 v{b}, v{b}, v{b+2}"))
    linv.append(I_valu(f"v_max3_f32 v{T+1}, v{T}, v{T+4}, v{T+8}"))
    linv.append(I_valu(f"v_min3_f32 v{T+2}, v{T}, v{T+4}, v{T+8}"))
    linv.append(I_valu(f"v_max_f32 v{T+1}, v{T+1}, v{T+12}"))
    linv.append(I_valu(f"v_min_f32 v{T+2}, v{T+2}, v{T+12}"))
    linv.append(I_valu(f"v_cmp_lt_f32 vcc, s{S_T3}, v{T+1}"))
    linv.append(I_valu(f"v_cmp_gt_f32 s[68:69], s{S_T4}, v{T+2}"))
    for qb in range(4):
        b = T + 4 * qb
        linv.append(I_valu(f"v_rcp_f32 v{b}, v{b}", 8))
    linv.append(I_raw(f"s_or_b64 vcc, vcc, s[68:69]\ns_cbranch_vccnz L_slow"))
    items = []
    lreads = [I_lds(f"ds_read_b128 v[{T+4*qb}:{T+4*qb+3}], v{LRREG} offset:{qb*256}", ("LR", qb)) for qb in range(4)]
    head = [I_salu(f"s_mov_b32 s{S_T0+k}, {8192*(k+1)}") for k in range(3)] + [I_salu(f"s_mov_b32 s{S_T3}, 0x5d800000"), I_salu(f"s_mov_b32 s{S_T4}, 0x21800000")] + p_reads(t) + lreads
    gaps = [[] for _ in range(64)]
    q = list(linv)
    g = 4
    while q:
        gaps[g] += q[:2]; q = q[2:]; g = min(g + 1, 15) if g < 15 else 15
    for qb in range(3):
        e = epi(qb)
        g0 = 16 * (qb + 1) + 3
        per = (len(e) + 12) // 13
        g = g0
        while e:
            gaps[g] += e[:per]; e = e[per:]; g = min(g + 1, 63)
    for k, (pre, m, post) in enumerate(mf):
        items += pre
        items.append(m)
        if k == 0:
            items += head
        items += gaps[k]
    items.append(I_raw("s_nop 7"))
    items += epi(3)
    return items

def gen_slow(a, opt, T, V_LW, V_LR, V_OUT):
    M, F, X_ = 48, 52, 56
    S = V_S
    a.label("L_slow")
    a("s_waitcnt vmcnt(0) lgkmcnt(0)")
    a("s_nop 15")
    a("s_barrier")
    for r in range(64): a(f"v_accvgpr_write_b32 a{A_O+r}, 0")
    for qb in range(4):
        a(f"v_mov_b32 v{V_L+qb}, 0")
        a(f"v_mov_b32 v{M+qb}, 0xff7fffff")
    a(f"s_mov_b32 s{S_I}, 0")
    a.label("L_slow_loop")
    a(f"s_lshl_b32 s{S_KUSE}, s{S_I}, 16")
    a(f"s_mov_b32 s{S_VOFF}, s{S_KUSE}")
    for f in range(16): a(kload(0, f, S_KUSE).text)
    for f in range(16): a(vload(0, f, S_VOFF).text)
    a("s_waitcnt vmcnt(16)")
    for kb in range(2):
        for qb in range(4):
            for sx in range(8):
                f = kb * 8 + sx
                d = f"v[{S+(kb*4+qb)*4}:{S+(kb*4+qb)*4+3}]"
                c = "0" if sx == 0 else d
                a(f"{MF} {d}, a[{A_K+4*f}:{A_K+4*f+3}], a[{A_Q+(qb*8+sx)*4}:{A_Q+(qb*8+sx)*4+3}], {c}")
    a("s_nop 15")
    for qb in range(4):
        x0, x1 = S + qb * 4, S + (4 + qb) * 4
        a(f"v_max3_f32 v{F+qb}, v{x0}, v{x0+1}, v{x0+2}")
        a(f"v_max3_f32 v{F+qb}, v{F+qb}, v{x0+3}, v{x1}")
        a(f"v_max3_f32 v{F+qb}, v{F+qb}, v{x1+1}, v{x1+2}")
        a(f"v_max_f32 v{F+qb}, v{F+qb}, v{x1+3}")
    for swap in ("v_permlane32_swap_b32", "v_permlane16_swap_b32"):
        for qb in range(4): a(f"v_mov_b32 v{X_+qb}, v{F+qb}")
        a("s_nop 1")
        for qb in range(4): a(f"{swap} v{X_+qb}, v{F+qb}")
        a("s_nop 1")
        for qb in range(4): a(f"v_max_f32 v{F+qb}, v{F+qb}, v{X_+qb}")
    for qb in range(4): a(f"ds_write_b32 v{V_LW}, v{F+qb} offset:{qb*256}")
    a("s_waitcnt lgkmcnt(0)")
    a("s_barrier")
    for qb in range(4): a(f"ds_read_b128 v[{X_+4*qb}:{X_+4*qb+3}], v{V_LR} offset:{qb*256}")
    a("s_waitcnt lgkmcnt(0)")
    for qb in range(4):
        b = X_ + 4 * qb
        a(f"v_max3_f32 v{b}, v{b}, v{b+1}, v{b+2}")
        a(f"v_max3_f32 v{b}, v{b}, v{b+3}, v{M+qb}")
        a(f"v_sub_f32 v{F+qb}, v{M+qb}, v{b}")
        a(f"v_mov_b32 v{M+qb}, v{b}")
    for qb in range(4): a(f"v_exp_f32 v{F+qb}, v{F+qb}")
    a("s_nop 0")
    for qb in range(4): a(f"v_mul_f32 v{V_L+qb}, v{V_L+qb}, v{F+qb}")
    for db in range(4):
        for qb in range(4):
            for r in range(4):
                o = A_O + (db * 4 + qb) * 4 + r
                a(f"v_accvgpr_read_b32 v{X_}, a{o}")
                a(f"v_mul_f32 v{X_}, v{X_}, v{F+qb}")
                a(f"v_accvgpr_write_b32 a{o}, v{X_}")
    for qb in range(4):
        for kb in range(2):
            for r in range(4):
                x = S + (kb * 4 + qb) * 4 + r
                a(f"v_sub_f32 v{x}, v{x}, v{M+qb}")
        for kb in range(2):
            for r in range(4):
                x = S + (kb * 4 + qb) * 4 + r
                a(f"v_exp_f32 v{x}, v{x}")
        a("s_nop 0")
        for kb in range(2):
            for r in range(4):
                x = S + (kb * 4 + qb) * 4 + r
                a(f"v_add_f32 v{V_L+qb}, v{V_L+qb}, v{x}")
        for kb in range(2):
            for h in range(2):
                x = S + (kb * 4 + qb) * 4 + 2 * h
                a(f"v_cvt_pk_bf16_f32 v{V_PO+qb*4+kb*2+h}, v{x}, v{x+1}")
        a(f"ds_write_b128 v{V_PW}, v[{V_PO+qb*4}:{V_PO+qb*4+3}] offset:{qb*1024}")
    a("s_waitcnt lgkmcnt(0)")
    a("s_barrier")
    for it in p_reads(0): a(it.text)
    a("s_waitcnt vmcnt(0) lgkmcnt(0)")
    for db in range(4):
        for qb in range(4):
            for p in range(4):
                a(pv_item(0, db, qb, p).text)
    a("s_nop 15")
    a("s_barrier")
    a(f"s_add_u32 s{S_I}, s{S_I}, 1")
    a(f"s_cmp_lt_u32 s{S_I}, 16")
    a("s_cbranch_scc1 L_slow_loop")
    for swap in ("v_permlane32_swap_b32", "v_permlane16_swap_b32"):
        for qb in range(4): a(f"v_mov_b32 v{X_+qb}, v{V_L+qb}")
        a("s_nop 1")
        for qb in range(4): a(f"{swap} v{X_+qb}, v{V_L+qb}")
        a("s_nop 1")
        for qb in range(4): a(f"v_add_f32 v{V_L+qb}, v{V_L+qb}, v{X_+qb}")
    for qb in range(4): a(f"ds_write_b32 v{V_LW}, v{V_L+qb} offset:{qb*256}")
    a("s_waitcnt lgkmcnt(0)")
    a("s_barrier")
    for qb in range(4): a(f"ds_read_b128 v[{T+4*qb}:{T+4*qb+3}], v{V_LR} offset:{qb*256}")
    a("s_waitcnt lgkmcnt(0)")
    for qb in range(4):
        b = T + 4 * qb
        a(f"v_add_f32 v{b}, v{b}, v{b+1}"); a(f"v_add_f32 v{b+2}, v{b+2}, v{b+3}")
        a(f"v_add_f32 v{b}, v{b}, v{b+2}")
        a(f"v_rcp_f32 v{b}, v{b}")
    a("s_nop 0")
    for qb in range(4):
        inv = T + 4 * qb
        a(f"s_mov_b32 s{S_T0}, {qb*8192}")
        for half in range(2):
            o = 16 + half * 4
            for kk in range(4):
                k = half * 4 + kk
                r = k >> 1
                c = 2 * (k & 1)
                a(f"v_accvgpr_read_b32 v{X_}, a{A_O+((c)*4+qb)*4+r}")
                a(f"v_accvgpr_read_b32 v{X_+1}, a{A_O+((c+1)*4+qb)*4+r}")
                a(f"v_mul_f32 v{X_}, v{X_}, v{inv}")
                a(f"v_mul_f32 v{X_+1}, v{X_+1}, v{inv}")
                a(f"v_cvt_pk_bf16_f32 v{o+kk}, v{X_}, v{X_+1}")
            a(f"buffer_store_dwordx4 v[{o}:{o+3}], v{V_OUT}, s[{S_OSRD}:{S_OSRD+3}], s{S_T0} offen offset:{half*16}")
            a("s_nop 1")
    a("s_endpgm")

def gen_fused(a, opt):
    global OUTF, LRREG
    NT = 16
    st = Stamp(a, opt)
    PP = RM(); PP.kraw, PP.krr, PP.kst, PP.vraw, PP.vst = 248, 249, 250, 251, 252
    PP.ksc, PP.vsc = 253, 254
    V_QW, V_QR, V_QOFF = 8, 9, 14
    X, Y, QD, TT = 16, 48, 96, 160
    Z = X
    WK, WQ = 200, 128
    SC0, SC1, SC2, SC3 = 216, 224, 232, 240
    QPOS, V_NON, V_ZERO, VJ = 136, 138, 139, 140
    K1V = 96
    T = 240
    a.label(KNAME)
    a("s_cmp_ge_u32 s2, 256" if not opt.empty else "s_cmp_ge_u32 s2, 0")
    a("s_cbranch_scc1 L_done")
    st(force=True)
    if opt.dbgspan:
        a("s_memrealtime s[72:73]")
        a("s_waitcnt lgkmcnt(0)")
        a("s_not_b32 s98, s72")
    a("s_load_dwordx16 s[40:55], s[0:1], 0")
    a("s_load_dwordx2 s[62:63], s[0:1], 88")
    a("s_load_dwordx4 s[64:67], s[0:1], 96")
    if opt.codepf:
        a("s_getpc_b64 s[4:5]")
        a.label("L_pc")
        a("v_lshlrev_b32 v30, 7, v0")
        a(f"v_min_u32 v30, L_code_end-L_pc-4, v30")
        a("global_load_dword v31, v30, s[4:5]")
    a(f"s_and_b32 s{S_HEAD}, s2, 7")
    a(f"s_lshr_b32 s{S_J}, s2, 3")
    a("v_lshrrev_b32 v1, 6, v0")
    a("v_and_b32 v2, 15, v0")
    a("v_bfe_u32 v3, v0, 4, 2")
    a(f"v_readfirstlane_b32 s{S_W}, v1")
    task_addr(a, PP, 4)
    a("v_lshl_add_u32 v4, v1, 4, v3")
    a(f"v_lshlrev_b32 v{V_QOFF}, 9, v4")
    a(f"v_lshl_add_u32 v{V_QOFF}, v2, 4, v{V_QOFF}")
    task_params(a, 0, 68, 69, 70)
    a(f"s_lshl_b32 s{S_T4}, s{S_HEAD}, 21")
    a("s_waitcnt lgkmcnt(0)")
    isB = lambda lbl: (a(f"s_cmp_ge_u32 s{S_W}, 2"), a(f"s_cbranch_scc1 {lbl}"))
    make_srd(a, S_RAWK, 42, S_T4, 0x200000)
    a(f"s_lshl_b32 s{S_T0}, s{S_HEAD}, 20")
    a(f"s_lshl_b32 s{S_T3}, s{S_J}, 15")
    a(f"s_add_u32 s{S_T2}, s{S_T0}, s{S_T3}")
    make_srd(a, S_OSRD, 62, S_T2, 32768)
    make_srd(a, S_RAWV, 48, S_T4, 0x200000)
    make_srd(a, S_QSRD, 40, S_T2, 32768)
    isB("L_B_i0")
    k_raw_loads(a, PP, X, 68)
    a(f"s_lshl_b32 s{S_T2}, s{S_HEAD}, 12")
    make_srd(a, S_KSC, 44, S_T2, 4096)
    make_srd(a, S_KZ, 46, S_T2, 4096)
    a(f"v_lshlrev_b32 v{PP.ksc}, 1, v{PP.krr}")
    k_scale_loads(a, PP, 68, SC0)
    a(f"s_lshl_b32 s{S_T2}, s{S_HEAD}, 12")
    make_srd(a, S_VSC, 50, S_T2, 4096)
    make_srd(a, S_VZ, 52, S_T2, 4096)
    a(f"v_lshlrev_b32 v{PP.vsc}, 3, v3")
    a("s_branch L_i0_done")
    a.label("L_B_i0")
    v_raw_loads(a, PP, X, 69, 70)
    a(f"s_lshl_b32 s{S_T2}, s{S_HEAD}, 12")
    make_srd(a, S_VSC, 50, S_T2, 4096)
    make_srd(a, S_VZ, 52, S_T2, 4096)
    a(f"v_lshlrev_b32 v{PP.vsc}, 3, v3")
    v_scale_loads(a, PP, SC0, 69)
    a(f"s_lshl_b32 s{S_T2}, s{S_HEAD}, 12")
    make_srd(a, S_KSC, 44, S_T2, 4096)
    make_srd(a, S_KZ, 46, S_T2, 4096)
    a(f"v_lshlrev_b32 v{PP.ksc}, 1, v{PP.krr}")
    a.label("L_i0_done")
    a("s_mov_b32 s41, 4096")
    for it in range(4):
        so = "0" if it < 2 else "s41"
        io = (it & 1) * 2048
        b = QD + 8 * it
        a(f"buffer_load_dwordx4 v[{b}:{b+3}], v{V_QOFF}, s[{S_QSRD}:{S_QSRD+3}], {so} offen offset:{io}")
        a(f"buffer_load_dwordx4 v[{b+4}:{b+7}], v{V_QOFF}, s[{S_QSRD}:{S_QSRD+3}], {so} offen offset:{io+256}")
    a(f"s_mov_b32 s{S_PK}, s68"); a(f"s_mov_b32 s{S_PT}, s69"); a(f"s_mov_b32 s{S_PW}, s70")
    task_params(a, 1, S_PK2, S_PT2, S_PW2)
    task_params(a, 2, 68, 69, 70)
    task_params(a, 3, 46, 47, 48)
    a(f"v_mov_b32 v{V_ZERO}, 0")
    isB("L_B_sc")
    v_scale_loads(a, PP, SC1, S_PT2); k_scale_loads(a, PP, 68, SC2); v_scale_loads(a, PP, SC3, 47)
    a("s_branch L_sc_done")
    a.label("L_B_sc")
    k_scale_loads(a, PP, S_PK2, SC1); v_scale_loads(a, PP, SC2, 69); k_scale_loads(a, PP, 46, SC3)
    a.label("L_sc_done")
    NSA, NSB = 10, 8
    a(f"s_mov_b32 s{S_DBG}, s64"); a(f"s_mov_b32 s{S_DBG+1}, s65")
    a(f"s_or_b32 s{S_T0}, s{S_HEAD}, s{S_J}")
    a(f"s_or_b32 s{S_T0}, s{S_T0}, s{S_W}")
    a(f"s_cmp_lg_u32 s{S_T0}, 0")
    a("s_cbranch_scc1 L_nononce")
    a("s_memrealtime s[100:101]")
    a("s_waitcnt lgkmcnt(0)")
    a("s_lshl_b32 s100, s100, 3")
    a("s_or_b32 s100, s100, 0x80000000")
    a("s_and_b32 s100, s100, 0xfffffff8")
    a(f"v_mov_b32 v{VJ}, s100")
    a("s_mov_b64 exec, 1")
    a(f"global_store_dword v{V_ZERO}, v{VJ}, s[{S_DBG}:{S_DBG+1}] sc1")
    a("s_mov_b64 exec, -1")
    a.label("L_nononce")
    a(f"global_load_dword v{V_NON}, v{V_ZERO}, s[{S_DBG}:{S_DBG+1}] sc1")
    def issue(kind_for_A, buf, pk, pt, pw, tag):
        isB(f"L_B_{tag}")
        (k_raw_loads(a, PP, buf, pk) if kind_for_A == "K" else v_raw_loads(a, PP, buf, pt, pw))
        a(f"s_branch L_{tag}_done")
        a.label(f"L_B_{tag}")
        (v_raw_loads(a, PP, buf, pt, pw) if kind_for_A == "K" else k_raw_loads(a, PP, buf, pk))
        a.label(f"L_{tag}_done")
    def comp(kind_for_A, buf, sc, pk, pt, pw, tag):
        isB(f"L_B_{tag}")
        (k_compute(a, PP, buf, sc, WK, TT, pk) if kind_for_A == "K" else v_compute(a, PP, buf, sc, TT, pt, pw))
        a(f"s_branch L_{tag}_done")
        a.label(f"L_B_{tag}")
        (v_compute(a, PP, buf, sc, TT, pt, pw) if kind_for_A == "K" else k_compute(a, PP, buf, sc, WK, TT, pk))
        a.label(f"L_{tag}_done")
    if opt.r1early:
        issue("V", Y, S_PK2, S_PT2, S_PW2, "i1")
    NR1 = 8 if opt.r1early else 0
    a(f"s_mov_b32 s{S_MASK}, 0xffff0000")
    a(f"s_mov_b32 s{S_C}, 0x{f32bits(math.log2(math.e)/16.0):08x}")
    a(f"s_and_b32 s{S_ROT}, s{S_J}, 3")
    a(f"s_lshl_b32 s{S_T0}, s{S_HEAD}, 20")
    make_srd(a, S_KSRD, 66, S_T0, 0x100000)
    a(f"s_add_u32 s{S_T1}, s{S_T0}, 0x800000")
    make_srd(a, S_VSRD, 66, S_T1, 0x100000)
    a(f"s_add_u32 s{S_FLG}, s66, 0x1000000")
    a(f"s_addc_u32 s{S_FLG+1}, s67, 0")
    if opt.stamp:
        a(f"s_mov_b32 s{S_STW}, s66"); a(f"s_mov_b32 s{S_STW+1}, s67")
    a(f"s_lshl_b32 s{S_T0}, s{S_J}, 6")
    a(f"v_add_u32 v{QPOS}, s{S_T0}, v4")
    a(f"v_cvt_f32_u32 v{QPOS}, v{QPOS}")
    a(f"v_and_b32 v{TT}, 7, v0"); a(f"v_lshlrev_b32 v{TT}, 3, v{TT}"); a(f"v_cvt_f32_u32 v{TT}, v{TT}")
    a(f"v_lshlrev_b32 v{TT+1}, 3, v2"); a(f"v_cvt_f32_u32 v{TT+1}, v{TT+1}")
    freq_consts(a, WK, 16, TT, [64 * (k >> 3) + (k & 7) for k in range(16)])
    freq_consts(a, WQ, 8, TT + 1, list(range(8)))
    a(f"v_mul_u32_u24 v{V_QW}, {8*QFS}, v1")
    a(f"v_lshrrev_b32 v{TT}, 2, v2")
    a(f"v_mul_u32_u24 v{TT}, {QFS}, v{TT}")
    a(f"v_add_u32 v{V_QW}, v{V_QW}, v{TT}")
    a(f"v_and_b32 v{TT}, 3, v2")
    a(f"v_mul_u32_u24 v{TT}, {QGS}, v{TT}")
    a(f"v_add_u32 v{V_QW}, v{V_QW}, v{TT}")
    a(f"v_lshl_add_u32 v{V_QW}, v3, 4, v{V_QW}")
    a(f"v_mul_u32_u24 v{V_QR}, {QGS}, v3")
    a(f"v_lshl_add_u32 v{V_QR}, v2, 4, v{V_QR}")
    for r in range(64):
        a(f"v_accvgpr_write_b32 a{A_O+r}, 0")
    a(f"s_waitcnt vmcnt({8 + NSB + 1 + NR1})")
    st()
    comp("K", X, SC0, S_PK, S_PT, S_PW, "c0")
    if not opt.r1early:
        issue("V", Y, S_PK2, S_PT2, S_PW2, "i1")
    issue("K", Z, 68, 69, 70, "i2")
    st(level=2)
    a(f"s_waitcnt vmcnt(20)")
    def rope_it(it):
        if it:
            a(f"v_add_f32 v{QPOS}, 4.0, v{QPOS}")
        o = rope_q(a, QD + 8 * it, TT, QPOS, WQ)
        a(f"ds_write_b128 v{V_QW}, v[{o}:{o+3}] offset:{it*64}")
        a(f"ds_write_b128 v{V_QW}, v[{o+4}:{o+7}] offset:{it*64 + 4*QFS}")
    for it in range(opt.rope_first):
        rope_it(it)
    st(level=2)
    a(f"s_waitcnt vmcnt({8 if opt.r1early else 16})")
    st(level=2)
    a(f"v_readfirstlane_b32 s{S_NONCE}, v{V_NON}")
    a(f"s_cmp_lg_u32 s{S_NONCE}, 0")
    a("s_cbranch_scc1 L_have_nonce")
    a(f"s_mov_b32 s{S_SPIN}, 0")
    a.label("L_nonce_spin")
    a(f"global_load_dword v{V_NON}, v{V_ZERO}, s[{S_DBG}:{S_DBG+1}] sc1")
    a("s_waitcnt vmcnt(0)")
    a(f"v_readfirstlane_b32 s{S_NONCE}, v{V_NON}")
    a(f"s_add_u32 s{S_SPIN}, s{S_SPIN}, 1")
    a(f"s_cmp_ge_u32 s{S_SPIN}, 0x8000")
    a("s_cbranch_scc1 L_have_nonce")
    a(f"s_cmp_eq_u32 s{S_NONCE}, 0")
    a("s_cbranch_scc1 L_nonce_spin")
    a.label("L_have_nonce")
    a("s_waitcnt lgkmcnt(0)")
    a("s_barrier")
    publish(a, 1, "L_pub1", VJ)
    st()
    if opt.rope_first < 4:
        for it in range(opt.rope_first, 4):
            rope_it(it)
        a("s_waitcnt lgkmcnt(0)")
        a("s_barrier")
    for qb in range(4):
        for s in range(8):
            b = A_Q + (qb * 8 + s) * 4
            a(f"ds_read_b128 a[{b}:{b+3}], v{V_QR} offset:{(qb*8+s)*QFS}")
    a("s_waitcnt vmcnt(8)")
    comp("V", Y, SC1, S_PK2, S_PT2, S_PW2, "c1")
    a("s_waitcnt lgkmcnt(0)")
    a(f"v_and_b32 v{TT}, 63, v0")
    a(f"v_lshrrev_b32 v{TT+1}, 6, v0")
    a(f"v_and_b32 v{V_FADDR}, 31, v0")
    a(f"s_lshl_b32 s{S_T0}, s{S_HEAD}, 5")
    a(f"v_add_u32 v{V_FADDR}, s{S_T0}, v{V_FADDR}")
    a(f"v_lshlrev_b32 v{V_FADDR}, 7, v{V_FADDR}")
    flag_load(a)
    a(f"v_lshlrev_b32 v{TT+2}, 4, v{TT}")
    a(f"v_add_u32 v{TT+3}, {LDS_P}, v{TT+2}")
    for t in range(1, 4):
        a(f"v_add_u32 v{TT+4}, {t}, v{TT+1}")
        a(f"v_and_b32 v{TT+4}, 3, v{TT+4}")
        a(f"v_lshl_add_u32 v{V_PR+t-1}, v{TT+4}, 12, v{TT+3}")
    a(f"v_lshl_add_u32 v{V_PW}, v{TT+1}, 12, v{TT+3}")
    a(f"v_lshl_add_u32 v{V_OFF}, v{TT+1}, 14, v{TT+2}")
    for k in range(1, 4):
        a(f"v_add_u32 v{V_OFF+k}, {4096*k}, v{V_OFF}")
    for r in range(4):
        a(f"v_mov_b32 v{V_L+r}, 0")
    a(f"s_mov_b32 s{S_FMASK}, {0x202 if opt.latepub else 0x2}")
    set_need(a, 1)
    a(f"v_lshlrev_b32 v{TT+6}, 4, v{TT}")
    for k in range(4):
        a(f"ds_write_b128 v{TT+6}, v[{WK+4*k}:{WK+4*k+3}] offset:{LDS_WK+k*1024}")
    a(f"s_mul_i32 s{S_T1}, s{S_W}, 2560")
    a(f"s_add_u32 s{S_T1}, s{S_T1}, {LDS_SC}")
    a(f"v_add_u32 v{TT+6}, s{S_T1}, v{TT+6}")
    a(f"ds_write_b128 v{TT+6}, v[{SC3}:{SC3+3}]")
    a(f"ds_write_b128 v{TT+6}, v[{SC3+4}:{SC3+7}] offset:1024")
    a(f"s_mul_i32 s{S_T0}, s{S_J}, 43")
    a(f"s_lshr_b32 s{S_T0}, s{S_T0}, 8")
    a(f"s_mul_i32 s{S_T0}, s{S_T0}, 6")
    a(f"s_sub_u32 s{S_G}, s{S_J}, s{S_T0}")
    if opt.ngroups == 1: a(f"s_mov_b32 s{S_G}, 0")
    if opt.ngroups == 4: a(f"s_and_b32 s{S_G}, s{S_J}, 3")
    if opt.gshift: a(f"s_add_u32 s{S_G}, s{S_G}, {opt.gshift}")
    a(f"s_lshl_b32 s{S_HMASK}, 0xe, s{S_G}")
    a(f"s_or_b32 s{S_HMASK}, s{S_HMASK}, 0x404")
    a("s_waitcnt vmcnt(0)")
    flag_check(a)
    a("s_nop 4")
    a("s_cbranch_vccz L_chk_r0_ok")
    spin(a, "r0")
    a.label("L_chk_r0_ok")
    st()
    a(f"s_lshl_b32 s{S_KOFF}, s{S_ROT}, 16")
    a(f"s_mov_b32 s{S_VOFF}, s{S_KOFF}")
    a(f"s_mov_b32 s{S_KUSE}, s{S_KOFF}")
    pro = [kload(0, f, S_KUSE) for f in range(16)]
    if opt.k1o:
        a(f"s_add_u32 s{S_T0}, s{S_ROT}, 1")
        a(f"s_and_b32 s{S_T0}, s{S_T0}, 3")
        a(f"s_lshl_b32 s{S_T4}, s{S_T0}, 16")
        for f in range(16):
            pro.append(I_vm(f"buffer_load_dwordx4 v[{K1V+4*f}:{K1V+4*f+3}], v{V_OFF+(f>>2)}, s[{S_KSRD}:{S_KSRD+3}], s{S_T4} offen offset:{(f&3)*1024}{gen2.LDFLAGS}", ("K", 1, f)))
    for it in pro:
        a(it.text)
    comp("K", Z, SC2, 68, 69, 70, "c2")
    a("s_waitcnt lgkmcnt(0)")
    st()
    endbar = [I_wlds("all"), I_raw("s_barrier")]
    mf = []
    for t in range(2):
        S = V_S + 32 * t
        for kb in range(2):
            for qb in range(4):
                for sx in range(8):
                    f = kb * 8 + sx
                    d = f"v[{S+(kb*4+qb)*4}:{S+(kb*4+qb)*4+3}]"
                    c = "0" if sx == 0 else d
                    pre_ = [I_wvm(("K", t, kb * 8 + 7))] if (qb == 0 and sx == 0) else []
                    A = f"a[{A_K+4*f}:{A_K+4*f+3}]" if t == 0 else f"v[{K1V+4*f}:{K1V+4*f+3}]"
                    mf.append([pre_, I_mfma(f"{MF} {d}, {A}, a[{A_Q+(qb*8+sx)*4}:{A_Q+(qb*8+sx)*4+3}], {c}"), []])
    for j in range(16):
        mf[28 + 4 * j if j < 8 else 64 + 4 * (j - 8)][2].append(kload(2, j, S_KUSE))
    for j in range(9):
        mf[92 + 4 * j][2].append(vload(0, j, S_VOFF))
    class O2: pass
    o2 = O2(); o2.__dict__.update(opt.__dict__); o2.sm_g0 = 68; o2.sm_g1 = 124; o2.pace = 0
    head0 = [I_salu(f"s_mov_b32 s{S_I}, 0")] + tile_off(S_KUSE, 2, S_T4)
    pre = schedule(mf, head0, [], softmax_stream(0, opt), 64, o2)
    it0 = [I_raw(f"s_waitcnt vmcnt({29 - 8 if opt.latepub else 25 - 8})") if False else I_raw("s_waitcnt vmcnt(25)")] + endbar + [I_salu(f"s_mov_b32 s{S_I}, 1")]
    blocks = [("pro", pro + [I_vm("", ("ST", k)) for k in range(4)]), ("pre", pre), ("it0", it0)]
    stat = {}
    for i in range(1, 15):
        items = build_iter(i, opt) + [I_salu(f"s_add_u32 s{S_I}, s{S_I}, 1")] + endbar
        nm = "odd" if i % 2 else "even"
        blocks.append((nm, items))
        if nm not in stat: stat[nm] = items
        else: assert [x.text for x in stat[nm]] == [x.text for x in items], nm
    it15 = build_iter(15, opt)
    V_LW, V_LR, V_OUT = 231, 232, 233
    LRREG = V_LR
    red = [I_valu(f"v_and_b32 v224, 15, v0"), I_valu(f"v_lshrrev_b32 v225, 6, v0"), I_valu(f"v_bfe_u32 v226, v0, 4, 2"),
           I_valu(f"v_lshlrev_b32 v{V_LR}, 4, v224"), I_valu(f"v_add_u32 v{V_LR}, {LDS_L}, v{V_LR}"),
           I_valu(f"v_lshl_add_u32 v{V_LW}, v225, 2, v{V_LR}"), I_valu(f"v_lshlrev_b32 v{V_OUT}, 9, v224"),
           I_valu(f"v_lshl_add_u32 v{V_OUT}, v225, 7, v{V_OUT}"),
           I_valu(f"v_lshl_add_u32 v{V_OUT+1}, v226, 5, v{V_OUT}"),
           I_valu(f"v_lshl_add_u32 v{V_OUT}, v226, {4 if opt.wide_out else 5}, v{V_OUT}")]
    for qb in range(4): red.append(I_valu(f"v_mov_b32 v{T+qb}, v{V_L+qb}"))
    red.append(I_raw("s_nop 1"))
    for qb in range(4): red.append(I_valu(f"v_permlane32_swap_b32 v{T+qb}, v{V_L+qb}"))
    red.append(I_raw("s_nop 1"))
    for qb in range(4): red.append(I_valu(f"v_add_f32 v{V_L+qb}, v{V_L+qb}, v{T+qb}"))
    for qb in range(4): red.append(I_valu(f"v_mov_b32 v{T+qb}, v{V_L+qb}"))
    red.append(I_raw("s_nop 1"))
    for qb in range(4): red.append(I_valu(f"v_permlane16_swap_b32 v{T+qb}, v{V_L+qb}"))
    red.append(I_raw("s_nop 1"))
    for qb in range(4): red.append(I_valu(f"v_add_f32 v{V_L+qb}, v{V_L+qb}, v{T+qb}"))
    for qb in range(4): red.append(I_lds(f"ds_write_b32 v{V_LW}, v{V_L+qb} offset:{qb*256}", ("LW", qb)))
    it15 += red + endbar
    blocks.append(("it15", it15))
    it16 = build_last(opt, T, V_OUT)
    blocks.append(("it16", it16))
    waits = resolve_waits(blocks)
    emit_block(a, "pre", pre, waits)
    if opt.stamp == 5: st()
    emit_block(a, "it0", it0, waits)
    publish(a, 3, "L_pub3", 158)
    def hook_site(name):
        a(f"s_bitcmp1_b32 s{S_HMASK}, s{S_I}")
        a(f"s_cbranch_scc0 L_nohook_{name}")
        a(f"s_call_b64 s[{S_RET}:{S_RET+1}], L_hook")
        a.label(f"L_nohook_{name}")
    hook_site("it0")
    st()
    a.label("L_loop")
    base = st.n
    emit_block(a, "odd", stat["odd"], waits)
    if opt.stamp == 4: st.dyn(2, base - 4, 9)
    hook_site("odd")
    if opt.stamp == 3: st.dyn(1, base - 2, 15)
    if opt.stamp == 4: st.dyn(2, base - 3, 9)
    emit_block(a, "even", stat["even"], waits)
    if opt.stamp == 4: st.dyn(2, base - 4, 9)
    hook_site("even")
    if opt.stamp == 3:
        st.dyn(1, base - 2, 15); st.n = base + 14
    if opt.stamp == 4:
        st.dyn(2, base - 3, 9); st.n = base + 16
    a(f"s_cmp_lt_u32 s{S_I}, 15")
    a("s_cbranch_scc1 L_loop")
    if opt.stamp in (1, 2): st()
    emit_block(a, "it15", it15, waits)
    emit_block(a, "it16", it16, waits)
    if opt.stamp:
        a("s_waitcnt vmcnt(0)")
        st(force=True)
        st.finish()
    if opt.dbgspan:
        a("s_waitcnt vmcnt(0)")
        a("s_memrealtime s[72:73]")
        a("s_waitcnt lgkmcnt(0)")
        a("v_mov_b32 v16, 8"); a("v_mov_b32 v17, s98"); a("v_mov_b32 v18, 12"); a("v_mov_b32 v19, s72")
        a("s_mov_b64 exec, 1")
        a(f"global_atomic_umax v16, v17, s[{S_DBG}:{S_DBG+1}]")
        a(f"global_atomic_umax v18, v19, s[{S_DBG}:{S_DBG+1}]")
        a("s_waitcnt vmcnt(0)")
    a("s_endpgm")
    H = RM(); H.krr, H.kraw, H.kst, H.vraw, H.vst = 156, 158, 157, 158, 157
    a.label("L_hook")
    a(f"s_and_b32 s{S_T0}, s{S_I}, 7")
    a(f"s_cmp_lg_u32 s{S_T0}, 2")
    a("s_cbranch_scc1 L_hook_d")
    a(f"s_lshr_b32 s{S_T0}, s{S_I}, 3")
    a(f"s_add_u32 s{S_T0}, s{S_T0}, 3")
    a(f"s_add_u32 s{S_NEED}, s{S_NONCE}, s{S_T0}")
    a(f"s_sub_u32 s{S_RANGE}, 4, s{S_T0}")
    nyoung = sum(1 for j in range(16) if 28 + 4 * j > opt.flag_gap) + sum(1 for j in range(9) if 92 + 4 * j > opt.flag_gap)
    a(f"s_waitcnt vmcnt({nyoung})")
    flag_check(a)
    a("s_nop 4")
    a(f"s_cbranch_vccz L_hook_d")
    spin(a, "hk")
    a.label("L_hook_d")
    a(f"s_sub_u32 s{S_T3}, s{S_I}, s{S_G}")
    a(f"s_cmp_eq_u32 s{S_T3}, 1"); a("s_cbranch_scc1 L_h_issue")
    a(f"s_cmp_eq_u32 s{S_T3}, 2"); a("s_cbranch_scc1 L_h_comp")
    a(f"s_cmp_eq_u32 s{S_T3}, 3"); a("s_cbranch_scc0 L_hook_ret")
    publish(a, 4, "L_pub4", 158)
    a("s_branch L_hook_ret")
    a.label("L_h_issue")
    a(f"s_cmp_lt_u32 s{S_W}, 2"); a("s_cbranch_scc1 L_h_issueV")
    task_addr(a, H, 140, v=False)
    k_raw_loads(a, H, 224, 46)
    a("s_branch L_hook_ret")
    a.label("L_h_issueV")
    task_addr(a, H, 140, k=False)
    v_raw_loads(a, H, 224, 47, 48)
    a("s_branch L_hook_ret")
    a.label("L_h_comp")
    a(f"v_and_b32 v142, 63, v0")
    a(f"v_lshlrev_b32 v143, 4, v142")
    a(f"s_mul_i32 s{S_T1}, s{S_W}, 2560")
    a(f"s_add_u32 s{S_T1}, s{S_T1}, {LDS_SC}")
    a(f"v_add_u32 v142, s{S_T1}, v143")
    a(f"s_cmp_lt_u32 s{S_W}, 2"); a("s_cbranch_scc1 L_h_compV")
    for k in range(4):
        a(f"ds_read_b128 v[{112+4*k}:{115+4*k}], v143 offset:{LDS_WK+k*1024}")
    a(f"ds_read_b64 v[128:129], v142")
    task_addr(a, H, 140, v=False)
    a("s_waitcnt lgkmcnt(0)")
    k_compute(a, H, 224, 128, 112, 130, 46)
    a("s_branch L_hook_ret")
    a.label("L_h_compV")
    a(f"ds_read_b128 v[112:115], v142")
    a(f"ds_read_b128 v[116:119], v142 offset:1024")
    task_addr(a, H, 140, k=False)
    a("s_waitcnt lgkmcnt(0)")
    v_compute(a, H, 224, 112, 120, 47, 48)
    a.label("L_hook_ret")
    a(f"s_setpc_b64 s[{S_RET}:{S_RET+1}]")
    gen_slow(a, opt, T, V_LW, V_LR, V_OUT + 1)
    a.label("L_done")
    a("s_endpgm")
    a.label("L_code_end")

DOC = """;
"""

def main():
    global OUTF
    ap = argparse.ArgumentParser()
    ap.add_argument("-o", default=f"cdna_kernels/{NAME}.s")
    ap.add_argument("--stamp", type=int, default=0)
    ap.add_argument("--wgrp", type=int, default=4)
    ap.add_argument("--kgrp", type=int, default=8)
    ap.add_argument("--spread", type=int, default=1)
    ap.add_argument("--cap", type=int, default=2)
    ap.add_argument("--pace", type=int, default=1)
    ap.add_argument("--read_spread", type=int, default=1)
    ap.add_argument("--sm_g0", type=int, default=0)
    ap.add_argument("--sm_g1", type=int, default=117)
    ap.add_argument("--ldflags", default="sc1")
    ap.add_argument("--outflags", default="sc1")
    ap.add_argument("--empty", type=int, default=0)
    ap.add_argument("--dbgspan", type=int, default=0)
    ap.add_argument("--codepf", type=int, default=1)
    ap.add_argument("--r1early", type=int, default=1)
    ap.add_argument("--k1o", type=int, default=1)
    ap.add_argument("--gshift", type=int, default=0)
    ap.add_argument("--wide_out", type=int, default=1)
    ap.add_argument("--latepub", type=int, default=1)
    ap.add_argument("--pretouch", type=int, default=1)
    ap.add_argument("--rope_first", type=int, default=4)
    ap.add_argument("--prefetch", type=int, default=0)
    ap.add_argument("--flag_gap", type=int, default=57)
    ap.add_argument("--ngroups", type=int, default=6)
    opt = ap.parse_args()
    OUTF = (" " + opt.outflags.replace("+", " ")) if opt.outflags else ""
    gen2.LDFLAGS = (" " + opt.ldflags.replace("+", " ")) if opt.ldflags else ""
    out = header()
    out += f"; @launch grid=(256,1,1) block=(256,1,1) lds={LDS_TOTAL}\n"
    out += DOC
    out += '.amdgcn_target "amdgcn-amd-amdhsa--gfx950"\n.text\n'
    a = EA()
    gen_fused(a, opt)
    out += f".globl {KNAME}\n.p2align 8\n.type {KNAME},@function\n" + a.text()
    out += kd(KNAME, 512, 102, 256)
    open(opt.o, "w").write(out)

if __name__ == "__main__":
    main()
```

```python
import sys, os, argparse, math, struct
sys.path.insert(0, "dev")
from gen import f32bits, make_srd, kd, NAME, Item, I_valu, I_raw, I_salu, I_vm, I_lds, I_wvm, I_wlds, I_mfma, resolve_waits, emit_block
import gen2
from gen2 import (MF, V_OFF, V_PW, V_PR, V_L, V_S, V_PO, V_PF, V_V, A_O, A_Q, A_K, QFS, QGS,
                  S_KSRD, S_VSRD, S_QSRD, S_OSRD, S_KOFF, S_VOFF, S_I, S_ROT, S_C, S_W, S_MASK, S_KUSE,
                  kload, vload, softmax_stream, qk_mfmas, schedule, respread_loads, header)

KNAME = NAME + "_kernel"

class EA:
    def __init__(self): self.lines = []
    def __call__(self, s):
        for l in s.split("\n"):
            l = l.strip()
            if not l: continue
            self.lines.append(l if l.endswith(":") else "    " + l)
    def label(self, l): self.lines.append(l + ":")
    def text(self): return "\n".join(self.lines) + "\n"

LDS_Q = 0
LDS_L = 34816
LDS_SC = LDS_L + 1024
LDS_WK = LDS_SC + 4 * 4096
LDS_P = 56320
LDS_TOTAL = LDS_P + 32768
assert LDS_WK + 4096 <= LDS_P

S_STW = 36
S_NONCE = 39
S_PK, S_PT, S_PW = 40, 41, 42
S_PK2, S_PT2, S_PW2 = 43, 44, 45
S_HK, S_HT, S_HW = 46, 47, 48
S_FLG = 50
S_RANGE = 53
S_FMASK = 49
S_HMASK = 38
S_G = 64
S_RET = 66
S_RAWK, S_RAWV = 56, 60
S_KSC, S_KZ, S_VSC, S_VZ = 72, 76, 80, 84
S_DBG = 88
S_J, S_NEED = 90, 91
S_T0, S_T1, S_T2, S_T3, S_T4 = 92, 93, 94, 95, 96
S_SPIN, S_HEAD = 97, 99
V_FLAG, V_FADDR, V_STAMP = 13, 14, 15
STF = " sc1"

class RM: pass

class Stamp:
    def __init__(self, a, opt):
        self.a = a; self.on = opt.stamp; self.n = 0
    def _emit(self, idx_sgpr=None):
        a = self.a
        a("s_memtime s[54:55]")
        a("s_memrealtime s[100:101]")
        a("s_waitcnt lgkmcnt(0)")
        if idx_sgpr is None:
            a(f"v_writelane_b32 v{V_STAMP}, s54, {2*self.n}")
            a(f"v_writelane_b32 v{V_STAMP}, s100, {2*self.n+1}")
        else:
            a(f"s_mov_b32 m0, s{idx_sgpr}"); a("s_nop 1")
            a(f"v_writelane_b32 v{V_STAMP}, s54, m0")
            a(f"s_add_u32 m0, s{idx_sgpr}, 1"); a("s_nop 1")
            a(f"v_writelane_b32 v{V_STAMP}, s100, m0")
    def __call__(self, again=False, level=1, force=False):
        if not self.on: return
        if self.on == 9 and not force: return
        if level == 2 and self.on != 2: return
        if again: self.n -= 1
        self._emit()
        self.n += 1
    def dyn(self, mul, add, cap):
        a = self.a
        a(f"s_min_u32 s52, s{S_I}, {cap}")
        a(f"s_mul_i32 s52, s52, {2*mul}")
        a(f"s_add_u32 s52, s52, {2*add}")
        self._emit(52)
    def finish(self):
        if not self.on: return
        a = self.a
        a("s_waitcnt vmcnt(0)")
        a(f"s_lshl_b32 s46, s{S_J}, 3")
        a(f"s_add_u32 s46, s46, s{S_HEAD}")
        a(f"s_lshl_b32 s46, s46, 10")
        a(f"s_lshl_b32 s47, s{S_W}, 8")
        a("s_add_u32 s46, s46, s47")
        a("s_add_u32 s46, s46, 0x8000000")
        a(f"s_add_u32 s46, s{S_STW}, s46")
        a(f"s_addc_u32 s47, s{S_STW+1}, 0")
        a("v_and_b32 v16, 63, v0")
        a("v_lshlrev_b32 v16, 2, v16")
        a(f"global_store_dword v16, v{V_STAMP}, s[46:47]")
        a("s_waitcnt vmcnt(0)")

LOG2_10000_128 = math.log2(10000.0) / 128.0
LOG2_2PI = math.log2(2 * math.pi)

def vp(r): return f"v[{r}:{r+1}]"

def k_raw_loads(a, R, X, rowreg):
    a(f"s_lshl_b32 s{S_T0}, s{rowreg}, 10")
    for c in range(4):
        for hf in range(2):
            b = X + c * 8 + hf * 4
            a(f"buffer_load_dwordx4 v[{b}:{b+3}], v{R.kraw}, s[{S_RAWK}:{S_RAWK+3}], s{S_T0} offen offset:{c*256+hf*16}")
    return 8
def k_scale_loads(a, R, rowreg, dst):
    a(f"s_lshl_b32 s{S_T2}, s{rowreg}, 1")
    a(f"buffer_load_ushort v{dst}, v{R.ksc}, s[{S_KSC}:{S_KSC+3}], s{S_T2} offen")
    a(f"buffer_load_ushort v{dst+1}, v{R.ksc}, s[{S_KZ}:{S_KZ+3}], s{S_T2} offen")
    return 2
def v_raw_loads(a, R, X, treg, wreg):
    a(f"s_lshl_b32 s{S_T0}, s{treg}, 15")
    a(f"s_lshl_b32 s{S_T1}, s{wreg}, 8")
    a(f"s_add_u32 s{S_T0}, s{S_T0}, s{S_T1}")
    a(f"s_add_u32 s{S_T1}, s{S_T0}, 16384")
    for j in range(8):
        b = X + j * 4
        so = S_T0 if j < 4 else S_T1
        a(f"buffer_load_dwordx4 v[{b}:{b+3}], v{R.vraw}, s[{S_RAWV}:{S_RAWV+3}], s{so} offen offset:{(j&3)*1024}")
    return 8
def v_scale_loads(a, R, SC, treg):
    a(f"s_lshl_b32 s{S_T2}, s{treg}, 6")
    for g2 in range(2):
        a(f"buffer_load_dwordx2 v[{SC+2*g2}:{SC+1+2*g2}], v{R.vsc}, s[{S_VSC}:{S_VSC+3}], s{S_T2} offen offset:{g2*32}")
        a(f"buffer_load_dwordx2 v[{SC+4+2*g2}:{SC+5+2*g2}], v{R.vsc}, s[{S_VZ}:{S_VZ+3}], s{S_T2} offen offset:{g2*32}")
    return 4

def sincos8(a, pos, w, cs, sn):
    for k in range(4):
        a(f"v_pk_mul_f32 {vp(sn+2*k)}, {vp(w+2*k)}, {vp(pos)} op_sel_hi:[1,0]")
    for e in range(8):
        a(f"v_fract_f32 v{sn+e}, v{sn+e}")
    for e in range(8):
        a(f"v_cos_f32 v{cs+e}, v{sn+e}")
    for e in range(8):
        a(f"v_sin_f32 v{sn+e}, v{sn+e}")

def rope8(a, x1, x2, cs, sn, u, o1dst, o2dst):
    for k in range(4):
        a(f"v_pk_mul_f32 {vp(u+2*k)}, {vp(x2+2*k)}, {vp(sn+2*k)}")
    for k in range(4):
        a(f"v_pk_mul_f32 {vp(sn+2*k)}, {vp(x1+2*k)}, {vp(sn+2*k)}")
    for k in range(4):
        a(f"v_pk_fma_f32 {vp(u+2*k)}, {vp(x1+2*k)}, {vp(cs+2*k)}, {vp(u+2*k)} neg_lo:[0,0,1] neg_hi:[0,0,1]")
    for k in range(4):
        a(f"v_pk_fma_f32 {vp(sn+2*k)}, {vp(x2+2*k)}, {vp(cs+2*k)}, {vp(sn+2*k)}")
    for k in range(4):
        a(f"v_cvt_pk_bf16_f32 v{o1dst+k}, v{u+2*k}, v{u+2*k+1}")
    for k in range(4):
        a(f"v_cvt_pk_bf16_f32 v{o2dst+k}, v{sn+2*k}, v{sn+2*k+1}")

def k_compute(a, R, X, sc, WK, T, rowreg):
    assert sc % 2 == 0 and T % 2 == 0 and X % 4 == 0
    pos, cs, sn, u = T, T + 2, T + 10, T + 18
    a(f"v_lshlrev_b32 v{sc}, 16, v{sc}")
    a(f"v_lshlrev_b32 v{sc+1}, 16, v{sc+1}")
    a(f"v_cvt_f32_u32 v{pos}, v{R.krr}")
    a(f"v_cvt_f32_u32 v{pos+1}, s{rowreg}")
    a(f"v_mul_f32 v{sc+1}, v{sc+1}, v{sc}")
    a(f"v_add_f32 v{pos}, v{pos}, v{pos+1}")
    for k in range(32):
        a(f"v_cvt_f32_i32 v{X+k}, v{X+k}")
    sincos8(a, pos, WK, cs, sn)
    for k in range(16):
        a(f"v_pk_fma_f32 {vp(X+2*k)}, {vp(X+2*k)}, {vp(sc)}, {vp(sc)} op_sel:[0,0,1] op_sel_hi:[1,0,1] neg_lo:[0,0,1] neg_hi:[0,0,1]")
    rope8(a, X, X + 16, cs, sn, u, X, X + 16)
    sincos8(a, pos, WK + 8, cs, sn)
    a("s_nop 0")
    rope8(a, X + 8, X + 24, cs, sn, u, X + 8, X + 24)
    a(f"s_lshr_b32 s{S_T0}, s{rowreg}, 4")
    a(f"s_lshl_b32 s{S_T0}, s{S_T0}, 13")
    a(f"s_and_b32 s{S_T1}, s{rowreg}, 8")
    a(f"s_lshl_b32 s{S_T1}, s{S_T1}, 4")
    a(f"s_add_u32 s{S_T0}, s{S_T0}, s{S_T1}")
    a(f"s_add_u32 s{S_T1}, s{S_T0}, 4096")
    for c in range(4):
        b = X + c * 8
        so = S_T0 if c < 2 else S_T1
        a(f"buffer_store_dwordx4 v[{b}:{b+3}], v{R.kst}, s[{S_KSRD}:{S_KSRD+3}], s{so} offen offset:{(c&1)*2048}{STF}")

def v_compute(a, R, X, SC, T, treg, wreg):
    M = S_MASK
    SZ = T
    for j in range(8):
        src_s = SC + 2 * (j >> 2) + ((j & 3) >> 1)
        src_z = SC + 4 + 2 * (j >> 2) + ((j & 3) >> 1)
        if j & 1:
            a(f"v_and_b32 v{SZ+2*j}, s{M}, v{src_s}"); a(f"v_and_b32 v{SZ+2*j+1}, s{M}, v{src_z}")
        else:
            a(f"v_lshlrev_b32 v{SZ+2*j}, 16, v{src_s}"); a(f"v_lshlrev_b32 v{SZ+2*j+1}, 16, v{src_z}")
    for k in range(32):
        a(f"v_cvt_f32_i32 v{X+k}, v{X+k}")
    for j in range(8):
        a(f"v_mul_f32 v{SZ+2*j+1}, v{SZ+2*j+1}, v{SZ+2*j}")
    for j in range(8):
        for h in range(2):
            x = X + 4 * j + 2 * h
            a(f"v_pk_fma_f32 {vp(x)}, {vp(x)}, {vp(SZ+2*j)}, {vp(SZ+2*j)} op_sel:[0,0,1] op_sel_hi:[1,0,1] neg_lo:[0,0,1] neg_hi:[0,0,1]")
    O = T
    for db in range(4):
        for jj in range(4):
            a(f"v_cvt_pk_bf16_f32 v{O+db*4+jj}, v{X+(2*jj)*4+db}, v{X+(2*jj+1)*4+db}")
    a(f"s_lshr_b32 s{S_T0}, s{treg}, 2")
    a(f"s_lshl_b32 s{S_T0}, s{S_T0}, 16")
    a(f"s_lshl_b32 s{S_T1}, s{wreg}, 14")
    a(f"s_add_u32 s{S_T0}, s{S_T0}, s{S_T1}")
    a(f"s_sub_u32 s{S_T1}, s{treg}, s{wreg}")
    a(f"s_and_b32 s{S_T1}, s{S_T1}, 3")
    a(f"s_lshl_b32 s{S_T1}, s{S_T1}, 10")
    a(f"s_add_u32 s{S_T0}, s{S_T0}, s{S_T1}")
    for db in range(4):
        if db:
            a(f"s_add_u32 s{S_T0}, s{S_T0}, 4096")
        a(f"buffer_store_dwordx4 v[{O+4*db}:{O+4*db+3}], v{R.vst}, s[{S_VSRD}:{S_VSRD+3}], s{S_T0} offen{STF}")

def freq_consts(a, dst, n, dbase_v, offs):
    a(f"s_mov_b32 s{S_T0}, 0x{f32bits(-LOG2_10000_128):08x}")
    for k in range(n):
        a(f"v_mov_b32 v{dst+k}, 0x{f32bits(-LOG2_10000_128 * offs[k] - LOG2_2PI):08x}")
    for k in range(n):
        a(f"v_fma_f32 v{dst+k}, v{dbase_v}, s{S_T0}, v{dst+k}")
    for k in range(n):
        a(f"v_exp_f32 v{dst+k}, v{dst+k}")
    a("s_nop 0")

def rope_q(a, src, T, pos, wq):
    M = S_MASK
    q1, q2, cs, sn, u, out = T, T + 8, T + 16, T + 24, T + 32, T
    sincos8(a, pos, wq, cs, sn)
    for k in range(4):
        a(f"v_lshlrev_b32 v{q1+2*k}, 16, v{src+k}"); a(f"v_and_b32 v{q1+2*k+1}, s{M}, v{src+k}")
        a(f"v_lshlrev_b32 v{q2+2*k}, 16, v{src+4+k}"); a(f"v_and_b32 v{q2+2*k+1}, s{M}, v{src+4+k}")
    for k in range(4):
        a(f"v_pk_mul_f32 {vp(cs+2*k)}, {vp(cs+2*k)}, s[{S_C}:{S_C+1}] op_sel_hi:[1,0]")
    for k in range(4):
        a(f"v_pk_mul_f32 {vp(sn+2*k)}, {vp(sn+2*k)}, s[{S_C}:{S_C+1}] op_sel_hi:[1,0]")
    rope8(a, q1, q2, cs, sn, u, out, out + 4)
    return out

def task_params(a, rnd, pk, pt, pw):
    a(f"s_and_b32 s{S_T0}, s{S_W}, 1")
    a(f"s_lshl_b32 s{S_T1}, s{S_J}, 1")
    a(f"s_add_u32 s{S_T0}, s{S_T0}, s{S_T1}")
    if pk is not None:
        a(f"s_lshl_b32 s{pk}, s{S_T0}, 3")
        if isinstance(rnd, int): a(f"s_add_u32 s{pk}, s{pk}, {512*rnd}")
        else:
            a(f"s_lshl_b32 s{S_T1}, s{rnd[1]}, 9"); a(f"s_add_u32 s{pk}, s{pk}, s{S_T1}")
    if pt is not None:
        a(f"s_lshr_b32 s{pt}, s{S_T0}, 2")
        if isinstance(rnd, int): a(f"s_add_u32 s{pt}, s{pt}, {16*rnd}")
        else:
            a(f"s_lshl_b32 s{S_T1}, s{rnd[1]}, 4"); a(f"s_add_u32 s{pt}, s{pt}, s{S_T1}")
        a(f"s_and_b32 s{pw}, s{S_T0}, 3")

def task_addr(a, R, tmp, k=True, v=True):
    if k:
        a(f"v_and_b32 v{tmp}, 7, v0")
        a(f"v_bfe_u32 v{R.krr}, v0, 3, 3")
        a(f"v_lshlrev_b32 v{R.kraw}, 10, v{R.krr}")
        a(f"v_lshl_add_u32 v{R.kraw}, v{tmp}, 5, v{R.kraw}")
        a(f"v_lshrrev_b32 v{tmp+1}, 2, v{tmp}")
        a(f"v_lshlrev_b32 v{R.kst}, 10, v{tmp+1}")
        a(f"v_and_b32 v{tmp+1}, 3, v{tmp}")
        a(f"v_lshl_add_u32 v{R.kst}, v{tmp+1}, 8, v{R.kst}")
        a(f"v_lshl_add_u32 v{R.kst}, v{R.krr}, 4, v{R.kst}")
    if v:
        a(f"v_and_b32 v{tmp}, 15, v0")
        a(f"v_bfe_u32 v{tmp+1}, v0, 4, 2")
        a(f"v_lshlrev_b32 v{R.vraw}, 12, v{tmp+1}")
        a(f"v_lshl_add_u32 v{R.vraw}, v{tmp}, 4, v{R.vraw}")
        a(f"v_and_b32 v{R.vst}, 63, v0")
        a(f"v_lshlrev_b32 v{R.vst}, 4, v{R.vst}")

def publish(a, val, lbl, t):
    a(f"s_cmp_lg_u32 s{S_W}, 0")
    a(f"s_cbranch_scc1 {lbl}")
    a(f"s_mov_b64 exec, 1")
    a(f"s_add_u32 s{S_T1}, s{S_NONCE}, {val}")
    a(f"v_mov_b32 v{t}, s{S_T1}")
    a(f"s_lshl_b32 s{S_T0}, s{S_HEAD}, 5")
    a(f"s_add_u32 s{S_T0}, s{S_T0}, s{S_J}")
    a(f"s_lshl_b32 s{S_T0}, s{S_T0}, 7")
    a(f"v_mov_b32 v{t+1}, s{S_T0}")
    a(f"global_store_dword v{t+1}, v{t}, s[{S_FLG}:{S_FLG+1}] sc1")
    a(f"s_mov_b64 exec, -1")
    a.label(lbl)

def flag_load(a):
    a(f"global_load_dword v{V_FLAG}, v{V_FADDR}, s[{S_FLG}:{S_FLG+1}] sc1")
def flag_check(a):
    a(f"v_subrev_u32 v{V_FLAG}, s{S_NEED}, v{V_FLAG}")
    a(f"v_cmp_lt_u32 vcc, s{S_RANGE}, v{V_FLAG}")
def set_need(a, need):
    a(f"s_add_u32 s{S_NEED}, s{S_NONCE}, {need}")
    a(f"s_mov_b32 s{S_RANGE}, {4-need}")
def spin(a, name):
    a(f"s_mov_b32 s{S_SPIN}, 0")
    a.label(f"L_spin_{name}")
    flag_load(a)
    a("s_waitcnt vmcnt(0)")
    flag_check(a)
    a(f"s_add_u32 s{S_SPIN}, s{S_SPIN}, 1")
    a(f"s_cmp_lt_u32 s{S_SPIN}, 0x8000")
    a(f"s_cbranch_scc0 L_spin_{name}_done")
    a("s_nop 3")
    a(f"s_cbranch_vccnz L_spin_{name}")
    a.label(f"L_spin_{name}_done")

def tile_off(dst, tadd, tmp):
    return [I_salu(f"s_add_u32 s{dst}, s{S_I}, {tadd}"),
            I_salu(f"s_add_u32 s{tmp}, s{dst}, s{S_ROT}"),
            I_salu(f"s_and_b32 s{tmp}, s{tmp}, 3"),
            I_salu(f"s_and_b32 s{dst}, s{dst}, 12"),
            I_salu(f"s_or_b32 s{dst}, s{dst}, s{tmp}"),
            I_salu(f"s_lshl_b32 s{dst}, s{dst}, 16")]

def pv_item(t, db, qb, p):
    par = t & 1
    f = db * 4 + p
    o = A_O + (db * 4 + qb) * 4
    b = V_PO + 16 * par + qb * 4 if p == 0 else V_PF + (p - 1) * 16 + qb * 4
    return I_mfma(f"{MF} a[{o}:{o+3}], v[{V_V+4*f}:{V_V+4*f+3}], v[{b}:{b+3}], a[{o}:{o+3}]")

def p_reads(t):
    par = t & 1
    r = []
    for p in range(1, 4):
        for qb in range(4):
            dst = V_PF + (p - 1) * 16 + qb * 4
            r.append(I_lds(f"ds_read_b128 v[{dst}:{dst+3}], v{V_PR+p-1} offset:{par*16384+qb*1024}", ("PR", t, p, qb)))
    return r

def build_iter(i, opt, NT=16):
    has_qk = (i + 1) < NT
    has_sm = 0 <= i < NT
    has_pv = 1 <= i <= NT
    mf = []
    if has_qk:
        mf += qk_mfmas(i + 1, opt, NT)
    nqk = len(mf)
    if has_pv:
        t = i - 1
        for db in range(4):
            for qb in range(4):
                for p in range(4):
                    pre = []
                    if qb == 0 and p == 0:
                        pre.append(I_wvm(("V", t, db * 4 + 3)))
                    if db == 0 and qb == 0 and p == 1:
                        pre.append(I_wlds(("PR", t, 3, 3)))
                    post = []
                    if qb == 3 and t + 1 < NT:
                        post.append(vload(t + 1, db * 4 + p, S_VOFF))
                    mf.append([pre, pv_item(t, db, qb, p), post])
    respread_loads(mf, i, NT, opt)
    if i == 15:
        mf[0][2] = [vload(14, j, S_VOFF) for j in range(9, 16)] + mf[0][2]
    reads = p_reads(i - 1) if has_pv else []
    sm = softmax_stream(i, opt) if has_sm else []
    head = []
    full = len(mf) == 128
    if has_qk:
        head += tile_off(S_KOFF, 2, S_T4) + [I_salu(f"s_cmp_lt_u32 s{S_I}, {NT-2}"), I_salu(f"s_cselect_b32 s{S_KUSE}, s{S_KOFF}, 0x100000")]
    if has_pv:
        vup = tile_off(S_VOFF, 0, S_T3)
        if full:
            for k, x in enumerate(vup):
                mf[41 + k][2].append(x)
        else:
            head += vup
    if full and i % 2 == 1:
        txt = (f"s_bitcmp1_b32 s{S_FMASK}, s{S_I}\ns_cbranch_scc0 L_noflagld\n"
               f"global_load_dword v{V_FLAG}, v{V_FADDR}, s[{S_FLG}:{S_FLG+1}] sc1\nL_noflagld:")
        mf[opt.flag_gap][2].append(I_raw(txt))
    return schedule(mf, head, reads, sm, nqk, opt)

def build_it0_k1o(opt):
    mf = []
    S = V_S + 32
    for kb in range(2):
        for qb in range(4):
            for s in range(8):
                f = kb * 8 + s
                d = f"v[{S+(kb*4+qb)*4}:{S+(kb*4+qb)*4+3}]"
                c = "0" if s == 0 else d
                pre = [I_wvm(("K", 1, kb * 8 + 7))] if (qb == 0 and s == 0) else []
                mf.append([pre, I_mfma(f"{MF} {d}, a[{A_O+4*f}:{A_O+4*f+3}], a[{A_Q+(qb*8+s)*4}:{A_Q+(qb*8+s)*4+3}], {c}"), []])
    for k in range(32):
        mf[32 + k][2].append(I_valu(f"v_accvgpr_write_b32 a{A_O+k}, 0"))
    items = schedule(mf, [], [], softmax_stream(0, opt), 64, opt)
    items += [I_valu(f"v_accvgpr_write_b32 a{A_O+32+k}, 0") for k in range(32)]
    return items

def build_last(opt, T, V_OUT):
    t = 15
    mf = []
    for qb in range(4):
        for db in range(4):
            for p in range(4):
                pre = []
                if qb == 0 and p == 0:
                    pre.append(I_wvm(("V", t, db * 4 + 3)))
                if qb == 0 and db == 0 and p == 1:
                    pre.append(I_wlds(("PR", t, 3, 3)))
                mf.append([pre, pv_item(t, db, qb, p), []])
    def epi(qb):
        it = []
        inv = T + 4 * qb
        tb = 48 + (qb & 1) * 16
        for par in range(2):
            for k in range(par, 8, 2):
                r = k >> 1
                c = 2 * (k & 1)
                x = tb + 2 * k
                it.append(I_valu(f"v_accvgpr_read_b32 v{x}, a{A_O+((c)*4+qb)*4+r}"))
                it.append(I_valu(f"v_accvgpr_read_b32 v{x+1}, a{A_O+((c+1)*4+qb)*4+r}"))
        for k in range(8):
            x = tb + 2 * k
            it.append(I_valu(f"v_pk_mul_f32 {vp(x)}, {vp(x)}, {vp(inv)} op_sel_hi:[1,0]"))
        for half in range(2):
            o = 16 + (qb * 2 + half) * 4
            for kk in range(4):
                x = tb + 2 * (half * 4 + kk)
                it.append(I_valu(f"v_cvt_pk_bf16_f32 v{o+kk}, v{x}, v{x+1}"))
        oA, oB = 16 + qb * 8, 16 + qb * 8 + 4
        so = "0" if qb == 0 else f"s{S_T0+qb-1}"
        if opt.wide_out:
            it.append(I_raw("s_nop 1"))
            for kk in range(4):
                it.append(I_valu(f"v_permlane16_swap_b32 v{oA+kk}, v{oB+kk}"))
            it.append(I_raw("s_nop 1"))
            for kk in range(4):
                it.append(I_valu(f"v_permlane32_swap_b32 v{oA+kk}, v{oB+kk}"))
            it.append(I_raw("s_nop 0"))
            it.append(I_vm(f"buffer_store_dwordx4 v[{oA}:{oA+3}], v{V_OUT}, s[{S_OSRD}:{S_OSRD+3}], {so} offen{OUTF}", ("O", qb, 0)))
            it.append(I_vm(f"buffer_store_dwordx4 v[{oB}:{oB+3}], v{V_OUT}, s[{S_OSRD}:{S_OSRD+3}], {so} offen offset:64{OUTF}", ("O", qb, 1)))
        else:
            it.append(I_vm(f"buffer_store_dwordx4 v[{oA}:{oA+3}], v{V_OUT}, s[{S_OSRD}:{S_OSRD+3}], {so} offen offset:0{OUTF}", ("O", qb, 0)))
            it.append(I_vm(f"buffer_store_dwordx4 v[{oB}:{oB+3}], v{V_OUT}, s[{S_OSRD}:{S_OSRD+3}], {so} offen offset:16{OUTF}", ("O", qb, 1)))
        return it
    linv = [I_wlds(("LR", 3))]
    for qb in range(4):
        b = T + 4 * qb
        linv += [I_valu(f"v_add_f32 v{b}, v{b}, v{b+1}"), I_valu(f"v_add_f32 v{b+2}, v{b+2}, v{b+3}")]
    for qb in range(4):
        b = T + 4 * qb
        linv.append(I_valu(f"v_add_f32 v{b}, v{b}, v{b+2}"))
    linv.append(I_valu(f"v_max3_f32 v{T+1}, v{T}, v{T+4}, v{T+8}"))
    linv.append(I_valu(f"v_min3_f32 v{T+2}, v{T}, v{T+4}, v{T+8}"))
    linv.append(I_valu(f"v_max_f32 v{T+1}, v{T+1}, v{T+12}"))
    linv.append(I_valu(f"v_min_f32 v{T+2}, v{T+2}, v{T+12}"))
    linv.append(I_valu(f"v_cmp_lt_f32 vcc, s{S_T3}, v{T+1}"))
    linv.append(I_valu(f"v_cmp_gt_f32 s[68:69], s{S_T4}, v{T+2}"))
    for qb in range(4):
        b = T + 4 * qb
        linv.append(I_valu(f"v_rcp_f32 v{b}, v{b}", 8))
    linv.append(I_raw(f"s_or_b64 vcc, vcc, s[68:69]\ns_cbranch_vccnz L_slow"))
    items = []
    lreads = [I_lds(f"ds_read_b128 v[{T+4*qb}:{T+4*qb+3}], v{LRREG} offset:{qb*256}", ("LR", qb)) for qb in range(4)]
    head = [I_salu(f"s_mov_b32 s{S_T0+k}, {8192*(k+1)}") for k in range(3)] + [I_salu(f"s_mov_b32 s{S_T3}, 0x5d800000"), I_salu(f"s_mov_b32 s{S_T4}, 0x21800000")] + p_reads(t) + lreads
    gaps = [[] for _ in range(64)]
    q = list(linv)
    g = 4
    while q:
        gaps[g] += q[:2]; q = q[2:]; g = min(g + 1, 15) if g < 15 else 15
    for qb in range(3):
        e = epi(qb)
        g0 = 16 * (qb + 1) + 3
        per = (len(e) + 12) // 13
        g = g0
        while e:
            gaps[g] += e[:per]; e = e[per:]; g = min(g + 1, 63)
    for k, (pre, m, post) in enumerate(mf):
        items += pre
        items.append(m)
        if k == 0:
            items += head
        items += gaps[k]
    items.append(I_raw("s_nop 7"))
    items += epi(3)
    return items

def gen_slow(a, opt, T, V_LW, V_LR, V_OUT):
    M, F, X_ = 48, 52, 56
    S = V_S
    a.label("L_slow")
    a("s_waitcnt vmcnt(0) lgkmcnt(0)")
    a("s_nop 15")
    a("s_barrier")
    for r in range(64): a(f"v_accvgpr_write_b32 a{A_O+r}, 0")
    for qb in range(4):
        a(f"v_mov_b32 v{V_L+qb}, 0")
        a(f"v_mov_b32 v{M+qb}, 0xff7fffff")
    a(f"s_mov_b32 s{S_I}, 0")
    a.label("L_slow_loop")
    a(f"s_lshl_b32 s{S_KUSE}, s{S_I}, 16")
    a(f"s_mov_b32 s{S_VOFF}, s{S_KUSE}")
    for f in range(16): a(kload(0, f, S_KUSE).text)
    for f in range(16): a(vload(0, f, S_VOFF).text)
    a("s_waitcnt vmcnt(16)")
    for kb in range(2):
        for qb in range(4):
            for sx in range(8):
                f = kb * 8 + sx
                d = f"v[{S+(kb*4+qb)*4}:{S+(kb*4+qb)*4+3}]"
                c = "0" if sx == 0 else d
                a(f"{MF} {d}, a[{A_K+4*f}:{A_K+4*f+3}], a[{A_Q+(qb*8+sx)*4}:{A_Q+(qb*8+sx)*4+3}], {c}")
    a("s_nop 15")
    for qb in range(4):
        x0, x1 = S + qb * 4, S + (4 + qb) * 4
        a(f"v_max3_f32 v{F+qb}, v{x0}, v{x0+1}, v{x0+2}")
        a(f"v_max3_f32 v{F+qb}, v{F+qb}, v{x0+3}, v{x1}")
        a(f"v_max3_f32 v{F+qb}, v{F+qb}, v{x1+1}, v{x1+2}")
        a(f"v_max_f32 v{F+qb}, v{F+qb}, v{x1+3}")
    for swap in ("v_permlane32_swap_b32", "v_permlane16_swap_b32"):
        for qb in range(4): a(f"v_mov_b32 v{X_+qb}, v{F+qb}")
        a("s_nop 1")
        for qb in range(4): a(f"{swap} v{X_+qb}, v{F+qb}")
        a("s_nop 1")
        for qb in range(4): a(f"v_max_f32 v{F+qb}, v{F+qb}, v{X_+qb}")
    for qb in range(4): a(f"ds_write_b32 v{V_LW}, v{F+qb} offset:{qb*256}")
    a("s_waitcnt lgkmcnt(0)")
    a("s_barrier")
    for qb in range(4): a(f"ds_read_b128 v[{X_+4*qb}:{X_+4*qb+3}], v{V_LR} offset:{qb*256}")
    a("s_waitcnt lgkmcnt(0)")
    for qb in range(4):
        b = X_ + 4 * qb
        a(f"v_max3_f32 v{b}, v{b}, v{b+1}, v{b+2}")
        a(f"v_max3_f32 v{b}, v{b}, v{b+3}, v{M+qb}")
        a(f"v_sub_f32 v{F+qb}, v{M+qb}, v{b}")
        a(f"v_mov_b32 v{M+qb}, v{b}")
    for qb in range(4): a(f"v_exp_f32 v{F+qb}, v{F+qb}")
    a("s_nop 0")
    for qb in range(4): a(f"v_mul_f32 v{V_L+qb}, v{V_L+qb}, v{F+qb}")
    for db in range(4):
        for qb in range(4):
            for r in range(4):
                o = A_O + (db * 4 + qb) * 4 + r
                a(f"v_accvgpr_read_b32 v{X_}, a{o}")
                a(f"v_mul_f32 v{X_}, v{X_}, v{F+qb}")
                a(f"v_accvgpr_write_b32 a{o}, v{X_}")
    for qb in range(4):
        for kb in range(2):
            for r in range(4):
                x = S + (kb * 4 + qb) * 4 + r
                a(f"v_sub_f32 v{x}, v{x}, v{M+qb}")
        for kb in range(2):
            for r in range(4):
                x = S + (kb * 4 + qb) * 4 + r
                a(f"v_exp_f32 v{x}, v{x}")
        a("s_nop 0")
        for kb in range(2):
            for r in range(4):
                x = S + (kb * 4 + qb) * 4 + r
                a(f"v_add_f32 v{V_L+qb}, v{V_L+qb}, v{x}")
        for kb in range(2):
            for h in range(2):
                x = S + (kb * 4 + qb) * 4 + 2 * h
                a(f"v_cvt_pk_bf16_f32 v{V_PO+qb*4+kb*2+h}, v{x}, v{x+1}")
        a(f"ds_write_b128 v{V_PW}, v[{V_PO+qb*4}:{V_PO+qb*4+3}] offset:{qb*1024}")
    a("s_waitcnt lgkmcnt(0)")
    a("s_barrier")
    for it in p_reads(0): a(it.text)
    a("s_waitcnt vmcnt(0) lgkmcnt(0)")
    for db in range(4):
        for qb in range(4):
            for p in range(4):
                a(pv_item(0, db, qb, p).text)
    a("s_nop 15")
    a("s_barrier")
    a(f"s_add_u32 s{S_I}, s{S_I}, 1")
    a(f"s_cmp_lt_u32 s{S_I}, 16")
    a("s_cbranch_scc1 L_slow_loop")
    for swap in ("v_permlane32_swap_b32", "v_permlane16_swap_b32"):
        for qb in range(4): a(f"v_mov_b32 v{X_+qb}, v{V_L+qb}")
        a("s_nop 1")
        for qb in range(4): a(f"{swap} v{X_+qb}, v{V_L+qb}")
        a("s_nop 1")
        for qb in range(4): a(f"v_add_f32 v{V_L+qb}, v{V_L+qb}, v{X_+qb}")
    for qb in range(4): a(f"ds_write_b32 v{V_LW}, v{V_L+qb} offset:{qb*256}")
    a("s_waitcnt lgkmcnt(0)")
    a("s_barrier")
    for qb in range(4): a(f"ds_read_b128 v[{T+4*qb}:{T+4*qb+3}], v{V_LR} offset:{qb*256}")
    a("s_waitcnt lgkmcnt(0)")
    for qb in range(4):
        b = T + 4 * qb
        a(f"v_add_f32 v{b}, v{b}, v{b+1}"); a(f"v_add_f32 v{b+2}, v{b+2}, v{b+3}")
        a(f"v_add_f32 v{b}, v{b}, v{b+2}")
        a(f"v_rcp_f32 v{b}, v{b}")
    a("s_nop 0")
    for qb in range(4):
        inv = T + 4 * qb
        a(f"s_mov_b32 s{S_T0}, {qb*8192}")
        for half in range(2):
            o = 16 + half * 4
            for kk in range(4):
                k = half * 4 + kk
                r = k >> 1
                c = 2 * (k & 1)
                a(f"v_accvgpr_read_b32 v{X_}, a{A_O+((c)*4+qb)*4+r}")
                a(f"v_accvgpr_read_b32 v{X_+1}, a{A_O+((c+1)*4+qb)*4+r}")
                a(f"v_mul_f32 v{X_}, v{X_}, v{inv}")
                a(f"v_mul_f32 v{X_+1}, v{X_+1}, v{inv}")
                a(f"v_cvt_pk_bf16_f32 v{o+kk}, v{X_}, v{X_+1}")
            a(f"buffer_store_dwordx4 v[{o}:{o+3}], v{V_OUT}, s[{S_OSRD}:{S_OSRD+3}], s{S_T0} offen offset:{half*16}")
            a("s_nop 1")
    a("s_endpgm")

def gen_fused(a, opt):
    global OUTF, LRREG
    NT = 16
    st = Stamp(a, opt)
    PP = RM(); PP.kraw, PP.krr, PP.kst, PP.vraw, PP.vst = 248, 249, 250, 251, 252
    PP.ksc, PP.vsc = 253, 254
    V_QW, V_QR, V_QOFF = 8, 9, 14
    X, Y, QD, TT = 16, 48, 96, 160
    Z = X
    WK, WQ = 200, 128
    SC0, SC1, SC2, SC3 = 216, 224, 232, 240
    QPOS, V_NON, V_ZERO, VJ = 136, 138, 139, 140
    K1V = 96
    T = 240
    a.label(KNAME)
    a("s_cmp_ge_u32 s2, 256" if not opt.empty else "s_cmp_ge_u32 s2, 0")
    a("s_cbranch_scc1 L_done")
    st(force=True)
    if opt.dbgspan:
        a("s_memrealtime s[72:73]")
        a("s_waitcnt lgkmcnt(0)")
        a("s_not_b32 s98, s72")
    a("s_load_dwordx16 s[40:55], s[0:1], 0")
    a("s_load_dwordx2 s[62:63], s[0:1], 88")
    a("s_load_dwordx4 s[64:67], s[0:1], 96")
    if opt.codepf:
        a("s_getpc_b64 s[4:5]")
        a.label("L_pc")
        a("v_lshlrev_b32 v30, 7, v0")
        a(f"v_min_u32 v30, L_code_end-L_pc-4, v30")
        a("global_load_dword v31, v30, s[4:5]")
    a(f"s_and_b32 s{S_HEAD}, s2, 7")
    a(f"s_lshr_b32 s{S_J}, s2, 3")
    a("v_lshrrev_b32 v1, 6, v0")
    a("v_and_b32 v2, 15, v0")
    a("v_bfe_u32 v3, v0, 4, 2")
    a(f"v_readfirstlane_b32 s{S_W}, v1")
    task_addr(a, PP, 4)
    a("v_lshl_add_u32 v4, v1, 4, v3")
    a(f"v_lshlrev_b32 v{V_QOFF}, 9, v4")
    a(f"v_lshl_add_u32 v{V_QOFF}, v2, 4, v{V_QOFF}")
    task_params(a, 0, 68, 69, 70)
    a(f"s_lshl_b32 s{S_T4}, s{S_HEAD}, 21")
    a("s_waitcnt lgkmcnt(0)")
    isB = lambda lbl: (a(f"s_cmp_ge_u32 s{S_W}, 2"), a(f"s_cbranch_scc1 {lbl}"))
    make_srd(a, S_RAWK, 42, S_T4, 0x200000)
    a(f"s_lshl_b32 s{S_T0}, s{S_HEAD}, 20")
    a(f"s_lshl_b32 s{S_T3}, s{S_J}, 15")
    a(f"s_add_u32 s{S_T2}, s{S_T0}, s{S_T3}")
    make_srd(a, S_OSRD, 62, S_T2, 32768)
    make_srd(a, S_RAWV, 48, S_T4, 0x200000)
    make_srd(a, S_QSRD, 40, S_T2, 32768)
    isB("L_B_i0")
    k_raw_loads(a, PP, X, 68)
    a(f"s_lshl_b32 s{S_T2}, s{S_HEAD}, 12")
    make_srd(a, S_KSC, 44, S_T2, 4096)
    make_srd(a, S_KZ, 46, S_T2, 4096)
    a(f"v_lshlrev_b32 v{PP.ksc}, 1, v{PP.krr}")
    k_scale_loads(a, PP, 68, SC0)
    a(f"s_lshl_b32 s{S_T2}, s{S_HEAD}, 12")
    make_srd(a, S_VSC, 50, S_T2, 4096)
    make_srd(a, S_VZ, 52, S_T2, 4096)
    a(f"v_lshlrev_b32 v{PP.vsc}, 3, v3")
    a("s_branch L_i0_done")
    a.label("L_B_i0")
    v_raw_loads(a, PP, X, 69, 70)
    a(f"s_lshl_b32 s{S_T2}, s{S_HEAD}, 12")
    make_srd(a, S_VSC, 50, S_T2, 4096)
    make_srd(a, S_VZ, 52, S_T2, 4096)
    a(f"v_lshlrev_b32 v{PP.vsc}, 3, v3")
    v_scale_loads(a, PP, SC0, 69)
    a(f"s_lshl_b32 s{S_T2}, s{S_HEAD}, 12")
    make_srd(a, S_KSC, 44, S_T2, 4096)
    make_srd(a, S_KZ, 46, S_T2, 4096)
    a(f"v_lshlrev_b32 v{PP.ksc}, 1, v{PP.krr}")
    a.label("L_i0_done")
    a("s_mov_b32 s41, 4096")
    for it in range(4):
        so = "0" if it < 2 else "s41"
        io = (it & 1) * 2048
        b = QD + 8 * it
        a(f"buffer_load_dwordx4 v[{b}:{b+3}], v{V_QOFF}, s[{S_QSRD}:{S_QSRD+3}], {so} offen offset:{io}")
        a(f"buffer_load_dwordx4 v[{b+4}:{b+7}], v{V_QOFF}, s[{S_QSRD}:{S_QSRD+3}], {so} offen offset:{io+256}")
    a(f"s_mov_b32 s{S_PK}, s68"); a(f"s_mov_b32 s{S_PT}, s69"); a(f"s_mov_b32 s{S_PW}, s70")
    task_params(a, 1, S_PK2, S_PT2, S_PW2)
    task_params(a, 2, 68, 69, 70)
    task_params(a, 3, 46, 47, 48)
    a(f"v_mov_b32 v{V_ZERO}, 0")
    isB("L_B_sc")
    v_scale_loads(a, PP, SC1, S_PT2); k_scale_loads(a, PP, 68, SC2); v_scale_loads(a, PP, SC3, 47)
    a("s_branch L_sc_done")
    a.label("L_B_sc")
    k_scale_loads(a, PP, S_PK2, SC1); v_scale_loads(a, PP, SC2, 69); k_scale_loads(a, PP, 46, SC3)
    a.label("L_sc_done")
    NSA, NSB = 10, 8
    a(f"s_mov_b32 s{S_DBG}, s64"); a(f"s_mov_b32 s{S_DBG+1}, s65")
    a(f"s_or_b32 s{S_T0}, s{S_HEAD}, s{S_J}")
    a(f"s_or_b32 s{S_T0}, s{S_T0}, s{S_W}")
    a(f"s_cmp_lg_u32 s{S_T0}, 0")
    a("s_cbranch_scc1 L_nononce")
    a("s_memrealtime s[100:101]")
    a("s_waitcnt lgkmcnt(0)")
    a("s_lshl_b32 s100, s100, 3")
    a("s_or_b32 s100, s100, 0x80000000")
    a("s_and_b32 s100, s100, 0xfffffff8")
    a(f"v_mov_b32 v{VJ}, s100")
    a("s_mov_b64 exec, 1")
    a(f"global_store_dword v{V_ZERO}, v{VJ}, s[{S_DBG}:{S_DBG+1}] sc1")
    a("s_mov_b64 exec, -1")
    a.label("L_nononce")
    a(f"global_load_dword v{V_NON}, v{V_ZERO}, s[{S_DBG}:{S_DBG+1}] sc1")
    def issue(kind_for_A, buf, pk, pt, pw, tag):
        isB(f"L_B_{tag}")
        (k_raw_loads(a, PP, buf, pk) if kind_for_A == "K" else v_raw_loads(a, PP, buf, pt, pw))
        a(f"s_branch L_{tag}_done")
        a.label(f"L_B_{tag}")
        (v_raw_loads(a, PP, buf, pt, pw) if kind_for_A == "K" else k_raw_loads(a, PP, buf, pk))
        a.label(f"L_{tag}_done")
    def comp(kind_for_A, buf, sc, pk, pt, pw, tag):
        isB(f"L_B_{tag}")
        (k_compute(a, PP, buf, sc, WK, TT, pk) if kind_for_A == "K" else v_compute(a, PP, buf, sc, TT, pt, pw))
        a(f"s_branch L_{tag}_done")
        a.label(f"L_B_{tag}")
        (v_compute(a, PP, buf, sc, TT, pt, pw) if kind_for_A == "K" else k_compute(a, PP, buf, sc, WK, TT, pk))
        a.label(f"L_{tag}_done")
    if opt.r1early:
        issue("V", Y, S_PK2, S_PT2, S_PW2, "i1")
    NR1 = 8 if opt.r1early else 0
    a(f"s_mov_b32 s{S_MASK}, 0xffff0000")
    a(f"s_mov_b32 s{S_C}, 0x{f32bits(math.log2(math.e)/16.0):08x}")
    a(f"s_and_b32 s{S_ROT}, s{S_J}, 3")
    a(f"s_lshl_b32 s{S_T0}, s{S_HEAD}, 20")
    make_srd(a, S_KSRD, 66, S_T0, 0x100000)
    a(f"s_add_u32 s{S_T1}, s{S_T0}, 0x800000")
    make_srd(a, S_VSRD, 66, S_T1, 0x100000)
    a(f"s_add_u32 s{S_FLG}, s66, 0x1000000")
    a(f"s_addc_u32 s{S_FLG+1}, s67, 0")
    if opt.stamp:
        a(f"s_mov_b32 s{S_STW}, s66"); a(f"s_mov_b32 s{S_STW+1}, s67")
    a(f"s_lshl_b32 s{S_T0}, s{S_J}, 6")
    a(f"v_add_u32 v{QPOS}, s{S_T0}, v4")
    a(f"v_cvt_f32_u32 v{QPOS}, v{QPOS}")
    a(f"v_and_b32 v{TT}, 7, v0"); a(f"v_lshlrev_b32 v{TT}, 3, v{TT}"); a(f"v_cvt_f32_u32 v{TT}, v{TT}")
    a(f"v_lshlrev_b32 v{TT+1}, 3, v2"); a(f"v_cvt_f32_u32 v{TT+1}, v{TT+1}")
    freq_consts(a, WK, 16, TT, [64 * (k >> 3) + (k & 7) for k in range(16)])
    freq_consts(a, WQ, 8, TT + 1, list(range(8)))
    a(f"v_mul_u32_u24 v{V_QW}, {8*QFS}, v1")
    a(f"v_lshrrev_b32 v{TT}, 2, v2")
    a(f"v_mul_u32_u24 v{TT}, {QFS}, v{TT}")
    a(f"v_add_u32 v{V_QW}, v{V_QW}, v{TT}")
    a(f"v_and_b32 v{TT}, 3, v2")
    a(f"v_mul_u32_u24 v{TT}, {QGS}, v{TT}")
    a(f"v_add_u32 v{V_QW}, v{V_QW}, v{TT}")
    a(f"v_lshl_add_u32 v{V_QW}, v3, 4, v{V_QW}")
    a(f"v_mul_u32_u24 v{V_QR}, {QGS}, v3")
    a(f"v_lshl_add_u32 v{V_QR}, v2, 4, v{V_QR}")
    for r in range(64):
        a(f"v_accvgpr_write_b32 a{A_O+r}, 0")
    a(f"s_waitcnt vmcnt({8 + NSB + 1 + NR1})")
    st()
    comp("K", X, SC0, S_PK, S_PT, S_PW, "c0")
    if not opt.r1early:
        issue("V", Y, S_PK2, S_PT2, S_PW2, "i1")
    st(level=2)
    a(f"s_waitcnt vmcnt(12)")
    def rope_it(it):
        if it:
            a(f"v_add_f32 v{QPOS}, 4.0, v{QPOS}")
        o = rope_q(a, QD + 8 * it, TT, QPOS, WQ)
        a(f"ds_write_b128 v{V_QW}, v[{o}:{o+3}] offset:{it*64}")
        a(f"ds_write_b128 v{V_QW}, v[{o+4}:{o+7}] offset:{it*64 + 4*QFS}")
    for it in range(opt.rope_first):
        rope_it(it)
    st(level=2)
    a(f"s_waitcnt vmcnt({0 if opt.r1early else 8})")
    st(level=2)
    a(f"v_readfirstlane_b32 s{S_NONCE}, v{V_NON}")
    a(f"s_cmp_lg_u32 s{S_NONCE}, 0")
    a("s_cbranch_scc1 L_have_nonce")
    a(f"s_mov_b32 s{S_SPIN}, 0")
    a.label("L_nonce_spin")
    a(f"global_load_dword v{V_NON}, v{V_ZERO}, s[{S_DBG}:{S_DBG+1}] sc1")
    a("s_waitcnt vmcnt(0)")
    a(f"v_readfirstlane_b32 s{S_NONCE}, v{V_NON}")
    a(f"s_add_u32 s{S_SPIN}, s{S_SPIN}, 1")
    a(f"s_cmp_ge_u32 s{S_SPIN}, 0x8000")
    a("s_cbranch_scc1 L_have_nonce")
    a(f"s_cmp_eq_u32 s{S_NONCE}, 0")
    a("s_cbranch_scc1 L_nonce_spin")
    a.label("L_have_nonce")
    a("s_waitcnt lgkmcnt(0)")
    a("s_barrier")
    publish(a, 1, "L_pub1", VJ)
    st()
    if opt.rope_first < 4:
        for it in range(opt.rope_first, 4):
            rope_it(it)
        a("s_waitcnt lgkmcnt(0)")
        a("s_barrier")
    for qb in range(4):
        for s in range(8):
            b = A_Q + (qb * 8 + s) * 4
            a(f"ds_read_b128 a[{b}:{b+3}], v{V_QR} offset:{(qb*8+s)*QFS}")
    a(f"s_waitcnt vmcnt({1 if opt.r1early else 0})")
    comp("V", Y, SC1, S_PK2, S_PT2, S_PW2, "c1")
    a("s_waitcnt lgkmcnt(0)")
    a(f"v_and_b32 v{TT}, 63, v0")
    a(f"v_lshrrev_b32 v{TT+1}, 6, v0")
    a(f"v_and_b32 v{V_FADDR}, 31, v0")
    a(f"s_lshl_b32 s{S_T0}, s{S_HEAD}, 5")
    a(f"v_add_u32 v{V_FADDR}, s{S_T0}, v{V_FADDR}")
    a(f"v_lshlrev_b32 v{V_FADDR}, 7, v{V_FADDR}")
    flag_load(a)
    a(f"v_lshlrev_b32 v{TT+2}, 4, v{TT}")
    a(f"v_add_u32 v{TT+3}, {LDS_P}, v{TT+2}")
    for t in range(1, 4):
        a(f"v_add_u32 v{TT+4}, {t}, v{TT+1}")
        a(f"v_and_b32 v{TT+4}, 3, v{TT+4}")
        a(f"v_lshl_add_u32 v{V_PR+t-1}, v{TT+4}, 12, v{TT+3}")
    a(f"v_lshl_add_u32 v{V_PW}, v{TT+1}, 12, v{TT+3}")
    a(f"v_lshl_add_u32 v{V_OFF}, v{TT+1}, 14, v{TT+2}")
    for k in range(1, 4):
        a(f"v_add_u32 v{V_OFF+k}, {4096*k}, v{V_OFF}")
    for r in range(4):
        a(f"v_mov_b32 v{V_L+r}, 0")
    a(f"s_mov_b32 s{S_FMASK}, 0x222")
    set_need(a, 1)
    a(f"v_lshlrev_b32 v{TT+6}, 4, v{TT}")
    for k in range(4):
        a(f"ds_write_b128 v{TT+6}, v[{WK+4*k}:{WK+4*k+3}] offset:{LDS_WK+k*1024}")
    a(f"s_mul_i32 s{S_T1}, s{S_W}, 4096")
    a(f"s_add_u32 s{S_T1}, s{S_T1}, {LDS_SC}")
    a(f"v_add_u32 v{TT+6}, s{S_T1}, v{TT+6}")
    a(f"ds_write_b128 v{TT+6}, v[{SC2}:{SC2+3}]")
    a(f"ds_write_b128 v{TT+6}, v[{SC2+4}:{SC2+7}] offset:1024")
    a(f"ds_write_b128 v{TT+6}, v[{SC3}:{SC3+3}] offset:2048")
    a(f"ds_write_b128 v{TT+6}, v[{SC3+4}:{SC3+7}] offset:3072")
    if opt.ng2 == 3:
        a(f"s_mul_i32 s{S_T0}, s{S_J}, 43")
        a(f"s_lshr_b32 s{S_T0}, s{S_T0}, 7")
        a(f"s_mul_i32 s{S_T0}, s{S_T0}, 3")
        a(f"s_sub_u32 s{S_G}, s{S_J}, s{S_T0}")
    else:
        a(f"s_lshr_b32 s{S_G}, s{S_J}, 2")
        a(f"s_and_b32 s{S_G}, s{S_G}, 1")
    a(f"s_and_b32 s{S_G+1}, s{S_J}, 3")
    a(f"s_add_u32 s{S_G+1}, s{S_G+1}, {opt.r3base - 1}")
    a(f"s_lshl_b32 s{S_HMASK}, 0xe, s{S_G}")
    a(f"s_lshl_b32 s{S_T0}, 0xe, s{S_G+1}")
    a(f"s_or_b32 s{S_HMASK}, s{S_HMASK}, s{S_T0}")
    a(f"s_or_b32 s{S_HMASK}, s{S_HMASK}, 0x444")
    a("s_waitcnt vmcnt(0)")
    flag_check(a)
    a("s_nop 4")
    a("s_cbranch_vccz L_chk_r0_ok")
    spin(a, "r0")
    a.label("L_chk_r0_ok")
    st()
    a(f"s_lshl_b32 s{S_KOFF}, s{S_ROT}, 16")
    a(f"s_mov_b32 s{S_VOFF}, s{S_KOFF}")
    a(f"s_mov_b32 s{S_KUSE}, s{S_KOFF}")
    pro = [kload(0, f, S_KUSE) for f in range(16)]
    if opt.k1o:
        a(f"s_add_u32 s{S_T0}, s{S_ROT}, 1")
        a(f"s_and_b32 s{S_T0}, s{S_T0}, 3")
        a(f"s_lshl_b32 s{S_T4}, s{S_T0}, 16")
        for f in range(16):
            pro.append(I_vm(f"buffer_load_dwordx4 v[{K1V+4*f}:{K1V+4*f+3}], v{V_OFF+(f>>2)}, s[{S_KSRD}:{S_KSRD+3}], s{S_T4} offen offset:{(f&3)*1024}{gen2.LDFLAGS}", ("K", 1, f)))
    for it in pro:
        a(it.text)
    a("s_waitcnt lgkmcnt(0)")
    st()
    endbar = [I_wlds("all"), I_raw("s_barrier")]
    mf = []
    for t in range(2):
        S = V_S + 32 * t
        for kb in range(2):
            for qb in range(4):
                for sx in range(8):
                    f = kb * 8 + sx
                    d = f"v[{S+(kb*4+qb)*4}:{S+(kb*4+qb)*4+3}]"
                    c = "0" if sx == 0 else d
                    pre_ = [I_wvm(("K", t, kb * 8 + 7))] if (qb == 0 and sx == 0) else []
                    A = f"a[{A_K+4*f}:{A_K+4*f+3}]" if t == 0 else f"v[{K1V+4*f}:{K1V+4*f+3}]"
                    mf.append([pre_, I_mfma(f"{MF} {d}, {A}, a[{A_Q+(qb*8+sx)*4}:{A_Q+(qb*8+sx)*4+3}], {c}"), []])
    for j in range(16):
        mf[28 + 4 * j if j < 8 else 64 + 4 * (j - 8)][2].append(kload(2, j, S_KUSE))
    for j in range(9):
        mf[92 + 4 * j][2].append(vload(0, j, S_VOFF))
    class O2: pass
    o2 = O2(); o2.__dict__.update(opt.__dict__); o2.sm_g0 = 68; o2.sm_g1 = 124; o2.pace = 0
    head0 = [I_salu(f"s_mov_b32 s{S_I}, 0")] + tile_off(S_KUSE, 2, S_T4)
    pre = schedule(mf, head0, [], softmax_stream(0, opt), 64, o2)
    it0 = [I_raw(f"s_waitcnt vmcnt({29 - 8 if opt.latepub else 25 - 8})") if False else I_raw("s_nop 0")] + endbar + [I_salu(f"s_mov_b32 s{S_I}, 1")]
    blocks = [("pro", pro + []), ("pre", pre), ("it0", it0)]
    stat = {}
    for i in range(1, 15):
        items = build_iter(i, opt) + [I_salu(f"s_add_u32 s{S_I}, s{S_I}, 1")] + endbar
        nm = "odd" if i % 2 else "even"
        blocks.append((nm, items))
        if nm not in stat: stat[nm] = items
        else: assert [x.text for x in stat[nm]] == [x.text for x in items], nm
    it15 = build_iter(15, opt)
    V_LW, V_LR, V_OUT = 231, 232, 233
    LRREG = V_LR
    red = [I_valu(f"v_and_b32 v224, 15, v0"), I_valu(f"v_lshrrev_b32 v225, 6, v0"), I_valu(f"v_bfe_u32 v226, v0, 4, 2"),
           I_valu(f"v_lshlrev_b32 v{V_LR}, 4, v224"), I_valu(f"v_add_u32 v{V_LR}, {LDS_L}, v{V_LR}"),
           I_valu(f"v_lshl_add_u32 v{V_LW}, v225, 2, v{V_LR}"), I_valu(f"v_lshlrev_b32 v{V_OUT}, 9, v224"),
           I_valu(f"v_lshl_add_u32 v{V_OUT}, v225, 7, v{V_OUT}"),
           I_valu(f"v_lshl_add_u32 v{V_OUT+1}, v226, 5, v{V_OUT}"),
           I_valu(f"v_lshl_add_u32 v{V_OUT}, v226, {4 if opt.wide_out else 5}, v{V_OUT}")]
    for qb in range(4): red.append(I_valu(f"v_mov_b32 v{T+qb}, v{V_L+qb}"))
    red.append(I_raw("s_nop 1"))
    for qb in range(4): red.append(I_valu(f"v_permlane32_swap_b32 v{T+qb}, v{V_L+qb}"))
    red.append(I_raw("s_nop 1"))
    for qb in range(4): red.append(I_valu(f"v_add_f32 v{V_L+qb}, v{V_L+qb}, v{T+qb}"))
    for qb in range(4): red.append(I_valu(f"v_mov_b32 v{T+qb}, v{V_L+qb}"))
    red.append(I_raw("s_nop 1"))
    for qb in range(4): red.append(I_valu(f"v_permlane16_swap_b32 v{T+qb}, v{V_L+qb}"))
    red.append(I_raw("s_nop 1"))
    for qb in range(4): red.append(I_valu(f"v_add_f32 v{V_L+qb}, v{V_L+qb}, v{T+qb}"))
    for qb in range(4): red.append(I_lds(f"ds_write_b32 v{V_LW}, v{V_L+qb} offset:{qb*256}", ("LW", qb)))
    it15 += red + endbar
    blocks.append(("it15", it15))
    it16 = build_last(opt, T, V_OUT)
    blocks.append(("it16", it16))
    waits = resolve_waits(blocks)
    emit_block(a, "pre", pre, waits)
    if opt.stamp == 5: st()
    emit_block(a, "it0", it0, waits)
    publish(a, 2, "L_pub2", 158)
    def hook_site(name):
        a(f"s_bitcmp1_b32 s{S_HMASK}, s{S_I}")
        a(f"s_cbranch_scc0 L_nohook_{name}")
        a(f"s_call_b64 s[{S_RET}:{S_RET+1}], L_hook")
        a.label(f"L_nohook_{name}")
    hook_site("it0")
    st()
    a.label("L_loop")
    base = st.n
    emit_block(a, "odd", stat["odd"], waits)
    if opt.stamp == 4: st.dyn(2, base - 4, 9)
    hook_site("odd")
    if opt.stamp == 3: st.dyn(1, base - 2, 15)
    if opt.stamp == 4: st.dyn(2, base - 3, 9)
    emit_block(a, "even", stat["even"], waits)
    if opt.stamp == 4: st.dyn(2, base - 4, 9)
    hook_site("even")
    if opt.stamp == 3:
        st.dyn(1, base - 2, 15); st.n = base + 14
    if opt.stamp == 4:
        st.dyn(2, base - 3, 9); st.n = base + 16
    a(f"s_cmp_lt_u32 s{S_I}, 15")
    a("s_cbranch_scc1 L_loop")
    if opt.stamp in (1, 2): st()
    emit_block(a, "it15", it15, waits)
    emit_block(a, "it16", it16, waits)
    if opt.stamp:
        a("s_waitcnt vmcnt(0)")
        st(force=True)
        st.finish()
    if opt.dbgspan:
        a("s_waitcnt vmcnt(0)")
        a("s_memrealtime s[72:73]")
        a("s_waitcnt lgkmcnt(0)")
        a("v_mov_b32 v16, 8"); a("v_mov_b32 v17, s98"); a("v_mov_b32 v18, 12"); a("v_mov_b32 v19, s72")
        a("s_mov_b64 exec, 1")
        a(f"global_atomic_umax v16, v17, s[{S_DBG}:{S_DBG+1}]")
        a(f"global_atomic_umax v18, v19, s[{S_DBG}:{S_DBG+1}]")
        a("s_waitcnt vmcnt(0)")
    a("s_endpgm")
    H = RM(); H.krr, H.kraw, H.kst, H.vraw, H.vst = 156, 158, 157, 158, 157
    H = RM(); H.krr, H.kraw, H.kst, H.vraw, H.vst = 156, 158, 157, 158, 157
    a.label("L_hook")
    a(f"s_and_b32 s{S_T0}, s{S_I}, 3")
    a(f"s_cmp_lg_u32 s{S_T0}, 2")
    a("s_cbranch_scc1 L_hook_d")
    a(f"s_lshr_b32 s{S_T0}, s{S_I}, 2")
    a(f"s_add_u32 s{S_T0}, s{S_T0}, 2")
    a(f"s_add_u32 s{S_NEED}, s{S_NONCE}, s{S_T0}")
    a(f"s_sub_u32 s{S_RANGE}, 4, s{S_T0}")
    nyoung = sum(1 for j in range(16) if 28 + 4 * j > opt.flag_gap) + sum(1 for j in range(9) if 92 + 4 * j > opt.flag_gap)
    a(f"s_waitcnt vmcnt({nyoung})")
    flag_check(a)
    a("s_nop 4")
    a(f"s_cbranch_vccz L_hook_d")
    spin(a, "hk")
    a.label("L_hook_d")
    a(f"s_sub_u32 s{S_T3}, s{S_I}, s{S_G}")
    a(f"s_mov_b32 s{S_T4}, 0")
    a(f"s_cmp_le_u32 s{S_T3}, 3"); a("s_cbranch_scc1 L_h_act")
    a.label("L_h_ph2")
    a(f"s_sub_u32 s{S_T3}, s{S_I}, s{S_G+1}")
    a(f"s_mov_b32 s{S_T4}, 1")
    a(f"s_sub_u32 s{S_T0}, s{S_T3}, 1")
    a(f"s_cmp_le_u32 s{S_T0}, 2"); a("s_cbranch_scc0 L_hook_ret")
    a.label("L_h_act")
    a(f"s_cmp_eq_u32 s{S_T3}, 1"); a("s_cbranch_scc1 L_h_issue")
    a(f"s_cmp_eq_u32 s{S_T3}, 2"); a("s_cbranch_scc1 L_h_comp")
    a(f"s_cmp_eq_u32 s{S_T3}, 3"); a("s_cbranch_scc0 L_h_next")
    a(f"s_cmp_lg_u32 s{S_W}, 0")
    a(f"s_cbranch_scc1 L_h_next")
    a(f"s_mov_b64 exec, 1")
    a(f"s_add_u32 s{S_T1}, s{S_NONCE}, 3")
    a(f"s_add_u32 s{S_T1}, s{S_T1}, s{S_T4}")
    a(f"v_mov_b32 v158, s{S_T1}")
    a(f"s_lshl_b32 s{S_T0}, s{S_HEAD}, 5")
    a(f"s_add_u32 s{S_T0}, s{S_T0}, s{S_J}")
    a(f"s_lshl_b32 s{S_T0}, s{S_T0}, 7")
    a(f"v_mov_b32 v159, s{S_T0}")
    a(f"global_store_dword v159, v158, s[{S_FLG}:{S_FLG+1}] sc1")
    a(f"s_mov_b64 exec, -1")
    a("s_branch L_h_next")
    a.label("L_h_issue")
    a(f"s_lshr_b32 s{S_T0}, s{S_W}, 1")
    a(f"s_xor_b32 s{S_T0}, s{S_T0}, s{S_T4}")
    a(f"s_cmp_eq_u32 s{S_T0}, 1"); a("s_cbranch_scc1 L_h_issueV")
    a(f"s_cmp_eq_u32 s{S_T4}, 0")
    a(f"s_cselect_b32 s{S_T2}, s68, s46")
    task_addr(a, H, 140, v=False)
    k_raw_loads(a, H, 224, S_T2)
    a("s_branch L_h_next")
    a.label("L_h_issueV")
    a(f"s_cmp_eq_u32 s{S_T4}, 0")
    a(f"s_cselect_b32 s{S_T2}, s69, s47")
    a(f"s_cselect_b32 s{S_SPIN}, s70, s48")
    task_addr(a, H, 140, k=False)
    v_raw_loads(a, H, 224, S_T2, S_SPIN)
    a("s_branch L_h_next")
    a.label("L_h_comp")
    a(f"v_and_b32 v142, 63, v0")
    a(f"v_lshlrev_b32 v143, 4, v142")
    a(f"s_mul_i32 s{S_T1}, s{S_W}, 4096")
    a(f"s_add_u32 s{S_T1}, s{S_T1}, {LDS_SC}")
    a(f"s_lshl_b32 s{S_T0}, s{S_T4}, 11")
    a(f"s_add_u32 s{S_T1}, s{S_T1}, s{S_T0}")
    a(f"v_add_u32 v142, s{S_T1}, v143")
    a(f"s_lshr_b32 s{S_T0}, s{S_W}, 1")
    a(f"s_xor_b32 s{S_T0}, s{S_T0}, s{S_T4}")
    a(f"s_cmp_eq_u32 s{S_T0}, 1"); a("s_cbranch_scc1 L_h_compV")
    for k in range(4):
        a(f"ds_read_b128 v[{112+4*k}:{115+4*k}], v143 offset:{LDS_WK+k*1024}")
    a(f"ds_read_b64 v[128:129], v142")
    a(f"s_cmp_eq_u32 s{S_T4}, 0")
    a(f"s_cselect_b32 s{S_NEED}, s68, s46")
    task_addr(a, H, 140, v=False)
    a("s_waitcnt lgkmcnt(0)")
    a(f"s_mov_b32 s{S_RANGE}, s{S_T4}")
    k_compute(a, H, 224, 128, 112, 130, S_NEED)
    a(f"s_mov_b32 s{S_T4}, s{S_RANGE}")
    a("s_branch L_h_next")
    a.label("L_h_compV")
    a(f"ds_read_b128 v[112:115], v142")
    a(f"ds_read_b128 v[116:119], v142 offset:1024")
    a(f"s_cmp_eq_u32 s{S_T4}, 0")
    a(f"s_cselect_b32 s{S_NEED}, s69, s47")
    a(f"s_cselect_b32 s{S_SPIN}, s70, s48")
    task_addr(a, H, 140, k=False)
    a("s_waitcnt lgkmcnt(0)")
    v_compute(a, H, 224, 112, 120, S_NEED, S_SPIN)
    a.label("L_h_next")
    a(f"s_cmp_eq_u32 s{S_T4}, 0"); a("s_cbranch_scc1 L_h_ph2")
    a.label("L_hook_ret")
    a(f"s_setpc_b64 s[{S_RET}:{S_RET+1}]")
    gen_slow(a, opt, T, V_LW, V_LR, V_OUT + 1)
    a.label("L_done")
    a("s_endpgm")
    a.label("L_code_end")

DOC = """;
"""

def main():
    global OUTF
    ap = argparse.ArgumentParser()
    ap.add_argument("-o", default=f"cdna_kernels/{NAME}.s")
    ap.add_argument("--stamp", type=int, default=0)
    ap.add_argument("--wgrp", type=int, default=4)
    ap.add_argument("--kgrp", type=int, default=8)
    ap.add_argument("--spread", type=int, default=1)
    ap.add_argument("--cap", type=int, default=2)
    ap.add_argument("--pace", type=int, default=1)
    ap.add_argument("--read_spread", type=int, default=1)
    ap.add_argument("--sm_g0", type=int, default=0)
    ap.add_argument("--sm_g1", type=int, default=117)
    ap.add_argument("--ldflags", default="sc1")
    ap.add_argument("--outflags", default="sc1")
    ap.add_argument("--empty", type=int, default=0)
    ap.add_argument("--dbgspan", type=int, default=0)
    ap.add_argument("--codepf", type=int, default=1)
    ap.add_argument("--r1early", type=int, default=1)
    ap.add_argument("--k1o", type=int, default=1)
    ap.add_argument("--r3base", type=int, default=4)
    ap.add_argument("--ng2", type=int, default=3)
    ap.add_argument("--wide_out", type=int, default=1)
    ap.add_argument("--latepub", type=int, default=1)
    ap.add_argument("--pretouch", type=int, default=1)
    ap.add_argument("--rope_first", type=int, default=4)
    ap.add_argument("--prefetch", type=int, default=0)
    ap.add_argument("--flag_gap", type=int, default=57)
    ap.add_argument("--ngroups", type=int, default=6)
    opt = ap.parse_args()
    OUTF = (" " + opt.outflags.replace("+", " ")) if opt.outflags else ""
    gen2.LDFLAGS = (" " + opt.ldflags.replace("+", " ")) if opt.ldflags else ""
    out = header()
    out += f"; @launch grid=(256,1,1) block=(256,1,1) lds={LDS_TOTAL}\n"
    out += DOC
    out += '.amdgcn_target "amdgcn-amd-amdhsa--gfx950"\n.text\n'
    a = EA()
    gen_fused(a, opt)
    out += f".globl {KNAME}\n.p2align 8\n.type {KNAME},@function\n" + a.text()
    out += kd(KNAME, 512, 102, 256)
    open(opt.o, "w").write(out)

if __name__ == "__main__":
    main()
```
